```python
import torch

def _softmax(x, axis=-1):
    return torch.softmax(x, dim=axis)

def _gelu(x):
    return torch.nn.functional.gelu(x, approximate='tanh')

def _silu(x):
    return torch.nn.functional.silu(x)

def _sigmoid(x):
    return torch.sigmoid(x)

def _layernorm(x, axis=-1, eps=1e-05):
    m = x.mean(dim=axis, keepdim=True)
    v = x.var(dim=axis, keepdim=True, unbiased=False)
    return (x - m) / torch.sqrt(v + eps)

def _scatter_add(tgt, idx, src, axis=0):
    return tgt.clone().index_add_(axis, idx, src)

def _segment_sum(src, seg, n):
    out = torch.zeros((n,) + src.shape[1:], dtype=src.dtype)
    return out.index_add_(0, seg, src)

def _pad(x, pw):
    flat = tuple((v for pair in reversed(pw) for v in pair))
    return torch.nn.functional.pad(x, flat)
kernel_name = 'gated_mix__linear_attn_block__memory_aug_recurrent_mem_tr__prompt'

def setup_inputs():

    _w = lambda a: (lambda t: t.to(torch.bfloat16) if t.is_floating_point() else t)(torch.as_tensor(a))

    def _A_setup():
        B, S, D = (1, 2048, 640)
        return {'x': _w((lambda *s: torch.randn(*s, dtype=torch.bfloat16) * 0.05)(B, S, D)), 'wqkv': _w((lambda *s: torch.randn(*s, dtype=torch.bfloat16) * 1.6)(D, 3 * D)), 'wo': _w((lambda *s: torch.randn(*s, dtype=torch.bfloat16) * 0.1)(D, D))}
    _A_in = _A_setup()

    def _B_setup():
        B, S, Dm = (1, 2048, 640)
        H, Dh = (32, 192)
        M, seg = (8, 32)
        seg = min(seg, S)
        S = S // seg * seg
        return {'x': _w((lambda *s: torch.randn(*s, dtype=torch.bfloat16) * 0.05)(B, S, Dm)), 'mem0': _w((lambda *s: torch.randn(*s, dtype=torch.bfloat16) * 0.8)(B, M, Dm)), 'Wq': _w((lambda *s: torch.randn(*s, dtype=torch.bfloat16) * 3.2)(Dm, H, Dh) * Dm ** (-0.5)), 'Wk': _w((lambda *s: torch.randn(*s, dtype=torch.bfloat16) * 3.2)(Dm, H, Dh) * Dm ** (-0.5)), 'Wv': _w((lambda *s: torch.randn(*s, dtype=torch.bfloat16) * 0.8)(Dm, H, Dh) * Dm ** (-0.5)), 'Wo': _w((lambda *s: torch.randn(*s, dtype=torch.bfloat16) * 0.8)(H, Dh, Dm) * (H * Dh) ** (-0.5)), 'seg_len': seg}
    _B_in = _B_setup()
    return {'A_x': _A_in['x'], 'A_wqkv': _A_in['wqkv'], 'A_wo': _A_in['wo'], 'B_x': _B_in['x'], 'B_mem0': _B_in['mem0'], 'B_Wq': _B_in['Wq'], 'B_Wk': _B_in['Wk'], 'B_Wv': _B_in['Wv'], 'B_Wo': _B_in['Wo'], 'B_seg_len': _B_in['seg_len'], 'gate_w': _w((lambda *s: torch.randn(*s, dtype=torch.bfloat16) * 0.05)(640) * 16.0)}

def reference(A_x, A_wqkv, A_wo, B_x, B_mem0, B_Wq, B_Wk, B_Wv, B_Wo, B_seg_len, gate_w):

    def _A_ref(x, wqkv, wo):
        B, S, D = x.shape
        H = 32
        Dh = D // H
        qkv = (lambda x, *d: x.permute(*d))((x @ wqkv).reshape(B, S, 3, H, Dh), 2, 0, 3, 1, 4)
        q, k, v = (qkv[0], qkv[1], qkv[2])
        phi = lambda t: torch.where(t > 0, t + 1, torch.exp(t)) + 1e-06
        pq, pk = (phi(q), phi(k))
        kv = torch.einsum('bhsd,bhse->bhde', pk, v)
        z = torch.einsum('bhsd->bhd', pk)
        num = torch.einsum('bhqd,bhde->bhqe', pq, kv)
        den = torch.einsum('bhqd,bhd->bhq', pq, z)[..., None] + 1e-06
        o = num / den
        return (lambda x, *d: x.permute(*d))(o, 0, 2, 1, 3).reshape(B, S, D) @ wo

    def _B_ref(x, mem0, Wq, Wk, Wv, Wo, seg_len):
        B, S, Dm = x.shape
        H, Dh = (Wq.shape[1], Wq.shape[2])
        M = mem0.shape[1]
        scale = Dh ** (-0.5)
        n_seg = S // seg_len
        L = M + seg_len
        idx = torch.arange(L)
        mask = (idx[:, None] < M) | (idx[:, None] >= idx[None, :])
        mem = mem0
        outs = []
        for s in range(n_seg):
            xs = x[:, s * seg_len:(s + 1) * seg_len, :].clone()
            h = torch.concatenate([mem, xs], axis=1)
            q = torch.einsum('btd,dhe->bhte', h, Wq)
            k = torch.einsum('btd,dhe->bhte', h, Wk)
            v = torch.einsum('btd,dhe->bhte', h, Wv)
            scores = torch.einsum('bhqe,bhke->bhqk', q, k) * scale
            scores = torch.where(mask[None, None], scores, -1000000000.0)
            p = _softmax(scores, axis=-1)
            o = torch.einsum('bhqk,bhke->bhqe', p, v)
            o = torch.einsum('bhte,hed->btd', o, Wo)
            mem = o[:, :M, :].clone()
            outs.append(o[:, M:, :])
        return torch.concatenate(outs, axis=1)
    x = A_x
    g = _sigmoid((x * gate_w).sum(-1, keepdims=True))
    a = _A_ref(x, A_wqkv, A_wo)
    b = _B_ref(x, B_mem0, B_Wq, B_Wk, B_Wv, B_Wo, B_seg_len)
    return g * a + (1 - g) * b
```

```python
class Asm:
    def __init__(self):
        self.lines = []
        self.uid = 0
    def __call__(self, s):
        for ln in s.strip('\n').split('\n'):
            ln = ln.strip()
            if not ln: continue
            if ln.endswith(':') and ' ' not in ln:
                self.lines.append(ln)
            else:
                self.lines.append('    ' + ln)
    def lab(self, base):
        self.uid += 1
        return f'L_{base}_{self.uid}'
    def nop(self, n):
        while n > 0:
            k = min(n, 16)
            self(f's_nop {k-1}')
            n -= k
    def text(self):
        return '\n'.join(self.lines) + '\n'

def vr(b, n=4): return f'v[{b}:{b+n-1}]' if n > 1 else f'v{b}'
def ar(b, n=4): return f'a[{b}:{b+n-1}]' if n > 1 else f'a{b}'
def sr(b, n=2): return f's[{b}:{b+n-1}]' if n > 1 else f's{b}'

def interleave(main, fill, per=1, start=0):
    out = []; fi = 0
    for i, m in enumerate(main):
        out.append(m)
        if i >= start:
            for _ in range(per):
                if fi < len(fill):
                    out.append(fill[fi]); fi += 1
    out.extend(fill[fi:])
    return out
```

```python
from asmb import *
from lay import *
from gen_rec import *

def common_entry(a):
    a(f"""s_load_dwordx16 s[8:23], s[0:1], 0
    s_load_dwordx8 s[24:31], s[0:1], 64
    s_load_dwordx4 s[32:35], s[0:1], 96
    s_getreg_b32 s{S_X}, hwreg(HW_REG_XCC_ID, 0, 3)
    v_lshrrev_b32 v1, 6, v0
    s_mov_b32 s{S_TO}, 0
    v_readfirstlane_b32 s{S_WAVE}, v1
    s_waitcnt lgkmcnt(0)
    s_add_u32 s{P_WS}, s{P_WS}, 0x1fffff
    s_addc_u32 s{P_WS+1}, s{P_WS+1}, 0
    s_and_b32 s{P_WS}, s{P_WS}, 0xffe00000""")
    srd(a, SRD_W, P_WS, WS_USED)
    srd(a, SRD_D, P_DBG, 256)
    lab = a.lab('tk')
    a(f"""v_mov_b32 v1, 0
    s_cmp_lg_u32 s{S_WAVE}, 0
    s_cbranch_scc1 {lab}
    s_lshl_b32 s{S_J}, s{S_X}, 5
    v_mov_b32 v2, s{S_J}
    v_mov_b32 v3, 1
    s_mov_b64 exec, 1
    buffer_atomic_add v3, v2, s[{SRD_D}:{SRD_D+3}], 0 offen offset:{DBG_TICK} sc0 sc1
    s_waitcnt vmcnt(0)
    ds_write_b32 v1, v3
    s_mov_b64 exec, -1
    s_waitcnt lgkmcnt(0)
    {lab}:
    s_barrier
    ds_read_b32 v2, v1
    s_waitcnt lgkmcnt(0)
    v_readfirstlane_b32 s{S_J}, v2
    s_barrier
    s_cmp_ge_u32 s{S_J}, 32
    s_cbranch_scc1 L_exit""")

def calibrate(a, nsamp=8):
    a(f"""v_mbcnt_lo_u32_b32 v11, -1, 0
    v_mbcnt_hi_u32_b32 v11, -1, v11
    v_and_b32 v12, 31, v11
    v_lshlrev_b32 v12, 8, v12
    v_lshrrev_b32 v13, 5, v11
    v_lshl_add_u32 v12, v13, 13, v12
    s_mov_b32 s86, {CAL_OFF}""")
    a(W('store_dword', 'v11', 12, f's86', 0, 'sc1'))
    a(f"""s_waitcnt vmcnt(0)
    s_mov_b32 s80, -1
    s_mov_b32 s81, -1
    v_mov_b32 v12, 0""")
    for i in range(nsamp):
        for p in range(2):
            a(f"""s_mov_b32 s86, {CAL_OFF + 8192*p + 256*i}
            s_memtime s[82:83]
            s_waitcnt lgkmcnt(0)""")
            a(W('load_dword', 'v13', 12, f's86', 0, 'sc1'))
            a(f"""s_waitcnt vmcnt(0)
            s_memtime s[84:85]
            s_waitcnt lgkmcnt(0)
            s_sub_u32 s82, s84, s82
            s_min_u32 s{80+p}, s{80+p}, s82""")
    a(f"""s_cmp_lt_u32 s80, s81
    s_cselect_b32 s82, 2, 1
    v_mov_b32 v12, {DBG_PAR}
    v_mov_b32 v13, s82
    s_mov_b64 exec, 1
    buffer_store_dword v13, v12, s[{SRD_D}:{SRD_D+3}], 0 offen sc1
    s_mov_b64 exec, -1""")

KD = """
.section .rodata,"a"
.p2align 6
.amdhsa_kernel {name}
  .amdhsa_next_free_vgpr 512
  .amdhsa_next_free_sgpr 102
  .amdhsa_accum_offset 256
  .amdhsa_group_segment_fixed_size 0
  .amdhsa_kernarg_size 112
  .amdhsa_user_sgpr_count 2
  .amdhsa_user_sgpr_kernarg_segment_ptr 1
  .amdhsa_system_sgpr_workgroup_id_x 1
.end_amdhsa_kernel
"""
def head(name, lds):
    return f"""; @launch grid=(256,1,1) block=(256,1,1) lds={lds}
.amdgcn_target "amdgcn-amd-amdhsa--gfx950"
.text
.globl {name}
.p2align 8
.type {name},@function
{name}:
"""
import struct, math
def fbits(x): return '0x%08x' % struct.unpack('<I', struct.pack('<f', x))[0]
DEFP = dict(cexp=fbits(192**-0.5 * math.log2(math.e)), ninit=128, live=0, own_before=0, b2a=1, b2c=1, u_early=2, u_pre=4, spos_s=20, spos_o=22,
            sgap_s=0, sgap_o=8, sdepth=2, mdepth=2, mgap=24, yspread=1,
            sleep_g=7, nop_g=0, gdepth=3, ggap=48, dm=48,
            wait_k0=lambda: [], wait_k=lambda: [], wait_y=lambda w: [], wait_y0=lambda w: [], progress=lambda w: [], done=lambda: [], stamp=lambda i: '', dump=lambda a, w: '')
```

```python
from asmb import *
from lay import *
from gen_rec import (S_WAVE, S_X, S_J, S_STEP, S_TO, P_X, P_WQKV, P_WOA, P_WQ, P_WK, P_WV, P_WO, P_GATE, P_OUT,
                     SRD_W, SRD_A, SRD_B, SRD_D, TO_LIMIT, srd, W)
import struct, math
def fbits(x): return '0x%08x' % struct.unpack('<I', struct.pack('<f', x))[0]
OOB = 0xF0000000
sH, sI, sCol, sT0, sT1, sT2, sT3, sXo, sBufW, sBufR, sOut, sOutN, sEnd, sFl, sFv, sKn, sHave = range(52, 69)
sK, sKm, sGt, sWk, sCb, sY, sU, sP, sO, sB, sQt = range(69, 80)
sMask = 80
sC2 = 88
sEx = 90
vN, vG, vLn, vL16, vYp, vXs, vR0, vR1, vZ, vFa = range(0, 10)

def lanes(a):
    a(f"""v_and_b32 v{vLn}, 63, v0
    v_lshrrev_b32 v{vG}, 4, v{vLn}
    v_and_b32 v{vN}, 15, v{vLn}
    v_lshlrev_b32 v{vL16}, 4, v{vLn}
    v_lshrrev_b32 v10, 3, v{vN}
    v_lshlrev_b32 v10, 9, v10
    v_lshl_add_u32 v10, v{vG}, 7, v10
    v_and_b32 v11, 7, v{vN}
    v_lshl_add_u32 v{vYp}, v11, 4, v10
    v_mov_b32 v{vZ}, 0""")

def flag_addr(x, j):
    return FL_OFF + (32*x + j)*128

def set_flag(a, val, fl='sc1'):
    l = a.lab('sf')
    a(f"""s_cmp_lg_u32 s{S_WAVE}, 0
    s_cbranch_scc1 {l}
    v_mov_b32 v10, {val}
    s_mov_b64 exec, 1
    {W('store_dword', 'v10', vZ, f's{sFl}', 0, fl)}
    s_mov_b64 exec, -1
    {l}:""")

def wait_flags(a, va, so, thr, tmp=10, sleep=2):
    l = a.lab('wf')
    a(f"""s_branch {l}_go
    {l}:
    s_sleep {sleep}
    s_add_u32 s{S_TO}, s{S_TO}, 1
    s_cmp_gt_u32 s{S_TO}, {TO_LIMIT}
    s_cbranch_scc1 L_exit
    {l}_go:
    {W('load_dword', f'v{tmp}', va, so, 0, 'sc1')}
    s_waitcnt vmcnt(0)
    v_cmp_gt_u32 vcc, {thr}, v{tmp}
    s_cbranch_vccnz {l}""")

def wait_init(a, n):
    l = a.lab('wi')
    a(f"""v_mov_b32 v11, {DBG_INIT}
    s_branch {l}_go
    {l}:
    s_sleep 4
    s_add_u32 s{S_TO}, s{S_TO}, 1
    s_cmp_gt_u32 s{S_TO}, {TO_LIMIT}
    s_cbranch_scc1 L_exit
    {l}_go:
    buffer_load_dword v10, v11, s[{SRD_D}:{SRD_D+3}], 0 offen sc1
    s_waitcnt vmcnt(0)
    v_cmp_gt_u32 vcc, {n}, v10
    s_cbranch_vccnz {l}""")

def load_w(a, rstride, nblk, RC, nchunk, nbuf, mapt, ntile, pr0, dest, private=False, tv=16):
    csz = nblk*RC*128
    vS, vB, vT = tv, tv+1, tv+2
    tmp = tv+2+ntile
    a(f"""v_lshrrev_b32 v{tmp}, 3, v{vLn}
    v_mul_u32_u24 v{vS}, {rstride}, v{tmp}""")
    if mapt == 'A':
        a(f"""v_bfe_u32 v{tmp}, v{tmp}, 1, 1
        s_and_b32 s{sT0}, s{S_WAVE}, 1
        s_lshl_b32 s{sT0}, s{sT0}, 1
        v_add_u32 v{tmp}, s{sT0}, v{tmp}""")
    else:
        a(f'v_lshrrev_b32 v{tmp}, 1, v{tmp}')
    a(f"""v_lshlrev_b32 v{tmp}, 1, v{tmp}
    v_and_b32 v{tmp+1}, 7, v{vLn}
    v_xor_b32 v{tmp}, v{tmp}, v{tmp+1}
    v_lshl_add_u32 v{vS}, v{tmp}, 4, v{vS}
    v_lshrrev_b32 v{tmp}, 2, v{vN}
    v_lshl_add_u32 v{vB}, v{vG}, {3 if mapt == 'A' else 2}, v{tmp}
    v_lshlrev_b32 v{vB}, 7, v{vB}
    v_and_b32 v{tmp+1}, 3, v{vN}
    v_lshl_add_u32 v{vB}, v{tmp+1}, 3, v{vB}
    v_lshrrev_b32 v{tmp}, 1, v{tmp}
    v_and_b32 v{tmp+1}, 1, v{vG}
    v_lshl_add_u32 v{tmp}, v{tmp+1}, 1, v{tmp}""")
    if private:
        assert mapt == 'B' and nchunk == 1
        a(f's_mul_i32 s{sT3}, s{S_WAVE}, {csz}\ns_mov_b32 s{sT2}, s{sCol}\nv_add_u32 v{vB}, s{sT3}, v{vB}')
    else:
        a(f"""s_lshl_b32 s{sT3}, s{S_WAVE}, 10
        s_mul_i32 s{sT2}, s{S_WAVE}, {8*rstride}
        s_add_u32 s{sT2}, s{sT2}, s{sCol}""")
    for t in range(ntile):
        a(f"""s_add_u32 s{sT0}, {pr0}, {t}
        s_and_b32 s{sT1}, s{sT0}, 3
        s_lshr_b32 s{sT0}, s{sT0}, 2
        s_mul_i32 s{sT0}, s{sT0}, {RC*128}
        v_xor_b32 v{tmp+1}, s{sT1}, v{tmp}
        v_lshl_add_u32 v{tmp+1}, v{tmp+1}, 5, v{vB}
        v_add_u32 v{vT+t}, s{sT0}, v{tmp+1}""")
    nq = RC//8 if private else RC//32
    rsk = 8 if private else 32
    per = nblk*nq
    def issue(c):
        for q in range(nq):
            for b in range(nblk):
                a(f"""s_add_u32 m0, s{sT3}, {(c % nbuf)*csz + b*RC*128 + q*rsk*128}
                s_add_u32 s{sT0}, s{sT2}, {(c*RC + q*rsk)*rstride + b*128}
                buffer_load_dwordx4 v{vS}, s[{SRD_A}:{SRD_A+3}], s{sT0} offen lds""")
    assert per*min(nbuf, nchunk) <= 63
    for c in range(min(nbuf, nchunk)): issue(c)
    for c in range(nchunk):
        left = min(nchunk, c+nbuf) - c - 1
        a(f's_waitcnt vmcnt({per*left})')
        if not private: a('s_barrier')
        cnt = 0
        for t in range(ntile):
            a(f'v_add_u32 v{tmp+1+(t&1)}, {(c % nbuf)*csz}, v{vT+t}')
            for k in range(RC//32):
                for v in range(2):
                    off = (32*k + (4 if mapt == 'A' else 16)*v)*128
                    a(f'ds_read_b64_tr_b16 {dest(t, c*(RC//32)+k, v)}, v{tmp+1+(t&1)} offset:{off}')
                    cnt += 1
                    if cnt % 8 == 0: a('s_waitcnt lgkmcnt(6)')
        a('s_waitcnt lgkmcnt(0)')
        if not private: a('s_barrier')
        if c+nbuf < nchunk: issue(c+nbuf)

XBUF = 40960
FR = 16
AC = 48
EP = 96

def x_setup(a):
    srd(a, SRD_B, P_X, 2048*1280)
    a(f"""v_lshrrev_b32 v10, 3, v{vLn}
    v_mul_u32_u24 v{vXs}, 1280, v10
    v_lshrrev_b32 v10, 1, v10
    s_and_b32 s{sT0}, s{S_WAVE}, 1
    s_lshl_b32 s{sT0}, s{sT0}, 2
    v_add_u32 v10, s{sT0}, v10
    v_and_b32 v11, 7, v{vLn}
    v_xor_b32 v10, v10, v11
    v_lshl_add_u32 v{vXs}, v10, 4, v{vXs}
    s_mul_i32 s{sT0}, s{S_WAVE}, {8*1280}
    s_add_u32 s{sXo}, s{sXo}, s{sT0}
    s_mul_i32 s{sBufW}, s{S_WAVE}, 10240
    v_lshrrev_b32 v10, 3, v{vN}
    v_mul_u32_u24 v10, 10240, v10
    v_and_b32 v11, 7, v{vN}
    v_lshl_add_u32 v10, v11, 7, v10
    v_lshrrev_b32 v11, 1, v{vN}
    v_xor_b32 v11, v11, v{vG}
    v_lshl_add_u32 v{vR0}, v11, 4, v10
    v_xor_b32 v11, 4, v11
    v_lshl_add_u32 v{vR1}, v11, 4, v10
    s_mov_b32 s{sBufR}, 0""")

def x_dma():
    L = [f's_add_u32 m0, s{sBufW}, {896*l}\ns_nop 0\nbuffer_load_dwordx4 v{vXs}, s[{SRD_B}:{SRD_B+3}], s{sXo} offen offset:{128*l} lds' for l in range(10)]
    L.append(f"""s_add_u32 s{sXo}, s{sXo}, {XBUF}
    s_add_u32 s{sBufW}, s{sBufW}, {XBUF}
    s_cmp_ge_u32 s{sBufW}, {3*XBUF}
    s_cselect_b32 s{sT0}, {3*XBUF}, 0
    s_sub_u32 s{sBufW}, s{sBufW}, s{sT0}""")
    return L

def x_rd(k):
    return [f'ds_read_b128 {vr(FR+8*(k%4)+4*xt)}, v{vR0+(k&1)} offset:{20480*xt+1024*(k>>1)}' for xt in range(2)]

def gemm_loop(a, name, nt, orient, epi, post=None, early=None, flagfl='sc1', flagbase=None, after_bar=None):
    for s in x_dma(): a(s)
    for s in x_dma(): a(s)
    a('s_waitcnt vmcnt(10)\ns_barrier')
    for s in x_rd(0) + x_rd(1): a(s)
    a(f's_mov_b32 s{sOut}, {OOB}')
    a(f'.p2align 6\nL_{name}_loop:')
    for p in range(2 if epi else 1):
        acc = AC + 24*p; prev = AC + 24*(1-p)
        fill = (early() if early else []) + (epi(prev) if epi else []) + x_dma()
        nmf = 2*nt
        slots = 16*nmf
        k0 = 8//nmf + 1
        tot = (17-k0)*nmf
        fi = 0; seen = 0
        for k in range(20):
            if k == 18:
                while fi < len(fill): a(fill[fi]); fi += 1
                a(f"""s_add_u32 s{sBufR}, s{sBufR}, {XBUF}
                s_cmp_ge_u32 s{sBufR}, {3*XBUF}
                s_cselect_b32 s{sT0}, {3*XBUF}, 0
                s_sub_u32 s{sBufR}, s{sBufR}, s{sT0}
                s_sub_u32 s{sT0}, {XBUF}, s{sT0}
                v_add_u32 v{vR0}, s{sT0}, v{vR0}
                v_add_u32 v{vR1}, s{sT0}, v{vR1}
                s_waitcnt vmcnt(10) lgkmcnt(0)
                s_barrier""")
                for s in x_rd(0) + x_rd(1): a(s)
                if after_bar: after_bar(a)
            elif k < 18:
                for s in x_rd(k+2): a(s)
                a('s_waitcnt lgkmcnt(4)')
            for t in range(nt):
                for xt in range(2):
                    d = vr(acc + 4*(2*t+xt)); wv = ar((t*20+k)*4); xv = vr(FR+8*(k%4)+4*xt)
                    c = '0' if k == 0 else d
                    a(f'v_mfma_f32_16x16x32_bf16 {d}, {wv}, {xv}, {c}' if orient == 'T' else f'v_mfma_f32_16x16x32_bf16 {d}, {xv}, {wv}, {c}')
                    if k0 <= k < 17:
                        seen += 1
                        while fi < len(fill) and fi*tot < seen*len(fill): a(fill[fi]); fi += 1
        if post: post(a, acc)
        a(f's_mov_b32 s{sOut}, s{sOutN}')
        a(f's_add_u32 s{S_STEP}, s{S_STEP}, 1')
    a(f"""s_cmp_lt_u32 s{S_STEP}, s{sEnd}
    s_cbranch_scc1 L_{name}_loop""")
    if epi:
        a.nop(8)
        for s in epi(AC+24): a(s)
    a('s_waitcnt vmcnt(0) lgkmcnt(0)\ns_barrier')

def epi_plain(nt, stride, fl, phi=False):
    def f(acc):
        L = []
        for t in range(nt):
            o = EP + 4*t
            for xt in range(2):
                b = acc + 4*(2*t+xt)
                if phi:
                    e = EP + 16
                    L += [f'v_pk_mul_f32 v[{e}:{e+1}], v[{b}:{b+1}], s[{sC2}:{sC2+1}]', f'v_pk_mul_f32 v[{e+2}:{e+3}], v[{b+2}:{b+3}], s[{sC2}:{sC2+1}]']
                    L += [f'v_min_f32 v{e+i}, 0, v{e+i}' for i in range(4)]
                    L += [f'v_exp_f32 v{e+i}, v{e+i}' for i in range(4)]
                    L += [f'v_max_f32 v{b+i}, 0, v{b+i}' for i in range(4)]
                    L += [f'v_pk_add_f32 v[{b}:{b+1}], v[{b}:{b+1}], v[{e}:{e+1}]', f'v_pk_add_f32 v[{b+2}:{b+3}], v[{b+2}:{b+3}], v[{e+2}:{e+3}]']
                    L += [f'v_pk_add_f32 v[{b}:{b+1}], v[{b}:{b+1}], s[{sEx}:{sEx+1}]', f'v_pk_add_f32 v[{b+2}:{b+3}], v[{b+2}:{b+3}], s[{sEx}:{sEx+1}]']
                L += [f'v_cvt_pk_bf16_f32 v{o+2*xt}, v{b}, v{b+1}', f'v_cvt_pk_bf16_f32 v{o+2*xt+1}, v{b+2}, v{b+3}']
            L.append(W('store_dwordx4', vr(o), vL16, f's{sOut}', 1024*t, fl))
        L.append(f's_add_u32 s{sOutN}, s{sOutN}, {stride}')
        return L
    return f

def head_ids(a):
    a(f"""s_sub_u32 s{sH}, s{S_X}, 4
    s_lshl_b32 s{sH}, s{sH}, 3
    s_lshr_b32 s{sT0}, s{S_J}, 2
    s_add_u32 s{sH}, s{sH}, s{sT0}
    s_lshl_b32 s{sFl}, s{S_X}, 5
    s_add_u32 s{sFl}, s{sFl}, s{S_J}
    s_lshl_b32 s{sFl}, s{sFl}, 7
    s_add_u32 s{sFl}, s{sFl}, {FL_OFF}""")

def w_head(a, ptr):
    srd(a, SRD_A, ptr, 640*6144*2)
    a(f's_mul_i32 s{sCol}, s{sH}, 384\ns_mul_i32 s{sI}, s{S_WAVE}, 3')
    load_w(a, 12288, 3, 160, 4, 2, 'A', 3, f's{sI}', lambda t, k, v: ar((t*20+k)*4+2*v, 2))

def kv_role(a, name, ptr, off, fl, P):
    a(f'L_{name}:')
    w_head(a, ptr)
    a(f"""s_mov_b32 s{S_STEP}, 0
    s_mov_b32 s{sEnd}, 64
    s_mov_b32 s{sXo}, 0
    s_mul_i32 s{sOutN}, s{sH}, 12288
    s_mul_i32 s{sT0}, s{S_WAVE}, 3072
    s_add_u32 s{sOutN}, s{sOutN}, s{sT0}
    s_add_u32 s{sOutN}, s{sOutN}, {off - 32*12288}""")
    x_setup(a)
    gemm_loop(a, name, 3, 'T', epi_plain(3, 32*12288, fl), after_bar=lambda a: set_flag(a, f's{S_STEP}', fl))
    set_flag(a, 64, fl)
    a(P['after_kvy'])

def y_role(a, P):
    a('L_y:')
    srd(a, SRD_A, P_WO, 32*192*640*2)
    a(f's_mul_i32 s{sCol}, s{sH}, {192*1280}\ns_mul_i32 s{sI}, s{S_WAVE}, 10')
    load_w(a, 1280, 10, 32, 6, 3, 'B', 10, f's{sI}', lambda t, k, v: ar((t*6+k)*4+2*v, 2))
    P['pre_y'](a)
    VB = 12288; NBUF = 4
    FA = 16
    a(f"""s_mov_b32 s{S_STEP}, 0
    s_mov_b32 s{sKn}, {P['v_known']}
    s_sub_u32 s{sFv}, s{sFl}, 128
    s_mul_i32 s{sXo}, s{sH}, 12288
    s_mul_i32 s{sT0}, s{S_WAVE}, 3072
    s_add_u32 s{sXo}, s{sXo}, s{sT0}
    s_add_u32 s{sXo}, s{sXo}, {V_OFF}
    s_mov_b32 s{sBufW}, s{sT0}
    s_mul_i32 s{sOut}, s{sH}, 40960
    s_mul_i32 s{sT0}, s{S_WAVE}, 10240
    s_add_u32 s{sOut}, s{sOut}, s{sT0}
    s_add_u32 s{sOut}, s{sOut}, {Y_OFF}
    s_mov_b32 s{sOutN}, {OOB}
    s_mov_b32 s{sEnd}, 0
    v_mov_b32 v{vR0}, v{vL16}
    v_add_u32 v{vR1}, 8, v{vL16}""")
    def need():
        l = a.lab('nv')
        a(f"""s_cmp_gt_u32 s{sKn}, s{sEnd}
        s_cbranch_scc1 {l}
        s_add_u32 s{sT1}, s{sEnd}, 1
        s_min_u32 s{sT1}, s{sT1}, 64""")
        wait_flags(a, vZ, f's{sFv}', f's{sT1}', sleep=1)
        a(f'v_readfirstlane_b32 s{sKn}, v10\n{l}:')
    def vdma():
        L = [f's_mov_b32 m0, s{sBufW}\ns_nop 0'] + [f'buffer_load_dwordx4 v{vL16}, s[{SRD_W}:{SRD_W+3}], s{sXo} offen offset:{1024*i} sc1 lds' for i in range(3)]
        L.append(f"""s_add_u32 s{sXo}, s{sXo}, {32*12288}
        s_add_u32 s{sEnd}, s{sEnd}, 1
        s_add_u32 s{sBufW}, s{sBufW}, {VB}
        s_cmp_ge_u32 s{sBufW}, {2*VB}
        s_cselect_b32 s{sT0}, {2*VB}, 0
        s_sub_u32 s{sBufW}, s{sBufW}, s{sT0}""")
        return L
    def vrd(p):
        return [f'ds_read2st64_b64 {vr(FA+48*p+8*k+4*xt)}, v{vR0+xt} offset0:{24*p+4*k} offset1:{24*p+4*k+2}' for k in range(6) for xt in range(2)]
    need()
    for s in vdma(): a(s)
    a('s_waitcnt vmcnt(0)\ns_barrier')
    for s in vrd(0): a(s)
    a('.p2align 6\nL_y_loop:')
    def ep(t, so, offb):
        b = 112 + 8*(t & 1); o = 128 + 4*(t & 1)
        return [f'v_cvt_pk_bf16_f32 v{o}, v{b}, v{b+1}', f'v_cvt_pk_bf16_f32 v{o+1}, v{b+2}, v{b+3}',
                f'v_cvt_pk_bf16_f32 v{o+2}, v{b+4}, v{b+5}', f'v_cvt_pk_bf16_f32 v{o+3}, v{b+6}, v{b+7}',
                (f's_add_u32 s{sT1}, {so}, {offb}\n' + W('store_dwordx4', vr(o), vYp, f's{sT1}', 0, 'sc1'))]
    for p in range(2):
        need()
        a('s_waitcnt lgkmcnt(0)')
        for t in range(10):
            fill = ep(9, f's{sOutN}', 9216) if t == 0 else ep(t-1, f's{sOut}', 1024*(t-1))
            pre = []
            if t == 0: pre = vdma()
            if t == 7:
                a('s_waitcnt vmcnt(6)\ns_barrier')
            if t in (7, 8): pre = vrd(1-p)[6*(t-7):6*(t-7)+6]
            mm = []
            for k in range(6):
                for xt in range(2):
                    d = vr(112+8*(t & 1)+4*xt)
                    mm.append(f'v_mfma_f32_16x16x32_bf16 {d}, {vr(FA+48*p+8*k+4*xt)}, {ar((t*6+k)*4)}, {"0" if k == 0 else d}')
            seq = interleave(mm[:7], pre, 1) + interleave(mm[7:], fill, 1)
            for s in seq: a(s)
            if t == 7:
                set_flag(a, f's{S_STEP}')
        a(f"""s_mov_b32 s{sOutN}, s{sOut}
        s_add_u32 s{sOut}, s{sOut}, {32*40960}
        s_add_u32 s{S_STEP}, s{S_STEP}, 1""")
    a(f"""s_cmp_lt_u32 s{S_STEP}, 64
    s_cbranch_scc1 L_y_loop""")
    a.nop(8)
    for s in ep(9, f's{sOutN}', 9216): a(s)
    a('s_waitcnt vmcnt(0) lgkmcnt(0)\ns_barrier')
    set_flag(a, 64)
    a(P['after_kvy'])

def q_flags(a):
    a(f"""v_and_b32 v{vFa}, 31, v{vLn}
    v_lshlrev_b32 v{vFa}, 9, v{vFa}
    v_add_u32 v{vFa}, {flag_addr(4, 3)}, v{vFa}""")

def alpha_role(a, P):
    a('L_alpha:')
    a(f"""s_and_b32 s{sT0}, s{sH}, 1
    s_lshl_b32 s{S_STEP}, s{sT0}, 5
    s_add_u32 s{sEnd}, s{S_STEP}, 32
    s_mul_i32 s{sXo}, s{S_STEP}, {XBUF}
    s_lshr_b32 s{sB}, s{sH}, 1
    s_mov_b32 s{sC2}, {fbits(math.log2(math.e))}
    s_mov_b32 s{sC2+1}, {fbits(math.log2(math.e))}
    s_mov_b32 s{sEx}, {fbits(1e-6)}
    s_mov_b32 s{sEx+1}, {fbits(1e-6)}
    s_cmp_eq_u32 s{sB}, 15
    s_cbranch_scc1 L_gate""")
    srd(a, SRD_A, P_WQKV, 640*1920*2)
    a(f's_lshl_b32 s{sCol}, s{sB}, 8\ns_lshl_b32 s{sI}, s{S_WAVE}, 1')
    load_w(a, 3840, 2, 160, 4, 3, 'A', 2, f's{sI}', lambda t, k, v: ar((t*20+k)*4+2*v, 2))
    a(f"""s_mul_i32 s{sT1}, s{sB}, 0x3334
    s_lshr_b32 s{sT1}, s{sT1}, 16
    s_mul_i32 s{sT2}, s{sT1}, 5
    s_sub_u32 s{sT2}, s{sB}, s{sT2}
    s_mul_i32 s{sOutN}, s{sT1}, {PK_OFF-PQ_OFF}
    s_lshl_b32 s{sT2}, s{sT2}, 13
    s_add_u32 s{sOutN}, s{sOutN}, s{sT2}
    s_lshl_b32 s{sT2}, s{S_WAVE}, 11
    s_add_u32 s{sOutN}, s{sOutN}, s{sT2}
    s_add_u32 s{sOutN}, s{sOutN}, s{sXo}
    s_add_u32 s{sOutN}, s{sOutN}, {PQ_OFF - 40960}
    s_mov_b32 s{sQt}, s{sT1}""")
    x_setup(a)
    a(f"""s_cmp_eq_u32 s{sQt}, 1
    s_cbranch_scc1 L_alk
    s_cmp_eq_u32 s{sQt}, 2
    s_cbranch_scc1 L_alv""")
    gemm_loop(a, 'alq', 2, 'T', epi_plain(2, 40960, 'sc1', True))
    a('s_branch L_alpha_done\nL_alk:')
    gemm_loop(a, 'alk', 2, 'N', epi_plain(2, 40960, 'sc1', True))
    a('s_branch L_alpha_done\nL_alv:')
    gemm_loop(a, 'alv', 2, 'N', epi_plain(2, 40960, 'sc1', False))
    a('s_branch L_alpha_done\nL_gate:')
    srd(a, SRD_A, P_GATE, 1280)
    a(f'v_lshlrev_b32 v10, 4, v{vG}')
    for k in range(20): a(f'buffer_load_dwordx4 {ar(4*k)}, v10, s[{SRD_A}:{SRD_A+3}], 0 offen offset:{64*k}')
    a(f"""s_lshl_b32 s{sOutN}, s{S_STEP}, 7
    s_add_u32 s{sOutN}, s{sOutN}, {GT_OFF - 128}
    v_lshlrev_b32 v{vFa}, 2, v{vN}
    s_waitcnt vmcnt(0)""")
    x_setup(a)
    def epi_gate(acc):
        L = []
        for xt in range(2):
            b = acc + 4*xt; o = EP + xt
            L += [f'v_mul_f32 v{o}, s{sC2}, v{b}', f'v_exp_f32 v{o}, -v{o}', 's_nop 0', f'v_add_f32 v{o}, 1.0, v{o}', f'v_rcp_f32 v{o}, v{o}', 's_nop 0',
                  W('store_dword', f'v{o}', vFa, f's{sOut}', 64*xt, 'sc1')]
        L.append(f's_add_u32 s{sOutN}, s{sOutN}, 128')
        return L
    gemm_loop(a, 'gate', 1, 'T', epi_gate)
    a('L_alpha_done:')
    set_flag(a, 1)

PAIRS = [(i, j) for i in range(5) for j in range(5) if abs(i-j) <= 1]

def beta_role(a, P):
    a('L_beta:')
    q_flags(a)
    P['pre_beta'](a)
    ACC = 16
    RING = 96
    zt = lambda i: ACC + 4*(13+i)
    a(f"""s_and_b32 s{sB}, s{sH}, 7
    s_lshr_b32 s{sQt}, s{sH}, 3
    s_mul_i32 s{sT2}, s{sB}, 5120
    s_mul_i32 s{sK}, s{S_WAVE}, {16*40960}
    s_add_u32 s{sK}, s{sK}, s{sT2}
    s_add_u32 s{sK}, s{sK}, {PK_OFF}
    v_add_u32 v11, 4096, v{vL16}
    v_mov_b32 v12, 0x3f803f80
    v_mov_b32 v13, 0x3f803f80
    v_mov_b32 v14, 0x3f803f80
    v_mov_b32 v15, 0x3f803f80""")
    def ld(i):
        b = RING + 40*(i % 4)
        L = [f's_add_u32 s{sT0}, s{sK}, {i*40960}', f's_add_u32 s{sT1}, s{sT0}, {VV_OFF-PK_OFF}']
        for h, so in ((0, sT0), (1, sT1)):
            L += [W('load_dwordx4', vr(b+20*h+4*t), vL16 if t < 4 else 11, f's{so}', 1024*(t & 3), 'sc1') for t in range(5)]
        return L
    for i in range(3):
        for s in ld(i): a(s)
    for i in range(16):
        if i+3 < 16:
            for s in ld(i+3): a(s)
        a(f's_waitcnt vmcnt({10*min(3, 15-i)})')
        b = RING + 40*(i % 4)
        for n_, (p, q) in enumerate(PAIRS):
            d = vr(ACC+4*n_)
            a(f'v_mfma_f32_16x16x32_bf16 {d}, {vr(b+4*p)}, {vr(b+20+4*q)}, {"0" if i == 0 else d}')
        for p in range(5):
            d = vr(zt(p))
            a(f'v_mfma_f32_16x16x32_bf16 {d}, {vr(b+4*p)}, v[12:15], {"0" if i == 0 else d}')
    PQ = 96
    a(f"""s_lshl_b32 s{sT0}, s{sQt}, 2
    s_add_u32 s{sT0}, s{sT0}, s{S_WAVE}
    s_lshl_b32 s{sT0}, s{sT0}, 2
    s_lshl_b32 s{sGt}, s{sT0}, 7
    s_add_u32 s{sGt}, s{sGt}, {GT_OFF}
    s_mul_i32 s{sO}, s{sT0}, 40960
    s_add_u32 s{sO}, s{sO}, s{sT2}
    v_lshlrev_b32 v10, 2, v{vN}""")
    for i in range(4):
        a(f's_add_u32 s{sT0}, s{sO}, {PQ_OFF + i*40960}')
        for t in range(5): a(W('load_dwordx4', vr(PQ+20*i+4*t), vL16 if t < 4 else 11, f's{sT0}', 1024*(t & 3), 'sc1'))
        for xt in range(2): a(W('load_dword', f'v{176+2*i+xt}', 10, f's{sGt}', 128*i+64*xt, 'sc1'))
    a(f's_mul_i32 s{sT0}, s{S_WAVE}, 18432\nv_add_u32 v88, s{sT0}, v{vL16}\nv_add_u32 v89, 36864, v{vL16}')
    for n_ in range(18):
        a(f'ds_write_b128 v88, {vr(ACC+4*n_)} offset:{1024*n_}')
        if n_ % 8 == 7: a('s_waitcnt lgkmcnt(4)')
    a('s_waitcnt lgkmcnt(0)\ns_barrier')
    T = 184
    for n_ in range(18):
        d = ACC+4*n_
        a(f"""ds_read_b128 {vr(d)}, v{vL16} offset:{1024*n_}
        ds_read_b128 {vr(T)}, v{vL16} offset:{18432+1024*n_}
        ds_read_b128 {vr(T+4)}, v89 offset:{1024*n_}
        ds_read_b128 {vr(T+8)}, v89 offset:{18432+1024*n_}
        s_waitcnt lgkmcnt(0)
        v_pk_add_f32 v[{d}:{d+1}], v[{d}:{d+1}], v[{T}:{T+1}]
        v_pk_add_f32 v[{d+2}:{d+3}], v[{d+2}:{d+3}], v[{T+2}:{T+3}]
        v_pk_add_f32 v[{T+4}:{T+5}], v[{T+4}:{T+5}], v[{T+8}:{T+9}]
        v_pk_add_f32 v[{T+6}:{T+7}], v[{T+6}:{T+7}], v[{T+10}:{T+11}]
        v_pk_add_f32 v[{d}:{d+1}], v[{d}:{d+1}], v[{T+4}:{T+5}]
        v_pk_add_f32 v[{d+2}:{d+3}], v[{d+2}:{d+3}], v[{T+6}:{T+7}]""")
    KA, ZA = 200, 226
    for p in range(5):
        a(f"""v_lshlrev_b32 v{T+p}, 2, v{vG}
        v_add_u32 v{T+p}, {16*p}, v{T+p}
        v_mul_u32_u24 v{T+p}, 0xccd, v{T+p}
        v_lshrrev_b32 v{T+p}, 16, v{T+p}
        v_add_u32 v{T+5+p}, {16*p}, v{vN}
        v_mul_u32_u24 v{T+5+p}, 0xccd, v{T+5+p}
        v_lshrrev_b32 v{T+5+p}, 16, v{T+5+p}
        v_cvt_pk_bf16_f32 v{zt(p)}, v{zt(p)}, v{zt(p)+1}
        v_cvt_pk_bf16_f32 v{zt(p)+1}, v{zt(p)+2}, v{zt(p)+3}""")
    for n_, (p, q) in enumerate(PAIRS):
        d = ACC+4*n_
        a(f"""v_cmp_eq_u32 vcc, v{T+p}, v{T+5+q}
        v_cvt_pk_bf16_f32 v{d}, v{d}, v{d+1}
        v_cvt_pk_bf16_f32 v{d+1}, v{d+2}, v{d+3}
        v_cndmask_b32 v{KA+2*n_}, 0, v{d}, vcc
        v_cndmask_b32 v{KA+2*n_+1}, 0, v{d+1}, vcc
        v_cndmask_b32 v{ZA+2*n_}, 0, v{zt(p)}, vcc
        v_cndmask_b32 v{ZA+2*n_+1}, 0, v{zt(p)+1}, vcc""")
    a(f's_mov_b32 s{sT3}, {fbits(1e-6)}\ns_waitcnt vmcnt(0)')
    for i in range(4):
        for q in range(5):
            for xt in range(2):
                for base, A in ((16, KA), (56, ZA)):
                    d = vr(base+8*q+4*xt); first = True
                    for n_, (p, q2) in enumerate(PAIRS):
                        if q2 != q: continue
                        a(f'v_mfma_f32_16x16x16_bf16 {d}, {vr(A+2*n_,2)}, {vr(PQ+20*i+4*p+2*xt,2)}, {"0" if first else d}')
                        first = False
        a.nop(8)
        a(f's_add_u32 s{sT0}, s{sO}, {O_OFF + i*40960}')
        for q in range(5):
            o = T + 4*(q & 1)
            for xt in range(2):
                nb, db = 16+8*q+4*xt, 56+8*q+4*xt
                for r in range(4): a(f'v_add_f32 v{db+r}, s{sT3}, v{db+r}')
                for r in range(4): a(f'v_rcp_f32 v{db+r}, v{db+r}')
                for r in range(4): a(f'v_mul_f32 v{nb+r}, v{nb+r}, v{176+2*i+xt}')
                a(f"""v_pk_mul_f32 v[{nb}:{nb+1}], v[{nb}:{nb+1}], v[{db}:{db+1}]
                v_pk_mul_f32 v[{nb+2}:{nb+3}], v[{nb+2}:{nb+3}], v[{db+2}:{db+3}]
                v_cvt_pk_bf16_f32 v{o+2*xt}, v{nb}, v{nb+1}
                v_cvt_pk_bf16_f32 v{o+2*xt+1}, v{nb+2}, v{nb+3}""")
            a(W('store_dwordx4', vr(o), vL16 if q < 4 else 11, f's{sT0}', 1024*(q & 3), 'sc1'))
    a('s_waitcnt vmcnt(0)\ns_barrier')
    set_flag(a, 2)

def q_role(a, P):
    a('L_q:')
    w_head(a, P_WQ)
    KS, KF, KM, QF, D, GT, PR = 96, 108, 124, 132, 148, 168, 170
    SB = 3*XBUF
    a(f"""s_mov_b32 s{S_STEP}, 0
    s_mov_b32 s{sEnd}, 64
    s_mov_b32 s{sXo}, 0
    s_mul_i32 s{sK}, s{sH}, 12288
    s_mul_i32 s{sT0}, s{S_WAVE}, 3072
    s_add_u32 s{sK}, s{sK}, s{sT0}
    s_lshr_b32 s{sKm}, s{sK}, 1
    s_add_u32 s{sK}, s{sK}, {K_OFF}
    s_add_u32 s{sKm}, s{sKm}, {KM_OFF}
    s_mov_b32 s{sGt}, {GT_OFF}
    s_lshl_b32 s{sP}, s{sH}, 11
    s_add_u32 s{sP}, s{sP}, {PX_OFF}
    s_mov_b32 s{sC2}, {P['cexp']}
    s_mov_b32 s{sC2+1}, {P['cexp']}
    s_mov_b32 s{sKn}, {P['r_known']}
    v_lshlrev_b32 v12, 3, v{vLn}
    v_lshlrev_b32 v13, 2, v{vN}
    s_lshl_b32 s{sT0}, s{S_WAVE}, 12
    s_add_u32 s{sT0}, s{sT0}, {SB}
    v_add_u32 v14, s{sT0}, v{vL16}
    v_add_u32 v15, {SB}, v{vL16}
    v_lshlrev_b32 v10, 2, v{vG}""")
    for i in range(4):
        a(f'v_add_u32 v11, {i}, v10\nv_cmp_le_u32 s[{sMask+2*i}:{sMask+2*i+1}], v11, v{vN}')
    for r in (KF+6, KF+7, KF+14, KF+15, KM+6, KM+7, QF+6, QF+7, QF+14, QF+15): a(f'v_mov_b32 v{r}, 0')
    x_setup(a)
    late = [W('load_dwordx4', vr(KS+4*i), vL16, f's{sK}', 1024*i, 'sc1') for i in range(3)]
    late += [W('load_dwordx4', vr(KM), vL16, f's{sKm}', 0, 'sc1'), W('load_dwordx2', vr(KM+4, 2), 12, f's{sKm}', 1024, 'sc1')]
    def early():
        l = a.lab('qe')
        L = [f's_cmp_gt_u32 s{sKn}, s{S_STEP}\ns_cselect_b32 s{sHave}, 1, 0\ns_cbranch_scc0 {l}\n' + '\n'.join(late) + f'\n{l}:']
        L += [W('load_dword', f'v{GT+xt}', 13, f's{sGt}', 64*xt, 'sc1') for xt in range(2)]
        L += P['q_refresh'](PR)
        return L
    def post(a, acc):
        l = a.lab('qh')
        a(f's_cmp_lg_u32 s{sHave}, 0\ns_cbranch_scc1 {l}')
        P['q_wait'](a, PR)
        for s in late: a(s)
        a(f'{l}:')
        a.nop(6)
        for t in range(3):
            for xq in range(2):
                b = acc + 4*(2*t+xq)
                a(f"""v_pk_mul_f32 v[{b}:{b+1}], v[{b}:{b+1}], s[{sC2}:{sC2+1}]
                v_pk_mul_f32 v[{b+2}:{b+3}], v[{b+2}:{b+3}], s[{sC2}:{sC2+1}]
                v_cvt_pk_bf16_f32 v{QF+8*xq+2*t}, v{b}, v{b+1}
                v_cvt_pk_bf16_f32 v{QF+8*xq+2*t+1}, v{b+2}, v{b+3}""")
        a('s_waitcnt vmcnt(0)')
        for s in P['q_update'](PR): a(s)
        for i in range(3):
            for xt in range(2):
                for r in range(2): a(f'v_mov_b32 v{KF+8*xt+2*i+r}, v{KS+4*i+2*xt+r}')
        a(f's_add_u32 s{sK}, s{sK}, {32*12288}\ns_add_u32 s{sKm}, s{sKm}, {32*6144}')
        prods = [(D+12, KM, QF), (D+16, KM, QF+8), (D, KF, QF), (D+4, KF, QF+8), (D+8, KF+8, QF+8)]
        for d, A, B in prods: a(f'v_mfma_f32_16x16x32_bf16 {vr(d)}, {vr(A)}, {vr(B)}, 0')
        for d, A, B in prods: a(f'v_mfma_f32_16x16x32_bf16 {vr(d)}, {vr(A+4)}, {vr(B+4)}, {vr(d)}')
        a.nop(5)
        a(f"""v_mov_b32 v{D+14}, v{D+16}
        v_mov_b32 v{D+15}, v{D+17}
        ds_write_b128 v14, {vr(D+12)} offset:3072
        ds_write_b128 v14, {vr(D)}
        ds_write_b128 v14, {vr(D+4)} offset:1024
        ds_write_b128 v14, {vr(D+8)} offset:2048
        s_waitcnt lgkmcnt(0)
        s_barrier""")
        l2 = a.lab('qs')
        a(f's_cmp_lg_u32 s{S_WAVE}, 0\ns_cbranch_scc1 {l2}')
        R = 176
        for w in range(1, 4):
            for i in range(4): a(f'ds_read_b128 {vr(R+16*(w-1)+4*i)}, v15 offset:{4096*w+1024*i}')
        a(f'v_mov_b32 v224, {fbits(-1e9*math.log2(math.e))}')
        for w in range(1, 4):
            a(f's_waitcnt lgkmcnt({4*(3-w)})')
            for i in range(8): a(f'v_pk_add_f32 v[{D+2*i}:{D+2*i+1}], v[{D+2*i}:{D+2*i+1}], v[{R+16*(w-1)+2*i}:{R+16*(w-1)+2*i+1}]')
        for b in (D, D+8):
            for i in range(4): a(f'v_cndmask_b32 v{b+i}, v224, v{b+i}, s[{sMask+2*i}:{sMask+2*i+1}]')
        v0 = [D+i for i in range(4)] + [D+12, D+13]
        v1 = [D+4+i for i in range(8)] + [D+14, D+15]
        M0, M1 = R, R+2
        def red(op):
            a(f"""v_mov_b32 v{M0+1}, v{M0}
            v_mov_b32 v{M1+1}, v{M1}
            s_nop 0
            v_permlane16_swap_b32 v{M0}, v{M0+1}
            v_permlane16_swap_b32 v{M1}, v{M1+1}
            {op} v{M0}, v{M0}, v{M0+1}
            {op} v{M1}, v{M1}, v{M1+1}
            v_mov_b32 v{M0+1}, v{M0}
            v_mov_b32 v{M1+1}, v{M1}
            s_nop 0
            v_permlane32_swap_b32 v{M0}, v{M0+1}
            v_permlane32_swap_b32 v{M1}, v{M1+1}
            {op} v{M0}, v{M0}, v{M0+1}
            {op} v{M1}, v{M1}, v{M1+1}""")
        for M, vs in ((M0, v0), (M1, v1)):
            a(f'v_max_f32 v{M}, v{vs[0]}, v{vs[1]}')
            for i in range(2, len(vs), 2): a(f'v_max3_f32 v{M}, v{M}, v{vs[i]}, v{vs[i+1]}')
        red('v_max_f32')
        for M, vs in ((M0, v0), (M1, v1)):
            for i in range(0, len(vs), 2):
                a(f'v_pk_add_f32 v[{vs[i]}:{vs[i]+1}], v[{vs[i]}:{vs[i]+1}], v[{M}:{M+1}] op_sel_hi:[1,0] neg_lo:[0,1] neg_hi:[0,1]')
        for r in range(16): a(f'v_exp_f32 v{D+r}, v{D+r}')
        a(f'v_sub_f32 v{GT}, 1.0, v{GT}\nv_sub_f32 v{GT+1}, 1.0, v{GT+1}')
        for M, vs in ((M0, v0), (M1, v1)):
            a(f'v_pk_add_f32 v[{M}:{M+1}], v[{vs[0]}:{vs[0]+1}], v[{vs[2]}:{vs[2]+1}]')
            for i in range(4, len(vs), 2): a(f'v_pk_add_f32 v[{M}:{M+1}], v[{M}:{M+1}], v[{vs[i]}:{vs[i]+1}]')
            a(f'v_add_f32 v{M}, v{M}, v{M+1}')
        red('v_add_f32')
        a(f"""v_rcp_f32 v{M0}, v{M0}
        v_rcp_f32 v{M1}, v{M1}
        s_nop 0
        v_mul_f32 v{M0}, v{M0}, v{GT}
        v_mul_f32 v{M1}, v{M1}, v{GT+1}""")
        for M, vs in ((M0, v0), (M1, v1)):
            for i in range(0, len(vs), 2):
                a(f'v_pk_mul_f32 v[{vs[i]}:{vs[i]+1}], v[{vs[i]}:{vs[i]+1}], v[{M}:{M+1}] op_sel_hi:[1,0]')
        O = R+8
        for o, b in ((O, D), (O+1, D+2), (O+2, D+12), (O+3, D+14), (O+4, D+4), (O+5, D+6), (O+6, D+8), (O+7, D+10)):
            a(f'v_cvt_pk_bf16_f32 v{o}, v{b}, v{b+1}')
        a(W('store_dwordx4', vr(O), vL16, f's{sP}', 0, 'sc1'))
        a(W('store_dwordx4', vr(O+4), vL16, f's{sP}', 1024, 'sc1'))
        a(f"""{l2}:
        s_add_u32 s{sP}, s{sP}, {32*2048}
        s_add_u32 s{sGt}, s{sGt}, 128""")
    def after_bar(a):
        a(f's_add_u32 s{sT1}, s{S_STEP}, 2')
        set_flag(a, f's{sT1}')
    gemm_loop(a, 'q', 3, 'T', None, post=post, early=early, after_bar=after_bar)
    set_flag(a, 66)

def final_role(a, P):
    a('L_final:')
    a(f"""s_mul_i32 s{S_STEP}, s{sWk}, 0x3334
    s_lshr_b32 s{S_STEP}, s{S_STEP}, 16
    s_mul_i32 s{sCb}, s{S_STEP}, 5
    s_sub_u32 s{sCb}, s{sWk}, s{sCb}""")
    srd(a, SRD_A, P_WOA, 640*640*2)
    a(f"""s_mul_i32 s{sCol}, s{S_WAVE}, {160*1280}
    s_lshl_b32 s{sT0}, s{sCb}, 8
    s_add_u32 s{sCol}, s{sCol}, s{sT0}""")
    load_w(a, 1280, 2, 160, 1, 1, 'B', 8, '0', lambda t, k, v: ar((k*8+t)*4+2*v, 2), private=True)
    srd(a, SRD_B, P_OUT, 2048*1280)
    q_flags(a)
    ACC, PF, PM, OF = 16, 80, 144, 160
    RG = 160
    TS = 1056
    WSZ = 16*TS
    a(f"""v_add_u32 v12, 4096, v{vYp}
    v_add_u32 v13, 4096, v{vL16}
    s_mul_i32 s{sT0}, s{S_WAVE}, {WSZ}
    v_add_u32 v14, s{sT0}, v{vL16}
    v_lshrrev_b32 v10, 3, v{vLn}
    s_lshl_b32 s{sT0}, s{S_WAVE}, 3
    v_add_u32 v10, s{sT0}, v10              ; token 0..31
    v_and_b32 v11, 7, v{vLn}                ; tile
    v_mul_u32_u24 v{vXs}, 1280, v10
    v_lshl_add_u32 v{vXs}, v11, 5, v{vXs}
    v_lshrrev_b32 v15, 4, v10
    v_lshl_add_u32 v15, v11, 1, v15
    v_mul_u32_u24 v15, {TS}, v15
    v_and_b32 v10, 15, v10
    v_lshl_add_u32 v15, v10, 4, v15
    v_add_u32 v{vR0}, {2*WSZ}, v15
    s_barrier
    L_final_loop:
    s_lshl_b32 s{sT0}, s{S_STEP}, 5
    s_lshl_b32 s{sT1}, s{S_WAVE}, 3
    s_add_u32 s{sT0}, s{sT0}, s{sT1}       ; s*32 + 8w
    s_lshl_b32 s{sT2}, s{sCb}, 13
    s_mul_i32 s{sY}, s{sT0}, 40960
    s_add_u32 s{sY}, s{sY}, s{sT2}
    s_add_u32 s{sY}, s{sY}, {Y_OFF}
    s_lshl_b32 s{sP}, s{sT0}, 11
    s_add_u32 s{sP}, s{sP}, {PX_OFF}
    s_mul_i32 s{sU}, s{sT0}, 10240
    s_add_u32 s{sU}, s{sU}, s{sT2}
    s_add_u32 s{sU}, s{sU}, {U_OFF}
    s_mul_i32 s{sO}, s{S_STEP}, 40960
    s_lshl_b32 s{sT2}, s{sCb}, 8
    s_add_u32 s{sOut}, s{sO}, s{sT2}
    s_mul_i32 s{sT1}, s{S_WAVE}, 10240
    s_add_u32 s{sO}, s{sO}, s{sT1}
    s_add_u32 s{sO}, s{sO}, {O_OFF}""")
    P['final_wait'](a)
    def unit(u):
        base = f's{sY}, {40960*u}' if u < 8 else f's{sU}, {40960*(u-8)}'
        return [f's_add_u32 s{sT0}, {base}'] + [W('load_dwordx4', ar(RG+32*(u % 3)+4*t), vYp if t < 4 else 12, f's{sT0}', 1024*(t & 3), 'sc1') for t in range(8)]
    for i in range(10):
        if i % 8 == 0: a(f's_add_u32 s{sT0}, s{sO}, {1024*i}')
        a(W('load_dwordx4', vr(OF+4*i), vL16 if i % 8 < 4 else 13, f's{sT0}', 1024*(i & 3), 'sc1'))
    for i in range(16):
        if i % 8 == 0: a(f's_add_u32 s{sT0}, s{sP}, {1024*i}')
        a(W('load_dwordx4', vr(PF+4*i), vL16 if i % 8 < 4 else 13, f's{sT0}', 1024*(i & 3), 'sc1'))
    for u in range(3):
        for s in unit(u): a(s)
    a('s_waitcnt vmcnt(40)')
    for k in range(5):
        a(f'v_swap_b32 v{OF+8*k+2}, v{OF+8*k+4}\nv_swap_b32 v{OF+8*k+3}, v{OF+8*k+5}')
    a('s_nop 1')
    for k in range(5):
        for t in range(8):
            for xq in range(2):
                d = vr(ACC+8*t+4*xq)
                a(f'v_mfma_f32_16x16x32_bf16 {d}, {ar((k*8+t)*4)}, {vr(OF+8*k+4*xq)}, {"0" if k == 0 else d}')
    a('s_waitcnt vmcnt(24)')
    for h in range(8):
        for xq in range(2):
            a(f'v_mov_b32 v{PM+8*(h>>2)+4*xq+(h&3)}, v{PF+8*h+2+xq}')
        a(f'v_mov_b32 v{PF+8*h+2}, 0\nv_mov_b32 v{PF+8*h+3}, 0')
    for u in range(10):
        a(f's_waitcnt vmcnt({8*min(2, 9-u)})')
        B = PF+8*u if u < 8 else PM+8*(u-8)
        nx = unit(u+3) if u+3 < 10 else []
        if nx: a(nx.pop(0))
        for t in range(8):
            for xq in range(2):
                d = vr(ACC+8*t+4*xq)
                a(f'v_mfma_f32_16x16x32_bf16 {d}, {ar(RG+32*(u % 3)+4*t)}, {vr(B+4*xq)}, {d}')
            if nx: a(nx.pop(0))
    for i in range(16):
        a(f'ds_write_b128 v14, {vr(ACC+4*i)} offset:{TS*i}')
        if i % 8 == 7: a('s_waitcnt lgkmcnt(4)')
    a('s_waitcnt lgkmcnt(0)\ns_barrier')
    for w in range(4):
        for g in range(4):
            a(f'ds_read_b128 {vr(ACC+16*w+4*g)}, v{15 if w < 2 else vR0} offset:{WSZ*(w & 1)+256*g}')
        if w == 2: a('s_waitcnt lgkmcnt(4)')
    a('s_waitcnt lgkmcnt(0)\ns_barrier')
    for w in (1, 3):
        for i in range(8):
            d = ACC+16*(w-1)+2*i
            a(f'v_pk_add_f32 v[{d}:{d+1}], v[{d}:{d+1}], v[{d+16}:{d+17}]')
    for i in range(8):
        d = ACC+2*i
        a(f'v_pk_add_f32 v[{d}:{d+1}], v[{d}:{d+1}], v[{d+32}:{d+33}]\nv_cvt_pk_bf16_f32 v{200+i}, v{d}, v{d+1}')
    a(f"""buffer_store_dwordx4 v[200:203], v{vXs}, s[{SRD_B}:{SRD_B+3}], s{sOut} offen
    buffer_store_dwordx4 v[204:207], v{vXs}, s[{SRD_B}:{SRD_B+3}], s{sOut} offen offset:16
    s_add_u32 s{S_STEP}, s{S_STEP}, 19
    s_cmp_lt_u32 s{S_STEP}, 64
    s_cbranch_scc1 L_final_loop
    s_branch L_exit""")
```

```python
from asmb import *
from lay import *
S_WAVE, S_X, S_J, S_STEP, S_TO = 3, 4, 5, 6, 7
P_X, P_WQKV, P_WOA, P_MEM0, P_WQ, P_WK, P_WV, P_WO, P_GATE, P_OUT, P_DBG, P_WS = 8, 10, 12, 16, 18, 20, 22, 24, 28, 30, 32, 34
SRD_W = 36
SRD_A = 40
SRD_B = 44
SRD_D = 48
TO_LIMIT = 400000
sMr, sMw, sMp, sSw, sSr, sG, sGL, sGp, sGLp, sY, sK, sU, sKm = range(52, 65)
sTag, sTag3, sC, sT0, sT1, sT2, sPar = range(65, 72)
sSelT1, sSelT2, sSelU1, sSelU2 = range(72, 76)
sHalf = 76
sEx   = 78
sExLo = 80
sH, sCg, sHs, sCs = 82, 83, 84, 85
sGb, sMb = 86, 87
sKnY, sKnK, sFy, sFk, sFl = 90, 91, 92, 93, 94
vFy, vFk, vFd, vFa = 36, 101, 102, 103
sC2 = 88
MB, QB, KB, DB, RB, UB = 0, 10240, 11264, 13312, 25600, 26112
FM, FQ, FK, FD, YB = 29184, 30208, 31232, 32256, 33280
vL16, vIdx, vQw, vY = 0, 1, 2, 3
vKw, vD2 = 4, 5
vDr, vGst = 6, 7
vG0, vG1 = 6, 7
vUP = 8
vAq, vAk = 16, 20
vUa = 24
SETA, SETB = [16, 20, 36, 40], [80, 84, 88, 92]
vYt = 44
vMF = 56
vWq, vWk = 96, 176
aSel, aMst = 240, 244
vQr, vKr, vPG, vPM, vL8 = 96, 97, 98, 99, 100
vNeg = 104
vKF = 108
vKS = 124
vQf, vKf = 136, 144
vD0, vD1, vDm, vPk = 152, 156, 160, 164
vPU, vPK = 168, 180
OWN = [[0,1,2],[3,4,5],[6,7,8],[9]]

def srd(a, base, ptr, nbytes):
    a(f"""s_mov_b32 s{base}, s{ptr}
    s_and_b32 s{base+1}, s{ptr+1}, 0xffff
    s_mov_b32 s{base+2}, {nbytes}
    s_mov_b32 s{base+3}, 0x20000""")

def W(op, data, va, so, off=0, fl=''):
    return f'buffer_{op} {data}, v{va}, s[{SRD_W}:{SRD_W+3}], {so} offen offset:{off} {fl}'.rstrip()

def retry(a, tail, lab_retry, lab_back):
    tail(f"""{lab_retry}:
    s_add_u32 s{S_TO}, s{S_TO}, 1
    s_cmp_gt_u32 s{S_TO}, {TO_LIMIT}
    s_cbranch_scc1 L_exit
    s_branch {lab_back}""")

def build_sel(a, dst, vn, vg, goff, tmp):
    a(f"""v_and_b32 v{tmp}, 1, v{vn}
    v_lshlrev_b32 v{tmp}, 4, v{tmp}
    v_mov_b32 v{tmp+1}, 0x3f80
    v_lshlrev_b32 v{tmp}, v{tmp}, v{tmp+1}
    v_lshrrev_b32 v{tmp+1}, 1, v{vn}
    v_add_u32 v{tmp+1}, {4*goff}, v{tmp+1}
    v_lshlrev_b32 v{tmp+2}, 2, v{vg}
    v_sub_u32 v{tmp+1}, v{tmp+1}, v{tmp+2}""")
    for r in range(4):
        a(f"""v_cmp_eq_u32 vcc, {r}, v{tmp+1}
        s_nop 1
        v_cndmask_b32 v{dst+r}, 0, v{tmp}, vcc""")

def phys(a, v, tmp):
    a(f"""v_lshrrev_b32 v{tmp}, 13, v{v}
    v_lshl_add_u32 v{v}, v{tmp}, 13, v{v}""")

def dma(srdb, va, so, fl=''):
    return f'buffer_load_dwordx4 v{va}, s[{srdb}:{srdb+3}], {so} offen {fl} lds'

def rec_prologue(a, P):
    n, g, ln = 60, 61, 62
    a(f"""v_and_b32 v{ln}, 63, v0
    v_and_b32 v{n}, 15, v{ln}
    v_lshrrev_b32 v{g}, 4, v{ln}
    v_lshlrev_b32 v{vL16}, 4, v{ln}
    s_and_b32 s{sT0}, s{S_J}, 1
    s_lshl_b32 s{sT0}, s{sT0}, 2
    s_add_u32 s{sT0}, s{sT0}, s{S_WAVE}
    s_lshl_b32 s{sH}, s{S_X}, 3
    s_add_u32 s{sH}, s{sH}, s{sT0}
    s_lshr_b32 s{sCg}, s{S_J}, 1
    s_lshr_b32 s{sHs}, s{S_J}, 2
    s_and_b32 s{sCs}, s{S_J}, 3
    s_lshl_b32 s{sT1}, s{S_X}, 3
    s_add_u32 s{sHs}, s{sHs}, s{sT1}
    s_lshl_b32 s{sT1}, s{S_X}, 5
    s_add_u32 s{sT1}, s{sT1}, s{S_J}
    s_mul_i32 s{sGb}, s{sT1}, 768
    s_lshl_b32 s{sSw}, s{sT1}, 10
    s_add_u32 s{sSw}, s{sSw}, {S_OFF}
    s_lshl_b32 s{sSr}, s{sH}, 12
    s_add_u32 s{sSr}, s{sSr}, {S_OFF}
    s_mov_b32 s{sSelT1}, 0x0c0c0400
    s_mov_b32 s{sSelT2}, 0x05040100
    s_mov_b32 s{sSelU1}, 0x0c04000c
    s_mov_b32 s{sSelU2}, 0x0402010c
    s_mov_b32 s{sC2}, {P['cexp']}
    s_mov_b32 s{sC2+1}, {P['cexp']}
    s_mov_b32 s{sHalf}, 0xff00ff00
    s_mov_b32 s{sHalf+1}, 0xff00ff00
    s_mov_b32 s{sExLo}, 0x00ff00ff
    s_mov_b32 s{sExLo+1}, 0x00ff00ff
    s_mul_i32 s{sMb}, s{S_X}, 10240
    s_add_u32 s{sMb}, s{sMb}, {M_OFF}""")
    srd(a, SRD_A, P_WQ, 640*6144*2)
    srd(a, SRD_B, P_WK, 640*6144*2)
    a(f"""v_mul_u32_u24 v56, 0x2aab, v{ln}
    v_lshrrev_b32 v56, 16, v56              ; lane/6
    v_mul_u32_u24 v57, 6, v56
    v_sub_u32 v57, v{ln}, v57
    v_mul_u32_u24 v56, 12288, v56
    v_lshl_add_u32 v56, v57, 4, v56
    s_mul_i32 s{sT0}, s{sHs}, 384
    s_mul_i32 s{sT1}, s{sCs}, 96
    s_add_u32 s{sT0}, s{sT0}, s{sT1}
    s_mul_i32 s{sT1}, s{S_WAVE}, {160*12288}
    s_add_u32 s{sT0}, s{sT0}, s{sT1}
    s_mul_i32 s{sT2}, s{S_WAVE}, {160*96}
    s_mov_b32 s{sEx}, -1
    s_mov_b32 s{sEx+1}, 0x0fffffff
    s_mov_b64 exec, s[{sEx}:{sEx+1}]""")
    for i in range(16):
        a(f"""s_add_u32 m0, s{sT2}, {960*i}
        s_add_u32 s{sT1}, s{sT0}, {10*i*12288}
        {dma(SRD_A, 56, f's{sT1}')}
        s_add_u32 m0, s{sT2}, {61440+960*i}
        s_nop 0
        {dma(SRD_B, 56, f's{sT1}')}""")
    a('s_mov_b64 exec, -1')
    a(f"""v_mov_b32 v64, -1
    v_mov_b32 v65, -1
    v_mov_b32 v66, -1
    v_mov_b32 v67, -1
    v_min_u32 v68, 47, v{ln}
    v_lshlrev_b32 v68, 4, v68
    v_add_u32 v68, s{sGb}, v68""")
    phys(a, 68, 69)
    a(f"""s_mul_i32 s{sT0}, s{S_WAVE}, {G_SLOT}
    s_add_u32 s{sT0}, s{sT0}, {G_OFF}
    s_add_u32 s{sT1}, s{sT0}, 8192""")
    a(W('store_dwordx4', 'v[64:67]', 68, f's{sT0}', 0, 'sc1'))
    a(W('store_dwordx4', 'v[64:67]', 68, f's{sT1}', 0, 'sc1'))
    a(f"""v_min_u32 v69, 19, v{ln}
    v_lshlrev_b32 v69, 4, v69
    s_mul_i32 s{sT0}, s{S_WAVE}, {M_SLOT}
    s_add_u32 s{sT0}, s{sT0}, s{sMb}
    s_mul_i32 s{sT1}, s{S_J}, 320
    s_add_u32 s{sT0}, s{sT0}, s{sT1}""")
    a(W('store_dwordx4', 'v[64:67]', 69, f's{sT0}', 0))
    a(W('store_dwordx4', 'v[64:67]', vL16, f's{sSw}', 0))
    if P['live']:
        a(f"""s_lshl_b32 s{sFl}, s{S_X}, 5
        s_add_u32 s{sFl}, s{sFl}, s{S_J}
        s_lshl_b32 s{sFl}, s{sFl}, 7
        s_add_u32 s{sFl}, s{sFl}, {FL_OFF}
        s_lshl_b32 s{sFy}, s{sH}, 9
        s_add_u32 s{sFy}, s{sFy}, {FL_OFF + (128+2)*128}
        s_lshl_b32 s{sFk}, s{sHs}, 9
        s_add_u32 s{sFk}, s{sFk}, {FL_OFF + 128*128}
        v_mov_b32 v70, 0""")
        a(W('store_dword', 'v70', 70, f's{sFl}', 0, 'sc1'))
    a(f"""s_waitcnt vmcnt(0)
    s_barrier""")
    lab = a.lab('noini')
    a(f"""s_cmp_lg_u32 s{S_WAVE}, 3
    s_cbranch_scc1 {lab}
    v_mov_b32 v68, {DBG_INIT}
    v_mov_b32 v69, 1
    s_mov_b64 exec, 1
    buffer_atomic_add v69, v68, s[{SRD_D}:{SRD_D+3}], 0 offen sc1
    s_mov_b64 exec, -1
    s_branch {lab}_e
    {lab}:""")
    a(f"""v_lshrrev_b32 v56, 1, v{g}
    v_lshlrev_b32 v56, 4, v56
    v_and_b32 v57, 1, v{g}
    v_lshl_add_u32 v56, v57, 2, v56
    v_bfe_u32 v57, v{n}, 2, 1
    v_add_u32 v56, v56, v57
    v_lshrrev_b32 v57, 3, v{n}
    v_lshl_add_u32 v56, v57, 3, v56
    v_mul_u32_u24 v56, 96, v56
    v_and_b32 v57, 3, v{n}
    v_lshl_add_u32 v56, v57, 3, v56
    s_lshl_b32 s{sT0}, s{S_WAVE}, 5
    v_add_u32 v56, s{sT0}, v56
    v_add_u32 v57, 61440, v56""")
    for i in range(40):
        t, v = i >> 2, i & 3
        off = (64*t + 32*(v >> 1) + 2*(v & 1))*96
        a(f"""ds_read_b64_tr_b16 {vr(vWq+2*i,2)}, v56 offset:{off}
        ds_read_b64_tr_b16 {vr(vWk+2*i,2)}, v57 offset:{off}""")
        if i % 4 == 3: a('s_waitcnt lgkmcnt(4)')
    a(f"""{lab}_e:
    s_waitcnt lgkmcnt(0)
    s_barrier""")
    WB = 36864
    frag = [8+4*i for i in range(12)] + [64+4*i for i in range(6)]
    F = lambda tc, kap: frag[tc*6+kap]
    srd(a, SRD_A, P_WO, 32*192*640*2)
    srd(a, SRD_B, P_WV, 640*6144*2)
    a(f"""v_mul_u32_u24 v56, 0x3334, v{ln}
    v_lshrrev_b32 v56, 16, v56              ; lane/5
    v_mul_u32_u24 v57, 5, v56
    v_sub_u32 v57, v{ln}, v57
    v_mul_u32_u24 v56, 1280, v56
    v_lshl_add_u32 v56, v57, 4, v56
    s_mul_i32 s{sT0}, s{sH}, {192*1280}
    s_mul_i32 s{sT1}, s{sCg}, 80
    s_add_u32 s{sT0}, s{sT0}, s{sT1}
    s_mul_i32 s{sT2}, s{S_WAVE}, {WB}
    s_mov_b64 exec, s[{sEx}:{sEx+1}]""")
    WOB = 3*6144
    for i in range(16):
        a(f"""s_add_u32 m0, s{sT2}, {WOB+960*i}
        s_add_u32 s{sT1}, s{sT0}, {12*i*1280}
        {dma(SRD_A, 56, f's{sT1}')}""")
    a('s_mov_b64 exec, -1')
    a(f"""v_lshrrev_b32 v58, 3, v{ln}
    v_bfe_u32 v57, v58, 1, 1
    v_lshlrev_b32 v56, 3, v57
    v_bfe_u32 v57, v58, 2, 1
    v_lshl_add_u32 v56, v57, 2, v56
    v_and_b32 v57, 1, v58
    v_add_u32 v56, v56, v57
    v_mul_u32_u24 v56, 12288, v56
    v_lshrrev_b32 v58, 1, v58
    v_and_b32 v57, 7, v{ln}
    v_xor_b32 v57, v57, v58
    v_lshl_add_u32 v1, v57, 4, v56          ; rows 0..7
    v_xor_b32 v57, 4, v57
    v_lshl_add_u32 v2, v57, 4, v56
    v_add_u32 v2, {16*12288}, v2            ; rows 8..15
    s_mul_i32 s{sT0}, s{sH}, 384""")
    a(f"""v_lshrrev_b32 v56, 3, v{n}
    v_mul_u32_u24 v56, 3072, v56
    v_and_b32 v57, 7, v{n}
    v_lshl_add_u32 v56, v57, 7, v56
    v_add_u32 v56, s{sT2}, v56
    v_lshrrev_b32 v57, 1, v{n}
    v_xor_b32 v57, v57, v{g}
    v_lshl_add_u32 v3, v57, 4, v56
    v_xor_b32 v57, 4, v57
    v_lshl_add_u32 v4, v57, 4, v56""")
    NB = 6
    def cload(tau):
        t, v = tau >> 2, tau & 3
        L = []
        for k in range(6):
            L.append(f"""s_add_u32 m0, s{sT2}, {6144*(tau % NB)+1024*k}
            s_add_u32 s{sT1}, s{sT0}, {(64*t+32*(v>>1)+2*(v&1))*12288 + 128*(k%3)}
            {dma(SRD_B, 1 if k < 3 else 2, f's{sT1}')}""")
        return L
    for tau in range(3):
        for s in cload(tau): a(s)
    a(f"""v_lshrrev_b32 v56, 2, v{n}
    v_lshl_add_u32 v56, v{g}, 3, v56
    v_mul_u32_u24 v56, 80, v56
    v_add_u32 v56, s{sT2}, v56
    v_and_b32 v57, 1, v{n}
    v_lshl_add_u32 v58, v57, 3, v56
    v_and_b32 v57, 3, v{n}
    v_lshl_add_u32 v56, v57, 3, v56
    s_waitcnt vmcnt(18)""")
    for kap in range(6):
        for v in range(2):
            for tc in range(3):
                a(f'ds_read_b64_tr_b16 {vr(F(tc,kap)+2*v,2)}, v{56 if tc < 2 else 58} offset:{WOB+(32*kap+4*v)*80+32*tc}')
        a('s_waitcnt lgkmcnt(6)')
    a('s_waitcnt lgkmcnt(0)')
    for tau in range(3, NB-1):
        for s in cload(tau): a(s)
    acc = [[240, 244, 248]]
    AF = [88, 92, 56]
    def rd(tau, k):
        return f'ds_read_b128 {vr(AF[k % 3])}, v{3 + (k & 1)} offset:{6144*(tau % NB) + 1024*(k >> 1)}'
    for tau in range(40):
        t, v = tau >> 2, tau & 3
        ld = cload(tau+NB-1) if tau+NB-1 < 40 else []
        a(f's_waitcnt vmcnt({6*min(NB-2, 39-tau)})')
        a(rd(tau, 0)); a(rd(tau, 1))
        for k in range(6):
            if k+2 < 6: a(rd(tau, k+2))
            a(f's_waitcnt lgkmcnt({min(2, 5-k)})')
            for tc in range(3):
                c = '0' if k == 0 else ar(240+4*tc)
                a(f'v_mfma_f32_16x16x32_bf16 {ar(240+4*tc)}, {vr(AF[k % 3])}, {vr(F(tc,k))}, {c}')
            if ld and k < 5: a(ld.pop(0))
        had = bool(ld)
        while ld: a(ld.pop(0))
        a.nop(3 if had else 6)
        for tc in range(3):
            d = (tc*10+t)*8 + 2*v
            a(f"""v_accvgpr_read_b32 v5, a{240+4*tc}
            v_accvgpr_read_b32 v6, a{241+4*tc}
            v_accvgpr_read_b32 v7, a{242+4*tc}
            v_accvgpr_read_b32 v63, a{243+4*tc}
            v_cvt_pk_bf16_f32 v5, v5, v6
            v_cvt_pk_bf16_f32 v7, v7, v63
            v_accvgpr_write_b32 a{d}, v5
            v_accvgpr_write_b32 a{d+1}, v7""")
    lp = a.lab('wini')
    a(f"""v_mov_b32 v64, {DBG_INIT}
    v_mov_b32 v65, {DBG_PAR}
    {lp}:
    buffer_load_dword v66, v64, s[{SRD_D}:{SRD_D+3}], 0 offen sc1
    buffer_load_dword v67, v65, s[{SRD_D}:{SRD_D+3}], 0 offen sc1
    s_add_u32 s{S_TO}, s{S_TO}, 1
    s_cmp_gt_u32 s{S_TO}, {TO_LIMIT}
    s_cbranch_scc1 L_exit
    s_waitcnt vmcnt(0)
    v_readfirstlane_b32 s{sT0}, v66
    v_readfirstlane_b32 s{sPar}, v67
    s_cmp_lt_u32 s{sT0}, {P['ninit']}
    s_cbranch_scc1 {lp}
    s_cmp_eq_u32 s{sPar}, 0
    s_cbranch_scc1 {lp}
    s_and_b32 s{sPar}, s{sPar}, 2
    s_lshl_b32 s{sPar}, s{sPar}, 12          ; 0 or 8192
    s_barrier""")
    a(f"""v_mov_b32 v64, 0x4444
    v_mov_b32 v65, 0xeeee
    v_cndmask_b32 v{vIdx}, v64, v65, s[{sHalf}:{sHalf+1}]
    s_lshl_b32 s{sT0}, s{S_WAVE}, 4
    v_add_u32 v64, s{sT0}, v{n}
    v_lshlrev_b32 v64, 4, v64
    v_and_b32 v65, 1, v{g}
    v_lshl_add_u32 v64, v65, 3, v64
    v_lshrrev_b32 v65, 1, v{g}
    v_lshl_add_u32 v{vQw}, v65, 2, v64
    v_lshlrev_b32 v{vKw}, 1, v{vQw}
    v_lshrrev_b32 v64, 3, v{n}
    v_lshlrev_b32 v64, 9, v64
    v_lshl_add_u32 v64, v{g}, 7, v64
    v_and_b32 v65, 7, v{n}
    v_lshl_add_u32 v{vY}, v65, 4, v64""")
    for r in range(vUP, vUP+8): a(f'v_mov_b32 v{r}, 0')
    a(f"""v_and_b32 v64, 0x1ff, v{vY}
    v_lshrrev_b32 v65, 3, v{n}
    v_lshl_add_u32 v{vD2}, v65, 3, v64""")
    a(f"""s_mov_b32 s{S_STEP}, 0
    s_mul_i32 s{sY}, s{sH}, 40960
    s_mul_i32 s{sT0}, s{sCg}, 2560
    s_add_u32 s{sY}, s{sY}, s{sT0}
    s_add_u32 s{sY}, s{sY}, {Y_OFF}
    s_lshr_b32 s{sU}, s{sH}, 2
    s_mul_i32 s{sU}, s{sU}, 40960
    s_add_u32 s{sU}, s{sU}, s{sT0}
    s_add_u32 s{sU}, s{sU}, {U_OFF - 8*40960}
    s_mul_i32 s{sK}, s{sHs}, 12288
    s_mul_i32 s{sT0}, s{sCs}, 3072
    s_add_u32 s{sK}, s{sK}, s{sT0}
    s_add_u32 s{sK}, s{sK}, {K_OFF}
    s_mul_i32 s{sKm}, s{sHs}, 6144
    s_mul_i32 s{sT0}, s{sCs}, 1536
    s_add_u32 s{sKm}, s{sKm}, s{sT0}
    s_add_u32 s{sKm}, s{sKm}, {KM_OFF - 32*6144}""")
    srd(a, SRD_A, P_MEM0, 8*640*2)
    a(f"""v_and_b32 v63, 7, v{n}
    v_mul_u32_u24 v63, 1280, v63
    v_lshl_add_u32 v63, v{g}, 5, v63
    v_lshrrev_b32 v64, 3, v{n}
    v_lshl_add_u32 v40, v64, 4, v63
    v_mov_b32 v41, v{n}
    v_mov_b32 v42, v{g}
    v_mov_b32 v43, v{ln}
    s_cmp_eq_u32 s{S_WAVE}, 0
    s_cbranch_scc1 L_rec_0
    s_cmp_eq_u32 s{S_WAVE}, 1
    s_cbranch_scc1 L_rec_1
    s_cmp_eq_u32 s{S_WAVE}, 2
    s_cbranch_scc1 L_rec_2
    s_branch L_rec_3""")

def step_scalars(w):
    L = [f's_and_b32 s{sT0}, s{S_STEP}, 3',
         f's_mul_i32 s{sMr}, s{sT0}, {M_SLOT}',
         f's_add_u32 s{sMr}, s{sMr}, s{sMb}',
         f's_add_u32 s{sMr}, s{sMr}, {OWN[w][0]*1024}',
         f's_mul_i32 s{sG}, s{sT0}, {G_SLOT}',
         f's_add_u32 s{sTag}, s{S_STEP}, 1',
         f's_mul_i32 s{sTag3}, s{sTag}, 0x01010101']
    if w >= 2:
        L += [f's_add_u32 s{sG}, s{sG}, s{sPar}',
              f's_xor_b32 s{sGL}, s{sG}, 8192']
    if w == 3:
        L += [f's_xor_b32 s{sT0}, s{sT0}, 2',
              f's_mul_i32 s{sGp}, s{sT0}, {G_SLOT}',
              f's_add_u32 s{sGp}, s{sGp}, s{sPar}',
              f's_xor_b32 s{sGLp}, s{sGp}, 8192',
              f's_add_u32 s{sT0}, s{S_STEP}, 3',
              f's_and_b32 s{sT0}, s{sT0}, 3',
              f's_mul_i32 s{sMp}, s{sT0}, {M_SLOT}',
              f's_add_u32 s{sMp}, s{sMp}, s{sMb}',
              f'v_mov_b32 v{vFd}, s{S_STEP}']
    return L

def poll_known(o, lab, sKn, sF, thr, tmp):
    o(f"""{lab}:
    s_add_u32 s{S_TO}, s{S_TO}, 1
    s_cmp_gt_u32 s{S_TO}, {TO_LIMIT}
    s_cbranch_scc1 L_exit
    {W('load_dword', f'v{tmp}', 9, f's{sF}', 0, 'sc1')}
    s_waitcnt vmcnt(0)
    v_readfirstlane_b32 s{sKn}, v{tmp}
    s_cmp_lt_u32 s{sKn}, {thr}
    s_cbranch_scc1 {lab}""")

def kx_load():
    return [W('load_dwordx4', vr(vKS+4*i), vL16, f's{sK}', 1024*i, 'sc1') for i in range(3)] + [f's_add_u32 s{sK}, s{sK}, {32*12288}']
def kx_copy():
    return [f'v_mov_b32 v{vKF+8*xt+2*i+r}, v{vKS+4*i+2*xt+r}' for i in range(3) for xt in range(2) for r in range(2)]

def y_dma(w, tmp):
    d = lambda va, off: f'buffer_load_dwordx4 v{va}, s[{SRD_W}:{SRD_W+3}], s{sY} offen offset:{off} sc1 lds'
    return [f's_mov_b32 m0, {YB+3072*w}', f'v_and_b32 v{tmp}, 0x1ff, v{vL16}', d(vL16, 0), d(vL16, 1024), d(tmp, 2048), f's_add_u32 s{sY}, s{sY}, {32*40960}']
def y_read(w):
    return [f'ds_read_b128 {vr(vYt+4*t)}, v{vY} offset:{YB+3072*w+1024*t}' for t in range(3)]
def flag_w(base, w):
    return f'ds_write_b32 v{vL16}, v{vTag} offset:{base+4*w}'
def flag_r(dst, base):
    return f'ds_read_b128 {vr(dst)}, v{vZ} offset:{base}'
def flag_chk(dst, nf):
    L = [f'v_min3_u32 v{dst}, v{dst}, v{dst+1}, v{dst+2}']
    if nf == 4: L.append(f'v_min_u32 v{dst}, v{dst}, v{dst+3}')
    return L + [f'v_cmp_ne_u32 vcc, s{sTag}, v{dst}']

def fold(acc, dst):
    return [f'v_permlane32_swap_b32 v{acc}, v{acc+2}', f'v_permlane32_swap_b32 v{acc+1}, v{acc+3}',
            f'v_pk_add_f32 v[{acc}:{acc+1}], v[{acc}:{acc+1}], v[{acc+2}:{acc+3}]',
            f'v_cvt_pk_bf16_f32 v{dst}, v{acc}, v{acc+1}']

def smf(acc, t, breg):
    return f'v_smfmac_f32_16x16x64_bf16 {vr(acc)}, {vr(vMF+4*t)}, {breg}, v{vIdx}'

def pub_reads():
    return [f'ds_read_b128 {vr(vPU+4*t)}, v{vL16} offset:{UB+1024*t}' for t in range(3)]
def pub_stores():
    L = [W('store_dwordx4', vr(vPU+4*t), vY, f's{sU}', 1024*t, 'sc1') for t in range(2)]
    L += [f's_mov_b64 exec, s[{sExLo}:{sExLo+1}]\n' + W('store_dwordx4', vr(vPU+8), vY, f's{sU}', 2048, 'sc1') + '\ns_mov_b64 exec, -1']
    L += [W('store_dwordx4', vr(vKf), vL16, f's{sKm}', 0, 'sc1'), W('store_dwordx2', vr(vKf+4, 2), vL8, f's{sKm}', 1024, 'sc1')]
    return L

def rec_wave(a, tail, w, P):
    n, g, ln = 41, 42, 43
    nm = str(w)
    st = P['stamp']
    own = OWN[w]; oth = [t for t in range(10) if t not in own]
    a(f'L_rec_{nm}:')
    if w < 2:
        a(f"""v_min_u32 v64, 9, v{n}
        v_add_u32 v65, {10*w}, v64
        v_lshlrev_b32 v65, 4, v65
        s_and_b32 s{sT0}, s{S_J}, 1
        s_mul_i32 s{sT1}, s{sT0}, 384
        s_mul_i32 s{sT2}, s{sCg}, 1536
        s_add_u32 s{sT1}, s{sT1}, s{sT2}
        v_add_u32 v65, s{sT1}, v65
        v_and_b32 v66, 1, v{g}
        v_mul_u32_u24 v66, 768, v66
        v_add_u32 v65, v65, v66""")
        for rho, dst in ((0, vG0), (1, vG1)):
            a(f"""v_lshrrev_b32 v66, 1, v{g}
            v_add_u32 v66, {2*rho}, v66
            v_mul_u32_u24 v67, {32*768}, v66
            v_add_u32 v{dst}, v65, v67""")
            phys(a, dst, 67)
            a(f"""v_add_u32 v{dst}, s{sPar}, v{dst}
            v_xor_b32 v67, 8192, v{dst}
            v_cmp_eq_u32 vcc, s{S_X}, v66
            s_nop 1
            v_cndmask_b32 v{dst}, v{dst}, v67, vcc""")
        a(f"""v_lshrrev_b32 v66, 1, v64
        v_lshlrev_b32 v66, 7, v66
        v_and_b32 v67, 1, v64
        v_lshl_add_u32 v66, v67, 4, v66
        v_lshl_add_u32 v66, v{g}, 3, v66
        s_mul_i32 s{sT1}, s{sCg}, 640
        s_lshl_b32 s{sT0}, s{sT0}, 6
        s_add_u32 s{sT1}, s{sT1}, s{sT0}
        s_add_u32 s{sT1}, s{sT1}, {32*w}
        v_add_u32 v66, s{sT1}, v66
        v_accvgpr_write_b32 a{aMst}, v66
        s_mov_b32 s{sEx}, 0x03ff03ff
        s_mov_b32 s{sEx+1}, 0
        v_mov_b32 v68, 0""")
        build_sel(a, 72, n, 68, 0, 64)
        for r in range(4): a(f'v_accvgpr_write_b32 a{aSel+r}, v{72+r}')
    else:
        z = w - 2
        a(f"""v_min_u32 v64, 39, v{ln}
        v_lshlrev_b32 v{vGst}, 3, v64
        v_add_u32 v{vGst}, s{sGb}, v{vGst}
        v_add_u32 v{vGst}, {384*z}, v{vGst}""")
        phys(a, vGst, 65)
        a(f"""v_lshrrev_b32 v65, 1, v64
        v_cmp_le_u32 vcc, 10, v65
        s_nop 1
        v_cndmask_b32 v66, 0, 1, vcc          ; om
        v_mul_u32_u24 v67, 10, v66
        v_sub_u32 v65, v65, v67               ; r
        v_and_b32 v67, 1, v65
        v_lshl_add_u32 v67, v66, 1, v67
        v_add_u32 v67, {4*z}, v67             ; q
        v_lshlrev_b32 v67, 4, v67
        v_lshrrev_b32 v65, 1, v65             ; o'
        v_and_b32 v64, 1, v64                 ; hb
        v_and_b32 v66, 1, v65
        v_lshl_add_u32 v66, v66, 1, v64       ; g
        v_lshlrev_b32 v66, 8, v66
        v_bfe_u32 v68, v65, 1, 1
        v_lshl_add_u32 v66, v68, 7, v66       ; g*256 + t*128
        v_lshlrev_b32 v64, 7, v64
        v_add_u32 v64, 1024, v64
        v_cmp_eq_u32 vcc, 4, v65
        s_nop 1
        v_cndmask_b32 v66, v66, v64, vcc
        v_add_u32 v{vDr}, v66, v67
        s_mov_b32 s{sEx}, -1
        s_mov_b32 s{sEx+1}, 0xff""")
    if w == 3:
        a(f"""v_lshrrev_b32 v64, 2, v{n}
        v_lshl_add_u32 v64, v{g}, 2, v64
        v_lshlrev_b32 v64, 4, v64
        v_and_b32 v65, 1, v{n}
        v_lshl_add_u32 v{vQr}, v65, 3, v64
        v_bfe_u32 v65, v{n}, 1, 1
        v_lshlrev_b32 v65, 3, v65
        v_lshl_add_u32 v{vKr}, v{vQr}, 1, v65
        v_lshlrev_b32 v{vL8}, 3, v{ln}
        v_min_u32 v64, 47, v{ln}
        v_lshlrev_b32 v64, 4, v64
        v_add_u32 v{vPG}, s{sGb}, v64""")
        phys(a, vPG, 65)
        a(f"""v_min_u32 v64, 19, v{ln}
        v_lshrrev_b32 v65, 2, v64
        v_lshlrev_b32 v65, 7, v65
        v_and_b32 v64, 3, v64
        v_lshl_add_u32 v65, v64, 4, v65
        s_and_b32 s{sT0}, s{S_J}, 1
        s_lshl_b32 s{sT0}, s{sT0}, 6
        s_mul_i32 s{sT1}, s{sCg}, 640
        s_add_u32 s{sT1}, s{sT1}, s{sT0}
        v_add_u32 v{vPM}, s{sT1}, v65""")
        for r in range(4): a(f'v_mov_b32 v{vNeg+r}, -1')
        for r in (vKF+6, vKF+7, vKF+14, vKF+15, vQf+6, vQf+7, vKf+6, vKf+7): a(f'v_mov_b32 v{r}, 0')
        for s in P['wait_k0'](): a(s)
        if P['live']:
            a(f"""v_mov_b32 v64, 0xf0000000
            v_cmp_eq_u32 vcc, 0, v{ln}
            s_nop 1
            v_cndmask_b32 v{vFa}, v64, 0, vcc""")
            poll_known(a, a.lab('k0'), sKnK, sFk, 1, vFk)
        for s in kx_load(): a(s)
        a('s_waitcnt vmcnt(0)')
        for s in kx_copy(): a(s)
    for s in step_scalars(w): a(s)
    if P['live']: poll_known(a, a.lab('y0'), sKnY, sFy, 1, vFy)
    for s in y_dma(w, 44): a(s)
    for i, t in enumerate(own):
        a(f'buffer_load_dwordx4 {vr(vMF+4*t)}, v40, s[{SRD_A}:{SRD_A+3}], 0 offen offset:{128*t}')
    uz = [f'v_mov_b32 v{vUa+r}, 0' for r in range(12)]
    az = ([f'v_mov_b32 v{vAq+r}, 0' for r in range(8)] if w < 3 else []) + uz
    for s in az: a(s)
    a('s_waitcnt vmcnt(0)')
    for t in own: a(f'ds_write_b128 v{vL16}, {vr(vMF+4*t)} offset:{MB+1024*t}')
    o = []
    if w < 3:
        for t in own: o += [smf(vAq, t, vr(vWq+8*t, 8)), smf(vAk, t, vr(vWk+8*t, 8))]
    nb = P['own_before'] if w < 3 else 0
    for s in o[:nb]: a(s)
    a(f"""s_waitcnt lgkmcnt(0)
    s_branch L_rec_{nm}_m""")
    a(f'.p2align 6\nL_rec_{nm}_top0:')
    a(st(0))
    mld = [f'buffer_load_dwordx4 v{vL16}, s[{SRD_W}:{SRD_W+3}], s{sMr} offen offset:{1024*i} sc1 lds' for i, t in enumerate(own)]
    md = P['mdepth']
    for r in range(md-1):
        for s in mld: a(s)
        a.nop(P['mgap'])
    a(f'L_rec_{nm}_top:')
    for s in mld: a(s)
    for i, t in enumerate(own):
        a(f's_waitcnt vmcnt({len(own)*(md-1) + len(own)-1-i})')
        a(f'ds_read_b128 {vr(vMF+4*t)}, v{vL16} offset:{MB+1024*t}')
    b0 = vMF+4*own[0]
    lr = a.lab('rm')
    if w < 3:
        oo = list(o[:nb])
        pop = lambda: oo.pop(0) if oo else ''
        a(f"""s_waitcnt lgkmcnt(2)
        {pop()}
        v_max3_u32 v40, v{b0}, v{b0+1}, v{b0+2}
        s_waitcnt lgkmcnt(1)
        v_max3_u32 v41, v{b0+3}, v{b0+4}, v{b0+5}
        {pop()}
        v_max3_u32 v40, v40, v{b0+6}, v{b0+7}
        s_waitcnt lgkmcnt(0)
        v_max3_u32 v41, v41, v{b0+8}, v{b0+9}
        v_max3_u32 v40, v40, v{b0+10}, v{b0+11}
        {pop()}
        v_max_u32 v40, v40, v41
        v_cmp_eq_u32 vcc, -1, v40""")
        while oo: a(oo.pop(0))
        tail(f'{lr}_z:\ns_nop 7')
        for r in range(8): tail(f'v_mov_b32 v{vAq+r}, 0')
        tail(f's_branch L_rec_{nm}_top')
        retry(a, tail, lr, f'{lr}_z')
    else:
        a(f"""s_waitcnt lgkmcnt(0)
        v_max3_u32 v40, v{b0}, v{b0+1}, v{b0+2}
        v_max_u32 v40, v40, v{b0+3}
        v_cmp_eq_u32 vcc, -1, v40""")
        retry(a, tail, lr, f'L_rec_{nm}_top')
    a(f's_cbranch_vccnz {lr}')
    a(f'L_rec_{nm}_m:')
    a(st(1))
    reads = [f'ds_read_b128 {vr(vMF+4*t)}, v{vL16} offset:{MB+1024*t}' for t in oth]
    sld = lambda S: [W('load_dwordx4', vr(r), vL16, f's{sSr}', 1024*i, 'sc1') for i, r in enumerate(S)]
    uch = [smf(vUa+4*tc, t, ar((tc*10+t)*8, 8)) for tc in range(3) for t in range(10)]
    ufold = lambda tc: fold(vUa+4*tc, vUP+2*tc) + [f'ds_write_b32 v{vL16}, v{vUP+2*tc} offset:{UB+1024*tc+4*w}']
    nb_ = P.get('nobg', 0)
    a('s_barrier')
    a(st(2))
    if w < 3:
        for s in reads[:3]: a(s)
        for s in interleave(o[nb:], reads[3:], 2): a(s)
        for i, t in enumerate(oth):
            a(f's_waitcnt lgkmcnt({len(oth)-1-i})\n' + smf(vAq, t, vr(vWq+8*t, 8)))
        kch = [smf(vAk, t, vr(vWk+8*t, 8)) for t in oth]
        fq = fold(vAq, 40) + [f'ds_write_b32 v{vQw}, v40 offset:{QB}']
        sc = f'v_pk_mul_f32 v[{vAq}:{vAq+1}], v[{vAq}:{vAq+1}], s[{sC2}:{sC2+1}]'
        a(kch[0]); a('s_nop 1'); a(kch[1]); a('s_nop 1'); a(kch[2]); a('s_nop 0')
        a(fq[0]); a(kch[3]); a(fq[1]); a(fq[2]); a(kch[4]); a(sc); a(fq[3]); a(fq[4]); a(kch[5]); a(kch[6])
        if P['b2a']:
            a('s_nop 5\ns_waitcnt lgkmcnt(0)\ns_barrier')
        else:
            a.nop(8)
        for s in fold(vAk, 41): a(s)
        a(f'ds_write_b32 v{vKw}, v41 offset:{KB}')
        np_ = P['u_early']
        for s in uch[:np_]: a(s)
        a('s_waitcnt lgkmcnt(0)\ns_barrier')
        a(st(3)); a(st(4))
        upos, spos = np_, P['spos_o']
        pend = y_read(w)
    else:
        for s in reads: a(s)
        lb = a.lab('np')
        slow = []
        if P['live']:
            lk = a.lab('wk')
            slow = [f's_cmp_gt_u32 s{sKnK}, s{sTag}\ns_cbranch_scc0 {lk}\n{lk}_b:', W('load_dword', f'v{vFk}', 9, f's{sFk}', 0, 'sc1')]
            tail(f'{lk}:\ns_add_u32 s{sT1}, s{sTag}, 1\ns_min_u32 s{sT1}, s{sT1}, 64')
            poll_known(tail, f'{lk}_p', sKnK, sFk, f's{sT1}', vFk)
            tail(f's_branch {lk}_b')
        slow += ([] if nb_ & 2 else kx_load())
        if not nb_ & 8: slow += [W('store_dwordx4', vr(vNeg), vPG, f's{sGp}', 0, 'sc1')]
        for s in slow: a(s)
        a(f's_cmp_eq_u32 s{S_STEP}, 0\ns_cbranch_scc1 {lb}')
        for s in ([] if nb_ & 1 else pub_stores()): a(s)
        a(f'{lb}:\ns_add_u32 s{sU}, s{sU}, {8*40960}\ns_add_u32 s{sKm}, s{sKm}, {32*6144}')
        plain = [] if nb_ & 4 else [W('store_dwordx4', vr(vNeg), vPG, f's{sGLp}'), W('store_dwordx4', vr(vNeg), vPM, f's{sMp}')]
        a('s_waitcnt lgkmcnt(0)')
        np_ = P['u_pre']
        for s in interleave(uch[:np_], plain, 1): a(s)
        qrd = [f'ds_read_b64_tr_b16 {vr(vQf+2*i,2)}, v{vQr} offset:{QB+256*i}' for i in range(3)]
        krd = [f'ds_read_b64_tr_b16 {vr(vKf+2*i,2)}, v{vKr} offset:{KB+512*i}' for i in range(3)]
        xm = [f'v_mfma_f32_16x16x32_bf16 {vr(vD0)}, {vr(vKF)}, {vr(vQf)}, 0',
              f'v_mfma_f32_16x16x32_bf16 {vr(vD1)}, {vr(vKF+8)}, {vr(vQf)}, 0',
              f'v_mfma_f32_16x16x32_bf16 {vr(vD0)}, {vr(vKF+4)}, {vr(vQf+4)}, {vr(vD0)}',
              f'v_mfma_f32_16x16x32_bf16 {vr(vD1)}, {vr(vKF+12)}, {vr(vQf+4)}, {vr(vD1)}']
        mm_ = [f'v_mfma_f32_16x16x32_bf16 {vr(vDm)}, {vr(vKf)}, {vr(vQf)}, 0',
               f'v_mfma_f32_16x16x32_bf16 {vr(vDm)}, {vr(vKf+4)}, {vr(vQf+4)}, {vr(vDm)}']
        sel = [f'v_cndmask_b32 v{vPk+i}, v{vD0+i}, v{vD1+i}, s[{sHalf}:{sHalf+1}]' for i in range(4)]
        sel += [f'v_mov_b32_sdwa v{vPk}, s{sTag} dst_sel:BYTE_0 dst_unused:UNUSED_PRESERVE src0_sel:BYTE_0']
        a('s_barrier')
        if P['b2a']:
            for s in qrd: a(s)
            a('s_waitcnt lgkmcnt(0)')
            a(xm[0]); a(xm[1])
            a('s_barrier')
            a(st(3))
            for s in krd: a(s)
            a(xm[2]); a(xm[3])
            a('s_waitcnt lgkmcnt(0)')
            a(mm_[0]); a(mm_[1])
            a.nop(5)
            for s in sel: a(s)
        else:
            a(st(3))
            for s in qrd + krd: a(s)
            a('s_waitcnt lgkmcnt(3)')
            for s in xm: a(s)
            a('s_waitcnt lgkmcnt(0)')
            a(mm_[0]); a(mm_[1])
            a.nop(5)
            for s in sel: a(s)
        a(f"""v_cndmask_b32 v{vDm}, v{vDm}, v{vDm+1}, s[{sHalf}:{sHalf+1}]
        v_mov_b32_sdwa v{vPk+1}, v{vDm} dst_sel:BYTE_0 dst_unused:UNUSED_PRESERVE src0_sel:BYTE_1
        v_mov_b32_sdwa v{vPk+2}, v{vDm} dst_sel:BYTE_0 dst_unused:UNUSED_PRESERVE src0_sel:BYTE_2
        v_mov_b32_sdwa v{vPk+3}, v{vDm} dst_sel:BYTE_0 dst_unused:UNUSED_PRESERVE src0_sel:BYTE_3
        s_nop 0""")
        a(W('store_dwordx4', vr(vPk), vL16, f's{sSw}'))
        a(st(4))
        upos, spos = np_, P['spos_s']
        pend = y_read(w)
    if P['live']: pend.append(f'v_readfirstlane_b32 s{sKnY}, v{vFy}')
    done0 = done1 = False
    for i in range(upos, 30):
        a(uch[i])
        if i == spos: pend += sld(SETA)
        if not done0 and i >= 17: pend += ufold(0); done0 = True
        if not done1 and i >= 27: pend += ufold(1); done1 = True
        for _ in range(2):
            if pend: a(pend.pop(0))
    k = len(pend)
    while pend: a(pend.pop(0))
    if spos >= 30:
        if spos > 30: a.nop(spos-30)
        for s in sld(SETA): a(s)
        k += 4
    a.nop(max(0, 8-k))
    for s in ufold(2): a(s)
    a(f"""s_cmp_eq_u32 s{S_STEP}, 63
    s_cbranch_scc1 L_rec_{nm}_fin""")
    a.nop(P['sgap_s'] if w == 3 else P['sgap_o'])
    X, MV, T = 68, 72, 73
    ls = a.lab('ps')
    def scheck(o, S, fail):
        A, B, C, D = S
        o(f"""v_perm_b32 v{T}, v{A}, v{B}, s{sSelT1}
        v_perm_b32 v{T+1}, v{C}, v{D}, s{sSelT1}
        v_pk_add_f32 v[{X}:{X+1}], v[{A}:{A+1}], v[{B}:{B+1}]
        v_perm_b32 v{T}, v{T+1}, v{T}, s{sSelT2}
        v_pk_add_f32 v[{X+2}:{X+3}], v[{A+2}:{A+3}], v[{B+2}:{B+3}]
        v_cmp_ne_u32 vcc, s{sTag3}, v{T}
        v_perm_b32 v{MV}, v{A+2}, v{A+1}, s{sSelU1}
        v_perm_b32 v{T}, v{B+2}, v{B+1}, s{sSelU1}
        v_perm_b32 v{T+1}, v{C+2}, v{C+1}, s{sSelU1}
        v_perm_b32 v{T+2}, v{D+2}, v{D+1}, s{sSelU1}
        v_perm_b32 v{MV}, v{A+3}, v{MV}, s{sSelU2}
        v_perm_b32 v{T}, v{B+3}, v{T}, s{sSelU2}
        s_cbranch_vccnz {fail}
        v_perm_b32 v{T+1}, v{C+3}, v{T+1}, s{sSelU2}
        v_perm_b32 v{T+2}, v{D+3}, v{T+2}, s{sSelU2}
        v_pk_add_f32 v[{X}:{X+1}], v[{X}:{X+1}], v[{C}:{C+1}]
        v_pk_add_f32 v[{X+2}:{X+3}], v[{X+2}:{X+3}], v[{C+2}:{C+3}]
        v_pk_add_f32 v[{MV}:{MV+1}], v[{MV}:{MV+1}], v[{T+1}:{T+2}]
        v_pk_add_f32 v[{X}:{X+1}], v[{X}:{X+1}], v[{D}:{D+1}]
        v_pk_add_f32 v[{X+2}:{X+3}], v[{X+2}:{X+3}], v[{D+2}:{D+3}]""")
    a(st(5))
    if P['sdepth'] == 2:
        a(f'{ls}_a:')
        for s in sld(SETB): a(s)
        a('s_waitcnt vmcnt(4) lgkmcnt(0)')
        scheck(a, SETA, f'{ls}_b')
        tail(f'{ls}_b:')
        for s in sld(SETA): tail(s)
        tail('s_waitcnt vmcnt(4)')
        scheck(tail, SETB, f'{ls}_r')
        tail(f's_branch {ls}_j')
        retry(a, tail, f'{ls}_r', f'{ls}_a')
    else:
        a(f'{ls}_a:\ns_waitcnt vmcnt(0) lgkmcnt(0)')
        scheck(a, SETA, f'{ls}_r')
        tail(f'{ls}_b:')
        for s in sld(SETA): tail(s)
        tail(f's_branch {ls}_a')
        retry(a, tail, f'{ls}_r', f'{ls}_b')
    PB = 76
    yd = ([] if nb_ & 16 else y_dma(w, 25))
    nw2 = 3
    if P['live']:
        ly = a.lab('wy')
        yd[1] = yd[1] + f'\ns_cmp_gt_u32 s{sKnY}, s{sTag}\ns_cbranch_scc0 {ly}\n{ly}_b:'
        tail(f'{ly}:\ns_add_u32 s{sT1}, s{sTag}, 1')
        poll_known(tail, f'{ly}_p', sKnY, sFy, f's{sT1}', vFy)
        tail(f's_branch {ly}_b')
        yd.append(W('load_dword', f'v{vFy}', 9, f's{sFy}', 0, 'sc1')); nw2 += 1
        if w == 3:
            yd.append(W('store_dword', f'v{vFd}', vFa, f's{sFl}', 0, 'sc1')); nw2 += 1
    def two(k=2):
        o = []
        for _ in range(k): o.append(yd.pop(0) if yd else 's_nop 0')
        return '\n'.join(o)
    a(f"""{ls}_j:
    {'s_barrier' if P['b2c'] else ''}
    {st(6)}
    v_add_f32 v{MV}, v{MV}, v{MV+1}
    v_max3_f32 v{T}, v{X}, v{X+1}, v{X+2}
    v_max3_f32 v{T}, v{T}, v{X+3}, v{MV}
    {two()}
    v_max_f32_dpp v{T+1}, v{T}, v{T} row_ror:8 row_mask:0xf bank_mask:0xf
    v_max_f32_dpp v{T+2}, v{T}, v{T} row_ror:8 row_mask:0xf bank_mask:0xf
    {two(1) if P['yspread'] else two()}
    {'s_nop 0' if P['yspread'] else ''}
    v_permlane16_swap_b32 v{T+1}, v{T+2}
    v_max_f32 v{T}, v{T+1}, v{T+2}
    v_max_f32 v{T+1}, v{T+1}, v{T+2}
    {'s_nop 1' if P['yspread'] else two(max(2, len(yd)))}
    v_permlane32_swap_b32 v{T}, v{T+1}
    v_max_f32 v{T+1}, v{T}, v{T+1}
    v_pk_add_f32 v[{X}:{X+1}], v[{X}:{X+1}], v[{T+1}:{T+2}] op_sel_hi:[1,0] neg_lo:[0,1] neg_hi:[0,1]
    v_pk_add_f32 v[{X+2}:{X+3}], v[{X+2}:{X+3}], v[{T+1}:{T+2}] op_sel_hi:[1,0] neg_lo:[0,1] neg_hi:[0,1]
    v_sub_f32 v{MV}, v{MV}, v{T+1}
    v_exp_f32 v{X}, v{X}
    v_exp_f32 v{X+1}, v{X+1}
    v_exp_f32 v{X+2}, v{X+2}
    v_exp_f32 v{X+3}, v{X+3}
    v_cvt_pk_bf16_f32 v{PB}, v{X}, v{X+1}
    v_exp_f32 v{MV}, v{MV}
    v_cvt_pk_bf16_f32 v{PB+1}, v{X+2}, v{X+3}
    v_mov_b32_dpp v{PB+2}, v{PB} row_ror:8 row_mask:0xf bank_mask:0xf
    v_add_f32 v{T}, v{X}, v{X+1}
    v_mov_b32_dpp v{PB+3}, v{PB+1} row_ror:8 row_mask:0xf bank_mask:0xf
    v_mov_b32_dpp v{T+1}, v{MV} row_ror:8 row_mask:0xf bank_mask:0xf
    v_add_f32 v{T+2}, v{X+2}, v{X+3}
    v_mfma_f32_16x16x32_bf16 {vr(60)}, {vr(vYt+4)}, {vr(PB)}, 0
    v_cvt_pk_bf16_f32 v{vUP+6}, v{MV}, v{T+1}
    v_add_f32 v{T}, v{T}, v{MV}
    v_mfma_f32_16x16x32_bf16 {vr(56)}, {vr(vYt)}, {vr(PB)}, 0
    v_add_f32 v{T}, v{T}, v{T+2}
    {two(1)}
    v_mfma_f32_16x16x32_bf16 {vr(64)}, {vr(vYt+8)}, {vr(PB)}, 0
    v_add_f32_dpp v{T+1}, v{T}, v{T} row_ror:8 row_mask:0xf bank_mask:0xf
    v_add_f32_dpp v{T+2}, v{T}, v{T} row_ror:8 row_mask:0xf bank_mask:0xf
    v_mfma_f32_16x16x16_bf16 {vr(60)}, {vr(vUP+2,2)}, {vr(vUP+6,2)}, {vr(60)}
    v_and_b32 v26, 0x1ff, v{vY}
    v_permlane16_swap_b32 v{T+1}, v{T+2}
    v_mfma_f32_16x16x16_bf16 {vr(56)}, {vr(vUP,2)}, {vr(vUP+6,2)}, {vr(56)}
    v_add_f32 v{T}, v{T+1}, v{T+2}
    v_add_f32 v{T+1}, v{T+1}, v{T+2}
    v_mfma_f32_16x16x16_bf16 {vr(64)}, {vr(vUP+4,2)}, {vr(vUP+6,2)}, {vr(64)}
    {two(1)}
    v_permlane32_swap_b32 v{T}, v{T+1}
    v_add_f32 v{T}, v{T}, v{T+1}
    v_rcp_f32 v{T}, v{T}
    {f'v_and_b32 v24, 0x70, v{vDr}' if w >= 2 else 's_nop 0'}
    v_mov_b32_dpp v56, v60 row_ror:8 row_mask:0xf bank_mask:0xc
    v_mov_b32_dpp v57, v61 row_ror:8 row_mask:0xf bank_mask:0xc
    v_mov_b32_dpp v58, v62 row_ror:8 row_mask:0xf bank_mask:0xc
    v_mov_b32_dpp v59, v63 row_ror:8 row_mask:0xf bank_mask:0xc
    ds_write_b128 v{vL16}, {vr(56)} offset:{DB+1536*w}
    v_mov_b32_dpp v64, v66 row_ror:8 row_mask:0xf bank_mask:0xc
    v_mov_b32_dpp v65, v67 row_ror:8 row_mask:0xf bank_mask:0xc
    ds_write_b32 v26, v{T} offset:{RB+4*w}
    ds_write_b64 v{vD2}, v[64:65] offset:{DB+1536*w+1024}
    {two(len(yd))}
    {f's_mov_b64 exec, s[{sEx}:{sEx+1}]' if w >= 2 else ''}
    s_waitcnt lgkmcnt(0)
    s_barrier""")
    a(st(7))
    nxt = [f's_add_u32 s{S_STEP}, s{S_STEP}, 1'] + step_scalars(w)
    if w >= 2:
        a(f'ds_read_b128 {vr(72)}, v24 offset:{RB}')
        for i in range(4): a(f'ds_read_b128 {vr(56+4*i)}, v{vDr} offset:{DB+1536*i}')
        a(f"""s_waitcnt lgkmcnt(3)
        v_pk_mul_f32 v[76:77], v[56:57], v[72:73] op_sel_hi:[1,0]
        v_pk_mul_f32 v[78:79], v[58:59], v[72:73] op_sel_hi:[1,0]
        s_waitcnt lgkmcnt(2)
        v_pk_fma_f32 v[76:77], v[60:61], v[72:73], v[76:77] op_sel:[0,1,0] op_sel_hi:[1,1,1]
        v_pk_fma_f32 v[78:79], v[62:63], v[72:73], v[78:79] op_sel:[0,1,0] op_sel_hi:[1,1,1]
        s_waitcnt lgkmcnt(1)
        v_pk_fma_f32 v[76:77], v[64:65], v[74:75], v[76:77] op_sel_hi:[1,0,1]
        v_pk_fma_f32 v[78:79], v[66:67], v[74:75], v[78:79] op_sel_hi:[1,0,1]
        s_waitcnt lgkmcnt(0)
        v_pk_fma_f32 v[76:77], v[68:69], v[74:75], v[76:77] op_sel:[0,1,0] op_sel_hi:[1,1,1]
        v_pk_fma_f32 v[78:79], v[70:71], v[74:75], v[78:79] op_sel:[0,1,0] op_sel_hi:[1,1,1]
        v_cvt_pk_bf16_f32 v76, v76, v77
        v_cvt_pk_bf16_f32 v77, v78, v79
        v_min_u32 v76, -2, v76""")
        a(W('store_dwordx2', 'v[76:77]', vGst, f's{sG}', 0, 'sc1'))
        a(W('store_dwordx2', 'v[76:77]', vGst, f's{sGL}'))
        a(st(8)); a(st(9))
        a(f's_mov_b64 exec, -1\ns_waitcnt vmcnt({nw2+2})')
        if w == 3:
            for s in pub_reads() + kx_copy(): a(s)
            if P['live']: a(f'v_readfirstlane_b32 s{sKnK}, v{vFk}')
        for s in P['progress'](w): a(s)
        for s in nxt + az: a(s)
        a('s_waitcnt lgkmcnt(0)')
    else:
        a(f's_waitcnt vmcnt({nw2}) lgkmcnt(0)')
        for s in az: a(s)
        a(f"""v_accvgpr_read_b32 v42, a{aMst}
        s_and_b32 s{sT0}, s{sTag}, 3
        s_mul_i32 s{sMw}, s{sT0}, {M_SLOT}
        s_add_u32 s{sMw}, s{sMw}, s{sMb}
        s_mov_b32 s{sGp}, s{sG}""")
        for s in nxt: a(s)
        if P['sleep_g']: a(f"s_sleep {P['sleep_g']}")
        a.nop(P['nop_g'])
        dep = P['gdepth']
        gl = lambda r: [W('load_dwordx4', vr(60+8*r), vG0, f's{sGp}', 0, 'sc1'), W('load_dwordx4', vr(64+8*r), vG1, f's{sGp}', 0, 'sc1')]
        lg = a.lab('pg')
        a(st(8))
        for r in range(dep-1):
            for s in gl(r): a(s)
            a.nop(P['ggap'])
        a(f'{lg}:')
        for r in range(dep):
            for s in gl((r+dep-1) % dep): a(s)
            b = 60+8*r
            a(f"""s_waitcnt vmcnt({2*(dep-1)})
            v_mfma_f32_16x16x32_bf16 {vr(56)}, {ar(aSel)}, {vr(b)}, 0
            v_max3_u32 v40, v{b}, v{b+2}, v{b+4}
            v_max_u32 v40, v40, v{b+6}
            v_mfma_f32_16x16x32_bf16 {vr(56)}, {ar(aSel)}, {vr(b+4)}, {vr(56)}
            v_cmp_eq_u32 vcc, -1, v40
            s_nop 4
            s_cbranch_vccz {lg}_ok""")
        a(f"""s_add_u32 s{S_TO}, s{S_TO}, 1
        s_cmp_gt_u32 s{S_TO}, {TO_LIMIT}
        s_cbranch_scc1 L_exit
        s_branch {lg}
        {lg}_ok:
        {st(9)}
        s_mov_b64 exec, s[{sEx}:{sEx+1}]
        v_cvt_pk_bf16_f32 v40, v56, v57
        v_cvt_pk_bf16_f32 v41, v58, v59
        v_min_u32 v40, -2, v40
        v_min_u32 v41, -2, v41""")
        a(W('store_dwordx2', 'v[40:41]', 42, f's{sMw}'))
        a('s_mov_b64 exec, -1')
    a('s_barrier')
    a(st(10))
    a(P['dump'](a, w))
    a(f's_mov_b32 m0, {MB+1024*own[0]}')
    a.nop(P['dm'])
    a(f's_branch L_rec_{nm}_top0')
    a(f"""L_rec_{nm}_fin:
    s_waitcnt lgkmcnt(0)
    s_barrier""")
    if w == 3:
        for s in pub_reads(): a(s)
        a('s_waitcnt lgkmcnt(0)')
        for s in pub_stores(): a(s)
        if P['live']:
            a(f'v_mov_b32 v{vFd}, 64\ns_waitcnt vmcnt(0)')
            a(W('store_dword', f'v{vFd}', vFa, f's{sFl}', 0, 'sc1'))
    a('s_branch L_rec_done')

def rec_role(a, P):
    tail = Asm(); tail.uid = 100000
    a('L_rec:')
    rec_prologue(a, P)
    for w in range(4):
        rec_wave(a, tail, w, P)
    a.lines += tail.lines
    a(f"""L_rec_done:
    s_waitcnt vmcnt(0)
    s_barrier""")
    for s in P['done'](): a(s)
    a('s_branch L_exit')
```

```python
G_OFF   = 0x0;       G_SLOT = 0x30000
CAL_OFF = 0xC0000
M_OFF   = 0x100000;  M_SLOT = 0xA000
S_OFF   = 0x130000
XF_OFF  = 0x150000
FL_OFF  = 0x160000
K_OFF   = 0x200000
V_OFF   = K_OFF + 0x1800000
Y_OFF   = V_OFF + 0x1800000
U_OFF   = Y_OFF + 0x5000000
KM_OFF  = U_OFF + 0x1420000
PX_OFF  = KM_OFF + 0x600000
PQ_OFF  = PX_OFF + 0x400000
PK_OFF  = PQ_OFF + 0x280000
VV_OFF  = PK_OFF + 0x280000
O_OFF   = VV_OFF + 0x280000
GT_OFF  = O_OFF + 0x280000
KV_OFF  = GT_OFF + 0x10000
BP_OFF  = KV_OFF + 0xF0000
EX_OFF  = BP_OFF + 0x1400000
WS_USED = 254 << 20
DBG_TICK = 0
DBG_INIT = 4
DBG_PAR  = 144
```

```python
from gen_common import *
import gen_par as gp
import gen_rec as gr

def worker_id(a):
    a(f"""L_tofinal:
    s_mul_i32 s{gp.sWk}, s{gp.sH}, 3
    s_and_b32 s{gp.sT0}, s{S_J}, 3
    s_add_u32 s{gp.sWk}, s{gp.sWk}, s{gp.sT0}
    s_cmp_ge_u32 s{gp.sWk}, 95
    s_cbranch_scc1 L_exit""")

def staged(stage, P, tstamp=True):
    a = Asm(); P = dict(P)
    P.update(after_kvy='s_branch L_exit', pre_y=lambda a: None, v_known=100, pre_beta=lambda a: None, r_known=100,
             q_refresh=lambda r: [], q_wait=lambda a, r: None, q_update=lambda r: [], final_wait=lambda a: None)
    a('s_memrealtime s[96:97]')
    common_entry(a)
    if stage == 'rec':
        a(f"""s_cmp_lt_u32 s{S_X}, 4
        s_cbranch_scc1 L_rec
        s_cmp_lg_u32 s{S_X}, 4
        s_cbranch_scc1 L_exit
        s_cmp_lg_u32 s{S_J}, 0
        s_cbranch_scc1 L_exit
        s_cmp_lg_u32 s{S_WAVE}, 0
        s_cbranch_scc1 L_exit""")
        calibrate(a)
        a('s_branch L_exit')
        rec_role(a, P)
    else:
        a(f's_cmp_lt_u32 s{S_X}, 4\ns_cbranch_scc1 L_exit')
        gp.lanes(a); gp.head_ids(a)
        a(f's_and_b32 s{gp.sT0}, s{S_J}, 3')
        tgt = {'s1': ['L_k', 'L_v', 'L_exit', 'L_alpha'], 's2': ['L_exit', 'L_exit', 'L_y', 'L_beta'],
               'q': ['L_exit']*3 + ['L_q'], 'fin': ['L_tofinal']*3 + ['L_exit']}[stage]
        for i in range(3): a(f's_cmp_eq_u32 s{gp.sT0}, {i}\ns_cbranch_scc1 {tgt[i]}')
        a(f's_branch {tgt[3]}')
        if stage == 's1':
            gp.kv_role(a, 'k', P_WK, K_OFF, 'sc1', P); gp.kv_role(a, 'v', P_WV, V_OFF, '', P)
            gp.alpha_role(a, P)
        if stage == 's2':
            gp.y_role(a, P); gp.beta_role(a, P)
        if stage == 'q': gp.q_role(a, P)
        if stage == 'fin':
            worker_id(a); gp.final_role(a, P)
    a(f"""L_exit:
    s_waitcnt vmcnt(0)
    s_memrealtime s[98:99]
    s_lshl_b32 s94, s{S_X}, 5
    s_add_u32 s94, s94, s{S_J}
    s_lshl_b32 s94, s94, 3
    s_add_u32 s94, s94, {FL_OFF+0x10000}
    s_waitcnt lgkmcnt(0)
    v_mov_b32 v10, s96
    v_mov_b32 v11, s98
    v_mov_b32 v12, 0
    {W('store_dwordx2', 'v[10:11]', 12, 's94')}
    s_waitcnt vmcnt(0)
    s_endpgm""")
    return a

def merged(P, diag=False):
    a = Asm(); P = dict(P)
    def pre_beta(a):
        gp.wait_init(a, 256)
        gp.wait_flags(a, gp.vFa, 0, 1)
    def q_wait(a, r):
        a(f's_add_u32 s{gp.sT1}, s{S_STEP}, 1')
        gp.wait_flags(a, gp.vFa, 0, f's{gp.sT1}', sleep=1)
    def q_update(r):
        L = [f'v_readlane_b32 s{gp.sT0+i}, v{r}, {i}' for i in range(4)]
        return L + [f's_min_u32 s{gp.sT0}, s{gp.sT0}, s{gp.sT1}', f's_min_u32 s{gp.sT2}, s{gp.sT2}, s{gp.sT3}', f's_min_u32 s{gp.sKn}, s{gp.sT0}, s{gp.sT2}']
    def final_wait(a):
        a(f's_add_u32 s{gp.sT1}, s{S_STEP}, 3')
        gp.wait_flags(a, gp.vFa, 0, f's{gp.sT1}', sleep=P.get('fsleep', 8))
    P.update(live=1, ninit=256, after_kvy='s_branch L_tofinal', pre_y=lambda a: gp.wait_init(a, 256), v_known=0, pre_beta=pre_beta, r_known=0,
             q_refresh=lambda r: [W('load_dword', f'v{r}', gp.vFa, 0, 0, 'sc1')], q_wait=q_wait, q_update=q_update, final_wait=final_wait)
    mark = (lambda i: a(f's_memrealtime s[{96+2*i}:{97+2*i}]')) if diag else (lambda i: None)
    mark(0)
    if diag:
        a('s_mov_b32 s98, 0')
        P['wait_k0'] = lambda: ['s_memrealtime s[98:99]']
    common_entry(a)
    a(f's_cmp_lt_u32 s{S_X}, 4\ns_cbranch_scc1 L_rec')
    gp.lanes(a); gp.head_ids(a)
    l = a.lab('ini')
    a(f"""s_cmp_lg_u32 s{S_WAVE}, 0
    s_cbranch_scc1 {l}
    s_mov_b64 exec, 1
    {W('store_dword', f'v{gp.vZ}', gp.vZ, f's{gp.sFl}', 0, 'sc1')}
    v_mov_b32 v10, {DBG_INIT}
    v_mov_b32 v11, 1
    s_waitcnt vmcnt(0)
    buffer_atomic_add v11, v10, s[{SRD_D}:{SRD_D+3}], 0 offen sc1
    s_mov_b64 exec, -1
    s_cmp_lg_u32 s{S_J}, 31
    s_cbranch_scc1 {l}
    s_cmp_lg_u32 s{S_X}, 7
    s_cbranch_scc1 {l}""")
    calibrate(a)
    a(f"""{l}:
    s_and_b32 s{gp.sT0}, s{S_J}, 3
    s_cmp_eq_u32 s{gp.sT0}, 0
    s_cbranch_scc1 L_k
    s_cmp_eq_u32 s{gp.sT0}, 1
    s_cbranch_scc1 L_v
    s_cmp_eq_u32 s{gp.sT0}, 2
    s_cbranch_scc1 L_y""")
    gp.alpha_role(a, P)
    gp.beta_role(a, P)
    mark(1)
    a(f"""v_and_b32 v{gp.vFa}, 3, v{gp.vLn}
    s_lshl_b32 s{gp.sT0}, s{gp.sH}, 2
    v_add_u32 v{gp.vFa}, s{gp.sT0}, v{gp.vFa}
    v_lshlrev_b32 v{gp.vFa}, 7, v{gp.vFa}
    v_add_u32 v{gp.vFa}, {FL_OFF}, v{gp.vFa}""")
    gp.q_role(a, P)
    a('s_branch L_exit')
    gp.kv_role(a, 'k', P_WK, K_OFF, 'sc1', P); gp.kv_role(a, 'v', P_WV, V_OFF, '', P)
    gp.y_role(a, P)
    worker_id(a)
    mark(1)
    gp.wait_init(a, 256)
    gp.final_role(a, P)
    a('L_exit:')
    if diag:
        a(f"""s_waitcnt vmcnt(0)
        s_cmp_lg_u32 s{S_WAVE}, 3
        s_cbranch_scc1 L_exit2
        s_memrealtime s[100:101]
        s_lshl_b32 s94, s{S_X}, 5
        s_add_u32 s94, s94, s{S_J}
        s_lshl_b32 s94, s94, 4
        s_add_u32 s94, s94, {FL_OFF+0x10000}
        s_waitcnt lgkmcnt(0)
        v_mov_b32 v12, s96
        v_mov_b32 v13, s98
        v_mov_b32 v14, s100
        v_mov_b32 v15, s{S_TO}
        v_mov_b32 v10, 0
        {W('store_dwordx4', 'v[12:15]', 10, 's94')}
        L_exit2:""")
    a('s_waitcnt vmcnt(0)\ns_endpgm')
    rec_role(a, P)
    return a

KNAME = 'gated_mix__linear_attn_block__memory_aug_recurrent_mem_tr__prompt_kernel'
def final_text(P):
    ref = open('gated_mix__linear_attn_block__memory_aug_recurrent_mem_tr__prompt.s.ref').read()
    top = ''.join(l+'\n' for l in ref.split('\n') if l.startswith(';') and '@launch' not in l)
    return top + head(KNAME, 163840) + merged(P).text() + KD.format(name=KNAME)
if __name__ == '__main__':
    import sys
    out = sys.argv[1] if len(sys.argv) > 1 else 'gated_mix__linear_attn_block__memory_aug_recurrent_mem_tr__prompt.s'
    P = dict(DEFP)
    for spec in sys.argv[2:]:
        for kv in spec.split(','):
            k, v = kv.split('='); P[k] = int(v)
    open(out, 'w').write(final_text(P))
```

```python
from asmb import *
from lay import *
from gen_rec import *

def common_entry(a):
    a(f"""s_load_dwordx16 s[8:23], s[0:1], 0
    s_load_dwordx8 s[24:31], s[0:1], 64
    s_load_dwordx4 s[32:35], s[0:1], 96
    s_getreg_b32 s{S_X}, hwreg(HW_REG_XCC_ID, 0, 3)
    v_lshrrev_b32 v1, 6, v0
    s_mov_b32 s{S_TO}, 0
    v_readfirstlane_b32 s{S_WAVE}, v1
    s_waitcnt lgkmcnt(0)
    s_add_u32 s{P_WS}, s{P_WS}, 0x1fffff
    s_addc_u32 s{P_WS+1}, s{P_WS+1}, 0
    s_and_b32 s{P_WS}, s{P_WS}, 0xffe00000""")
    srd(a, SRD_W, P_WS, WS_USED)
    srd(a, SRD_D, P_DBG, 256)
    lab = a.lab('tk')
    a(f"""v_mov_b32 v1, 0
    s_cmp_lg_u32 s{S_WAVE}, 0
    s_cbranch_scc1 {lab}
    s_lshl_b32 s{S_J}, s{S_X}, 5
    v_mov_b32 v2, s{S_J}
    v_mov_b32 v3, 1
    s_mov_b64 exec, 1
    buffer_atomic_add v3, v2, s[{SRD_D}:{SRD_D+3}], 0 offen offset:{DBG_TICK} sc0 sc1
    s_waitcnt vmcnt(0)
    ds_write_b32 v1, v3
    s_mov_b64 exec, -1
    s_waitcnt lgkmcnt(0)
    {lab}:
    s_barrier
    ds_read_b32 v2, v1
    s_waitcnt lgkmcnt(0)
    v_readfirstlane_b32 s{S_J}, v2
    s_barrier
    s_cmp_ge_u32 s{S_J}, 32
    s_cbranch_scc1 L_exit""")

def calibrate(a, nsamp=8, diag=False):
    a(f"""v_mbcnt_lo_u32_b32 v11, -1, 0
    v_mbcnt_hi_u32_b32 v11, -1, v11
    v_and_b32 v12, 31, v11
    v_lshlrev_b32 v12, 8, v12
    v_lshrrev_b32 v13, 5, v11
    v_lshl_add_u32 v12, v13, 13, v12
    s_mov_b32 s86, {CAL_OFF}""")
    a(W('store_dword', 'v11', 12, f's86', 0, 'sc1'))
    a(f"""s_waitcnt vmcnt(0)
    s_mov_b32 s80, -1
    s_mov_b32 s81, -1
    v_mov_b32 v12, 0""")
    for i in range(nsamp):
        for p in range(2):
            a(f"""s_mov_b32 s86, {CAL_OFF + 8192*p + 256*i}
            s_memtime s[82:83]
            s_waitcnt lgkmcnt(0)""")
            a(W('load_dword', 'v13', 12, f's86', 0, 'sc1'))
            a(f"""s_waitcnt vmcnt(0)
            s_memtime s[84:85]
            s_waitcnt lgkmcnt(0)
            s_sub_u32 s82, s84, s82
            s_min_u32 s{80+p}, s{80+p}, s82""")
            if diag: a(f'v_writelane_b32 v14, s82, {2*i+p}')
    if diag:
        a(f'v_lshlrev_b32 v12, 2, v11\ns_mov_b32 s86, {FL_OFF+0x18000}')
        a(W('store_dword', 'v14', 12, 's86'))
    a(f"""s_cmp_lt_u32 s80, s81
    s_cselect_b32 s82, 2, 1
    v_mov_b32 v12, {DBG_PAR}
    v_mov_b32 v13, s82
    s_mov_b64 exec, 1
    buffer_store_dword v13, v12, s[{SRD_D}:{SRD_D+3}], 0 offen sc1
    s_mov_b64 exec, -1""")

KD = """
.section .rodata,"a"
.p2align 6
.amdhsa_kernel {name}
  .amdhsa_next_free_vgpr 512
  .amdhsa_next_free_sgpr 102
  .amdhsa_accum_offset 256
  .amdhsa_group_segment_fixed_size 0
  .amdhsa_kernarg_size 112
  .amdhsa_user_sgpr_count 2
  .amdhsa_user_sgpr_kernarg_segment_ptr 1
  .amdhsa_system_sgpr_workgroup_id_x 1
.end_amdhsa_kernel
"""
def head(name, lds):
    return f"""; @launch grid=(256,1,1) block=(256,1,1) lds={lds}
.amdgcn_target "amdgcn-amd-amdhsa--gfx950"
.text
.globl {name}
.p2align 8
.type {name},@function
{name}:
"""
import struct, math
def fbits(x): return '0x%08x' % struct.unpack('<I', struct.pack('<f', x))[0]
DEFP = dict(cexp=fbits(192**-0.5 * math.log2(math.e)), ninit=128, live=0, qsplit=28, own_before=0, b2a=1, b2c=1, u_early=2, u_pre=4, spos_s=20, spos_o=22,
            sgap_s=0, sgap_o=8, sdepth=2, mdepth=2, mgap=24, yspread=1,
            sleep_g=7, nop_g=0, gdepth=3, ggap=48, dm=48,
            wait_k0=lambda: [], wait_k=lambda: [], wait_y=lambda w: [], wait_y0=lambda w: [], progress=lambda w: [], done=lambda: [], stamp=lambda i: '', dump=lambda a, w: '')
```

```python
from asmb import *
from lay import *
from gen_rec import (S_WAVE, S_X, S_J, S_STEP, S_TO, P_X, P_WQKV, P_WOA, P_WQ, P_WK, P_WV, P_WO, P_GATE, P_OUT,
                     SRD_W, SRD_A, SRD_B, SRD_D, TO_LIMIT, srd, W)
import struct, math
def fbits(x): return '0x%08x' % struct.unpack('<I', struct.pack('<f', x))[0]
OOB = 0xF0000000
EXP = {}
sH, sI, sCol, sT0, sT1, sT2, sT3, sXo, sBufW, sBufR, sOut, sOutN, sEnd, sFl, sFv, sKn, sHave = range(52, 69)
sK, sKm, sGt, sWk, sCb, sY, sU, sP, sO, sB, sQt = range(69, 80)
sMask = 80
sC2 = 88
sEx = 90
sDl, sFb = 94, 95
sStr, sXs, sDone, sPh = 90, 91, 78, 79
vN, vG, vLn, vL16, vYp, vXs, vR0, vR1, vZ, vFa = range(0, 10)

def lanes(a):
    a(f"""v_and_b32 v{vLn}, 63, v0
    v_lshrrev_b32 v{vG}, 4, v{vLn}
    v_and_b32 v{vN}, 15, v{vLn}
    v_lshlrev_b32 v{vL16}, 4, v{vLn}
    v_lshrrev_b32 v10, 3, v{vN}
    v_lshlrev_b32 v10, 9, v10
    v_lshl_add_u32 v10, v{vG}, 7, v10
    v_and_b32 v11, 7, v{vN}
    v_lshl_add_u32 v{vYp}, v11, 4, v10
    v_mov_b32 v{vZ}, 0""")

def dmark(a, i):
    if not EXP.get('marks'): return
    a(f"""s_memrealtime s[100:101]
    s_add_u32 s99, s{sFl}, {0x20000 + 4*i}
    s_waitcnt lgkmcnt(0)
    v_mov_b32 v10, s100
    {W('store_dword', 'v10', vZ, 's99')}""")

def flag_addr(x, j):
    return FL_OFF + (32*x + j)*128

def set_flag(a, val, fl='sc1'):
    l = a.lab('sf')
    a(f"""s_cmp_lg_u32 s{S_WAVE}, 0
    s_cbranch_scc1 {l}
    v_mov_b32 v10, {val}
    s_mov_b64 exec, 1
    {W('store_dword', 'v10', vZ, f's{sFl}', 0, fl)}
    s_mov_b64 exec, -1
    {l}:""")

def wait_flags(a, va, so, thr, tmp=10, sleep=2):
    l = a.lab('wf')
    a(f"""s_branch {l}_go
    {l}:
    s_sleep {sleep}
    s_add_u32 s{S_TO}, s{S_TO}, 1
    s_cmp_gt_u32 s{S_TO}, {TO_LIMIT}
    s_cbranch_scc1 L_exit
    {l}_go:
    {W('load_dword', f'v{tmp}', va, so, 0, 'sc1')}
    s_waitcnt vmcnt(0)
    v_cmp_gt_u32 vcc, {thr}, v{tmp}
    s_cbranch_vccnz {l}""")

def wait_init(a, n):
    l = a.lab('wi')
    a(f"""v_mov_b32 v11, {DBG_INIT}
    s_branch {l}_go
    {l}:
    s_sleep 4
    s_add_u32 s{S_TO}, s{S_TO}, 1
    s_cmp_gt_u32 s{S_TO}, {TO_LIMIT}
    s_cbranch_scc1 L_exit
    {l}_go:
    buffer_load_dword v10, v11, s[{SRD_D}:{SRD_D+3}], 0 offen sc1
    s_waitcnt vmcnt(0)
    v_cmp_gt_u32 vcc, {n}, v10
    s_cbranch_vccnz {l}""")

def load_w(a, rstride, nblk, RC, nchunk, nbuf, mapt, ntile, pr0, dest, private=False, tv=16):
    csz = nblk*RC*128
    vS, vB, vT = tv, tv+1, tv+2
    tmp = tv+2+ntile
    a(f"""v_lshrrev_b32 v{tmp}, 3, v{vLn}
    v_mul_u32_u24 v{vS}, {rstride}, v{tmp}""")
    if mapt == 'A':
        a(f"""v_bfe_u32 v{tmp}, v{tmp}, 1, 1
        s_and_b32 s{sT0}, s{S_WAVE}, 1
        s_lshl_b32 s{sT0}, s{sT0}, 1
        v_add_u32 v{tmp}, s{sT0}, v{tmp}""")
    else:
        a(f'v_lshrrev_b32 v{tmp}, 1, v{tmp}')
    a(f"""v_lshlrev_b32 v{tmp}, 1, v{tmp}
    v_and_b32 v{tmp+1}, 7, v{vLn}
    v_xor_b32 v{tmp}, v{tmp}, v{tmp+1}
    v_lshl_add_u32 v{vS}, v{tmp}, 4, v{vS}
    v_lshrrev_b32 v{tmp}, 2, v{vN}
    v_lshl_add_u32 v{vB}, v{vG}, {3 if mapt == 'A' else 2}, v{tmp}
    v_lshlrev_b32 v{vB}, 7, v{vB}
    v_and_b32 v{tmp+1}, 3, v{vN}
    v_lshl_add_u32 v{vB}, v{tmp+1}, 3, v{vB}
    v_lshrrev_b32 v{tmp}, 1, v{tmp}
    v_and_b32 v{tmp+1}, 1, v{vG}
    v_lshl_add_u32 v{tmp}, v{tmp+1}, 1, v{tmp}""")
    if private:
        assert mapt == 'B' and nchunk == 1
        a(f's_mul_i32 s{sT3}, s{S_WAVE}, {csz}\ns_mov_b32 s{sT2}, s{sCol}\nv_add_u32 v{vB}, s{sT3}, v{vB}')
    else:
        a(f"""s_lshl_b32 s{sT3}, s{S_WAVE}, 10
        s_mul_i32 s{sT2}, s{S_WAVE}, {8*rstride}
        s_add_u32 s{sT2}, s{sT2}, s{sCol}""")
    for t in range(ntile):
        a(f"""s_add_u32 s{sT0}, {pr0}, {t}
        s_and_b32 s{sT1}, s{sT0}, 3
        s_lshr_b32 s{sT0}, s{sT0}, 2
        s_mul_i32 s{sT0}, s{sT0}, {RC*128}
        v_xor_b32 v{tmp+1}, s{sT1}, v{tmp}
        v_lshl_add_u32 v{tmp+1}, v{tmp+1}, 5, v{vB}
        v_add_u32 v{vT+t}, s{sT0}, v{tmp+1}""")
    nq = RC//8 if private else RC//32
    rsk = 8 if private else 32
    per = nblk*nq
    def issue(c):
        for q in range(nq):
            for b in range(nblk):
                a(f"""s_add_u32 m0, s{sT3}, {(c % nbuf)*csz + b*RC*128 + q*rsk*128}
                s_add_u32 s{sT0}, s{sT2}, {(c*RC + q*rsk)*rstride + b*128}
                buffer_load_dwordx4 v{vS}, s[{SRD_A}:{SRD_A+3}], s{sT0} offen lds""")
    assert per*min(nbuf, nchunk) <= 63
    for c in range(min(nbuf, nchunk)): issue(c)
    for c in range(nchunk):
        left = min(nchunk, c+nbuf) - c - 1
        a(f's_waitcnt vmcnt({per*left})')
        if not private: a('s_barrier')
        cnt = 0
        for t in range(ntile):
            a(f'v_add_u32 v{tmp+1+(t&1)}, {(c % nbuf)*csz}, v{vT+t}')
            for k in range(RC//32):
                for v in range(2):
                    off = (32*k + (4 if mapt == 'A' else 16)*v)*128
                    a(f'ds_read_b64_tr_b16 {dest(t, c*(RC//32)+k, v)}, v{tmp+1+(t&1)} offset:{off}')
                    cnt += 1
                    if cnt % 8 == 0: a('s_waitcnt lgkmcnt(6)')
        a('s_waitcnt lgkmcnt(0)')
        if not private: a('s_barrier')
        if c+nbuf < nchunk: issue(c+nbuf)

XBUF = 40960
FR = 16
AC = 48
EP = 96

def x_setup(a):
    srd(a, SRD_B, P_X, 2048*1280)
    a(f"""v_lshrrev_b32 v10, 3, v{vLn}
    v_mul_u32_u24 v{vXs}, 1280, v10
    v_lshrrev_b32 v10, 1, v10
    s_and_b32 s{sT0}, s{S_WAVE}, 1
    s_lshl_b32 s{sT0}, s{sT0}, 2
    v_add_u32 v10, s{sT0}, v10
    v_and_b32 v11, 7, v{vLn}
    v_xor_b32 v10, v10, v11
    v_lshl_add_u32 v{vXs}, v10, 4, v{vXs}
    s_mul_i32 s{sT0}, s{S_WAVE}, {8*1280}
    s_add_u32 s{sXo}, s{sXo}, s{sT0}
    s_mul_i32 s{sBufW}, s{S_WAVE}, 10240
    v_lshrrev_b32 v10, 3, v{vN}
    v_mul_u32_u24 v10, 10240, v10
    v_and_b32 v11, 7, v{vN}
    v_lshl_add_u32 v10, v11, 7, v10
    v_lshrrev_b32 v11, 1, v{vN}
    v_xor_b32 v11, v11, v{vG}
    v_lshl_add_u32 v{vR0}, v11, 4, v10
    v_xor_b32 v11, 4, v11
    v_lshl_add_u32 v{vR1}, v11, 4, v10
    s_mov_b32 s{sBufR}, 0""")

def x_dma(strided=False):
    L = [f's_add_u32 m0, s{sBufW}, {896*l}\ns_nop 0\nbuffer_load_dwordx4 v{vXs}, s[{SRD_B}:{SRD_B+3}], s{sXo} offen offset:{128*l} lds' for l in range(10)]
    L.append(f"""s_add_u32 s{sXo}, s{sXo}, {f's{sXs}' if strided else XBUF}
    s_add_u32 s{sBufW}, s{sBufW}, {XBUF}
    s_cmp_ge_u32 s{sBufW}, {3*XBUF}
    s_cselect_b32 s{sT0}, {3*XBUF}, 0
    s_sub_u32 s{sBufW}, s{sBufW}, s{sT0}""")
    return L

def x_rd(k):
    return [f'ds_read_b128 {vr(FR+8*(k%4)+4*xt)}, v{vR0+(k&1)} offset:{20480*xt+1024*(k>>1)}' for xt in range(2)]

def gemm_loop(a, name, nt, orient, epi, post=None, early=None, after_bar=None, cinit='0', relaxed=False, late_fill=None, strided=False):
    for s in x_dma(strided): a(s)
    for s in x_dma(strided): a(s)
    a('s_waitcnt vmcnt(10)\ns_barrier')
    for s in x_rd(0) + x_rd(1): a(s)
    a(f's_mov_b32 s{sOut}, {OOB}\ns_waitcnt lgkmcnt(2)')
    if EXP.get('stamp'): a('s_memtime s[92:93]\ns_memrealtime s[100:101]\ns_waitcnt lgkmcnt(0)')
    a(f'.p2align 6\nL_{name}_loop:')
    for p in range(2 if epi else 1):
        acc = AC + 24*p; prev = AC + 24*(1-p)
        fill = (early() if early else []) + (epi(prev) if epi else [])
        dm = x_dma(strided)
        if EXP.get('nodma'): dm = dm[-1:]
        if EXP.get('nost'): fill = [x for x in fill if 'buffer_store' not in x]
        dl = []
        for x in dm[:-1]:
            m0, _, ld = x.split('\n')
            dl += [m0, ld]
        dl += dm[-1:]
        nwait = 10 if len(dm) > 1 else 0
        if relaxed:
            nwait += sum('buffer_store' in x for x in fill)
            step = max(1, len(fill)//11); mix = []
            for i in range(0, len(dl), 2):
                mix += dl[i:i+1] + fill[:1] + dl[i+1:i+2] + fill[1:step]; fill = fill[step:]
            fill = mix + fill
        else:
            fill += dl
        lf = late_fill() if late_fill else []
        nmf = 2*nt
        k0 = 8//nmf + 1
        cost = lambda x: sum(2 if ('v_exp' in y or 'v_rcp' in y) else 1 for y in x.split('\n'))
        gaps = []
        for k in range(k0, 18):
            for i in range(nmf):
                gaps.append(2 - (1 if i < 2 else 0) - (1 if i == nmf-1 else 0))
        totc = sum(cost(x) for x in fill); totg = sum(gaps)
        fi = 0; used = 0; avail = 0; gi = 0
        for k in range(20):
            if k == 18:
                while fi < len(fill): a(fill[fi]); a('s_nop 0'); fi += 1
                a(f"""s_waitcnt vmcnt({nwait}) lgkmcnt(0)
                s_barrier""")
            rd = x_rd(k+2) if k < 18 else x_rd(k-18)
            i = 0
            for t in range(nt):
                for xt in range(2):
                    d = vr(acc + 4*(2*t+xt)); wv = ar((t*20+k)*4); xv = vr(FR+8*(k%4)+4*xt)
                    c = cinit if k == 0 else d
                    a(f'v_mfma_f32_16x16x32_bf16 {d}, {wv}, {xv}, {c}' if orient == 'T' else f'v_mfma_f32_16x16x32_bf16 {d}, {xv}, {wv}, {c}')
                    if i < 2: a(rd[i])
                    if k == 0 and i == nmf-1:
                        a(f"""s_add_u32 s{sBufR}, s{sBufR}, {XBUF}
                        s_cmp_ge_u32 s{sBufR}, {3*XBUF}""")
                    if k == 1 and i == 0: a(f's_cselect_b32 s{sDl}, {3*XBUF}, 0')
                    if k == 1 and i == 1: a(f's_sub_u32 s{sBufR}, s{sBufR}, s{sDl}')
                    if k == 1 and i == nmf-1: a(f's_sub_u32 s{sDl}, {XBUF}, s{sDl}')
                    if k == 17 and i == 0: a(f'v_add_u32 v{vR0}, s{sDl}, v{vR0}')
                    if k == 17 and i == 1: a(f'v_add_u32 v{vR1}, s{sDl}, v{vR1}')
                    if k0 <= k < 18:
                        avail += gaps[gi]; gi += 1
                        last = ''
                        while fi < len(fill) and (used + cost(fill[fi]))*totg <= avail*max(totc, 1) + totg//2:
                            if last.startswith('s_add_u32 m0') and ' lds' in fill[fi]: break
                            a(fill[fi]); last = fill[fi]; used += cost(fill[fi]); fi += 1
                    if k >= 18:
                        for _ in range(1 if i < 2 else 2):
                            if lf: a(lf.pop(0))
                    if k == 19 and i == 2 and after_bar: after_bar(a)
                    if i == nmf-1 and k not in (17, 18): a('s_waitcnt lgkmcnt(2)')
                    i += 1
        while lf: a(lf.pop(0))
        if post: post(a, acc)
        a(f's_mov_b32 s{sOut}, s{sOutN}')
        a(f's_add_u32 s{S_STEP}, s{S_STEP}, ' + (f's{sStr}' if strided else '1'))
    a(f"""s_cmp_lt_u32 s{S_STEP}, s{sEnd}
    s_cbranch_scc1 L_{name}_loop""")
    if epi:
        a.nop(8)
        for s in epi(AC+24): a(s)
    a('s_waitcnt vmcnt(0) lgkmcnt(0)\ns_barrier')

def epi_plain(nt, stride, fl, phi=False):
    def f(acc):
        L = []
        for t in range(nt):
            o = EP + 4*t
            for xt in range(2):
                b = acc + 4*(2*t+xt)
                if phi:
                    e = EP + 16
                    L += [f'v_pk_fma_f32 v[{e}:{e+1}], v[{b}:{b+1}], s[{sC2}:{sC2+1}], v[{EP+24}:{EP+25}]', f'v_pk_fma_f32 v[{e+2}:{e+3}], v[{b+2}:{b+3}], s[{sC2}:{sC2+1}], v[{EP+24}:{EP+25}]']
                    for i in range(4): L += [f'v_exp_f32 v{e+i}, v{e+i} clamp', f'v_max_f32 v{b+i}, v{EP+20}, v{b+i}']
                    L += [f'v_pk_add_f32 v[{b}:{b+1}], v[{b}:{b+1}], v[{e}:{e+1}]', f'v_pk_add_f32 v[{b+2}:{b+3}], v[{b+2}:{b+3}], v[{e+2}:{e+3}]']
                L += [f'v_cvt_pk_bf16_f32 v{o+2*xt}, v{b}, v{b+1}', f'v_cvt_pk_bf16_f32 v{o+2*xt+1}, v{b+2}, v{b+3}']
            L.append(W('store_dwordx4', vr(o), vL16, f's{sOut}', 1024*t, fl))
        L.append(f's_add_u32 s{sOutN}, s{sOutN}, {stride}')
        return L
    return f

def head_ids(a):
    a(f"""s_sub_u32 s{sH}, s{S_X}, 4
    s_lshl_b32 s{sH}, s{sH}, 3
    s_lshr_b32 s{sT0}, s{S_J}, 2
    s_add_u32 s{sH}, s{sH}, s{sT0}
    s_lshl_b32 s{sFl}, s{S_X}, 5
    s_add_u32 s{sFl}, s{sFl}, s{S_J}
    s_lshl_b32 s{sFl}, s{sFl}, 7
    s_add_u32 s{sFl}, s{sFl}, {FL_OFF}""")

def w_head(a, ptr):
    srd(a, SRD_A, ptr, 640*6144*2)
    a(f's_mul_i32 s{sCol}, s{sH}, 384\ns_mul_i32 s{sI}, s{S_WAVE}, 3')
    load_w(a, 12288, 3, 160, 4, 2, 'A', 3, f's{sI}', lambda t, k, v: ar((t*20+k)*4+2*v, 2))

def kv_role(a, name, ptr, off, fl, P):
    a(f'L_{name}:')
    w_head(a, ptr)
    a(f"""s_mov_b32 s{S_STEP}, 0
    s_mov_b32 s{sEnd}, 64
    s_mov_b32 s{sXo}, 0
    s_mul_i32 s{sOutN}, s{sH}, 12288
    s_mul_i32 s{sT0}, s{S_WAVE}, 3072
    s_add_u32 s{sOutN}, s{sOutN}, s{sT0}
    s_add_u32 s{sOutN}, s{sOutN}, {off - 32*12288}""")
    dmark(a, 0)
    x_setup(a)
    gemm_loop(a, name, 3, 'T', epi_plain(3, 32*12288, fl), after_bar=lambda a: set_flag(a, f's{S_STEP}', fl))
    set_flag(a, 64, fl)
    a(P['after_'+name])

def y_role(a, P):
    a('L_y:')
    srd(a, SRD_A, P_WO, 32*192*640*2)
    a(f's_mul_i32 s{sCol}, s{sH}, {192*1280}\ns_mul_i32 s{sI}, s{S_WAVE}, 10')
    load_w(a, 1280, 10, 32, 6, 3, 'B', 10, f's{sI}', lambda t, k, v: ar((t*6+k)*4+2*v, 2))
    dmark(a, 0)
    P['pre_y'](a)
    VB = 12288; NBUF = 4
    FA = 16
    a(f"""s_mov_b32 s{S_STEP}, 0
    s_mov_b32 s{sKn}, {P['v_known']}
    s_sub_u32 s{sFv}, s{sFl}, 128
    s_mul_i32 s{sXo}, s{sH}, 12288
    s_mul_i32 s{sT0}, s{S_WAVE}, 3072
    s_add_u32 s{sXo}, s{sXo}, s{sT0}
    s_add_u32 s{sXo}, s{sXo}, {V_OFF}
    s_mov_b32 s{sBufW}, s{sT0}
    s_mul_i32 s{sOut}, s{sH}, 40960
    s_mul_i32 s{sT0}, s{S_WAVE}, 10240
    s_add_u32 s{sOut}, s{sOut}, s{sT0}
    s_add_u32 s{sOut}, s{sOut}, {Y_OFF}
    s_mov_b32 s{sOutN}, {OOB}
    s_mov_b32 s{sEnd}, 0
    v_mov_b32 v{vR0}, v{vL16}
    v_add_u32 v{vR1}, 8, v{vL16}""")
    def need():
        l = a.lab('nv')
        a(f"""s_cmp_gt_u32 s{sKn}, s{sEnd}
        s_cbranch_scc1 {l}
        s_add_u32 s{sT1}, s{sEnd}, 1
        s_min_u32 s{sT1}, s{sT1}, 64""")
        wait_flags(a, vZ, f's{sFv}', f's{sT1}', sleep=1)
        a(f'v_readfirstlane_b32 s{sKn}, v10\n{l}:')
    def vdma():
        L = [f's_mov_b32 m0, s{sBufW}\ns_nop 0'] + [f'buffer_load_dwordx4 v{vL16}, s[{SRD_W}:{SRD_W+3}], s{sXo} offen offset:{1024*i} sc1 lds' for i in range(3)]
        L.append(f"""s_add_u32 s{sXo}, s{sXo}, {32*12288}
        s_add_u32 s{sEnd}, s{sEnd}, 1
        s_add_u32 s{sBufW}, s{sBufW}, {VB}
        s_cmp_ge_u32 s{sBufW}, {2*VB}
        s_cselect_b32 s{sT0}, {2*VB}, 0
        s_sub_u32 s{sBufW}, s{sBufW}, s{sT0}""")
        return L
    def vrd(p):
        return [f'ds_read2st64_b64 {vr(FA+48*p+8*k+4*xt)}, v{vR0+xt} offset0:{24*p+4*k} offset1:{24*p+4*k+2}' for k in range(6) for xt in range(2)]
    need()
    for s in vdma(): a(s)
    a('s_waitcnt vmcnt(0)\ns_barrier')
    for s in vrd(0): a(s)
    dmark(a, 1)
    if EXP.get('stamp'): a('s_memtime s[92:93]\ns_memrealtime s[100:101]\ns_waitcnt lgkmcnt(0)')
    a('.p2align 6\nL_y_loop:')
    def ep(t, so, offb):
        b = 112 + 8*(t & 1); o = 128 + 4*(t & 1)
        return [f'v_cvt_pk_bf16_f32 v{o}, v{b}, v{b+1}', f'v_cvt_pk_bf16_f32 v{o+1}, v{b+2}, v{b+3}',
                f'v_cvt_pk_bf16_f32 v{o+2}, v{b+4}, v{b+5}', f'v_cvt_pk_bf16_f32 v{o+3}, v{b+6}, v{b+7}',
                (f's_add_u32 s{sT1}, {so}, {offb}\n' + W('store_dwordx4', vr(o), vYp, f's{sT1}', 0, {0:'sc1',1:'',2:'sc1 nt',3:'nt'}[EXP.get('yfl',0)]))][:4 if EXP.get('nost') else 5]
    for p in range(2):
        need()
        a('s_waitcnt lgkmcnt(0)')
        for t in range(10):
            fill = ep(9, f's{sOutN}', 9216) if t == 0 else ep(t-1, f's{sOut}', 1024*(t-1))
            pre = []
            if t == 0: pre = vdma()
            if t == 7:
                a(f"s_waitcnt vmcnt({0 if EXP.get('nost') else EXP.get('yw',6)})\ns_barrier")
            if t in (7, 8): pre = vrd(1-p)[6*(t-7):6*(t-7)+6]
            mm = []
            for k in range(6):
                for xt in range(2):
                    d = vr(112+8*(t & 1)+4*xt)
                    mm.append(f'v_mfma_f32_16x16x32_bf16 {d}, {vr(FA+48*p+8*k+4*xt)}, {ar((t*6+k)*4)}, {"0" if k == 0 else d}')
            seq = interleave(mm[:7], pre, 1) + interleave(mm[7:], fill, 1)
            for s in seq: a(s)
            if t == 7:
                set_flag(a, f's{S_STEP}')
        a(f"""s_mov_b32 s{sOutN}, s{sOut}
        s_add_u32 s{sOut}, s{sOut}, {32*40960}
        s_add_u32 s{S_STEP}, s{S_STEP}, 1""")
    a(f"""s_cmp_lt_u32 s{S_STEP}, 64
    s_cbranch_scc1 L_y_loop""")
    a.nop(8)
    for s in ep(9, f's{sOutN}', 9216): a(s)
    a('s_waitcnt vmcnt(0) lgkmcnt(0)\ns_barrier')
    set_flag(a, 64)
    a(P['after_y'])

def q_flags(a):
    a(f"""v_and_b32 v{vFa}, 31, v{vLn}
    v_lshlrev_b32 v{vFa}, 9, v{vFa}
    v_add_u32 v{vFa}, {flag_addr(4, 0)}, v{vFa}""")

def alpha_role(a, P):
    a('L_alpha:')
    a(f"""s_and_b32 s{sT0}, s{sH}, 1
    s_lshl_b32 s{S_STEP}, s{sT0}, 5
    s_add_u32 s{sEnd}, s{S_STEP}, 32
    s_mul_i32 s{sXo}, s{S_STEP}, {XBUF}
    s_lshr_b32 s{sB}, s{sH}, 1
    s_mov_b32 s{sC2}, {fbits(math.log2(math.e))}
    s_mov_b32 s{sC2+1}, {fbits(math.log2(math.e))}
    v_mov_b32 v{EP+20}, {fbits(1e-6)}
    v_mov_b32 v{EP+21}, {fbits(1e-6)}
    v_mov_b32 v{EP+22}, {fbits(1e-6)}
    v_mov_b32 v{EP+23}, {fbits(1e-6)}
    v_mov_b32 v{EP+24}, {fbits(-1e-6*math.log2(math.e))}
    v_mov_b32 v{EP+25}, {fbits(-1e-6*math.log2(math.e))}
    s_cmp_eq_u32 s{sB}, 15
    s_cbranch_scc1 L_gate""")
    srd(a, SRD_A, P_WQKV, 640*1920*2)
    a(f's_lshl_b32 s{sCol}, s{sB}, 8\ns_lshl_b32 s{sI}, s{S_WAVE}, 1')
    load_w(a, 3840, 2, 160, 4, 3, 'A', 2, f's{sI}', lambda t, k, v: ar((t*20+k)*4+2*v, 2))
    a(f"""s_mul_i32 s{sT1}, s{sB}, 0x3334
    s_lshr_b32 s{sT1}, s{sT1}, 16
    s_mul_i32 s{sT2}, s{sT1}, 5
    s_sub_u32 s{sT2}, s{sB}, s{sT2}
    s_mul_i32 s{sOutN}, s{sT1}, {PK_OFF-PQ_OFF}
    s_lshl_b32 s{sT2}, s{sT2}, 13
    s_add_u32 s{sOutN}, s{sOutN}, s{sT2}
    s_lshl_b32 s{sT2}, s{S_WAVE}, 11
    s_add_u32 s{sOutN}, s{sOutN}, s{sT2}
    s_add_u32 s{sOutN}, s{sOutN}, s{sXo}
    s_add_u32 s{sOutN}, s{sOutN}, {PQ_OFF - 40960}
    s_mov_b32 s{sQt}, s{sT1}""")
    dmark(a, 0)
    x_setup(a)
    a(f"""s_cmp_eq_u32 s{sQt}, 1
    s_cbranch_scc1 L_alk
    s_cmp_eq_u32 s{sQt}, 2
    s_cbranch_scc1 L_alv""")
    gemm_loop(a, 'alq', 2, 'T', epi_plain(2, 40960, 'sc1', True), cinit=vr(EP+20), relaxed=True)
    a('s_branch L_alpha_done\nL_alk:')
    gemm_loop(a, 'alk', 2, 'N', epi_plain(2, 40960, 'sc1', True), cinit=vr(EP+20), relaxed=True)
    a('s_branch L_alpha_done\nL_alv:')
    gemm_loop(a, 'alv', 2, 'N', epi_plain(2, 40960, 'sc1', False), relaxed=True)
    a('s_branch L_alpha_done\nL_gate:')
    srd(a, SRD_A, P_GATE, 1280)
    a(f'v_lshlrev_b32 v10, 4, v{vG}')
    for k in range(20): a(f'buffer_load_dwordx4 {ar(4*k)}, v10, s[{SRD_A}:{SRD_A+3}], 0 offen offset:{64*k}')
    a(f"""s_lshl_b32 s{sOutN}, s{S_STEP}, 7
    s_add_u32 s{sOutN}, s{sOutN}, {GT_OFF - 128}
    v_lshlrev_b32 v{vFa}, 2, v{vN}
    s_waitcnt vmcnt(0)""")
    x_setup(a)
    def epi_gate(acc):
        L = []
        for xt in range(2):
            b = acc + 4*xt; o = EP + xt
            L += [f'v_mul_f32 v{o}, s{sC2}, v{b}', f'v_exp_f32 v{o}, -v{o}', 's_nop 0', f'v_add_f32 v{o}, 1.0, v{o}', f'v_rcp_f32 v{o}, v{o}', 's_nop 0',
                  W('store_dword', f'v{o}', vFa, f's{sOut}', 64*xt, 'sc1')]
        L.append(f's_add_u32 s{sOutN}, s{sOutN}, 128')
        return L
    gemm_loop(a, 'gate', 1, 'T', epi_gate, relaxed=True)
    a('L_alpha_done:')
    dmark(a, 1)
    set_flag(a, 1)

PAIRS = [(i, j) for i in range(5) for j in range(5) if abs(i-j) <= 1]

def beta_role(a, P):
    a('L_beta:')
    q_flags(a)
    P['pre_beta'](a)
    dmark(a, 2)
    ACC = 16
    RING = 96
    zt = lambda i: ACC + 4*(13+i)
    a(f"""s_lshr_b32 s{sB}, s{sH}, 2
    s_and_b32 s{sQt}, s{sH}, 3
    s_mul_i32 s{sT2}, s{sB}, 5120
    s_mul_i32 s{sK}, s{S_WAVE}, {16*40960}
    s_add_u32 s{sK}, s{sK}, s{sT2}
    s_add_u32 s{sK}, s{sK}, {PK_OFF}
    v_add_u32 v11, 4096, v{vL16}
    v_mov_b32 v12, 0x3f803f80
    v_mov_b32 v13, 0x3f803f80
    v_mov_b32 v14, 0x3f803f80
    v_mov_b32 v15, 0x3f803f80""")
    def ld(i):
        b = RING + 40*(i % 4)
        L = [f's_add_u32 s{sT0}, s{sK}, {i*40960}', f's_add_u32 s{sT1}, s{sT0}, {VV_OFF-PK_OFF}']
        for h, so in ((0, sT0), (1, sT1)):
            L += [W('load_dwordx4', vr(b+20*h+4*t), vL16 if t < 4 else 11, f's{so}', 1024*(t & 3), 'sc1') for t in range(5)]
        return L
    for i in range(3):
        for s in ld(i): a(s)
    for i in range(16):
        if i+3 < 16:
            for s in ld(i+3): a(s)
        a(f's_waitcnt vmcnt({10*min(3, 15-i)})')
        b = RING + 40*(i % 4)
        for n_, (p, q) in enumerate(PAIRS):
            d = vr(ACC+4*n_)
            a(f'v_mfma_f32_16x16x32_bf16 {d}, {vr(b+4*p)}, {vr(b+20+4*q)}, {"0" if i == 0 else d}')
        for p in range(5):
            d = vr(zt(p))
            a(f'v_mfma_f32_16x16x32_bf16 {d}, {vr(b+4*p)}, v[12:15], {"0" if i == 0 else d}')
    dmark(a, 3)
    PQ = 96
    a(f"""s_lshl_b32 s{sT0}, s{sQt}, 2
    s_add_u32 s{sT0}, s{sT0}, s{S_WAVE}
    s_lshl_b32 s{sT0}, s{sT0}, 2
    s_lshl_b32 s{sGt}, s{sT0}, 7
    s_add_u32 s{sGt}, s{sGt}, {GT_OFF}
    s_mul_i32 s{sO}, s{sT0}, 40960
    s_add_u32 s{sO}, s{sO}, s{sT2}
    v_lshlrev_b32 v10, 2, v{vN}""")
    for i in range(4):
        a(f's_add_u32 s{sT0}, s{sO}, {PQ_OFF + i*40960}')
        for t in range(5): a(W('load_dwordx4', vr(PQ+20*i+4*t), vL16 if t < 4 else 11, f's{sT0}', 1024*(t & 3), 'sc1'))
        for xt in range(2): a(W('load_dword', f'v{176+2*i+xt}', 10, f's{sGt}', 128*i+64*xt, 'sc1'))
    a(f's_mul_i32 s{sT0}, s{S_WAVE}, 18432\nv_add_u32 v88, s{sT0}, v{vL16}\nv_add_u32 v89, 36864, v{vL16}')
    for n_ in range(18):
        a(f'ds_write_b128 v88, {vr(ACC+4*n_)} offset:{1024*n_}')
        if n_ % 8 == 7: a('s_waitcnt lgkmcnt(4)')
    a('s_waitcnt lgkmcnt(0)\ns_barrier')
    T = 184
    for n_ in range(18):
        d = ACC+4*n_
        a(f"""ds_read_b128 {vr(d)}, v{vL16} offset:{1024*n_}
        ds_read_b128 {vr(T)}, v{vL16} offset:{18432+1024*n_}
        ds_read_b128 {vr(T+4)}, v89 offset:{1024*n_}
        ds_read_b128 {vr(T+8)}, v89 offset:{18432+1024*n_}
        s_waitcnt lgkmcnt(0)
        v_pk_add_f32 v[{d}:{d+1}], v[{d}:{d+1}], v[{T}:{T+1}]
        v_pk_add_f32 v[{d+2}:{d+3}], v[{d+2}:{d+3}], v[{T+2}:{T+3}]
        v_pk_add_f32 v[{T+4}:{T+5}], v[{T+4}:{T+5}], v[{T+8}:{T+9}]
        v_pk_add_f32 v[{T+6}:{T+7}], v[{T+6}:{T+7}], v[{T+10}:{T+11}]
        v_pk_add_f32 v[{d}:{d+1}], v[{d}:{d+1}], v[{T+4}:{T+5}]
        v_pk_add_f32 v[{d+2}:{d+3}], v[{d+2}:{d+3}], v[{T+6}:{T+7}]""")
    KA, ZA = 200, 226
    for p in range(5):
        a(f"""v_lshlrev_b32 v{T+p}, 2, v{vG}
        v_add_u32 v{T+p}, {16*p}, v{T+p}
        v_mul_u32_u24 v{T+p}, 0xccd, v{T+p}
        v_lshrrev_b32 v{T+p}, 16, v{T+p}
        v_add_u32 v{T+5+p}, {16*p}, v{vN}
        v_mul_u32_u24 v{T+5+p}, 0xccd, v{T+5+p}
        v_lshrrev_b32 v{T+5+p}, 16, v{T+5+p}
        v_cvt_pk_bf16_f32 v{zt(p)}, v{zt(p)}, v{zt(p)+1}
        v_cvt_pk_bf16_f32 v{zt(p)+1}, v{zt(p)+2}, v{zt(p)+3}""")
    for n_, (p, q) in enumerate(PAIRS):
        d = ACC+4*n_
        a(f"""v_cmp_eq_u32 vcc, v{T+p}, v{T+5+q}
        v_cvt_pk_bf16_f32 v{d}, v{d}, v{d+1}
        v_cvt_pk_bf16_f32 v{d+1}, v{d+2}, v{d+3}
        v_cndmask_b32 v{KA+2*n_}, 0, v{d}, vcc
        v_cndmask_b32 v{KA+2*n_+1}, 0, v{d+1}, vcc
        v_cndmask_b32 v{ZA+2*n_}, 0, v{zt(p)}, vcc
        v_cndmask_b32 v{ZA+2*n_+1}, 0, v{zt(p)+1}, vcc""")
    a(f's_mov_b32 s{sT3}, {fbits(1e-6)}\ns_waitcnt vmcnt(0)')
    for i in range(4):
        for q in range(5):
            for xt in range(2):
                for base, A in ((16, KA), (56, ZA)):
                    d = vr(base+8*q+4*xt); first = True
                    for n_, (p, q2) in enumerate(PAIRS):
                        if q2 != q: continue
                        a(f'v_mfma_f32_16x16x16_bf16 {d}, {vr(A+2*n_,2)}, {vr(PQ+20*i+4*p+2*xt,2)}, {"0" if first else d}')
                        first = False
        a.nop(8)
        a(f's_add_u32 s{sT0}, s{sO}, {O_OFF + i*40960}')
        for q in range(5):
            o = T + 4*(q & 1)
            for xt in range(2):
                nb, db = 16+8*q+4*xt, 56+8*q+4*xt
                for r in range(4): a(f'v_add_f32 v{db+r}, s{sT3}, v{db+r}')
                for r in range(4): a(f'v_rcp_f32 v{db+r}, v{db+r}')
                for r in range(4): a(f'v_mul_f32 v{nb+r}, v{nb+r}, v{176+2*i+xt}')
                a(f"""v_pk_mul_f32 v[{nb}:{nb+1}], v[{nb}:{nb+1}], v[{db}:{db+1}]
                v_pk_mul_f32 v[{nb+2}:{nb+3}], v[{nb+2}:{nb+3}], v[{db+2}:{db+3}]
                v_cvt_pk_bf16_f32 v{o+2*xt}, v{nb}, v{nb+1}
                v_cvt_pk_bf16_f32 v{o+2*xt+1}, v{nb+2}, v{nb+3}""")
            a(W('store_dwordx4', vr(o), vL16 if q < 4 else 11, f's{sT0}', 1024*(q & 3), 'sc1'))
    a('s_waitcnt vmcnt(0)\ns_barrier')
    set_flag(a, 2)
    dmark(a, 4)

def q_role(a, P):
    a('L_q:')
    w_head(a, P_WQ)
    KS, KF, KM, QF, D, GT, PR = 96, 108, 124, 132, 148, 168, 170
    vXr, vMr, vPo, vGa, NEG = 171, 172, 173, 13, 174
    SB = 3*XBUF
    a(f"""s_mov_b32 s{sC2}, {P['cexp']}
    s_mov_b32 s{sC2+1}, {P['cexp']}
    s_mov_b32 s{sKn}, {P['r_known']}
    v_lshlrev_b32 v12, 3, v{vLn}
    s_lshl_b32 s{sT0}, s{S_WAVE}, 12
    s_add_u32 s{sT0}, s{sT0}, {SB}
    v_add_u32 v14, s{sT0}, v{vL16}
    s_lshl_b32 s{sT0}, s{S_WAVE}, 2
    v_and_b32 v16, 3, v{vN}
    v_add_u32 v16, s{sT0}, v16               ; row
    v_bfe_u32 v17, v{vN}, 2, 1               ; xq
    v_lshrrev_b32 v18, 3, v{vN}              ; half
    v_lshl_add_u32 v19, v{vG}, 4, v16
    v_lshlrev_b32 v19, 4, v19
    v_add_u32 v20, v17, v18
    v_lshl_add_u32 v{vXr}, v20, 10, v19
    v_add_u32 v{vXr}, {SB}, v{vXr}
    v_lshl_add_u32 v20, v17, 1, v18
    v_lshl_add_u32 v{vMr}, v20, 2, v19
    v_add_u32 v{vMr}, {SB+3072}, v{vMr}
    v_lshl_add_u32 v{vPo}, v17, 10, v19
    v_lshl_add_u32 v{vPo}, v18, 3, v{vPo}
    v_lshl_add_u32 v16, v17, 4, v16          ; query 0..31
    v_lshlrev_b32 v{vGa}, 2, v16
    v_lshlrev_b32 v20, 2, v{vG}
    v_lshl_add_u32 v20, v18, 4, v20
    v_mov_b32 v{NEG}, {fbits(-1e9*math.log2(math.e))}
    v_mov_b32 v15, {SB+16384}
    v_add_u32 v169, s{sT0}, v15""")
    for i in range(4):
        a(f'v_add_u32 v11, {i}, v20\nv_cmp_le_u32 s[{sMask+2*i}:{sMask+2*i+1}], v11, v16')
    for r in (KF+6, KF+7, KF+14, KF+15, KM+6, KM+7, QF+6, QF+7, QF+14, QF+15): a(f'v_mov_b32 v{r}, 0')
    dmark(a, 5)
    a(f"""L_q_again:
    s_mul_i32 s{sXo}, s{S_STEP}, {XBUF}
    s_mul_i32 s{sXs}, s{sStr}, {XBUF}""")
    x_setup(a)
    late = [W('load_dwordx4', vr(KS+4*i), vL16, f's{sK}', 1024*i, 'sc1') for i in range(3)]
    late += [W('load_dwordx4', vr(KM), vL16, f's{sKm}', 0, 'sc1'), W('load_dwordx2', vr(KM+4, 2), 12, f's{sKm}', 1024, 'sc1')]
    if EXP.get('qnoload'): late = []
    shuf = [f'v_mov_b32 v{KF+8*xt+2*i+r}, v{KS+4*i+2*xt+r}' for i in range(3) for xt in range(2) for r in range(2)]
    def early():
        l = a.lab('qe')
        L = [f's_lshl_b32 s{sP}, s{S_STEP}, 5', f's_add_u32 s{sP}, s{sP}, s{sH}', f's_lshl_b32 s{sK}, s{sP}, 2', f's_add_u32 s{sK}, s{sK}, s{S_WAVE}',
             f's_mul_i32 s{sKm}, s{sK}, 1536', f's_lshl_b32 s{sK}, s{sKm}, 1', f's_add_u32 s{sK}, s{sK}, {K_OFF}', f's_add_u32 s{sKm}, s{sKm}, {KM_OFF}',
             f's_lshl_b32 s{sP}, s{sP}, 11', f's_add_u32 s{sP}, s{sP}, {PX_OFF}', f's_lshl_b32 s{sGt}, s{S_STEP}, 7', f's_add_u32 s{sGt}, s{sGt}, {GT_OFF}']
        L += [f's_cmp_gt_u32 s{sKn}, s{S_STEP}\ns_cselect_b32 s{sHave}, 1, 0\ns_cbranch_scc0 {l}\n' + '\n'.join(late) + f'\n{l}:']
        L += [W('load_dword', f'v{GT}', vGa, f's{sGt}', 0, 'sc1')]
        L += P['q_refresh'](PR)
        return L
    def post(a, acc):
        if EXP.get('qnopost'): return
        for s in P['q_update'](PR): a(s)
        a(f'v_mov_b32 v175, s{sKn}\nds_write_b32 v169, v175')
        a.nop(max(0, 6-len(P['q_update'](PR))))
        for t in range(3):
            for xq in range(2):
                b = acc + 4*(2*t+xq)
                a(f"""v_pk_mul_f32 v[{b}:{b+1}], v[{b}:{b+1}], s[{sC2}:{sC2+1}]
                v_pk_mul_f32 v[{b+2}:{b+3}], v[{b+2}:{b+3}], s[{sC2}:{sC2+1}]
                v_cvt_pk_bf16_f32 v{QF+8*xq+2*t}, v{b}, v{b+1}
                v_cvt_pk_bf16_f32 v{QF+8*xq+2*t+1}, v{b+2}, v{b+3}""")
        l = a.lab('qh')
        a(f's_cmp_lg_u32 s{sHave}, 0\ns_cbranch_scc1 {l}')
        P['q_wait'](a, PR)
        for s in late: a(s)
        a('s_waitcnt vmcnt(0)')
        for s in shuf: a(s)
        a(f's_nop 1\n{l}:')
        prods = [(D, KF, QF), (D+4, KF, QF+8), (D+8, KF+8, QF+8), (D+12, KM, QF), (D+16, KM, QF+8)]
        for d, A, B in prods:
            a(f'v_mfma_f32_16x16x32_bf16 {vr(d)}, {vr(A)}, {vr(B)}, 0')
            a(f'v_mfma_f32_16x16x32_bf16 {vr(d)}, {vr(A+4)}, {vr(B+4)}, {vr(d)}')
        a(f"""ds_write_b128 v14, {vr(D)}
        v_sub_f32 v{GT}, 1.0, v{GT}
        ds_write_b128 v14, {vr(D+4)} offset:1024
        s_nop 0
        ds_write_b128 v14, {vr(D+8)} offset:2048
        s_nop 2
        v_mov_b32 v{D+14}, v{D+16}
        v_mov_b32 v{D+15}, v{D+17}
        ds_write_b128 v14, {vr(D+12)} offset:3072
        s_waitcnt lgkmcnt(0)
        s_barrier""")
        R = 176; X = R; MV = R+16; T = R+20
        a('ds_read_b32 v175, v15')
        for w in range(4): a(f'ds_read_b128 {vr(R+4*w)}, v{vXr} offset:{4096*w}')
        for w in range(4): a(f'ds_read_b32 v{MV+w}, v{vMr} offset:{4096*w}')
        dpp = 'row_ror:8 row_mask:0xf bank_mask:0xf'
        def red(op):
            a(f"""s_nop 1
            {op}_dpp v{T+1}, v{T}, v{T} {dpp}
            {op}_dpp v{T+2}, v{T}, v{T} {dpp}
            s_nop 1
            v_permlane16_swap_b32 v{T+1}, v{T+2}
            {op} v{T}, v{T+1}, v{T+2}
            {op} v{T+1}, v{T+1}, v{T+2}
            s_nop 1
            v_permlane32_swap_b32 v{T}, v{T+1}
            {op} v{T}, v{T}, v{T+1}""")
        a(f"""s_waitcnt lgkmcnt(6)
        v_pk_add_f32 v[{X}:{X+1}], v[{X}:{X+1}], v[{X+4}:{X+5}]
        v_pk_add_f32 v[{X+2}:{X+3}], v[{X+2}:{X+3}], v[{X+6}:{X+7}]
        s_waitcnt lgkmcnt(4)
        v_pk_add_f32 v[{X+8}:{X+9}], v[{X+8}:{X+9}], v[{X+12}:{X+13}]
        v_pk_add_f32 v[{X+10}:{X+11}], v[{X+10}:{X+11}], v[{X+14}:{X+15}]
        v_pk_add_f32 v[{X}:{X+1}], v[{X}:{X+1}], v[{X+8}:{X+9}]
        v_pk_add_f32 v[{X+2}:{X+3}], v[{X+2}:{X+3}], v[{X+10}:{X+11}]
        s_waitcnt lgkmcnt(0)
        v_pk_add_f32 v[{MV}:{MV+1}], v[{MV}:{MV+1}], v[{MV+2}:{MV+3}]""")
        for i in range(4): a(f'v_cndmask_b32 v{X+i}, v{NEG}, v{X+i}, s[{sMask+2*i}:{sMask+2*i+1}]')
        a(f"""v_add_f32 v{MV}, v{MV}, v{MV+1}
        v_readfirstlane_b32 s{sKn}, v175
        v_max3_f32 v{T}, v{X}, v{X+1}, v{X+2}
        v_max3_f32 v{T}, v{T}, v{X+3}, v{MV}""")
        red('v_max_f32')
        a(f"""v_pk_add_f32 v[{X}:{X+1}], v[{X}:{X+1}], v[{T}:{T+1}] op_sel_hi:[1,0] neg_lo:[0,1] neg_hi:[0,1]
        v_pk_add_f32 v[{X+2}:{X+3}], v[{X+2}:{X+3}], v[{T}:{T+1}] op_sel_hi:[1,0] neg_lo:[0,1] neg_hi:[0,1]
        v_sub_f32 v{MV}, v{MV}, v{T}
        v_exp_f32 v{X}, v{X}
        v_exp_f32 v{X+1}, v{X+1}
        v_exp_f32 v{X+2}, v{X+2}
        v_exp_f32 v{X+3}, v{X+3}
        v_exp_f32 v{MV}, v{MV}
        v_pk_add_f32 v[{T}:{T+1}], v[{X}:{X+1}], v[{X+2}:{X+3}]
        v_add_f32 v{T}, v{T}, v{T+1}
        v_add_f32 v{T}, v{T}, v{MV}""")
        red('v_add_f32')
        a(f"""v_rcp_f32 v{T}, v{T}
        s_nop 0
        v_mul_f32 v{T}, v{T}, v{GT}
        v_mul_f32 v{MV}, v{MV}, v{T}
        v_pk_mul_f32 v[{X}:{X+1}], v[{X}:{X+1}], v[{T}:{T+1}] op_sel_hi:[1,0]
        v_pk_mul_f32 v[{X+2}:{X+3}], v[{X+2}:{X+3}], v[{T}:{T+1}] op_sel_hi:[1,0]
        v_mov_b32_dpp v{MV+1}, v{MV} {dpp}
        v_cvt_pk_bf16_f32 v{MV}, v{MV+1}, v{MV}
        v_cvt_pk_bf16_f32 v{X+4}, v{X}, v{X+1}
        v_cvt_pk_bf16_f32 v{X+5}, v{X+2}, v{X+3}
        v_mov_b32_dpp v{X+4}, v{MV} quad_perm:[0,1,2,3] row_mask:0xf bank_mask:0x4
        v_mov_b32_dpp v{X+5}, v{MV} row_shl:4 row_mask:0xf bank_mask:0x4""")
        if not EXP.get('qnost'): a(W('store_dwordx2', vr(X+4, 2), vPo, f's{sP}', 0, 'sc1'))
        a(f's_add_u32 s{sDone}, s{S_STEP}, 1')
        if P['q_prompt']:
            l3 = a.lab('qp')
            a(f's_cmp_lg_u32 s{sHave}, 0\ns_cbranch_scc1 {l3}\ns_waitcnt vmcnt(0)\ns_barrier')
            after_bar(a)
            a(f'{l3}:')
    def after_bar(a):
        a(f's_add_u32 s{sT1}, s{sDone}, s{sFb}')
        set_flag(a, f's{sT1}')
    gemm_loop(a, 'q', 3, 'T', None, post=post, early=early, after_bar=after_bar, late_fill=lambda: list(shuf), strided=True)
    after_bar(a)

def final_role(a, P):
    a('L_final:')
    a(f"""s_mul_i32 s{S_STEP}, s{sWk}, 0x199a
    s_lshr_b32 s{S_STEP}, s{S_STEP}, 16
    s_mul_i32 s{sCb}, s{S_STEP}, 10
    s_sub_u32 s{sCb}, s{sWk}, s{sCb}""")
    srd(a, SRD_A, P_WOA, 640*640*2)
    a(f"""s_mul_i32 s{sCol}, s{S_WAVE}, {160*1280}
    s_lshl_b32 s{sT0}, s{sCb}, 7
    s_add_u32 s{sCol}, s{sCol}, s{sT0}""")
    load_w(a, 1280, 1, 160, 1, 1, 'B', 4, '0', lambda t, k, v: ar((k*4+t)*4+2*v, 2), private=True)
    srd(a, SRD_B, P_OUT, 2048*1280)
    q_flags(a)
    ACC, PF, PM, OF = 16, 48, 112, 128
    YA, UA = 80, 208
    TS = 1056
    WSZ = 8*TS
    a(f"""v_add_u32 v13, 4096, v{vL16}
    s_mul_i32 s{sT0}, s{S_WAVE}, {WSZ}
    v_add_u32 v14, s{sT0}, v{vL16}
    v_lshrrev_b32 v10, 3, v{vLn}
    s_lshl_b32 s{sT0}, s{S_WAVE}, 3
    v_add_u32 v10, s{sT0}, v10              ; token 0..31
    v_and_b32 v11, 7, v{vLn}
    v_mul_u32_u24 v{vXs}, 1280, v10
    v_lshl_add_u32 v{vXs}, v11, 4, v{vXs}
    v_lshrrev_b32 v15, 4, v10
    v_and_b32 v12, 6, v11
    v_add_u32 v15, v12, v15
    v_mul_u32_u24 v15, {TS}, v15
    v_and_b32 v10, 15, v10
    v_lshl_add_u32 v15, v10, 4, v15
    v_and_b32 v11, 1, v11
    v_lshl_add_u32 v15, v11, 9, v15
    s_mov_b32 s{sMask}, 0
    s_mov_b32 s{sMask+1}, -1
    s_barrier""")
    def early_addr(step):
        return f"""s_lshl_b32 s{sT0}, {step}, 5
        s_lshl_b32 s{sT1}, s{S_WAVE}, 3
        s_add_u32 s{sT0}, s{sT0}, s{sT1}
        s_lshl_b32 s{sT2}, s{sCb}, 12
        s_mul_i32 s{sY}, s{sT0}, 40960
        s_add_u32 s{sY}, s{sY}, s{sT2}
        s_add_u32 s{sY}, s{sY}, {Y_OFF}
        s_mul_i32 s{sO}, s{sT0}, 1280
        s_add_u32 s{sO}, s{sO}, {O_OFF}"""
    def oload():
        L = []
        for i in range(10):
            L.append((f's_add_u32 s{sT0}, s{sO}, {1024*i}\n' if i % 8 == 0 else '') + W('load_dwordx4', vr(OF+4*i), vL16 if i % 8 < 4 else 13, f's{sT0}', 1024*(i & 3), 'sc1'))
        return L
    def yload(h):
        return [(f's_add_u32 s{sT0}, s{sY}, {40960*h}\n' if t == 0 else '') + W('load_dwordx4', ar(YA+16*h+4*t), vYp, f's{sT0}', 1024*t, 'sc1') for t in range(4)]
    a('L_final_fetch:')
    P['final_waity'](a)
    a(early_addr(f's{S_STEP}'))
    for s in oload(): a(s)
    for h in range(8):
        for s in yload(h): a(s)
    a(f"""L_final_loop:
    s_mov_b32 s{sHave}, 1""")
    P['final_wait'](a)
    a(f"""s_lshl_b32 s{sT0}, s{S_STEP}, 5
    s_lshl_b32 s{sT1}, s{S_WAVE}, 3
    s_add_u32 s{sT0}, s{sT0}, s{sT1}
    s_lshl_b32 s{sP}, s{sT0}, 11
    s_add_u32 s{sP}, s{sP}, {PX_OFF}
    s_lshl_b32 s{sT2}, s{sCb}, 12
    s_mul_i32 s{sU}, s{sT0}, 10240
    s_add_u32 s{sU}, s{sU}, s{sT2}
    s_add_u32 s{sU}, s{sU}, {U_OFF}
    s_waitcnt vmcnt(0)""")
    for i in range(16):
        if i % 8 == 0: a(f's_add_u32 s{sT0}, s{sP}, {1024*i}')
        a(W('load_dwordx4', vr(PF+4*i), vL16 if i % 8 < 4 else 13, f's{sT0}', 1024*(i & 3), 'sc1'))
    for u in range(2):
        a(f's_add_u32 s{sT0}, s{sU}, {40960*u}')
        for t in range(4): a(W('load_dwordx4', ar(UA+16*u+4*t), vYp, f's{sT0}', 1024*t, 'sc1'))
    for k in range(5):
        a(f'v_swap_b32 v{OF+8*k+2}, v{OF+8*k+4}\nv_swap_b32 v{OF+8*k+3}, v{OF+8*k+5}')
    a(f"""s_mul_i32 s{sOut}, s{S_STEP}, 40960
    s_lshl_b32 s{sT2}, s{sCb}, 7
    s_add_u32 s{sOut}, s{sOut}, s{sT2}
    s_add_u32 s{S_STEP}, s{S_STEP}, 6""")
    a(early_addr(f's{S_STEP}'))
    a(f"""s_cmp_lt_u32 s{S_STEP}, 64
    s_cselect_b32 s{sHave}, s{sHave}, 0
    s_cmp_lg_u32 s{sHave}, 0
    s_cselect_b32 s{sY}, s{sY}, {OOB}
    s_cselect_b32 s{sO}, s{sO}, {OOB}""")
    ol = oload()
    for k in range(5):
        for t in range(4):
            for xq in range(2):
                d = vr(ACC+8*t+4*xq)
                a(f'v_mfma_f32_16x16x32_bf16 {d}, {ar((k*4+t)*4)}, {vr(OF+8*k+4*xq)}, {"0" if k == 0 else d}')
        a(ol[2*k]); a(ol[2*k+1])
    for h in range(8):
        a(f's_waitcnt vmcnt({18 + 2*(7-h) + 4*h})')
        for xq in range(2):
            a(f'v_mov_b32 v{PM+8*(h>>2)+4*xq+(h&3)}, v{PF+8*h+2+xq}')
        a(f'v_mov_b32 v{PF+8*h+2}, 0\nv_mov_b32 v{PF+8*h+3}, 0')
        yl = yload(h)
        for xq in (1, 0):
            for t in range(4):
                d = vr(ACC+8*t+4*xq)
                a(f'v_mfma_f32_16x16x32_bf16 {d}, {ar(YA+16*h+4*t)}, {vr(PF+8*h+4*xq)}, {d}')
                if xq == 0: a(yl[t])
    a('s_waitcnt vmcnt(42)')
    for u in range(2):
        for t in range(4):
            for xq in range(2):
                d = vr(ACC+8*t+4*xq)
                a(f'v_mfma_f32_16x16x32_bf16 {d}, {ar(UA+16*u+4*t)}, {vr(PM+8*u+4*xq)}, {d}')
    a('s_nop 0')
    for i in range(8): a(f'ds_write_b128 v14, {vr(ACC+4*i)} offset:{TS*i}')
    a('s_waitcnt lgkmcnt(0)\ns_barrier')
    for w in range(4):
        for g in range(2): a(f'ds_read_b128 {vr(ACC+8*w+4*g)}, v15 offset:{WSZ*w+256*g}')
    a('s_waitcnt lgkmcnt(0)\ns_barrier')
    for w in (1, 3):
        for i in range(4):
            d = ACC+8*(w-1)+2*i
            a(f'v_pk_add_f32 v[{d}:{d+1}], v[{d}:{d+1}], v[{d+8}:{d+9}]')
    for i in range(4):
        d = ACC+2*i
        a(f'v_pk_add_f32 v[{d}:{d+1}], v[{d}:{d+1}], v[{d+16}:{d+17}]\nv_cvt_pk_bf16_f32 v{200+i}, v{d}, v{d+1}')
    a(f"""buffer_store_dwordx4 v[200:203], v{vXs}, s[{SRD_B}:{SRD_B+3}], s{sOut} offen
    s_cmp_lg_u32 s{sHave}, 0
    s_cbranch_scc1 L_final_loop
    s_cmp_lt_u32 s{S_STEP}, 64
    s_cbranch_scc1 L_final_fetch
    s_branch L_exit""")
```

```python
from asmb import *
from lay import *
S_WAVE, S_X, S_J, S_STEP, S_TO = 3, 4, 5, 6, 7
P_X, P_WQKV, P_WOA, P_MEM0, P_WQ, P_WK, P_WV, P_WO, P_GATE, P_OUT, P_DBG, P_WS = 8, 10, 12, 16, 18, 20, 22, 24, 28, 30, 32, 34
SRD_W = 36
SRD_A = 40
SRD_B = 44
SRD_D = 48
TO_LIMIT = 400000
sMr, sMw, sMp, sSw, sSr, sG, sGL, sGp, sGLp, sY, sK, sU, sKm = range(52, 65)
sTag, sTag3, sC, sT0, sT1, sT2, sPar = range(65, 72)
sSelT1, sSelT2, sSelU1, sSelU2 = range(72, 76)
sHalf = 76
sEx   = 78
sExLo = 80
sH, sCg, sHs, sCs = 82, 83, 84, 85
sGb, sMb = 86, 87
sKnY, sKnK, sFy, sFk, sFl = 90, 91, 92, 93, 94
vFy, vFk, vFd, vFa = 36, 101, 102, 103
sC2 = 88
MB, QB, KB, DB, RB, UB = 0, 10240, 11264, 13312, 25600, 26112
FM, FQ, FK, FD, YB = 29184, 30208, 31232, 32256, 33280
vL16, vIdx, vQw, vY = 0, 1, 2, 3
vKw, vD2 = 4, 5
vDr, vGst = 6, 7
vG0, vG1 = 6, 7
vUP = 8
vAq, vAk = 16, 20
vUa = 24
SETA, SETB = [16, 20, 36, 40], [80, 84, 88, 92]
vYt = 44
vMF = 56
vWq, vWk = 96, 176
aSel, aMst = 240, 244
vQr, vKr, vPG, vPM, vL8 = 96, 97, 98, 99, 100
vNeg = 104
vKF = 108
vKS = 124
vQf, vKf = 136, 144
vD0, vD1, vDm, vPk = 152, 156, 160, 164
vPU, vPK = 168, 180
OWN = [[0,1,2],[3,4,5],[6,7,8],[9]]

def srd(a, base, ptr, nbytes):
    a(f"""s_mov_b32 s{base}, s{ptr}
    s_and_b32 s{base+1}, s{ptr+1}, 0xffff
    s_mov_b32 s{base+2}, {nbytes}
    s_mov_b32 s{base+3}, 0x20000""")

def W(op, data, va, so, off=0, fl=''):
    return f'buffer_{op} {data}, v{va}, s[{SRD_W}:{SRD_W+3}], {so} offen offset:{off} {fl}'.rstrip()

def retry(a, tail, lab_retry, lab_back):
    tail(f"""{lab_retry}:
    s_add_u32 s{S_TO}, s{S_TO}, 1
    s_cmp_gt_u32 s{S_TO}, {TO_LIMIT}
    s_cbranch_scc1 L_exit
    s_branch {lab_back}""")

def build_sel(a, dst, vn, vg, goff, tmp):
    a(f"""v_and_b32 v{tmp}, 1, v{vn}
    v_lshlrev_b32 v{tmp}, 4, v{tmp}
    v_mov_b32 v{tmp+1}, 0x3f80
    v_lshlrev_b32 v{tmp}, v{tmp}, v{tmp+1}
    v_lshrrev_b32 v{tmp+1}, 1, v{vn}
    v_add_u32 v{tmp+1}, {4*goff}, v{tmp+1}
    v_lshlrev_b32 v{tmp+2}, 2, v{vg}
    v_sub_u32 v{tmp+1}, v{tmp+1}, v{tmp+2}""")
    for r in range(4):
        a(f"""v_cmp_eq_u32 vcc, {r}, v{tmp+1}
        s_nop 1
        v_cndmask_b32 v{dst+r}, 0, v{tmp}, vcc""")

def phys(a, v, tmp):
    a(f"""v_lshrrev_b32 v{tmp}, 13, v{v}
    v_lshl_add_u32 v{v}, v{tmp}, 13, v{v}""")

def dma(srdb, va, so, fl=''):
    return f'buffer_load_dwordx4 v{va}, s[{srdb}:{srdb+3}], {so} offen {fl} lds'

def rec_prologue(a, P):
    n, g, ln = 60, 61, 62
    a(f"""v_and_b32 v{ln}, 63, v0
    v_and_b32 v{n}, 15, v{ln}
    v_lshrrev_b32 v{g}, 4, v{ln}
    v_lshlrev_b32 v{vL16}, 4, v{ln}
    s_and_b32 s{sT0}, s{S_J}, 1
    s_lshl_b32 s{sT0}, s{sT0}, 2
    s_add_u32 s{sT0}, s{sT0}, s{S_WAVE}
    s_lshl_b32 s{sH}, s{S_X}, 3
    s_add_u32 s{sH}, s{sH}, s{sT0}
    s_lshr_b32 s{sCg}, s{S_J}, 1
    s_lshr_b32 s{sHs}, s{S_J}, 2
    s_and_b32 s{sCs}, s{S_J}, 3
    s_lshl_b32 s{sT1}, s{S_X}, 3
    s_add_u32 s{sHs}, s{sHs}, s{sT1}
    s_lshl_b32 s{sT1}, s{S_X}, 5
    s_add_u32 s{sT1}, s{sT1}, s{S_J}
    s_mul_i32 s{sGb}, s{sT1}, 768
    s_lshl_b32 s{sSw}, s{sT1}, 10
    s_add_u32 s{sSw}, s{sSw}, {S_OFF}
    s_lshl_b32 s{sSr}, s{sH}, 12
    s_add_u32 s{sSr}, s{sSr}, {S_OFF}
    s_mov_b32 s{sSelT1}, 0x0c0c0400
    s_mov_b32 s{sSelT2}, 0x05040100
    s_mov_b32 s{sSelU1}, 0x0c04000c
    s_mov_b32 s{sSelU2}, 0x0402010c
    s_mov_b32 s{sC2}, {P['cexp']}
    s_mov_b32 s{sC2+1}, {P['cexp']}
    s_mov_b32 s{sHalf}, 0xff00ff00
    s_mov_b32 s{sHalf+1}, 0xff00ff00
    s_mov_b32 s{sExLo}, 0x00ff00ff
    s_mov_b32 s{sExLo+1}, 0x00ff00ff
    s_mul_i32 s{sMb}, s{S_X}, 10240
    s_add_u32 s{sMb}, s{sMb}, {M_OFF}""")
    ps = P.get('pstamp', lambda i: '')
    a(ps(0))
    srd(a, SRD_A, P_WQ, 640*6144*2)
    srd(a, SRD_B, P_WK, 640*6144*2)
    a(f"""v_mul_u32_u24 v56, 0x2aab, v{ln}
    v_lshrrev_b32 v56, 16, v56              ; lane/6
    v_mul_u32_u24 v57, 6, v56
    v_sub_u32 v57, v{ln}, v57
    v_mul_u32_u24 v56, 12288, v56
    v_lshl_add_u32 v56, v57, 4, v56
    s_mul_i32 s{sT0}, s{sHs}, 384
    s_mul_i32 s{sT1}, s{sCs}, 96
    s_add_u32 s{sT0}, s{sT0}, s{sT1}
    s_mul_i32 s{sT1}, s{S_WAVE}, {160*12288}
    s_add_u32 s{sT0}, s{sT0}, s{sT1}
    s_mul_i32 s{sT2}, s{S_WAVE}, {160*96}
    s_mov_b32 s{sEx}, -1
    s_mov_b32 s{sEx+1}, 0x0fffffff
    s_mov_b64 exec, s[{sEx}:{sEx+1}]""")
    for i in range(16):
        a(f"""s_add_u32 m0, s{sT2}, {960*i}
        s_add_u32 s{sT1}, s{sT0}, {10*i*12288}
        {dma(SRD_A, 56, f's{sT1}')}
        s_add_u32 m0, s{sT2}, {61440+960*i}
        s_nop 0
        {dma(SRD_B, 56, f's{sT1}')}""")
    a('s_mov_b64 exec, -1')
    a(f"""v_mov_b32 v64, -1
    v_mov_b32 v65, -1
    v_mov_b32 v66, -1
    v_mov_b32 v67, -1
    v_min_u32 v68, 47, v{ln}
    v_lshlrev_b32 v68, 4, v68
    v_add_u32 v68, s{sGb}, v68""")
    phys(a, 68, 69)
    a(f"""s_mul_i32 s{sT0}, s{S_WAVE}, {G_SLOT}
    s_add_u32 s{sT0}, s{sT0}, {G_OFF}
    s_add_u32 s{sT1}, s{sT0}, 8192""")
    a(W('store_dwordx4', 'v[64:67]', 68, f's{sT0}', 0, 'sc1'))
    a(W('store_dwordx4', 'v[64:67]', 68, f's{sT1}', 0, 'sc1'))
    a(f"""v_min_u32 v69, 19, v{ln}
    v_lshlrev_b32 v69, 4, v69
    s_mul_i32 s{sT0}, s{S_WAVE}, {M_SLOT}
    s_add_u32 s{sT0}, s{sT0}, s{sMb}
    s_mul_i32 s{sT1}, s{S_J}, 320
    s_add_u32 s{sT0}, s{sT0}, s{sT1}""")
    a(W('store_dwordx4', 'v[64:67]', 69, f's{sT0}', 0))
    a(W('store_dwordx4', 'v[64:67]', vL16, f's{sSw}', 0))
    if P['live']:
        a(f"""s_lshl_b32 s{sFl}, s{S_X}, 5
        s_add_u32 s{sFl}, s{sFl}, s{S_J}
        s_lshl_b32 s{sFl}, s{sFl}, 7
        s_add_u32 s{sFl}, s{sFl}, {FL_OFF}
        s_lshl_b32 s{sFy}, s{sH}, 9
        s_add_u32 s{sFy}, s{sFy}, {FL_OFF + (128+2)*128}
        s_lshl_b32 s{sFk}, s{sHs}, 9
        s_add_u32 s{sFk}, s{sFk}, {FL_OFF + 128*128}
        v_mov_b32 v70, 0""")
        a(W('store_dword', 'v70', 70, f's{sFl}', 0, 'sc1'))
    a(f"""s_waitcnt vmcnt(0)
    s_barrier""")
    a(ps(1))
    lab = a.lab('noini')
    a(f"""s_cmp_lg_u32 s{S_WAVE}, 3
    s_cbranch_scc1 {lab}
    v_mov_b32 v68, {DBG_INIT}
    v_mov_b32 v69, 1
    s_mov_b64 exec, 1
    buffer_atomic_add v69, v68, s[{SRD_D}:{SRD_D+3}], 0 offen sc1
    s_mov_b64 exec, -1
    s_branch {lab}_e
    {lab}:""")
    a(f"""v_lshrrev_b32 v56, 1, v{g}
    v_lshlrev_b32 v56, 4, v56
    v_and_b32 v57, 1, v{g}
    v_lshl_add_u32 v56, v57, 2, v56
    v_bfe_u32 v57, v{n}, 2, 1
    v_add_u32 v56, v56, v57
    v_lshrrev_b32 v57, 3, v{n}
    v_lshl_add_u32 v56, v57, 3, v56
    v_mul_u32_u24 v56, 96, v56
    v_and_b32 v57, 3, v{n}
    v_lshl_add_u32 v56, v57, 3, v56
    s_lshl_b32 s{sT0}, s{S_WAVE}, 5
    v_add_u32 v56, s{sT0}, v56
    v_add_u32 v57, 61440, v56""")
    for i in range(40):
        t, v = i >> 2, i & 3
        off = (64*t + 32*(v >> 1) + 2*(v & 1))*96
        a(f"""ds_read_b64_tr_b16 {vr(vWq+2*i,2)}, v56 offset:{off}
        ds_read_b64_tr_b16 {vr(vWk+2*i,2)}, v57 offset:{off}""")
        if i % 4 == 3: a('s_waitcnt lgkmcnt(4)')
    a(f"""{lab}_e:
    s_waitcnt lgkmcnt(0)
    s_barrier""")
    a(ps(2))
    WB = 36864
    frag = [8+4*i for i in range(12)] + [64+4*i for i in range(6)]
    F = lambda tc, kap: frag[tc*6+kap]
    srd(a, SRD_A, P_WO, 32*192*640*2)
    srd(a, SRD_B, P_WV, 640*6144*2)
    a(f"""v_mul_u32_u24 v56, 0x3334, v{ln}
    v_lshrrev_b32 v56, 16, v56              ; lane/5
    v_mul_u32_u24 v57, 5, v56
    v_sub_u32 v57, v{ln}, v57
    v_mul_u32_u24 v56, 1280, v56
    v_lshl_add_u32 v56, v57, 4, v56
    s_mul_i32 s{sT0}, s{sH}, {192*1280}
    s_mul_i32 s{sT1}, s{sCg}, 80
    s_add_u32 s{sT0}, s{sT0}, s{sT1}
    s_mul_i32 s{sT2}, s{S_WAVE}, {WB}
    s_mov_b64 exec, s[{sEx}:{sEx+1}]""")
    WOB = 3*6144
    for i in range(16):
        a(f"""s_add_u32 m0, s{sT2}, {WOB+960*i}
        s_add_u32 s{sT1}, s{sT0}, {12*i*1280}
        {dma(SRD_A, 56, f's{sT1}')}""")
    a('s_mov_b64 exec, -1')
    a(f"""v_lshrrev_b32 v58, 3, v{ln}
    v_bfe_u32 v57, v58, 1, 1
    v_lshlrev_b32 v56, 3, v57
    v_bfe_u32 v57, v58, 2, 1
    v_lshl_add_u32 v56, v57, 2, v56
    v_and_b32 v57, 1, v58
    v_add_u32 v56, v56, v57
    v_mul_u32_u24 v56, 12288, v56
    v_lshrrev_b32 v58, 1, v58
    v_and_b32 v57, 7, v{ln}
    v_xor_b32 v57, v57, v58
    v_lshl_add_u32 v1, v57, 4, v56          ; rows 0..7
    v_xor_b32 v57, 4, v57
    v_lshl_add_u32 v2, v57, 4, v56
    v_add_u32 v2, {16*12288}, v2            ; rows 8..15
    s_mul_i32 s{sT0}, s{sH}, 384""")
    a(f"""v_lshrrev_b32 v56, 3, v{n}
    v_mul_u32_u24 v56, 3072, v56
    v_and_b32 v57, 7, v{n}
    v_lshl_add_u32 v56, v57, 7, v56
    v_add_u32 v56, s{sT2}, v56
    v_lshrrev_b32 v57, 1, v{n}
    v_xor_b32 v57, v57, v{g}
    v_lshl_add_u32 v3, v57, 4, v56
    v_xor_b32 v57, 4, v57
    v_lshl_add_u32 v4, v57, 4, v56""")
    NB = 6
    def cload(tau):
        t, v = tau >> 2, tau & 3
        L = []
        for k in range(6):
            L.append(f"""s_add_u32 m0, s{sT2}, {6144*(tau % NB)+1024*k}
            s_add_u32 s{sT1}, s{sT0}, {(64*t+32*(v>>1)+2*(v&1))*12288 + 128*(k%3)}
            {dma(SRD_B, 1 if k < 3 else 2, f's{sT1}')}""")
        return L
    for tau in range(3):
        for s in cload(tau): a(s)
    a(f"""v_lshrrev_b32 v56, 2, v{n}
    v_lshl_add_u32 v56, v{g}, 3, v56
    v_mul_u32_u24 v56, 80, v56
    v_add_u32 v56, s{sT2}, v56
    v_and_b32 v57, 1, v{n}
    v_lshl_add_u32 v58, v57, 3, v56
    v_and_b32 v57, 3, v{n}
    v_lshl_add_u32 v56, v57, 3, v56
    s_waitcnt vmcnt(18)""")
    for kap in range(6):
        for v in range(2):
            for tc in range(3):
                a(f'ds_read_b64_tr_b16 {vr(F(tc,kap)+2*v,2)}, v{56 if tc < 2 else 58} offset:{WOB+(32*kap+4*v)*80+32*tc}')
        a('s_waitcnt lgkmcnt(6)')
    a('s_waitcnt lgkmcnt(0)')
    a(ps(3))
    for tau in range(3, NB-1):
        for s in cload(tau): a(s)
    acc = [[240, 244, 248]]
    AF = [88, 92, 56]
    def rd(tau, k):
        return f'ds_read_b128 {vr(AF[k % 3])}, v{3 + (k & 1)} offset:{6144*(tau % NB) + 1024*(k >> 1)}'
    for tau in range(40):
        t, v = tau >> 2, tau & 3
        ld = cload(tau+NB-1) if tau+NB-1 < 40 else []
        a(f's_waitcnt vmcnt({6*min(NB-2, 39-tau)})')
        a(rd(tau, 0)); a(rd(tau, 1))
        for k in range(6):
            if k+2 < 6: a(rd(tau, k+2))
            a(f's_waitcnt lgkmcnt({min(2, 5-k)})')
            for tc in range(3):
                c = '0' if k == 0 else ar(240+4*tc)
                a(f'v_mfma_f32_16x16x32_bf16 {ar(240+4*tc)}, {vr(AF[k % 3])}, {vr(F(tc,k))}, {c}')
            if ld and k < 5: a(ld.pop(0))
        had = bool(ld)
        while ld: a(ld.pop(0))
        a.nop(3 if had else 6)
        for tc in range(3):
            d = (tc*10+t)*8 + 2*v
            a(f"""v_accvgpr_read_b32 v5, a{240+4*tc}
            v_accvgpr_read_b32 v6, a{241+4*tc}
            v_accvgpr_read_b32 v7, a{242+4*tc}
            v_accvgpr_read_b32 v63, a{243+4*tc}
            v_cvt_pk_bf16_f32 v5, v5, v6
            v_cvt_pk_bf16_f32 v7, v7, v63
            v_accvgpr_write_b32 a{d}, v5
            v_accvgpr_write_b32 a{d+1}, v7""")
    a(ps(4))
    lp = a.lab('wini')
    a(f"""v_mov_b32 v64, {DBG_INIT}
    v_mov_b32 v65, {DBG_PAR}
    {lp}:
    buffer_load_dword v66, v64, s[{SRD_D}:{SRD_D+3}], 0 offen sc1
    buffer_load_dword v67, v65, s[{SRD_D}:{SRD_D+3}], 0 offen sc1
    s_add_u32 s{S_TO}, s{S_TO}, 1
    s_cmp_gt_u32 s{S_TO}, {TO_LIMIT}
    s_cbranch_scc1 L_exit
    s_waitcnt vmcnt(0)
    v_readfirstlane_b32 s{sT0}, v66
    v_readfirstlane_b32 s{sPar}, v67
    s_cmp_lt_u32 s{sT0}, {P['ninit']}
    s_cbranch_scc1 {lp}
    s_cmp_eq_u32 s{sPar}, 0
    s_cbranch_scc1 {lp}
    s_and_b32 s{sPar}, s{sPar}, 2
    s_lshl_b32 s{sPar}, s{sPar}, 12          ; 0 or 8192
    s_barrier""")
    a(f"""v_mov_b32 v64, 0x4444
    v_mov_b32 v65, 0xeeee
    v_cndmask_b32 v{vIdx}, v64, v65, s[{sHalf}:{sHalf+1}]
    s_lshl_b32 s{sT0}, s{S_WAVE}, 4
    v_add_u32 v64, s{sT0}, v{n}
    v_lshlrev_b32 v64, 4, v64
    v_and_b32 v65, 1, v{g}
    v_lshl_add_u32 v64, v65, 3, v64
    v_lshrrev_b32 v65, 1, v{g}
    v_lshl_add_u32 v{vQw}, v65, 2, v64
    v_lshlrev_b32 v{vKw}, 1, v{vQw}
    v_lshrrev_b32 v64, 3, v{n}
    v_lshlrev_b32 v64, 9, v64
    v_lshl_add_u32 v64, v{g}, 7, v64
    v_and_b32 v65, 7, v{n}
    v_lshl_add_u32 v{vY}, v65, 4, v64""")
    for r in range(vUP, vUP+8): a(f'v_mov_b32 v{r}, 0')
    a(f"""v_and_b32 v64, 0x1ff, v{vY}
    v_lshrrev_b32 v65, 3, v{n}
    v_lshl_add_u32 v{vD2}, v65, 3, v64""")
    a(f"""s_mov_b32 s{S_STEP}, 0
    s_mul_i32 s{sY}, s{sH}, 40960
    s_mul_i32 s{sT0}, s{sCg}, 2560
    s_add_u32 s{sY}, s{sY}, s{sT0}
    s_add_u32 s{sY}, s{sY}, {Y_OFF}
    s_lshr_b32 s{sU}, s{sH}, 2
    s_mul_i32 s{sU}, s{sU}, 40960
    s_add_u32 s{sU}, s{sU}, s{sT0}
    s_add_u32 s{sU}, s{sU}, {U_OFF - 8*40960}
    s_mul_i32 s{sK}, s{sHs}, 12288
    s_mul_i32 s{sT0}, s{sCs}, 3072
    s_add_u32 s{sK}, s{sK}, s{sT0}
    s_add_u32 s{sK}, s{sK}, {K_OFF}
    s_mul_i32 s{sKm}, s{sHs}, 6144
    s_mul_i32 s{sT0}, s{sCs}, 1536
    s_add_u32 s{sKm}, s{sKm}, s{sT0}
    s_add_u32 s{sKm}, s{sKm}, {KM_OFF - 32*6144}""")
    srd(a, SRD_A, P_MEM0, 8*640*2)
    a(f"""v_and_b32 v63, 7, v{n}
    v_mul_u32_u24 v63, 1280, v63
    v_lshl_add_u32 v63, v{g}, 5, v63
    v_lshrrev_b32 v64, 3, v{n}
    v_lshl_add_u32 v40, v64, 4, v63
    v_mov_b32 v41, v{n}
    v_mov_b32 v42, v{g}
    v_mov_b32 v43, v{ln}
    s_cmp_eq_u32 s{S_WAVE}, 0
    s_cbranch_scc1 L_rec_0
    s_cmp_eq_u32 s{S_WAVE}, 1
    s_cbranch_scc1 L_rec_1
    s_cmp_eq_u32 s{S_WAVE}, 2
    s_cbranch_scc1 L_rec_2
    s_branch L_rec_3""")

def step_scalars(w):
    L = [f's_and_b32 s{sT0}, s{S_STEP}, 3',
         f's_mul_i32 s{sMr}, s{sT0}, {M_SLOT}',
         f's_add_u32 s{sMr}, s{sMr}, s{sMb}',
         f's_add_u32 s{sMr}, s{sMr}, {OWN[w][0]*1024}',
         f's_mul_i32 s{sG}, s{sT0}, {G_SLOT}',
         f's_add_u32 s{sTag}, s{S_STEP}, 1',
         f's_mul_i32 s{sTag3}, s{sTag}, 0x01010101']
    if w >= 2:
        L += [f's_add_u32 s{sG}, s{sG}, s{sPar}',
              f's_xor_b32 s{sGL}, s{sG}, 8192']
    if w == 3:
        L += [f's_xor_b32 s{sT0}, s{sT0}, 2',
              f's_mul_i32 s{sGp}, s{sT0}, {G_SLOT}',
              f's_add_u32 s{sGp}, s{sGp}, s{sPar}',
              f's_xor_b32 s{sGLp}, s{sGp}, 8192',
              f's_add_u32 s{sT0}, s{S_STEP}, 3',
              f's_and_b32 s{sT0}, s{sT0}, 3',
              f's_mul_i32 s{sMp}, s{sT0}, {M_SLOT}',
              f's_add_u32 s{sMp}, s{sMp}, s{sMb}',
              f'v_mov_b32 v{vFd}, s{S_STEP}']
    return L

def poll_known(o, lab, sKn, sF, thr, tmp):
    o(f"""{lab}:
    s_add_u32 s{S_TO}, s{S_TO}, 1
    s_cmp_gt_u32 s{S_TO}, {TO_LIMIT}
    s_cbranch_scc1 L_exit
    {W('load_dword', f'v{tmp}', 9, f's{sF}', 0, 'sc1')}
    s_waitcnt vmcnt(0)
    v_readfirstlane_b32 s{sKn}, v{tmp}
    s_cmp_lt_u32 s{sKn}, {thr}
    s_cbranch_scc1 {lab}""")

def kx_load():
    return [W('load_dwordx4', vr(vKS+4*i), vL16, f's{sK}', 1024*i, 'sc1') for i in range(3)] + [f's_add_u32 s{sK}, s{sK}, {32*12288}']
def kx_copy():
    return [f'v_mov_b32 v{vKF+8*xt+2*i+r}, v{vKS+4*i+2*xt+r}' for i in range(3) for xt in range(2) for r in range(2)]

def y_dma(w, tmp):
    d = lambda va, off: f'buffer_load_dwordx4 v{va}, s[{SRD_W}:{SRD_W+3}], s{sY} offen offset:{off} sc1 lds'
    return [f's_mov_b32 m0, {YB+3072*w}', f'v_and_b32 v{tmp}, 0x1ff, v{vL16}', d(vL16, 0), d(vL16, 1024), d(tmp, 2048), f's_add_u32 s{sY}, s{sY}, {32*40960}']
def y_read(w):
    return [f'ds_read_b128 {vr(vYt+4*t)}, v{vY} offset:{YB+3072*w+1024*t}' for t in range(3)]
def flag_w(base, w):
    return f'ds_write_b32 v{vL16}, v{vTag} offset:{base+4*w}'
def flag_r(dst, base):
    return f'ds_read_b128 {vr(dst)}, v{vZ} offset:{base}'
def flag_chk(dst, nf):
    L = [f'v_min3_u32 v{dst}, v{dst}, v{dst+1}, v{dst+2}']
    if nf == 4: L.append(f'v_min_u32 v{dst}, v{dst}, v{dst+3}')
    return L + [f'v_cmp_ne_u32 vcc, s{sTag}, v{dst}']

def fold(acc, dst):
    return [f'v_permlane32_swap_b32 v{acc}, v{acc+2}', f'v_permlane32_swap_b32 v{acc+1}, v{acc+3}',
            f'v_pk_add_f32 v[{acc}:{acc+1}], v[{acc}:{acc+1}], v[{acc+2}:{acc+3}]',
            f'v_cvt_pk_bf16_f32 v{dst}, v{acc}, v{acc+1}']

def smf(acc, t, breg):
    return f'v_smfmac_f32_16x16x64_bf16 {vr(acc)}, {vr(vMF+4*t)}, {breg}, v{vIdx}'

def pub_reads():
    return [f'ds_read_b128 {vr(vPU+4*t)}, v{vL16} offset:{UB+1024*t}' for t in range(3)]
def pub_stores():
    L = [W('store_dwordx4', vr(vPU+4*t), vY, f's{sU}', 1024*t, 'sc1') for t in range(2)]
    L += [f's_mov_b64 exec, s[{sExLo}:{sExLo+1}]\n' + W('store_dwordx4', vr(vPU+8), vY, f's{sU}', 2048, 'sc1') + '\ns_mov_b64 exec, -1']
    L += [W('store_dwordx4', vr(vKf), vL16, f's{sKm}', 0, 'sc1'), W('store_dwordx2', vr(vKf+4, 2), vL8, f's{sKm}', 1024, 'sc1')]
    return L

def rec_wave(a, tail, w, P):
    n, g, ln = 41, 42, 43
    nm = str(w)
    st = P['stamp']
    own = OWN[w]; oth = [t for t in range(10) if t not in own]
    a(f'L_rec_{nm}:')
    if w < 2:
        a(f"""v_min_u32 v64, 9, v{n}
        v_add_u32 v65, {10*w}, v64
        v_lshlrev_b32 v65, 4, v65
        s_and_b32 s{sT0}, s{S_J}, 1
        s_mul_i32 s{sT1}, s{sT0}, 384
        s_mul_i32 s{sT2}, s{sCg}, 1536
        s_add_u32 s{sT1}, s{sT1}, s{sT2}
        v_add_u32 v65, s{sT1}, v65
        v_and_b32 v66, 1, v{g}
        v_mul_u32_u24 v66, 768, v66
        v_add_u32 v65, v65, v66""")
        for rho, dst in ((0, vG0), (1, vG1)):
            a(f"""v_lshrrev_b32 v66, 1, v{g}
            v_add_u32 v66, {2*rho}, v66
            v_mul_u32_u24 v67, {32*768}, v66
            v_add_u32 v{dst}, v65, v67""")
            phys(a, dst, 67)
            a(f"""v_add_u32 v{dst}, s{sPar}, v{dst}
            v_xor_b32 v67, 8192, v{dst}
            v_cmp_eq_u32 vcc, s{S_X}, v66
            s_nop 1
            v_cndmask_b32 v{dst}, v{dst}, v67, vcc""")
        a(f"""v_lshrrev_b32 v66, 1, v64
        v_lshlrev_b32 v66, 7, v66
        v_and_b32 v67, 1, v64
        v_lshl_add_u32 v66, v67, 4, v66
        v_lshl_add_u32 v66, v{g}, 3, v66
        s_mul_i32 s{sT1}, s{sCg}, 640
        s_lshl_b32 s{sT0}, s{sT0}, 6
        s_add_u32 s{sT1}, s{sT1}, s{sT0}
        s_add_u32 s{sT1}, s{sT1}, {32*w}
        v_add_u32 v66, s{sT1}, v66
        v_accvgpr_write_b32 a{aMst}, v66
        s_mov_b32 s{sEx}, 0x03ff03ff
        s_mov_b32 s{sEx+1}, 0
        v_mov_b32 v68, 0""")
        build_sel(a, 72, n, 68, 0, 64)
        for r in range(4): a(f'v_accvgpr_write_b32 a{aSel+r}, v{72+r}')
    else:
        z = w - 2
        a(f"""v_min_u32 v64, 39, v{ln}
        v_lshlrev_b32 v{vGst}, 3, v64
        v_add_u32 v{vGst}, s{sGb}, v{vGst}
        v_add_u32 v{vGst}, {384*z}, v{vGst}""")
        phys(a, vGst, 65)
        a(f"""v_lshrrev_b32 v65, 1, v64
        v_cmp_le_u32 vcc, 10, v65
        s_nop 1
        v_cndmask_b32 v66, 0, 1, vcc          ; om
        v_mul_u32_u24 v67, 10, v66
        v_sub_u32 v65, v65, v67               ; r
        v_and_b32 v67, 1, v65
        v_lshl_add_u32 v67, v66, 1, v67
        v_add_u32 v67, {4*z}, v67             ; q
        v_lshlrev_b32 v67, 4, v67
        v_lshrrev_b32 v65, 1, v65             ; o'
        v_and_b32 v64, 1, v64                 ; hb
        v_and_b32 v66, 1, v65
        v_lshl_add_u32 v66, v66, 1, v64       ; g
        v_lshlrev_b32 v66, 8, v66
        v_bfe_u32 v68, v65, 1, 1
        v_lshl_add_u32 v66, v68, 7, v66       ; g*256 + t*128
        v_lshlrev_b32 v64, 7, v64
        v_add_u32 v64, 1024, v64
        v_cmp_eq_u32 vcc, 4, v65
        s_nop 1
        v_cndmask_b32 v66, v66, v64, vcc
        v_add_u32 v{vDr}, v66, v67
        s_mov_b32 s{sEx}, -1
        s_mov_b32 s{sEx+1}, 0xff""")
    if w == 3:
        a(f"""v_lshrrev_b32 v64, 2, v{n}
        v_lshl_add_u32 v64, v{g}, 2, v64
        v_lshlrev_b32 v64, 4, v64
        v_and_b32 v65, 1, v{n}
        v_lshl_add_u32 v{vQr}, v65, 3, v64
        v_bfe_u32 v65, v{n}, 1, 1
        v_lshlrev_b32 v65, 3, v65
        v_lshl_add_u32 v{vKr}, v{vQr}, 1, v65
        v_lshlrev_b32 v{vL8}, 3, v{ln}
        v_min_u32 v64, 47, v{ln}
        v_lshlrev_b32 v64, 4, v64
        v_add_u32 v{vPG}, s{sGb}, v64""")
        phys(a, vPG, 65)
        a(f"""v_min_u32 v64, 19, v{ln}
        v_lshrrev_b32 v65, 2, v64
        v_lshlrev_b32 v65, 7, v65
        v_and_b32 v64, 3, v64
        v_lshl_add_u32 v65, v64, 4, v65
        s_and_b32 s{sT0}, s{S_J}, 1
        s_lshl_b32 s{sT0}, s{sT0}, 6
        s_mul_i32 s{sT1}, s{sCg}, 640
        s_add_u32 s{sT1}, s{sT1}, s{sT0}
        v_add_u32 v{vPM}, s{sT1}, v65""")
        for r in range(4): a(f'v_mov_b32 v{vNeg+r}, -1')
        for r in (vKF+6, vKF+7, vKF+14, vKF+15, vQf+6, vQf+7, vKf+6, vKf+7): a(f'v_mov_b32 v{r}, 0')
        for s in P['wait_k0'](): a(s)
        if P['live']:
            a(f"""v_mov_b32 v64, 0xf0000000
            v_cmp_eq_u32 vcc, 0, v{ln}
            s_nop 1
            v_cndmask_b32 v{vFa}, v64, 0, vcc""")
            poll_known(a, a.lab('k0'), sKnK, sFk, 1, vFk)
        for s in kx_load(): a(s)
        a('s_waitcnt vmcnt(0)')
        for s in kx_copy(): a(s)
    for s in step_scalars(w): a(s)
    if P['live']: poll_known(a, a.lab('y0'), sKnY, sFy, 1, vFy)
    for s in y_dma(w, 44): a(s)
    for i, t in enumerate(own):
        a(f'buffer_load_dwordx4 {vr(vMF+4*t)}, v40, s[{SRD_A}:{SRD_A+3}], 0 offen offset:{128*t}')
    uz = [f'v_mov_b32 v{vUa+r}, 0' for r in range(12)]
    az = ([f'v_mov_b32 v{vAq+r}, 0' for r in range(8)] if w < 3 else []) + uz
    for s in az: a(s)
    a('s_waitcnt vmcnt(0)')
    for t in own: a(f'ds_write_b128 v{vL16}, {vr(vMF+4*t)} offset:{MB+1024*t}')
    o = []
    if w < 3:
        for t in own: o += [smf(vAq, t, vr(vWq+8*t, 8)), smf(vAk, t, vr(vWk+8*t, 8))]
    nb = P['own_before'] if w < 3 else 0
    for s in o[:nb]: a(s)
    a(f"""s_waitcnt lgkmcnt(0)
    s_branch L_rec_{nm}_m""")
    a(f'.p2align 6\nL_rec_{nm}_top0:')
    a(st(0))
    mld = [f'buffer_load_dwordx4 v{vL16}, s[{SRD_W}:{SRD_W+3}], s{sMr} offen offset:{1024*i} sc1 lds' for i, t in enumerate(own)]
    md = P['mdepth']
    for r in range(md-1):
        for s in mld: a(s)
        a.nop(P['mgap'])
    a(f'L_rec_{nm}_top:')
    for s in mld: a(s)
    for i, t in enumerate(own):
        a(f's_waitcnt vmcnt({len(own)*(md-1) + len(own)-1-i})')
        a(f'ds_read_b128 {vr(vMF+4*t)}, v{vL16} offset:{MB+1024*t}')
    b0 = vMF+4*own[0]
    lr = a.lab('rm')
    if w < 3:
        oo = list(o[:nb])
        pop = lambda: oo.pop(0) if oo else ''
        a(f"""s_waitcnt lgkmcnt(2)
        {pop()}
        v_max3_u32 v40, v{b0}, v{b0+1}, v{b0+2}
        s_waitcnt lgkmcnt(1)
        v_max3_u32 v41, v{b0+3}, v{b0+4}, v{b0+5}
        {pop()}
        v_max3_u32 v40, v40, v{b0+6}, v{b0+7}
        s_waitcnt lgkmcnt(0)
        v_max3_u32 v41, v41, v{b0+8}, v{b0+9}
        v_max3_u32 v40, v40, v{b0+10}, v{b0+11}
        {pop()}
        v_max_u32 v40, v40, v41
        v_cmp_eq_u32 vcc, -1, v40""")
        while oo: a(oo.pop(0))
        tail(f'{lr}_z:\ns_nop 7')
        for r in range(8): tail(f'v_mov_b32 v{vAq+r}, 0')
        tail(f's_branch L_rec_{nm}_top')
        retry(a, tail, lr, f'{lr}_z')
    else:
        a(f"""s_waitcnt lgkmcnt(0)
        v_max3_u32 v40, v{b0}, v{b0+1}, v{b0+2}
        v_max_u32 v40, v40, v{b0+3}
        v_cmp_eq_u32 vcc, -1, v40""")
        retry(a, tail, lr, f'L_rec_{nm}_top')
    a(f's_cbranch_vccnz {lr}')
    a(f'L_rec_{nm}_m:')
    a(st(1))
    reads = [f'ds_read_b128 {vr(vMF+4*t)}, v{vL16} offset:{MB+1024*t}' for t in oth]
    sld = lambda S: [W('load_dwordx4', vr(r), vL16, f's{sSr}', 1024*i, 'sc1') for i, r in enumerate(S)]
    uch = [smf(vUa+4*tc, t, ar((tc*10+t)*8, 8)) for tc in range(3) for t in range(10)]
    ufold = lambda tc: fold(vUa+4*tc, vUP+2*tc) + [f'ds_write_b32 v{vL16}, v{vUP+2*tc} offset:{UB+1024*tc+4*w}']
    nb_ = P.get('nobg', 0)
    a('s_barrier')
    a(st(2))
    if w < 3:
        for s in reads[:3]: a(s)
        for s in interleave(o[nb:], reads[3:], 2): a(s)
        for i, t in enumerate(oth):
            a(f's_waitcnt lgkmcnt({len(oth)-1-i})\n' + smf(vAq, t, vr(vWq+8*t, 8)))
        kch = [smf(vAk, t, vr(vWk+8*t, 8)) for t in oth]
        fq = fold(vAq, 40) + [f'ds_write_b32 v{vQw}, v40 offset:{QB}']
        sc = f'v_pk_mul_f32 v[{vAq}:{vAq+1}], v[{vAq}:{vAq+1}], s[{sC2}:{sC2+1}]'
        a(kch[0]); a('s_nop 1'); a(kch[1]); a('s_nop 1'); a(kch[2]); a('s_nop 0')
        a(fq[0]); a(kch[3]); a(fq[1]); a(fq[2]); a(kch[4]); a(sc); a(fq[3]); a(fq[4]); a(kch[5]); a(kch[6])
        if P['b2a']:
            a('s_nop 5\ns_waitcnt lgkmcnt(0)\ns_barrier')
        else:
            a.nop(8)
        for s in fold(vAk, 41): a(s)
        a(f'ds_write_b32 v{vKw}, v41 offset:{KB}')
        np_ = P['u_early']
        for s in uch[:np_]: a(s)
        a('s_waitcnt lgkmcnt(0)\ns_barrier')
        a(st(3)); a(st(4))
        upos, spos = np_, P['spos_o']
        pend = y_read(w)
    else:
        for s in reads: a(s)
        lb = a.lab('np')
        slow = []
        if P['live']:
            lk = a.lab('wk')
            slow = [f's_cmp_gt_u32 s{sKnK}, s{sTag}\ns_cbranch_scc0 {lk}\n{lk}_b:', W('load_dword', f'v{vFk}', 9, f's{sFk}', 0, 'sc1')]
            tail(f'{lk}:\ns_add_u32 s{sT1}, s{sTag}, 1\ns_min_u32 s{sT1}, s{sT1}, 64')
            poll_known(tail, f'{lk}_p', sKnK, sFk, f's{sT1}', vFk)
            tail(f's_branch {lk}_b')
        slow += ([] if nb_ & 2 else kx_load())
        if not nb_ & 8: slow += [W('store_dwordx4', vr(vNeg), vPG, f's{sGp}', 0, 'sc1')]
        for s in slow: a(s)
        a(f's_cmp_eq_u32 s{S_STEP}, 0\ns_cbranch_scc1 {lb}')
        for s in ([] if nb_ & 1 else pub_stores()): a(s)
        a(f'{lb}:\ns_add_u32 s{sU}, s{sU}, {8*40960}\ns_add_u32 s{sKm}, s{sKm}, {32*6144}')
        plain = [] if nb_ & 4 else [W('store_dwordx4', vr(vNeg), vPG, f's{sGLp}'), W('store_dwordx4', vr(vNeg), vPM, f's{sMp}')]
        a('s_waitcnt lgkmcnt(0)')
        np_ = P['u_pre']
        for s in interleave(uch[:np_], plain, 1): a(s)
        qrd = [f'ds_read_b64_tr_b16 {vr(vQf+2*i,2)}, v{vQr} offset:{QB+256*i}' for i in range(3)]
        krd = [f'ds_read_b64_tr_b16 {vr(vKf+2*i,2)}, v{vKr} offset:{KB+512*i}' for i in range(3)]
        xm = [f'v_mfma_f32_16x16x32_bf16 {vr(vD0)}, {vr(vKF)}, {vr(vQf)}, 0',
              f'v_mfma_f32_16x16x32_bf16 {vr(vD1)}, {vr(vKF+8)}, {vr(vQf)}, 0',
              f'v_mfma_f32_16x16x32_bf16 {vr(vD0)}, {vr(vKF+4)}, {vr(vQf+4)}, {vr(vD0)}',
              f'v_mfma_f32_16x16x32_bf16 {vr(vD1)}, {vr(vKF+12)}, {vr(vQf+4)}, {vr(vD1)}']
        mm_ = [f'v_mfma_f32_16x16x32_bf16 {vr(vDm)}, {vr(vKf)}, {vr(vQf)}, 0',
               f'v_mfma_f32_16x16x32_bf16 {vr(vDm)}, {vr(vKf+4)}, {vr(vQf+4)}, {vr(vDm)}']
        sel = [f'v_cndmask_b32 v{vPk+i}, v{vD0+i}, v{vD1+i}, s[{sHalf}:{sHalf+1}]' for i in range(4)]
        sel += [f'v_mov_b32_sdwa v{vPk}, s{sTag} dst_sel:BYTE_0 dst_unused:UNUSED_PRESERVE src0_sel:BYTE_0']
        a('s_barrier')
        if P['b2a']:
            for s in qrd: a(s)
            a('s_waitcnt lgkmcnt(0)')
            a(xm[0]); a(xm[1])
            a('s_barrier')
            a(st(3))
            for s in krd: a(s)
            a(xm[2]); a(xm[3])
            a('s_waitcnt lgkmcnt(0)')
            a(mm_[0]); a(mm_[1])
            a.nop(5)
            for s in sel: a(s)
        else:
            a(st(3))
            for s in qrd + krd: a(s)
            a('s_waitcnt lgkmcnt(3)')
            for s in xm: a(s)
            a('s_waitcnt lgkmcnt(0)')
            a(mm_[0]); a(mm_[1])
            a.nop(5)
            for s in sel: a(s)
        a(f"""v_cndmask_b32 v{vDm}, v{vDm}, v{vDm+1}, s[{sHalf}:{sHalf+1}]
        v_mov_b32_sdwa v{vPk+1}, v{vDm} dst_sel:BYTE_0 dst_unused:UNUSED_PRESERVE src0_sel:BYTE_1
        v_mov_b32_sdwa v{vPk+2}, v{vDm} dst_sel:BYTE_0 dst_unused:UNUSED_PRESERVE src0_sel:BYTE_2
        v_mov_b32_sdwa v{vPk+3}, v{vDm} dst_sel:BYTE_0 dst_unused:UNUSED_PRESERVE src0_sel:BYTE_3
        s_nop 0""")
        a(W('store_dwordx4', vr(vPk), vL16, f's{sSw}'))
        a(st(4))
        upos, spos = np_, P['spos_s']
        pend = y_read(w)
    if P['live']: pend.append(f'v_readfirstlane_b32 s{sKnY}, v{vFy}')
    done0 = done1 = False
    for i in range(upos, 30):
        a(uch[i])
        if i == spos: pend += sld(SETA)
        if not done0 and i >= 17: pend += ufold(0); done0 = True
        if not done1 and i >= 27: pend += ufold(1); done1 = True
        for _ in range(2):
            if pend: a(pend.pop(0))
    k = len(pend)
    while pend: a(pend.pop(0))
    if spos >= 30:
        if spos > 30: a.nop(spos-30)
        for s in sld(SETA): a(s)
        k += 4
    a.nop(max(0, 8-k))
    for s in ufold(2): a(s)
    a(f"""s_cmp_eq_u32 s{S_STEP}, 63
    s_cbranch_scc1 L_rec_{nm}_fin""")
    a.nop(P['sgap_s'] if w == 3 else P['sgap_o'])
    X, MV, T = 68, 72, 73
    ls = a.lab('ps')
    def scheck(o, S, fail):
        A, B, C, D = S
        o(f"""v_perm_b32 v{T}, v{A}, v{B}, s{sSelT1}
        v_perm_b32 v{T+1}, v{C}, v{D}, s{sSelT1}
        v_pk_add_f32 v[{X}:{X+1}], v[{A}:{A+1}], v[{B}:{B+1}]
        v_perm_b32 v{T}, v{T+1}, v{T}, s{sSelT2}
        v_pk_add_f32 v[{X+2}:{X+3}], v[{A+2}:{A+3}], v[{B+2}:{B+3}]
        v_cmp_ne_u32 vcc, s{sTag3}, v{T}
        v_perm_b32 v{MV}, v{A+2}, v{A+1}, s{sSelU1}
        v_perm_b32 v{T}, v{B+2}, v{B+1}, s{sSelU1}
        v_perm_b32 v{T+1}, v{C+2}, v{C+1}, s{sSelU1}
        v_perm_b32 v{T+2}, v{D+2}, v{D+1}, s{sSelU1}
        v_perm_b32 v{MV}, v{A+3}, v{MV}, s{sSelU2}
        v_perm_b32 v{T}, v{B+3}, v{T}, s{sSelU2}
        s_cbranch_vccnz {fail}
        v_perm_b32 v{T+1}, v{C+3}, v{T+1}, s{sSelU2}
        v_perm_b32 v{T+2}, v{D+3}, v{T+2}, s{sSelU2}
        v_pk_add_f32 v[{X}:{X+1}], v[{X}:{X+1}], v[{C}:{C+1}]
        v_pk_add_f32 v[{X+2}:{X+3}], v[{X+2}:{X+3}], v[{C+2}:{C+3}]
        v_pk_add_f32 v[{MV}:{MV+1}], v[{MV}:{MV+1}], v[{T+1}:{T+2}]
        v_pk_add_f32 v[{X}:{X+1}], v[{X}:{X+1}], v[{D}:{D+1}]
        v_pk_add_f32 v[{X+2}:{X+3}], v[{X+2}:{X+3}], v[{D+2}:{D+3}]""")
    a(st(5))
    if P['sdepth'] == 2:
        a(f'{ls}_a:')
        for s in sld(SETB): a(s)
        a('s_waitcnt vmcnt(4) lgkmcnt(0)')
        scheck(a, SETA, f'{ls}_b')
        tail(f'{ls}_b:')
        for s in sld(SETA): tail(s)
        tail('s_waitcnt vmcnt(4)')
        scheck(tail, SETB, f'{ls}_r')
        tail(f's_branch {ls}_j')
        retry(a, tail, f'{ls}_r', f'{ls}_a')
    else:
        a(f'{ls}_a:\ns_waitcnt vmcnt(0) lgkmcnt(0)')
        scheck(a, SETA, f'{ls}_r')
        tail(f'{ls}_b:')
        for s in sld(SETA): tail(s)
        tail(f's_branch {ls}_a')
        retry(a, tail, f'{ls}_r', f'{ls}_b')
    PB = 76
    yd = ([] if nb_ & 16 else y_dma(w, 25))
    nw2 = 3
    if P['live']:
        ly = a.lab('wy')
        yd[1] = yd[1] + f'\ns_cmp_gt_u32 s{sKnY}, s{sTag}\ns_cbranch_scc0 {ly}\n{ly}_b:'
        tail(f'{ly}:\ns_add_u32 s{sT1}, s{sTag}, 1')
        poll_known(tail, f'{ly}_p', sKnY, sFy, f's{sT1}', vFy)
        tail(f's_branch {ly}_b')
        yd.append(W('load_dword', f'v{vFy}', 9, f's{sFy}', 0, 'sc1')); nw2 += 1
        if w == 3:
            yd.append(W('store_dword', f'v{vFd}', vFa, f's{sFl}', 0, 'sc1')); nw2 += 1
    def two(k=2):
        o = []
        for _ in range(k): o.append(yd.pop(0) if yd else 's_nop 0')
        return '\n'.join(o)
    a(f"""{ls}_j:
    {'s_barrier' if P['b2c'] else ''}
    {st(6)}
    v_add_f32 v{MV}, v{MV}, v{MV+1}
    v_max3_f32 v{T}, v{X}, v{X+1}, v{X+2}
    v_max3_f32 v{T}, v{T}, v{X+3}, v{MV}
    {two()}
    v_max_f32_dpp v{T+1}, v{T}, v{T} row_ror:8 row_mask:0xf bank_mask:0xf
    v_max_f32_dpp v{T+2}, v{T}, v{T} row_ror:8 row_mask:0xf bank_mask:0xf
    {two(1) if P['yspread'] else two()}
    {'s_nop 0' if P['yspread'] else ''}
    v_permlane16_swap_b32 v{T+1}, v{T+2}
    v_max_f32 v{T}, v{T+1}, v{T+2}
    v_max_f32 v{T+1}, v{T+1}, v{T+2}
    {'s_nop 1' if P['yspread'] else two(max(2, len(yd)))}
    v_permlane32_swap_b32 v{T}, v{T+1}
    v_max_f32 v{T+1}, v{T}, v{T+1}
    v_pk_add_f32 v[{X}:{X+1}], v[{X}:{X+1}], v[{T+1}:{T+2}] op_sel_hi:[1,0] neg_lo:[0,1] neg_hi:[0,1]
    v_pk_add_f32 v[{X+2}:{X+3}], v[{X+2}:{X+3}], v[{T+1}:{T+2}] op_sel_hi:[1,0] neg_lo:[0,1] neg_hi:[0,1]
    v_sub_f32 v{MV}, v{MV}, v{T+1}
    v_exp_f32 v{X}, v{X}
    v_exp_f32 v{X+1}, v{X+1}
    v_exp_f32 v{X+2}, v{X+2}
    v_exp_f32 v{X+3}, v{X+3}
    v_cvt_pk_bf16_f32 v{PB}, v{X}, v{X+1}
    v_exp_f32 v{MV}, v{MV}
    v_cvt_pk_bf16_f32 v{PB+1}, v{X+2}, v{X+3}
    v_mov_b32_dpp v{PB+2}, v{PB} row_ror:8 row_mask:0xf bank_mask:0xf
    v_add_f32 v{T}, v{X}, v{X+1}
    v_mov_b32_dpp v{PB+3}, v{PB+1} row_ror:8 row_mask:0xf bank_mask:0xf
    v_mov_b32_dpp v{T+1}, v{MV} row_ror:8 row_mask:0xf bank_mask:0xf
    v_add_f32 v{T+2}, v{X+2}, v{X+3}
    v_mfma_f32_16x16x32_bf16 {vr(60)}, {vr(vYt+4)}, {vr(PB)}, 0
    v_cvt_pk_bf16_f32 v{vUP+6}, v{MV}, v{T+1}
    v_add_f32 v{T}, v{T}, v{MV}
    v_mfma_f32_16x16x32_bf16 {vr(56)}, {vr(vYt)}, {vr(PB)}, 0
    v_add_f32 v{T}, v{T}, v{T+2}
    {two(1)}
    v_mfma_f32_16x16x32_bf16 {vr(64)}, {vr(vYt+8)}, {vr(PB)}, 0
    v_add_f32_dpp v{T+1}, v{T}, v{T} row_ror:8 row_mask:0xf bank_mask:0xf
    v_add_f32_dpp v{T+2}, v{T}, v{T} row_ror:8 row_mask:0xf bank_mask:0xf
    v_mfma_f32_16x16x16_bf16 {vr(60)}, {vr(vUP+2,2)}, {vr(vUP+6,2)}, {vr(60)}
    v_and_b32 v26, 0x1ff, v{vY}
    v_permlane16_swap_b32 v{T+1}, v{T+2}
    v_mfma_f32_16x16x16_bf16 {vr(56)}, {vr(vUP,2)}, {vr(vUP+6,2)}, {vr(56)}
    v_add_f32 v{T}, v{T+1}, v{T+2}
    v_add_f32 v{T+1}, v{T+1}, v{T+2}
    v_mfma_f32_16x16x16_bf16 {vr(64)}, {vr(vUP+4,2)}, {vr(vUP+6,2)}, {vr(64)}
    {two(1)}
    v_permlane32_swap_b32 v{T}, v{T+1}
    v_add_f32 v{T}, v{T}, v{T+1}
    v_rcp_f32 v{T}, v{T}
    {f'v_and_b32 v24, 0x70, v{vDr}' if w >= 2 else 's_nop 0'}
    v_mov_b32_dpp v56, v60 row_ror:8 row_mask:0xf bank_mask:0xc
    v_mov_b32_dpp v57, v61 row_ror:8 row_mask:0xf bank_mask:0xc
    v_mov_b32_dpp v58, v62 row_ror:8 row_mask:0xf bank_mask:0xc
    v_mov_b32_dpp v59, v63 row_ror:8 row_mask:0xf bank_mask:0xc
    ds_write_b128 v{vL16}, {vr(56)} offset:{DB+1536*w}
    v_mov_b32_dpp v64, v66 row_ror:8 row_mask:0xf bank_mask:0xc
    v_mov_b32_dpp v65, v67 row_ror:8 row_mask:0xf bank_mask:0xc
    ds_write_b32 v26, v{T} offset:{RB+4*w}
    ds_write_b64 v{vD2}, v[64:65] offset:{DB+1536*w+1024}
    {two(len(yd))}
    {f's_mov_b64 exec, s[{sEx}:{sEx+1}]' if w >= 2 else ''}
    s_waitcnt lgkmcnt(0)
    s_barrier""")
    a(st(7))
    nxt = [f's_add_u32 s{S_STEP}, s{S_STEP}, 1'] + step_scalars(w)
    if w >= 2:
        a(f'ds_read_b128 {vr(72)}, v24 offset:{RB}')
        for i in range(4): a(f'ds_read_b128 {vr(56+4*i)}, v{vDr} offset:{DB+1536*i}')
        a(f"""s_waitcnt lgkmcnt(3)
        v_pk_mul_f32 v[76:77], v[56:57], v[72:73] op_sel_hi:[1,0]
        v_pk_mul_f32 v[78:79], v[58:59], v[72:73] op_sel_hi:[1,0]
        s_waitcnt lgkmcnt(2)
        v_pk_fma_f32 v[76:77], v[60:61], v[72:73], v[76:77] op_sel:[0,1,0] op_sel_hi:[1,1,1]
        v_pk_fma_f32 v[78:79], v[62:63], v[72:73], v[78:79] op_sel:[0,1,0] op_sel_hi:[1,1,1]
        s_waitcnt lgkmcnt(1)
        v_pk_fma_f32 v[76:77], v[64:65], v[74:75], v[76:77] op_sel_hi:[1,0,1]
        v_pk_fma_f32 v[78:79], v[66:67], v[74:75], v[78:79] op_sel_hi:[1,0,1]
        s_waitcnt lgkmcnt(0)
        v_pk_fma_f32 v[76:77], v[68:69], v[74:75], v[76:77] op_sel:[0,1,0] op_sel_hi:[1,1,1]
        v_pk_fma_f32 v[78:79], v[70:71], v[74:75], v[78:79] op_sel:[0,1,0] op_sel_hi:[1,1,1]
        v_cvt_pk_bf16_f32 v76, v76, v77
        v_cvt_pk_bf16_f32 v77, v78, v79
        v_min_u32 v76, -2, v76""")
        a(W('store_dwordx2', 'v[76:77]', vGst, f's{sG}', 0, 'sc1'))
        a(W('store_dwordx2', 'v[76:77]', vGst, f's{sGL}'))
        a(st(8)); a(st(9))
        a(f's_mov_b64 exec, -1\ns_waitcnt vmcnt({nw2+2})')
        if w == 3:
            for s in pub_reads() + kx_copy(): a(s)
            if P['live']: a(f'v_readfirstlane_b32 s{sKnK}, v{vFk}')
        for s in P['progress'](w): a(s)
        for s in nxt + az: a(s)
        a('s_waitcnt lgkmcnt(0)')
    else:
        a(f's_waitcnt vmcnt({nw2}) lgkmcnt(0)')
        for s in az: a(s)
        a(f"""v_accvgpr_read_b32 v42, a{aMst}
        s_and_b32 s{sT0}, s{sTag}, 3
        s_mul_i32 s{sMw}, s{sT0}, {M_SLOT}
        s_add_u32 s{sMw}, s{sMw}, s{sMb}
        s_mov_b32 s{sGp}, s{sG}""")
        for s in nxt: a(s)
        if P['sleep_g']: a(f"s_sleep {P['sleep_g']}")
        a.nop(P['nop_g'])
        dep = P['gdepth']
        gl = lambda r: [W('load_dwordx4', vr(60+8*r), vG0, f's{sGp}', 0, 'sc1'), W('load_dwordx4', vr(64+8*r), vG1, f's{sGp}', 0, 'sc1')]
        lg = a.lab('pg')
        a(st(8))
        for r in range(dep-1):
            for s in gl(r): a(s)
            a.nop(P['ggap'])
        a(f'{lg}:')
        for r in range(dep):
            for s in gl((r+dep-1) % dep): a(s)
            b = 60+8*r
            a(f"""s_waitcnt vmcnt({2*(dep-1)})
            v_mfma_f32_16x16x32_bf16 {vr(56)}, {ar(aSel)}, {vr(b)}, 0
            v_max3_u32 v40, v{b}, v{b+2}, v{b+4}
            v_max_u32 v40, v40, v{b+6}
            v_mfma_f32_16x16x32_bf16 {vr(56)}, {ar(aSel)}, {vr(b+4)}, {vr(56)}
            v_cmp_eq_u32 vcc, -1, v40
            s_nop 4
            s_cbranch_vccz {lg}_ok""")
        a(f"""s_add_u32 s{S_TO}, s{S_TO}, 1
        s_cmp_gt_u32 s{S_TO}, {TO_LIMIT}
        s_cbranch_scc1 L_exit
        s_branch {lg}
        {lg}_ok:
        {st(9)}
        s_mov_b64 exec, s[{sEx}:{sEx+1}]
        v_cvt_pk_bf16_f32 v40, v56, v57
        v_cvt_pk_bf16_f32 v41, v58, v59
        v_min_u32 v40, -2, v40
        v_min_u32 v41, -2, v41""")
        a(W('store_dwordx2', 'v[40:41]', 42, f's{sMw}'))
        a('s_mov_b64 exec, -1')
    a('s_barrier')
    a(st(10))
    a(P['dump'](a, w))
    a(f's_mov_b32 m0, {MB+1024*own[0]}')
    a.nop(P['dm'])
    a(f's_branch L_rec_{nm}_top0')
    a(f"""L_rec_{nm}_fin:
    s_waitcnt lgkmcnt(0)
    s_barrier""")
    if w == 3:
        for s in pub_reads(): a(s)
        a('s_waitcnt lgkmcnt(0)')
        for s in pub_stores(): a(s)
        if P['live']:
            a(f'v_mov_b32 v{vFd}, 64\ns_waitcnt vmcnt(0)')
            a(W('store_dword', f'v{vFd}', vFa, f's{sFl}', 0, 'sc1'))
    a('s_branch L_rec_done')

def rec_role(a, P):
    tail = Asm(); tail.uid = 100000
    a('L_rec:')
    rec_prologue(a, P)
    for w in range(4):
        rec_wave(a, tail, w, P)
    a.lines += tail.lines
    a(f"""L_rec_done:
    s_waitcnt vmcnt(0)
    s_barrier""")
    for s in P['done'](): a(s)
    a('s_branch L_exit')
```

```python
from gen_common import *
import gen_par as gp
import gen_rec as gr

def worker_id(a):
    a(f"""L_tofinal:
    s_and_b32 s{gp.sT0}, s{S_J}, 2
    s_lshl_b32 s{gp.sT0}, s{gp.sT0}, 4
    s_add_u32 s{gp.sWk}, s{gp.sH}, s{gp.sT0}
    s_cmp_ge_u32 s{gp.sWk}, 60
    s_cbranch_scc1 L_exit""")

def staged(stage, P, tstamp=True):
    a = Asm(); P = dict(P)
    P.update(after_k='s_branch L_exit', after_v='s_branch L_exit', after_y='s_branch L_exit', pre_y=lambda a: None, v_known=100, pre_beta=lambda a: None, r_known=100,
             q_refresh=lambda r: [], q_wait=lambda a, r: None, q_update=lambda r: [], final_wait=lambda a: None, final_waity=lambda a: a('s_waitcnt vmcnt(0)'), q_prompt=0)
    a('s_memrealtime s[96:97]')
    common_entry(a)
    if stage == 'rec':
        a(f"""s_cmp_lt_u32 s{S_X}, 4
        s_cbranch_scc1 L_rec
        s_cmp_lg_u32 s{S_X}, 4
        s_cbranch_scc1 L_exit
        s_cmp_lg_u32 s{S_J}, 0
        s_cbranch_scc1 L_exit
        s_cmp_lg_u32 s{S_WAVE}, 0
        s_cbranch_scc1 L_exit""")
        calibrate(a)
        a('s_branch L_exit')
        rec_role(a, P)
    else:
        a(f's_cmp_lt_u32 s{S_X}, 4\ns_cbranch_scc1 L_exit')
        gp.lanes(a); gp.head_ids(a)
        a(f's_and_b32 s{gp.sT0}, s{S_J}, 3\ns_mov_b32 s{S_STEP}, 0\ns_mov_b32 s{gp.sEnd}, 64\ns_mov_b32 s{gp.sFb}, 2\ns_mov_b32 s{gp.sStr}, 1\ns_mov_b32 s{gp.sDone}, 0')
        tgt = {'s1': ['L_k', 'L_v', 'L_exit', 'L_alpha'], 's2': ['L_exit', 'L_exit', 'L_y', 'L_beta'],
               'q': ['L_exit']*3 + ['L_q'], 'fin': ['L_exit', 'L_tofinal', 'L_tofinal', 'L_exit']}[stage]
        for i in range(3): a(f's_cmp_eq_u32 s{gp.sT0}, {i}\ns_cbranch_scc1 {tgt[i]}')
        a(f's_branch {tgt[3]}')
        if stage == 's1':
            gp.kv_role(a, 'k', P_WK, K_OFF, 'sc1', P); gp.kv_role(a, 'v', P_WV, V_OFF, '', P)
            gp.alpha_role(a, P)
        if stage == 's2':
            gp.y_role(a, P); gp.beta_role(a, P)
        if stage == 'q': gp.q_role(a, P)
        if stage == 'fin':
            worker_id(a); gp.final_role(a, P)
    a(f"""L_exit:
    s_waitcnt vmcnt(0)
    s_memrealtime s[98:99]
    s_memtime s[90:91]
    s_lshl_b32 s94, s{S_X}, 5
    s_add_u32 s94, s94, s{S_J}
    s_lshl_b32 s94, s94, 4
    s_add_u32 s94, s94, {FL_OFF+0x10000}
    s_waitcnt lgkmcnt(0)
    s_sub_u32 s90, s90, s92
    v_mov_b32 v12, s96
    v_mov_b32 v13, s98
    v_mov_b32 v14, s100
    v_mov_b32 v15, s90
    v_mov_b32 v10, 0
    {W('store_dwordx4', 'v[12:15]', 10, 's94')}
    s_waitcnt vmcnt(0)
    s_endpgm""")
    return a

def merged(P, diag=False):
    a = Asm(); P = dict(P)
    def pre_beta(a):
        gp.wait_init(a, 256)
        a(f's_mov_b32 s{gp.sT2}, 384')
        gp.wait_flags(a, gp.vFa, f's{gp.sT2}', 1)
    def q_wait(a, r):
        a(f's_add_u32 s{gp.sT1}, s{S_STEP}, 1')
        gp.wait_flags(a, gp.vFa, 0, f's{gp.sT1}', sleep=1)
    def q_update(r):
        L = [f'v_readlane_b32 s{gp.sT0+i}, v{r}, {i}' for i in range(4)]
        return L + [f's_min_u32 s{gp.sT0}, s{gp.sT0}, s{gp.sT1}', f's_min_u32 s{gp.sT2}, s{gp.sT2}, s{gp.sT3}', f's_min_u32 s{gp.sKn}, s{gp.sT0}, s{gp.sT2}']
    def final_waity(a):
        a(f"""v_add_u32 v200, 384, v{gp.vFa}
        v_add_u32 v201, 256, v{gp.vFa}
        v_cndmask_b32 v200, v200, v201, s[{gp.sMask}:{gp.sMask+1}]
        s_add_u32 s{gp.sT1}, s{S_STEP}, 1
        v_mov_b32 v202, s{gp.sT1}
        v_cndmask_b32 v201, 2, v202, s[{gp.sMask}:{gp.sMask+1}]""")
        gp.wait_flags(a, 200, 0, 'v201', sleep=8)
    def final_wait(a):
        l = a.lab('fw')
        a(f"""s_and_b32 s{gp.sT0}, s{S_STEP}, 1
        s_cmp_lt_u32 s{S_STEP}, {P['qsplit']}
        s_cselect_b32 s{gp.sT0}, 1, s{gp.sT0}
        s_cmp_lg_u32 s{gp.sT0}, 0
        s_cselect_b32 s{gp.sT1}, 3, 65
        s_cselect_b32 s{gp.sT2}, 384, 0
        s_add_u32 s{gp.sT1}, s{gp.sT1}, s{S_STEP}
        s_add_u32 s{gp.sT3}, s{S_STEP}, 7
        v_add_u32 v204, s{gp.sT2}, v{gp.vFa}
        v_add_u32 v205, 256, v{gp.vFa}
        v_cndmask_b32 v204, v204, v205, s[{gp.sMask}:{gp.sMask+1}]
        v_mov_b32 v205, s{gp.sT1}
        v_mov_b32 v206, s{gp.sT3}
        v_cndmask_b32 v205, v205, v206, s[{gp.sMask}:{gp.sMask+1}]
        s_branch {l}_go
        {l}:
        s_sleep {P.get('fsleep', 2)}
        s_add_u32 s{S_TO}, s{S_TO}, 1
        s_cmp_gt_u32 s{S_TO}, {TO_LIMIT}
        s_cbranch_scc1 L_exit
        {l}_go:
        {W('load_dword', 'v10', 204, 0, 0, 'sc1')}
        s_waitcnt vmcnt(0)
        v_cmp_gt_u32 vcc, v205, v10
        s_nop 4
        s_cmp_lg_u32 vcc_lo, 0
        s_cbranch_scc1 {l}
        s_cmp_eq_u32 vcc_hi, 0
        s_cselect_b32 s{gp.sHave}, 1, 0""")
    P.update(live=1, ninit=256, after_k='s_branch L_k2q', after_v='s_branch L_tofinal', after_y='s_branch L_tofinal', pre_y=lambda a: gp.wait_init(a, 256), v_known=0, pre_beta=pre_beta, r_known=0,
             q_refresh=lambda r: [W('load_dword', f'v{r}', gp.vFa, 0, 0, 'sc1')], q_wait=q_wait, q_update=q_update, final_wait=final_wait, final_waity=final_waity, q_prompt=1)
    mark = (lambda i: a(f's_memrealtime s[{96+2*i}:{97+2*i}]')) if diag else (lambda i: None)
    mark(0)
    if diag:
        a('s_mov_b32 s98, 0')
        P['wait_k0'] = lambda: ['s_memrealtime s[98:99]']
    common_entry(a)
    a(f's_cmp_lt_u32 s{S_X}, 4\ns_cbranch_scc1 L_rec')
    gp.lanes(a); gp.head_ids(a)
    l = a.lab('ini')
    a(f"""s_cmp_lg_u32 s{S_WAVE}, 0
    s_cbranch_scc1 {l}
    s_mov_b64 exec, 1
    {W('store_dword', f'v{gp.vZ}', gp.vZ, f's{gp.sFl}', 0, 'sc1')}
    v_mov_b32 v10, {DBG_INIT}
    v_mov_b32 v11, 1
    s_waitcnt vmcnt(0)
    buffer_atomic_add v11, v10, s[{SRD_D}:{SRD_D+3}], 0 offen sc1
    s_mov_b64 exec, -1
    s_cmp_lg_u32 s{S_J}, 31
    s_cbranch_scc1 {l}
    s_cmp_lg_u32 s{S_X}, 7
    s_cbranch_scc1 {l}""")
    calibrate(a, P.get('ncal', 8), diag)
    a(f"""{l}:
    s_and_b32 s{gp.sT0}, s{S_J}, 3
    s_cmp_eq_u32 s{gp.sT0}, 0
    s_cbranch_scc1 L_k
    s_cmp_eq_u32 s{gp.sT0}, 1
    s_cbranch_scc1 L_v
    s_cmp_eq_u32 s{gp.sT0}, 2
    s_cbranch_scc1 L_y""")
    gp.alpha_role(a, P)
    gp.beta_role(a, P)
    a(f"""s_mov_b32 s{S_STEP}, 0
    s_mov_b32 s{gp.sEnd}, {P['qsplit']}
    s_mov_b32 s{gp.sFb}, 2
    s_mov_b32 s{gp.sStr}, 1
    s_branch L_toq
    L_k2q:""")
    gp.q_flags(a)
    gp.wait_init(a, 256)
    a(f's_mov_b32 s{gp.sT2}, 384')
    gp.wait_flags(a, gp.vFa, f's{gp.sT2}', 2)
    a(f"""s_mov_b32 s{S_STEP}, {P['qsplit']}
    s_mov_b32 s{gp.sEnd}, 64
    s_mov_b32 s{gp.sFb}, 64
    s_mov_b32 s{gp.sStr}, 2
    L_toq:
    s_mov_b32 s{gp.sDone}, 0""")
    mark(1)
    a(f"""v_and_b32 v{gp.vFa}, 3, v{gp.vLn}
    s_lshl_b32 s{gp.sT0}, s{gp.sH}, 2
    v_add_u32 v{gp.vFa}, s{gp.sT0}, v{gp.vFa}
    v_lshlrev_b32 v{gp.vFa}, 7, v{gp.vFa}
    v_add_u32 v{gp.vFa}, {FL_OFF}, v{gp.vFa}""")
    gp.q_role(a, P)
    a(f"""s_cmp_eq_u32 s{gp.sStr}, 2
    s_cbranch_scc1 L_exit
    s_mov_b32 s{S_STEP}, {P['qsplit']+1}
    s_mov_b32 s{gp.sEnd}, 64
    s_mov_b32 s{gp.sStr}, 2
    s_branch L_q_again""")
    gp.kv_role(a, 'k', P_WK, K_OFF, 'sc1', P); gp.kv_role(a, 'v', P_WV, V_OFF, '', P)
    gp.y_role(a, P)
    worker_id(a)
    mark(1)
    gp.wait_init(a, 256)
    gp.final_role(a, P)
    a('L_exit:')
    if diag:
        a(f"""s_waitcnt vmcnt(0)
        s_cmp_lg_u32 s{S_WAVE}, 3
        s_cbranch_scc1 L_exit2
        s_memrealtime s[100:101]
        s_lshl_b32 s94, s{S_X}, 5
        s_add_u32 s94, s94, s{S_J}
        s_lshl_b32 s94, s94, 4
        s_add_u32 s94, s94, {FL_OFF+0x10000}
        s_waitcnt lgkmcnt(0)
        v_mov_b32 v12, s96
        v_mov_b32 v13, s98
        v_mov_b32 v14, s100
        v_mov_b32 v15, s{S_TO}
        v_mov_b32 v10, 0
        {W('store_dwordx4', 'v[12:15]', 10, 's94')}
        L_exit2:""")
    a('s_waitcnt vmcnt(0)\ns_endpgm')
    rec_role(a, P)
    return a

KNAME = 'gated_mix__linear_attn_block__memory_aug_recurrent_mem_tr__prompt_kernel'
def final_text(P):
    ref = open('gated_mix__linear_attn_block__memory_aug_recurrent_mem_tr__prompt.s.ref').read()
    top = ''.join(l+'\n' for l in ref.split('\n') if l.startswith(';') and '@launch' not in l)
    return top + head(KNAME, 163840) + merged(P).text() + KD.format(name=KNAME)
if __name__ == '__main__':
    import sys
    out = sys.argv[1] if len(sys.argv) > 1 else 'gated_mix__linear_attn_block__memory_aug_recurrent_mem_tr__prompt.s'
    P = dict(DEFP)
    for spec in sys.argv[2:]:
        for kv in spec.split(','):
            k, v = kv.split('='); P[k] = int(v)
    open(out, 'w').write(final_text(P))
```

```python
from asmb import *
from lay import *
from gen_rec import *

def common_entry(a, touch=False):
    a(f"""s_load_dwordx16 s[8:23], s[0:1], 0
    s_load_dwordx8 s[24:31], s[0:1], 64
    s_load_dwordx4 s[32:35], s[0:1], 96
    s_getreg_b32 s{S_X}, hwreg(HW_REG_XCC_ID, 0, 3)
    v_lshrrev_b32 v1, 6, v0
    s_mov_b32 s{S_TO}, 0
    v_readfirstlane_b32 s{S_WAVE}, v1
    s_waitcnt lgkmcnt(0)
    s_add_u32 s{P_WS}, s{P_WS}, 0x1fffff
    s_addc_u32 s{P_WS+1}, s{P_WS+1}, 0
    s_and_b32 s{P_WS}, s{P_WS}, 0xffe00000""")
    srd(a, SRD_W, P_WS, WS_USED)
    srd(a, SRD_D, P_DBG, 256)
    lab = a.lab('tk')
    a(f"""v_mov_b32 v1, 0
    s_cmp_lg_u32 s{S_WAVE}, 0
    s_cbranch_scc1 {lab}
    s_lshl_b32 s{S_J}, s{S_X}, 5
    v_mov_b32 v2, s{S_J}
    v_mov_b32 v3, 1
    s_mov_b64 exec, 1
    buffer_atomic_add v3, v2, s[{SRD_D}:{SRD_D+3}], 0 offen offset:{DBG_TICK} sc0 sc1
    s_mov_b64 exec, -1""")
    if touch:
        srd(a, SRD_A, P_WO, 32*192*640*2)
        a(f"""s_lshr_b32 s52, s2, 3
        s_and_b32 s52, s52, 31
        s_lshl_b32 s53, s{S_X}, 5
        s_add_u32 s52, s52, s53
        s_mul_i32 s52, s52, 61440
        v_min_u32 v4, 59, v0
        v_lshlrev_b32 v4, 7, v4""")
        for i in range(8):
            a(f'buffer_load_dword v255, v4, s[{SRD_A}:{SRD_A+3}], s52 offen\ns_add_u32 s52, s52, 7680')
    a(f"""s_waitcnt vmcnt({8 if touch else 0})
    s_mov_b64 exec, 1
    ds_write_b32 v1, v3
    s_mov_b64 exec, -1
    s_waitcnt lgkmcnt(0)
    {lab}:
    s_barrier
    ds_read_b32 v2, v1
    s_waitcnt lgkmcnt(0)
    v_readfirstlane_b32 s{S_J}, v2
    s_barrier
    s_cmp_ge_u32 s{S_J}, 32
    s_cbranch_scc1 L_exit""")

def cal_store(a, sidx):
    a(f"""v_mbcnt_lo_u32_b32 v11, -1, 0
    v_and_b32 v12, 1, v11
    v_lshlrev_b32 v12, 7, v12
    v_bfe_u32 v13, v11, 1, 1
    v_lshl_add_u32 v12, v13, 13, v12
    s_lshl_b32 s86, s{sidx}, 8
    s_add_u32 s86, s86, {CAL_OFF}
    s_mov_b64 exec, 15""")
    a(W('store_dword', 'v11', 12, 's86', 0, 'sc1'))
    a('s_mov_b64 exec, -1')

def cal_sample(a):
    a("""s_waitcnt vmcnt(0)
    s_mov_b32 s80, 0xffff
    s_mov_b32 s81, 0xffff
    v_mov_b32 v12, 0""")
    for i in range(2):
        for p in range(2):
            a(f"""s_add_u32 s87, s86, {8192*p + 128*i}
            s_memtime s[82:83]
            s_waitcnt lgkmcnt(0)""")
            a(W('load_dword', 'v13', 12, 's87', 0, 'sc1'))
            a(f"""s_waitcnt vmcnt(0)
            s_memtime s[84:85]
            s_waitcnt lgkmcnt(0)
            s_sub_u32 s82, s84, s82
            s_min_u32 s{80+p}, s{80+p}, s82""")
    a(f"""s_sub_u32 s80, 0xffff, s80
    s_sub_u32 s81, 0xffff, s81
    v_mov_b32 v13, s80
    v_mov_b32 v14, s81
    v_mov_b32 v11, 1
    s_mov_b64 exec, 1
    buffer_atomic_umax v13, v12, s[{SRD_D}:{SRD_D+3}], 0 offen offset:{DBG_PAR+4} sc1
    buffer_atomic_umax v14, v12, s[{SRD_D}:{SRD_D+3}], 0 offen offset:{DBG_PAR+8} sc1
    s_waitcnt vmcnt(0)
    buffer_atomic_add v11, v12, s[{SRD_D}:{SRD_D+3}], 0 offen offset:{DBG_PAR} sc1
    s_mov_b64 exec, -1""")

KD = """
.section .rodata,"a"
.p2align 6
.amdhsa_kernel {name}
  .amdhsa_next_free_vgpr 512
  .amdhsa_next_free_sgpr 102
  .amdhsa_accum_offset 256
  .amdhsa_group_segment_fixed_size 0
  .amdhsa_kernarg_size 112
  .amdhsa_user_sgpr_count 2
  .amdhsa_user_sgpr_kernarg_segment_ptr 1
  .amdhsa_system_sgpr_workgroup_id_x 1
.end_amdhsa_kernel
"""
def head(name, lds):
    return f"""; @launch grid=(256,1,1) block=(256,1,1) lds={lds}
.amdgcn_target "amdgcn-amd-amdhsa--gfx950"
.text
.globl {name}
.p2align 8
.type {name},@function
{name}:
"""
import struct, math
def fbits(x): return '0x%08x' % struct.unpack('<I', struct.pack('<f', x))[0]
DEFP = dict(cexp=fbits(192**-0.5 * math.log2(math.e)), ninit=128, live=0, qsplit=56, lag=6, fshare=42, flight=2, w1ord=0, ufrom=56, asplit=18, pk0=10, pkb=28, touch=1, touchv=0, wnt=0, help=9, own_before=0, khold=1, xpre=3, b2a=1, b2c=1, u_early=2, u_pre=2, spos_s=20, spos_o=22,
            sgap_s=0, sgap_o=8, sdepth=2, mdepth=2, mgap=12, yspread=1,
            sleep_g=7, nop_g=0, gdepth=3, ggap=48, dm=56,
            wait_k0=lambda: [], wait_k=lambda: [], wait_y=lambda w: [], wait_y0=lambda w: [], progress=lambda w: [], done=lambda: [], stamp=lambda i: '', dump=lambda a, w: '')
```

```python
from asmb import *
from lay import *
from gen_rec import (S_WAVE, S_X, S_J, S_STEP, S_TO, P_X, P_WQKV, P_WOA, P_WQ, P_WK, P_WV, P_WO, P_GATE, P_OUT,
                     SRD_W, SRD_A, SRD_B, SRD_D, TO_LIMIT, srd, W)
import struct, math
def fbits(x): return '0x%08x' % struct.unpack('<I', struct.pack('<f', x))[0]
OOB = 0xF0000000
EXP = {}
sH, sI, sCol, sT0, sT1, sT2, sT3, sXo, sBufW, sBufR, sOut, sOutN, sEnd, sFl, sFv, sKn, sHave = range(52, 69)
sK, sKm, sGt, sWk, sCb, sY, sU, sP, sO, sB, sQt = range(69, 80)
sMask = 80
sC2 = 88
sEx = 90
sDl, sFb = 94, 95
sStr, sXs, sDone, sD1, sPp, sKl = 90, 91, 78, 79, 74, 75
vN, vG, vLn, vL16, vYp, vXs, vR0, vR1, vZ, vFa = range(0, 10)

def lanes(a):
    a(f"""v_and_b32 v{vLn}, 63, v0
    v_lshrrev_b32 v{vG}, 4, v{vLn}
    v_and_b32 v{vN}, 15, v{vLn}
    v_lshlrev_b32 v{vL16}, 4, v{vLn}
    v_lshrrev_b32 v10, 3, v{vN}
    v_lshlrev_b32 v10, 9, v10
    v_lshl_add_u32 v10, v{vG}, 7, v10
    v_and_b32 v11, 7, v{vN}
    v_lshl_add_u32 v{vYp}, v11, 4, v10
    v_mov_b32 v{vZ}, 0""")

def dmark(a, i):
    if not EXP.get('marks'): return
    a(f"""s_memrealtime s[100:101]
    s_add_u32 s99, s{sFl}, {0x20000 + 4*i}
    s_waitcnt lgkmcnt(0)
    v_mov_b32 v10, s100
    {W('store_dword', 'v10', vZ, 's99')}""")

def flag_addr(x, j):
    return FL_OFF + (32*x + j)*128

def set_flag(a, val, fl='sc1'):
    l = a.lab('sf')
    a(f"""s_cmp_lg_u32 s{S_WAVE}, 0
    s_cbranch_scc1 {l}
    v_mov_b32 v10, {val}
    s_mov_b64 exec, 1
    {W('store_dword', 'v10', vZ, f's{sFl}', 0, fl)}
    s_mov_b64 exec, -1
    {l}:""")

def wait_flags(a, va, so, thr, tmp=10, sleep=2):
    l = a.lab('wf')
    a(f"""s_branch {l}_go
    {l}:
    s_sleep {sleep}
    s_add_u32 s{S_TO}, s{S_TO}, 1
    s_cmp_gt_u32 s{S_TO}, {TO_LIMIT}
    s_cbranch_scc1 L_exit
    {l}_go:
    {W('load_dword', f'v{tmp}', va, so, 0, 'sc1')}
    s_waitcnt vmcnt(0)
    v_cmp_gt_u32 vcc, {thr}, v{tmp}
    s_cbranch_vccnz {l}""")

def init_done(a, P):
    if not P['live']: return
    l = a.lab('idn')
    a(f"""s_cmp_lg_u32 s{S_WAVE}, 0
    s_cbranch_scc1 {l}
    v_mov_b32 v10, {DBG_INIT}
    v_mov_b32 v11, 1
    s_waitcnt vmcnt(0)
    s_mov_b64 exec, 1
    buffer_atomic_add v11, v10, s[{SRD_D}:{SRD_D+3}], 0 offen sc1
    s_mov_b64 exec, -1
    {l}:""")

def wait_init(a, n):
    l = a.lab('wi')
    a(f"""v_mov_b32 v11, {DBG_INIT}
    s_branch {l}_go
    {l}:
    s_sleep 4
    s_add_u32 s{S_TO}, s{S_TO}, 1
    s_cmp_gt_u32 s{S_TO}, {TO_LIMIT}
    s_cbranch_scc1 L_exit
    {l}_go:
    buffer_load_dword v10, v11, s[{SRD_D}:{SRD_D+3}], 0 offen sc1
    s_waitcnt vmcnt(0)
    v_cmp_gt_u32 vcc, {n}, v10
    s_cbranch_vccnz {l}""")

def load_w(a, rstride, nblk, RC, nchunk, nbuf, mapt, ntile, pr0, dest, private=False, tv=16):
    csz = nblk*RC*128
    vS, vB, vT = tv, tv+1, tv+2
    tmp = tv+2+ntile
    a(f"""v_lshrrev_b32 v{tmp}, 3, v{vLn}
    v_mul_u32_u24 v{vS}, {rstride}, v{tmp}""")
    if mapt == 'A':
        a(f"""v_bfe_u32 v{tmp}, v{tmp}, 1, 1
        s_and_b32 s{sT0}, s{S_WAVE}, 1
        s_lshl_b32 s{sT0}, s{sT0}, 1
        v_add_u32 v{tmp}, s{sT0}, v{tmp}""")
    else:
        a(f'v_lshrrev_b32 v{tmp}, 1, v{tmp}')
    a(f"""v_lshlrev_b32 v{tmp}, 1, v{tmp}
    v_and_b32 v{tmp+1}, 7, v{vLn}
    v_xor_b32 v{tmp}, v{tmp}, v{tmp+1}
    v_lshl_add_u32 v{vS}, v{tmp}, 4, v{vS}
    v_lshrrev_b32 v{tmp}, 2, v{vN}
    v_lshl_add_u32 v{vB}, v{vG}, {3 if mapt == 'A' else 2}, v{tmp}
    v_lshlrev_b32 v{vB}, 7, v{vB}
    v_and_b32 v{tmp+1}, 3, v{vN}
    v_lshl_add_u32 v{vB}, v{tmp+1}, 3, v{vB}
    v_lshrrev_b32 v{tmp}, 1, v{tmp}
    v_and_b32 v{tmp+1}, 1, v{vG}
    v_lshl_add_u32 v{tmp}, v{tmp+1}, 1, v{tmp}""")
    if private:
        assert mapt == 'B' and nchunk == 1
        a(f's_mul_i32 s{sT3}, s{S_WAVE}, {csz}\ns_mov_b32 s{sT2}, s{sCol}\nv_add_u32 v{vB}, s{sT3}, v{vB}')
    else:
        a(f"""s_lshl_b32 s{sT3}, s{S_WAVE}, 10
        s_mul_i32 s{sT2}, s{S_WAVE}, {8*rstride}
        s_add_u32 s{sT2}, s{sT2}, s{sCol}""")
    for t in range(ntile):
        a(f"""s_add_u32 s{sT0}, {pr0}, {t}
        s_and_b32 s{sT1}, s{sT0}, 3
        s_lshr_b32 s{sT0}, s{sT0}, 2
        s_mul_i32 s{sT0}, s{sT0}, {RC*128}
        v_xor_b32 v{tmp+1}, s{sT1}, v{tmp}
        v_lshl_add_u32 v{tmp+1}, v{tmp+1}, 5, v{vB}
        v_add_u32 v{vT+t}, s{sT0}, v{tmp+1}""")
    nq = RC//8 if private else RC//32
    rsk = 8 if private else 32
    per = nblk*nq
    def issue(c):
        for q in range(nq):
            for b in range(nblk):
                a(f"""s_add_u32 m0, s{sT3}, {(c % nbuf)*csz + b*RC*128 + q*rsk*128}
                s_add_u32 s{sT0}, s{sT2}, {(c*RC + q*rsk)*rstride + b*128}
                buffer_load_dwordx4 v{vS}, s[{SRD_A}:{SRD_A+3}], s{sT0} offen lds""")
    assert per*min(nbuf, nchunk) <= 63
    for c in range(min(nbuf, nchunk)): issue(c)
    for c in range(nchunk):
        left = min(nchunk, c+nbuf) - c - 1
        a(f's_waitcnt vmcnt({per*left})')
        if not private: a('s_barrier')
        cnt = 0
        for t in range(ntile):
            a(f'v_add_u32 v{tmp+1+(t&1)}, {(c % nbuf)*csz}, v{vT+t}')
            for k in range(RC//32):
                for v in range(2):
                    off = (32*k + (4 if mapt == 'A' else 16)*v)*128
                    a(f'ds_read_b64_tr_b16 {dest(t, c*(RC//32)+k, v)}, v{tmp+1+(t&1)} offset:{off}')
                    cnt += 1
                    if cnt % 8 == 0: a('s_waitcnt lgkmcnt(6)')
        a('s_waitcnt lgkmcnt(0)')
        if not private: a('s_barrier')
        if c+nbuf < nchunk: issue(c+nbuf)

XBUF = 40960
FR = 16
AC = 48
EP = 96

def x_setup(a):
    srd(a, SRD_B, P_X, 2048*1280)
    a(f"""v_lshrrev_b32 v10, 3, v{vLn}
    v_mul_u32_u24 v{vXs}, 1280, v10
    v_lshrrev_b32 v10, 1, v10
    s_and_b32 s{sT0}, s{S_WAVE}, 1
    s_lshl_b32 s{sT0}, s{sT0}, 2
    v_add_u32 v10, s{sT0}, v10
    v_and_b32 v11, 7, v{vLn}
    v_xor_b32 v10, v10, v11
    v_lshl_add_u32 v{vXs}, v10, 4, v{vXs}
    s_mul_i32 s{sT0}, s{S_WAVE}, {8*1280}
    s_add_u32 s{sXo}, s{sXo}, s{sT0}
    s_mul_i32 s{sBufW}, s{S_WAVE}, 10240
    v_lshrrev_b32 v10, 3, v{vN}
    v_mul_u32_u24 v10, 10240, v10
    v_and_b32 v11, 7, v{vN}
    v_lshl_add_u32 v10, v11, 7, v10
    v_lshrrev_b32 v11, 1, v{vN}
    v_xor_b32 v11, v11, v{vG}
    v_lshl_add_u32 v{vR0}, v11, 4, v10
    v_xor_b32 v11, 4, v11
    v_lshl_add_u32 v{vR1}, v11, 4, v10
    s_mov_b32 s{sBufR}, 0""")

def x_dma(strided=False):
    L = [f's_add_u32 m0, s{sBufW}, {896*l}\ns_nop 0\nbuffer_load_dwordx4 v{vXs}, s[{SRD_B}:{SRD_B+3}], s{sXo} offen offset:{128*l} lds' for l in range(10)]
    L.append(f"""s_add_u32 s{sXo}, s{sXo}, {f's{sXs}' if strided else XBUF}
    s_add_u32 s{sBufW}, s{sBufW}, {XBUF}
    s_cmp_ge_u32 s{sBufW}, {3*XBUF}
    s_cselect_b32 s{sT0}, {3*XBUF}, 0
    s_sub_u32 s{sBufW}, s{sBufW}, s{sT0}""")
    return L

def x_rd(k):
    return [f'ds_read_b128 {vr(FR+8*(k%4)+4*xt)}, v{vR0+(k&1)} offset:{20480*xt+1024*(k>>1)}' for xt in range(2)]

def gemm_loop(a, name, nt, orient, epi, post=None, early=None, after_bar=None, cinit='0', relaxed=False, late_fill=None, strided=False, defer=None):
    for s in x_dma(strided): a(s)
    for s in x_dma(strided): a(s)
    a('s_waitcnt vmcnt(10)\ns_barrier')
    for s in x_rd(0) + x_rd(1): a(s)
    a(f's_mov_b32 s{sOut}, {OOB}\ns_waitcnt lgkmcnt(2)')
    if EXP.get('stamp'): a('s_memtime s[92:93]\ns_memrealtime s[100:101]\ns_waitcnt lgkmcnt(0)')
    a(f'.p2align 6\nL_{name}_loop:')
    for p in range(2 if epi else 1):
        acc = AC + 24*p; prev = AC + 24*(1-p)
        head = early() if early else []
        fill = (epi(prev) if epi else []) + (defer() if defer else [])
        dm = x_dma(strided)
        if EXP.get('nodma'): dm = dm[-1:]
        if EXP.get('nost'): fill = [x for x in fill if 'buffer_store' not in x]
        dl = []
        for x in dm[:-1]:
            m0, _, ld = x.split('\n')
            dl += [m0, ld]
        tl = dm[-1].split('\n')
        dl += [tl[0], tl[1], tl[2]+'\n'+tl[3], tl[4]]
        nwait = 10 if len(dm) > 1 else 0
        nmf = 2*nt
        k0 = 8//nmf + 1
        if relaxed:
            nwait += sum('buffer_store' in x for x in fill)
            pre = 4 if not head else 0
            head += dl[:pre]; dl = dl[pre:]
            step = max(1, int(len(fill)*0.8)//(len(dl)//2)); mix = []
            for i in range(0, len(dl), 2):
                mix += dl[i:i+1] + fill[:1] + dl[i+1:i+2] + fill[1:step]; fill = fill[step:]
            fill = mix + fill
        else:
            fill += dl
        nhead = len(head)
        fill = head + fill
        lf = late_fill() if late_fill else []
        cost = lambda x: 3 if 'ds_write_b128' in x else sum(2 if ('v_exp' in y or 'v_rcp' in y or 'permlane' in y or 's_nop 1' in y) else 1 for y in x.split('\n') if not y.strip().endswith(':'))
        gaps = []
        for k in range(0, 18):
            for i in range(nmf):
                g_ = 2 - (1 if i < 2 else 0) - (1 if i == nmf-1 else 0)
                if (k == 0 and i == nmf-1) or (k == 1 and i in (0, 1, nmf-1)) or (k == 17 and i < 2): g_ = 0
                gaps.append(g_)
        totc = sum(cost(x) for x in fill); totg = sum(gaps)
        rate = max(totc, int(totg*0.75)) if early else max(totc, 1)
        fi = 0; used = 0; avail = 0; gi = 0
        since = [0]
        def emit(x):
            if x == '@': return
            if x.startswith('ds_'): since[0] = 0
            a(x.replace('lgkmcnt(0)', f'lgkmcnt({min(since[0], 15)})'))
        for k in range(20):
            if k == 18:
                while fi < len(fill): emit(fill[fi]); a('s_nop 0'); fi += 1
                a(f"""s_waitcnt vmcnt({nwait}) lgkmcnt(0)
                s_barrier""")
            rd = x_rd(k+2) if k < 18 else x_rd(k-18)
            i = 0
            for t in range(nt):
                for xt in range(2):
                    d = vr(acc + 4*(2*t+xt)); wv = ar((t*20+k)*4); xv = vr(FR+8*(k%4)+4*xt)
                    c = cinit if k == 0 else d
                    a(f'v_mfma_f32_16x16x32_bf16 {d}, {wv}, {xv}, {c}' if orient == 'T' else f'v_mfma_f32_16x16x32_bf16 {d}, {xv}, {wv}, {c}')
                    if i < 2: a(rd[i]); since[0] += 1
                    if k == 0 and i == nmf-1:
                        a(f"""s_add_u32 s{sBufR}, s{sBufR}, {XBUF}
                        s_cmp_ge_u32 s{sBufR}, {3*XBUF}""")
                    if k == 1 and i == 0: a(f's_cselect_b32 s{sDl}, {3*XBUF}, 0')
                    if k == 1 and i == 1: a(f's_sub_u32 s{sBufR}, s{sBufR}, s{sDl}')
                    if k == 1 and i == nmf-1: a(f's_sub_u32 s{sDl}, {XBUF}, s{sDl}')
                    if k == 17 and i == 0: a(f'v_add_u32 v{vR0}, s{sDl}, v{vR0}')
                    if k == 17 and i == 1: a(f'v_add_u32 v{vR1}, s{sDl}, v{vR1}')
                    if k < 18:
                        avail += gaps[gi]; gi += 1
                        last = ''
                        while gaps[gi-1] and fi < len(fill) and (k >= k0 or fi < nhead) and (used + min(cost(fill[fi]), 3))*totg <= avail*rate + totg//2:
                            if last.startswith('s_add_u32 m0') and ' lds' in fill[fi]: break
                            emit(fill[fi]); last = fill[fi] if fill[fi] != '@' else last; used += cost(fill[fi]); fi += 1
                    if k >= 18:
                        for _ in range(1 if i < 2 else 2):
                            if lf: a(lf.pop(0))
                    if k == 19 and i == 2 and after_bar: after_bar(a)
                    if i == nmf-1 and k not in (17, 18): a('s_waitcnt lgkmcnt(2)')
                    i += 1
        while lf: a(lf.pop(0))
        if post: post(a, acc)
        a(f's_mov_b32 s{sOut}, s{sOutN}')
        a(f's_add_u32 s{S_STEP}, s{S_STEP}, ' + (f's{sStr}' if strided else '1'))
    a(f"""s_cmp_lt_u32 s{S_STEP}, s{sEnd}
    s_cbranch_scc1 L_{name}_loop""")
    if epi:
        a.nop(8)
        for s in epi(AC+24): a(s)
    a('s_waitcnt vmcnt(0) lgkmcnt(0)\ns_barrier')

def epi_plain(nt, stride, fl, phi=False):
    def f(acc):
        L = []
        for t in range(nt):
            o = EP + 4*t
            for xt in range(2):
                b = acc + 4*(2*t+xt)
                if phi:
                    e = EP + 16
                    L += [f'v_fma_f32 v{e+i}, v{b+i}, s{sC2}, v{EP+24}' for i in range(4)]
                    for i in range(4): L += [f'v_exp_f32 v{e+i}, v{e+i} clamp', f'v_max_f32 v{b+i}, v{EP+20}, v{b+i}']
                    L += [f'v_add_f32 v{b+i}, v{b+i}, v{e+i}' for i in range(4)]
                L += [f'v_cvt_pk_bf16_f32 v{o+2*xt}, v{b}, v{b+1}', f'v_cvt_pk_bf16_f32 v{o+2*xt+1}, v{b+2}, v{b+3}']
            L.append(W('store_dwordx4', vr(o), vL16, f's{sOut}', 1024*t, fl))
        L.append(f's_add_u32 s{sOutN}, s{sOutN}, {stride}')
        return L
    return f

def head_ids(a):
    a(f"""s_sub_u32 s{sH}, s{S_X}, 4
    s_lshl_b32 s{sH}, s{sH}, 3
    s_lshr_b32 s{sT0}, s{S_J}, 2
    s_add_u32 s{sH}, s{sH}, s{sT0}
    s_lshl_b32 s{sFl}, s{S_X}, 5
    s_add_u32 s{sFl}, s{sFl}, s{S_J}
    s_lshl_b32 s{sFl}, s{sFl}, 7
    s_add_u32 s{sFl}, s{sFl}, {FL_OFF}""")

def touch_rows(a, ptr, part, nparts):
    rows = 640//(8*nparts)//4
    srd(a, SRD_A, ptr, 640*6144*2)
    a(f"""s_and_b32 s{sT0}, s{sH}, 7
    s_mul_i32 s{sT0}, s{sT0}, {nparts}
    s_add_u32 s{sT0}, s{sT0}, {part}
    s_lshl_b32 s{sT0}, s{sT0}, 2
    s_add_u32 s{sT0}, s{sT0}, s{S_WAVE}
    s_mul_i32 s{sT0}, s{sT0}, {rows*12288}
    s_lshr_b32 s{sT1}, s{sH}, 3
    s_mul_i32 s{sT1}, s{sT1}, 3072
    s_add_u32 s{sT0}, s{sT0}, s{sT1}""")
    for i in range(2):
        a(f"""v_min_u32 v10, 59, v{vLn}
        v_add_u32 v10, {60*i}, v10
        v_mul_u32_u24 v11, 0xaab, v10
        v_lshrrev_b32 v11, 16, v11
        v_mul_u32_u24 v12, 24, v11
        v_sub_u32 v10, v10, v12
        v_mul_u32_u24 v11, 12288, v11
        v_lshl_add_u32 v{13+i}, v10, 7, v11""")
    for r in range(rows//5):
        a(f"""buffer_load_dword v255, v13, s[{SRD_A}:{SRD_A+3}], s{sT0} offen
        buffer_load_dword v255, v14, s[{SRD_A}:{SRD_A+3}], s{sT0} offen
        s_add_u32 s{sT0}, s{sT0}, {5*12288}""")

def touch_x(a):
    srd(a, SRD_A, P_X, 2048*1280)
    a(f"""s_lshl_b32 s{sT0}, s{sH}, 2
    s_add_u32 s{sT0}, s{sT0}, s{S_WAVE}
    s_lshl_b32 s{sT0}, s{sT0}, 7
    v_lshlrev_b32 v10, 14, v{vLn}""")
    for i in range(3):
        a(f'buffer_load_dword v255, v10, s[{SRD_A}:{SRD_A+3}], s{sT0} offen\ns_add_u32 s{sT0}, s{sT0}, {1<<20}')

def w_head(a, ptr):
    srd(a, SRD_A, ptr, 640*6144*2)
    a(f's_mul_i32 s{sCol}, s{sH}, 384\ns_mul_i32 s{sI}, s{S_WAVE}, 3')
    load_w(a, 12288, 3, 160, 4, 2, 'A', 3, f's{sI}', lambda t, k, v: ar((t*20+k)*4+2*v, 2))

def kv_role(a, name, ptr, off, fl, P):
    a(f'L_{name}:')
    if name == 'k' and P['help']:
        a('s_waitcnt vmcnt(0)\ns_barrier')
        init_done(a, P)
        touch_rows(a, P_WK, 0, 2)
    w_head(a, ptr)
    if not (name == 'k' and P['help']): init_done(a, P)
    a(f"""s_mov_b32 s{S_STEP}, 0
    s_mov_b32 s{sEnd}, 64
    s_mov_b32 s{sXo}, 0
    s_mul_i32 s{sOutN}, s{sH}, 12288
    s_mul_i32 s{sT0}, s{S_WAVE}, 3072
    s_add_u32 s{sOutN}, s{sOutN}, s{sT0}
    s_add_u32 s{sOutN}, s{sOutN}, {off - 32*12288}""")
    dmark(a, 0)
    x_setup(a)
    gemm_loop(a, name, 3, 'T', epi_plain(3, 32*12288, fl), after_bar=lambda a: set_flag(a, f's{S_STEP}', fl))
    set_flag(a, 64, fl)
    a(P['after_'+name])

def y_role(a, P):
    a('L_y:')
    srd(a, SRD_A, P_WO, 32*192*640*2)
    a(f's_mul_i32 s{sCol}, s{sH}, {192*1280}\ns_mul_i32 s{sI}, s{S_WAVE}, 10')
    load_w(a, 1280, 10, 32, 6, 3, 'B', 10, f's{sI}', lambda t, k, v: ar((t*6+k)*4+2*v, 2))
    dmark(a, 0)
    init_done(a, P)
    if P['help'] & 2: touch_rows(a, P_WQ, 0, 2)
    if P['help'] & 4: touch_rows(a, P_WQ, 0, 1)
    a('s_waitcnt vmcnt(0)\ns_barrier')
    P['pre_y'](a)
    VB = 12288; NBUF = 4
    FA = 16
    a(f"""s_mov_b32 s{S_STEP}, 0
    s_mov_b32 s{sKn}, {P['v_known']}
    s_sub_u32 s{sFv}, s{sFl}, 128
    s_mul_i32 s{sXo}, s{sH}, 12288
    s_mul_i32 s{sT0}, s{S_WAVE}, 3072
    s_add_u32 s{sXo}, s{sXo}, s{sT0}
    s_add_u32 s{sXo}, s{sXo}, {V_OFF}
    s_mov_b32 s{sBufW}, s{sT0}
    s_mul_i32 s{sOut}, s{sH}, 40960
    s_mul_i32 s{sT0}, s{S_WAVE}, 10240
    s_add_u32 s{sOut}, s{sOut}, s{sT0}
    s_add_u32 s{sOut}, s{sOut}, {Y_OFF}
    s_mov_b32 s{sOutN}, {OOB}
    s_mov_b32 s{sEnd}, 0
    v_mov_b32 v{vR0}, v{vL16}
    v_add_u32 v{vR1}, 8, v{vL16}
    v_add_u32 v12, 4096, v{vYp}
    v_add_u32 v13, 8192, v{vYp}
    s_lshl_b32 s{sT0}, s{S_WAVE}, 6
    v_add_u32 v15, s{sT0}, v{vLn}
    v_min_u32 v15, 1, v15
    v_mul_u32_u24 v15, 0xf00000, v15
    v_lshlrev_b32 v15, 8, v15""")
    def need():
        l = a.lab('nv')
        a(f"""s_cmp_gt_u32 s{sKn}, s{sEnd}
        s_cbranch_scc1 {l}
        s_add_u32 s{sT1}, s{sEnd}, 1
        s_min_u32 s{sT1}, s{sT1}, 64""")
        wait_flags(a, vZ, f's{sFv}', f's{sT1}', sleep=1)
        a(f'v_readfirstlane_b32 s{sKn}, v10\n{l}:')
    def vdma():
        L = [f's_mov_b32 m0, s{sBufW}\ns_nop 0'] + [f'buffer_load_dwordx4 v{vL16}, s[{SRD_W}:{SRD_W+3}], s{sXo} offen offset:{1024*i} sc1 lds' for i in range(3)]
        L.append(f"""s_add_u32 s{sXo}, s{sXo}, {32*12288}
        s_add_u32 s{sEnd}, s{sEnd}, 1
        s_add_u32 s{sBufW}, s{sBufW}, {VB}
        s_cmp_ge_u32 s{sBufW}, {2*VB}
        s_cselect_b32 s{sT0}, {2*VB}, 0
        s_sub_u32 s{sBufW}, s{sBufW}, s{sT0}""")
        return L
    def vrd(p):
        return [f'ds_read2st64_b64 {vr(FA+48*p+8*k+4*xt)}, v{vR0+xt} offset0:{24*p+4*k} offset1:{24*p+4*k+2}' for k in range(6) for xt in range(2)]
    need()
    for s in vdma(): a(s)
    a('s_waitcnt vmcnt(0)\ns_barrier')
    for s in vrd(0): a(s)
    dmark(a, 1)
    if EXP.get('stamp'): a('s_memtime s[92:93]\ns_memrealtime s[100:101]\ns_waitcnt lgkmcnt(0)')
    a('.p2align 6\nL_y_loop:')
    def ep(t, so):
        b = 112 + 8*(t & 1); o = 128 + 4*(t & 1)
        return [f'v_cvt_pk_bf16_f32 v{o}, v{b}, v{b+1}', f'v_cvt_pk_bf16_f32 v{o+1}, v{b+2}, v{b+3}',
                f'v_cvt_pk_bf16_f32 v{o+2}, v{b+4}, v{b+5}', f'v_cvt_pk_bf16_f32 v{o+3}, v{b+6}, v{b+7}',
                W('store_dwordx4', vr(o), (vYp, 12, 13)[t >> 2], so, 1024*(t & 3), 'sc1')]
    for p in range(2):
        need()
        a('s_waitcnt lgkmcnt(0)')
        vd = vdma(); tl = vd[-1].split('\n')
        for t in range(10):
            fill = ep(9, f's{sOutN}') if t == 0 else ep(t-1, f's{sOut}')
            pre = ['']*7
            if t == 0: pre = [f's_mov_b32 m0, s{sBufW}', vd[1], '', vd[2], '', vd[3], P['y_refresh']]
            if t == 1: pre = [tl[0], tl[1], tl[2], tl[3]+'\n'+tl[4], tl[5], '', '']
            if t == 6:
                a('s_waitcnt vmcnt(5)\ns_barrier')
                pre[5] = P['y_update']
            if t >= 6:
                r = vrd(1-p)[3*(t-6):3*(t-6)+3]
                pre[0], pre[3], pre[6] = r
            mm = []
            for k in range(6):
                for xt in range(2):
                    d = vr(112+8*(t & 1)+4*xt)
                    mm.append(f'v_mfma_f32_16x16x32_bf16 {d}, {vr(FA+48*p+8*k+4*xt)}, {ar((t*6+k)*4)}, {"0" if k == 0 else d}')
            if t == 7:
                pre[1] = f'v_mov_b32 v14, s{S_STEP}'
                pre[4] = W('store_dword', 'v14', 15, f's{sFl}', 0, 'sc1')
            if t == 9:
                fill[4] += f'\ns_mov_b32 s{sOutN}, s{sOut}\ns_add_u32 s{sOut}, s{sOut}, {32*40960}'
                pre[1] = f's_add_u32 s{S_STEP}, s{S_STEP}, 1'
            seq = interleave(mm[:7], pre, 1) + interleave(mm[7:], fill, 1)
            for s in seq: a(s)
    a(f"""s_cmp_lt_u32 s{S_STEP}, 64
    s_cbranch_scc1 L_y_loop""")
    a.nop(8)
    for s in ep(9, f's{sOutN}'): a(s)
    a('s_waitcnt vmcnt(0) lgkmcnt(0)\ns_barrier')
    set_flag(a, 64)
    a(P['after_y'])

def q_flags(a):
    a(f"""v_and_b32 v{vFa}, 31, v{vLn}
    v_lshlrev_b32 v{vFa}, 9, v{vFa}
    v_add_u32 v{vFa}, {flag_addr(4, 0)}, v{vFa}""")

def alpha_role(a, P):
    a('L_alpha:')
    init_done(a, P)
    if P['help']:
        a('s_waitcnt vmcnt(0)\ns_barrier')
        touch_x(a)
        touch_rows(a, P_WK, 1, 2)
        if P['help'] & 2:
            a('s_waitcnt vmcnt(0)')
            touch_rows(a, P_WQ, 1, 2)
    a(f"""s_and_b32 s{sT0}, s{sH}, 1
    s_lshl_b32 s{S_STEP}, s{sT0}, 5
    s_add_u32 s{sEnd}, s{S_STEP}, 32
    s_mul_i32 s{sXo}, s{S_STEP}, {XBUF}
    s_and_b32 s{sB}, s{sH}, 6
    s_lshl_b32 s{sB}, s{sB}, 1
    s_add_u32 s{sB}, s{sB}, s{S_WAVE}
    s_mul_i32 s{sQt}, s{sB}, 0x3334
    s_lshr_b32 s{sQt}, s{sQt}, 16              ; 0 q, 1 k, 2 v, 3 gate
    s_mul_i32 s{sT2}, s{sQt}, 5
    s_sub_u32 s{sT2}, s{sB}, s{sT2}
    s_lshr_b32 s{sT1}, s{sH}, 3
    s_mul_i32 s{sT1}, s{sT1}, 5
    s_add_u32 s{sT2}, s{sT2}, s{sT1}
    s_mul_i32 s{sCol}, s{sQt}, 1280
    s_lshl_b32 s{sT1}, s{sT2}, 6
    s_add_u32 s{sCol}, s{sCol}, s{sT1}
    s_mul_i32 s{sOutN}, s{sQt}, {PK_OFF-PQ_OFF}
    s_lshl_b32 s{sT2}, s{sT2}, 11
    s_add_u32 s{sOutN}, s{sOutN}, s{sT2}
    s_add_u32 s{sOutN}, s{sOutN}, s{sXo}
    s_add_u32 s{sOutN}, s{sOutN}, {PQ_OFF - 40960}
    s_mov_b32 s{sC2}, {fbits(math.log2(math.e))}
    v_mov_b32 v{EP+20}, {fbits(1e-6)}
    v_mov_b32 v{EP+21}, {fbits(1e-6)}
    v_mov_b32 v{EP+22}, {fbits(1e-6)}
    v_mov_b32 v{EP+23}, {fbits(1e-6)}
    v_mov_b32 v{EP+24}, {fbits(-1e-6*math.log2(math.e))}
    s_cmp_eq_u32 s{sQt}, 3
    s_cbranch_scc1 L_gate""")
    srd(a, SRD_A, P_WQKV, 640*1920*2)
    a(f"""v_lshrrev_b32 v16, 2, v{vLn}
    v_mul_u32_u24 v17, 3840, v16
    v_lshrrev_b32 v16, 3, v16
    v_lshlrev_b32 v16, 1, v16
    v_and_b32 v18, 3, v{vLn}
    v_xor_b32 v16, v16, v18
    v_lshl_add_u32 v17, v16, 4, v17
    s_mul_i32 s{sT3}, s{S_WAVE}, 40960
    v_lshrrev_b32 v16, 2, v{vN}
    v_lshl_add_u32 v16, v{vG}, 3, v16
    v_lshlrev_b32 v16, 6, v16
    v_and_b32 v18, 3, v{vN}
    v_lshl_add_u32 v16, v18, 3, v16
    v_add_u32 v16, s{sT3}, v16
    v_and_b32 v18, 1, v{vG}
    v_lshl_add_u32 v19, v18, 5, v16
    v_xor_b32 v18, 1, v18
    v_lshl_add_u32 v20, v18, 5, v16""")
    for i in range(40):
        a(f"""s_add_u32 m0, s{sT3}, {1024*i}
        s_add_u32 s{sT0}, s{sCol}, {16*i*3840}
        buffer_load_dwordx4 v17, s[{SRD_A}:{SRD_A+3}], s{sT0} offen lds""")
    for k in range(20):
        a(f's_waitcnt vmcnt({38-2*k}) lgkmcnt(8)')
        for t in range(2):
            for v in range(2):
                a(f'ds_read_b64_tr_b16 {ar((t*20+k)*4+2*v, 2)}, v{19+t} offset:{(32*k+4*v)*64}')
    a('s_waitcnt lgkmcnt(0)\ns_barrier')
    dmark(a, 0)
    x_setup(a)
    a(f"""s_cmp_eq_u32 s{sQt}, 1
    s_cbranch_scc1 L_alk
    s_cmp_eq_u32 s{sQt}, 2
    s_cbranch_scc1 L_alv""")
    gemm_loop(a, 'alq', 2, 'T', epi_plain(2, 40960, '', True), cinit=vr(EP+20), relaxed=True)
    a('s_branch L_alpha_done\nL_alk:')
    gemm_loop(a, 'alk', 2, 'N', epi_plain(2, 40960, '', True), cinit=vr(EP+20), relaxed=True)
    a('s_branch L_alpha_done\nL_alv:')
    gemm_loop(a, 'alv', 2, 'N', epi_plain(2, 40960, '', False), relaxed=True)
    a('s_branch L_alpha_done\nL_gate:')
    srd(a, SRD_A, P_GATE, 1280)
    a(f'v_lshlrev_b32 v10, 4, v{vG}')
    for k in range(20): a(f'buffer_load_dwordx4 {ar(4*k)}, v10, s[{SRD_A}:{SRD_A+3}], 0 offen offset:{64*k}')
    a(f"""s_lshl_b32 s{sOutN}, s{S_STEP}, 7
    s_lshl_b32 s{sT0}, s{S_X}, 13
    s_add_u32 s{sOutN}, s{sOutN}, s{sT0}
    s_add_u32 s{sOutN}, s{sOutN}, {GT_OFF - 128}
    v_lshlrev_b32 v{vFa}, 2, v{vN}
    s_waitcnt vmcnt(0)
    s_barrier""")
    x_setup(a)
    def epi_gate(acc):
        L = []
        for xt in range(2):
            b = acc + 4*xt; o = EP + xt
            L += [f'v_mul_f32 v{o}, s{sC2}, v{b}', f'v_exp_f32 v{o}, -v{o}', 's_nop 0', f'v_add_f32 v{o}, 1.0, v{o}', f'v_rcp_f32 v{o}, v{o}', 's_nop 0',
                  W('store_dword', f'v{o}', vFa, f's{sOut}', 64*xt)]
        L.append(f's_add_u32 s{sOutN}, s{sOutN}, 128')
        return L
    gemm_loop(a, 'gate', 1, 'T', epi_gate, relaxed=True)
    a('L_alpha_done:')
    dmark(a, 1)
    set_flag(a, 1)

PAIRS = [(i, j) for i in range(5) for j in range(5) if abs(i-j) <= 1]

def beta_role(a, P):
    a('L_beta:')
    q_flags(a)
    P['pre_beta'](a)
    dmark(a, 2)
    ACC = 16
    RING = 96
    zt = lambda i: ACC + 4*(13+i)
    a(f"""s_lshr_b32 s{sB}, s{sH}, 2
    s_and_b32 s{sQt}, s{sH}, 3
    s_mul_i32 s{sT2}, s{sB}, 5120
    s_mul_i32 s{sK}, s{S_WAVE}, {16*40960}
    s_add_u32 s{sK}, s{sK}, s{sT2}
    s_add_u32 s{sK}, s{sK}, {PK_OFF}
    v_add_u32 v11, 4096, v{vL16}
    v_mov_b32 v12, 0x3f803f80
    v_mov_b32 v13, 0x3f803f80
    v_mov_b32 v14, 0x3f803f80
    v_mov_b32 v15, 0x3f803f80""")
    def ld(i):
        b = RING + 40*(i % 4)
        L = [f's_add_u32 s{sT0}, s{sK}, {i*40960}', f's_add_u32 s{sT1}, s{sT0}, {VV_OFF-PK_OFF}']
        for h, so in ((0, sT0), (1, sT1)):
            L += [W('load_dwordx4', vr(b+20*h+4*t), vL16 if t < 4 else 11, f's{so}', 1024*(t & 3), 'sc1') for t in range(5)]
        return L
    for i in range(3):
        for s in ld(i): a(s)
    for i in range(16):
        if i+3 < 16:
            for s in ld(i+3): a(s)
        a(f's_waitcnt vmcnt({10*min(3, 15-i)})')
        b = RING + 40*(i % 4)
        for n_, (p, q) in enumerate(PAIRS):
            d = vr(ACC+4*n_)
            a(f'v_mfma_f32_16x16x32_bf16 {d}, {vr(b+4*p)}, {vr(b+20+4*q)}, {"0" if i == 0 else d}')
        for p in range(5):
            d = vr(zt(p))
            a(f'v_mfma_f32_16x16x32_bf16 {d}, {vr(b+4*p)}, v[12:15], {"0" if i == 0 else d}')
    dmark(a, 3)
    PQ = 96
    a(f"""s_lshl_b32 s{sT0}, s{sQt}, 2
    s_add_u32 s{sT0}, s{sT0}, s{S_WAVE}
    s_lshl_b32 s{sT0}, s{sT0}, 2
    s_lshl_b32 s{sGt}, s{sT0}, 7
    s_lshl_b32 s{sT1}, s{S_X}, 13
    s_add_u32 s{sGt}, s{sGt}, s{sT1}
    s_add_u32 s{sGt}, s{sGt}, {GT_OFF}
    s_mul_i32 s{sO}, s{sT0}, 40960
    s_add_u32 s{sO}, s{sO}, s{sT2}
    v_lshlrev_b32 v10, 2, v{vN}""")
    for i in range(4):
        a(f's_add_u32 s{sT0}, s{sO}, {PQ_OFF + i*40960}')
        for t in range(5): a(W('load_dwordx4', vr(PQ+20*i+4*t), vL16 if t < 4 else 11, f's{sT0}', 1024*(t & 3), 'sc1'))
        for xt in range(2): a(W('load_dword', f'v{176+2*i+xt}', 10, f's{sGt}', 128*i+64*xt, 'sc1'))
    a(f's_mul_i32 s{sT0}, s{S_WAVE}, 18432\nv_add_u32 v88, s{sT0}, v{vL16}\nv_add_u32 v89, 36864, v{vL16}')
    for n_ in range(18):
        a(f'ds_write_b128 v88, {vr(ACC+4*n_)} offset:{1024*n_}')
        if n_ % 8 == 7: a('s_waitcnt lgkmcnt(4)')
    a('s_waitcnt lgkmcnt(0)\ns_barrier')
    T = 184
    for n_ in range(18):
        d = ACC+4*n_
        a(f"""ds_read_b128 {vr(d)}, v{vL16} offset:{1024*n_}
        ds_read_b128 {vr(T)}, v{vL16} offset:{18432+1024*n_}
        ds_read_b128 {vr(T+4)}, v89 offset:{1024*n_}
        ds_read_b128 {vr(T+8)}, v89 offset:{18432+1024*n_}
        s_waitcnt lgkmcnt(0)
        v_pk_add_f32 v[{d}:{d+1}], v[{d}:{d+1}], v[{T}:{T+1}]
        v_pk_add_f32 v[{d+2}:{d+3}], v[{d+2}:{d+3}], v[{T+2}:{T+3}]
        v_pk_add_f32 v[{T+4}:{T+5}], v[{T+4}:{T+5}], v[{T+8}:{T+9}]
        v_pk_add_f32 v[{T+6}:{T+7}], v[{T+6}:{T+7}], v[{T+10}:{T+11}]
        v_pk_add_f32 v[{d}:{d+1}], v[{d}:{d+1}], v[{T+4}:{T+5}]
        v_pk_add_f32 v[{d+2}:{d+3}], v[{d+2}:{d+3}], v[{T+6}:{T+7}]""")
    KA, ZA = 200, 226
    for p in range(5):
        a(f"""v_lshlrev_b32 v{T+p}, 2, v{vG}
        v_add_u32 v{T+p}, {16*p}, v{T+p}
        v_mul_u32_u24 v{T+p}, 0xccd, v{T+p}
        v_lshrrev_b32 v{T+p}, 16, v{T+p}
        v_add_u32 v{T+5+p}, {16*p}, v{vN}
        v_mul_u32_u24 v{T+5+p}, 0xccd, v{T+5+p}
        v_lshrrev_b32 v{T+5+p}, 16, v{T+5+p}
        v_cvt_pk_bf16_f32 v{zt(p)}, v{zt(p)}, v{zt(p)+1}
        v_cvt_pk_bf16_f32 v{zt(p)+1}, v{zt(p)+2}, v{zt(p)+3}""")
    for n_, (p, q) in enumerate(PAIRS):
        d = ACC+4*n_
        a(f"""v_cmp_eq_u32 vcc, v{T+p}, v{T+5+q}
        v_cvt_pk_bf16_f32 v{d}, v{d}, v{d+1}
        v_cvt_pk_bf16_f32 v{d+1}, v{d+2}, v{d+3}
        v_cndmask_b32 v{KA+2*n_}, 0, v{d}, vcc
        v_cndmask_b32 v{KA+2*n_+1}, 0, v{d+1}, vcc
        v_cndmask_b32 v{ZA+2*n_}, 0, v{zt(p)}, vcc
        v_cndmask_b32 v{ZA+2*n_+1}, 0, v{zt(p)+1}, vcc""")
    a(f's_mov_b32 s{sT3}, {fbits(1e-6)}\ns_waitcnt vmcnt(0)')
    for i in range(4):
        for q in range(5):
            for xt in range(2):
                for base, A in ((16, KA), (56, ZA)):
                    d = vr(base+8*q+4*xt); first = True
                    for n_, (p, q2) in enumerate(PAIRS):
                        if q2 != q: continue
                        a(f'v_mfma_f32_16x16x16_bf16 {d}, {vr(A+2*n_,2)}, {vr(PQ+20*i+4*p+2*xt,2)}, {"0" if first else d}')
                        first = False
        a.nop(8)
        a(f's_add_u32 s{sT0}, s{sO}, {O_OFF + i*40960}')
        for q in range(5):
            o = T + 4*(q & 1)
            for xt in range(2):
                nb, db = 16+8*q+4*xt, 56+8*q+4*xt
                for r in range(4): a(f'v_add_f32 v{db+r}, s{sT3}, v{db+r}')
                for r in range(4): a(f'v_rcp_f32 v{db+r}, v{db+r}')
                for r in range(4): a(f'v_mul_f32 v{nb+r}, v{nb+r}, v{176+2*i+xt}')
                a(f"""v_pk_mul_f32 v[{nb}:{nb+1}], v[{nb}:{nb+1}], v[{db}:{db+1}]
                v_pk_mul_f32 v[{nb+2}:{nb+3}], v[{nb+2}:{nb+3}], v[{db+2}:{db+3}]
                v_cvt_pk_bf16_f32 v{o+2*xt}, v{nb}, v{nb+1}
                v_cvt_pk_bf16_f32 v{o+2*xt+1}, v{nb+2}, v{nb+3}""")
            a(W('store_dwordx4', vr(o), vL16 if q < 4 else 11, f's{sT0}', 1024*(q & 3), 'sc1'))
    a('s_waitcnt vmcnt(0)\ns_barrier')
    set_flag(a, 2)
    dmark(a, 4)

def q_role(a, P):
    a('L_q:')
    w_head(a, P_WQ)
    KS, KF, KM, QF, D, GT, PR = 96, 108, 124, 132, 148, 168, 170
    vXr, vMr, vPo, vGa, NEG = 171, 172, 173, 13, 174
    SB = 3*XBUF
    a(f"""s_mov_b32 s{sC2}, {P['cexp']}
    s_mov_b32 s{sC2+1}, {P['cexp']}
    s_mov_b32 s{sKn}, {P['r_known']}
    v_lshlrev_b32 v12, 3, v{vLn}
    s_lshl_b32 s{sT0}, s{S_WAVE}, 12
    s_add_u32 s{sT0}, s{sT0}, {SB}
    v_add_u32 v14, s{sT0}, v{vL16}
    s_lshl_b32 s{sT0}, s{S_WAVE}, 2
    v_and_b32 v16, 3, v{vN}
    v_add_u32 v16, s{sT0}, v16               ; row
    v_bfe_u32 v17, v{vN}, 2, 1               ; xq
    v_lshrrev_b32 v18, 3, v{vN}              ; half
    v_lshl_add_u32 v19, v{vG}, 4, v16
    v_lshlrev_b32 v19, 4, v19
    v_add_u32 v20, v17, v18
    v_lshl_add_u32 v{vXr}, v20, 10, v19
    v_add_u32 v{vXr}, {SB}, v{vXr}
    v_lshl_add_u32 v20, v17, 1, v18
    v_lshl_add_u32 v{vMr}, v20, 2, v19
    v_add_u32 v{vMr}, {SB+3072}, v{vMr}
    v_lshl_add_u32 v{vPo}, v17, 10, v19
    v_lshl_add_u32 v{vPo}, v18, 3, v{vPo}
    v_lshl_add_u32 v16, v17, 4, v16          ; query 0..31
    v_lshlrev_b32 v{vGa}, 2, v16
    s_lshl_b32 s{sT1}, s{S_X}, 13
    v_add_u32 v{vGa}, s{sT1}, v{vGa}
    v_lshlrev_b32 v20, 2, v{vG}
    v_lshl_add_u32 v20, v18, 4, v20
    v_mov_b32 v{NEG}, {fbits(-1e9*math.log2(math.e))}
    v_mov_b32 v15, {SB+16384}
    v_add_u32 v169, s{sT0}, v15""")
    for i in range(4):
        a(f'v_add_u32 v11, {i}, v20\nv_cmp_le_u32 s[{sMask+2*i}:{sMask+2*i+1}], v11, v16')
    for r in (KF+6, KF+7, KF+14, KF+15, KM+6, KM+7, QF+6, QF+7, QF+14, QF+15): a(f'v_mov_b32 v{r}, 0')
    dmark(a, 5)
    a(f"""L_q_again:
    s_mul_i32 s{sXo}, s{S_STEP}, {XBUF}
    s_mul_i32 s{sXs}, s{sStr}, {XBUF}""")
    x_setup(a)
    late = [W('load_dwordx4', vr(KS+4*i), vL16, f's{sK}', 1024*i, 'sc1') for i in range(3)]
    late += [W('load_dwordx4', vr(KM), vL16, f's{sKm}', 0, 'sc1'), W('load_dwordx2', vr(KM+4, 2), 12, f's{sKm}', 1024, 'sc1')]
    if EXP.get('qnoload'): late = []
    shuf = [f'v_mov_b32 v{KF+8*xt+2*i+r}, v{KS+4*i+2*xt+r}' for i in range(3) for xt in range(2) for r in range(2)]
    def early():
        l = a.lab('qe')
        L = [f's_lshl_b32 s{sP}, s{S_STEP}, 5', f's_add_u32 s{sP}, s{sP}, s{sH}', f's_lshl_b32 s{sK}, s{sP}, 2', f's_add_u32 s{sK}, s{sK}, s{S_WAVE}',
             f's_mul_i32 s{sKm}, s{sK}, 1536', f's_lshl_b32 s{sK}, s{sKm}, 1', f's_add_u32 s{sK}, s{sK}, {K_OFF}', f's_add_u32 s{sKm}, s{sKm}, {KM_OFF}',
             f's_lshl_b32 s{sP}, s{sP}, 11', f's_add_u32 s{sP}, s{sP}, {PX_OFF}', f's_lshl_b32 s{sGt}, s{S_STEP}, 7', f's_add_u32 s{sGt}, s{sGt}, {GT_OFF}']
        L += [f's_cmp_gt_u32 s{sKn}, s{S_STEP}\ns_cselect_b32 s{sHave}, 1, 0\ns_cbranch_scc0 {l}\n' + '\n'.join(late) + f'\n{l}:']
        L += [W('load_dword', f'v{GT}', vGa, f's{sGt}', 0, 'sc1')]
        L += P['q_refresh'](PR)
        return L
    R = 176; X = R; MV = R+16; T = R+20; G2 = 204
    dpp = 'row_ror:8 row_mask:0xf bank_mask:0xf'
    def soft():
        L = [f'ds_write_b128 v14, {vr(D)}', f'v_mov_b32 v{D+14}, v{D+16}', f'ds_write_b128 v14, {vr(D+4)} offset:1024', f'v_mov_b32 v{D+15}, v{D+17}',
             f'ds_write_b128 v14, {vr(D+8)} offset:2048', f'v_mov_b32 v175, s{sKl}', f'ds_write_b128 v14, {vr(D+12)} offset:3072', 'ds_write_b32 v169, v175',
             '@', '@', '@', '@', '@', '@', 's_waitcnt lgkmcnt(0)\ns_barrier', 'ds_read_b32 v175, v15']
        L += [f'ds_read_b128 {vr(R+4*w)}, v{vXr} offset:{4096*w}' for w in range(4)]
        L += [f'ds_read_b32 v{MV+w}, v{vMr} offset:{4096*w}' for w in range(4)]
        L += ['@', '@', '@', '@', 's_waitcnt lgkmcnt(0)']
        for d, o in ((X, 4), (X+8, 4), (X, 8)):
            L += [f'v_add_f32 v{d+i}, v{d+i}, v{d+o+i}' for i in range(4)]
        L += [f'v_add_f32 v{MV}, v{MV}, v{MV+1}', f'v_add_f32 v{MV+2}, v{MV+2}, v{MV+3}', f'v_readfirstlane_b32 s{sKn}, v175', f'v_add_f32 v{MV}, v{MV}, v{MV+2}']
        L += [f'v_cndmask_b32 v{X+i}, v{NEG}, v{X+i}, s[{sMask+2*i}:{sMask+2*i+1}]' for i in range(4)]
        L += [f'v_max3_f32 v{T}, v{X}, v{X+1}, v{X+2}', f'v_max3_f32 v{T}, v{T}, v{X+3}, v{MV}']
        red = lambda op: [f's_nop 1\n{op}_dpp v{T+1}, v{T}, v{T} {dpp}', f'{op}_dpp v{T+2}, v{T}, v{T} {dpp}',
                          f's_nop 1\nv_permlane16_swap_b32 v{T+1}, v{T+2}', f'{op} v{T}, v{T+1}, v{T+2}', f'{op} v{T+1}, v{T+1}, v{T+2}',
                          f's_nop 1\nv_permlane32_swap_b32 v{T}, v{T+1}', f'{op} v{T}, v{T}, v{T+1}']
        L += red('v_max_f32')
        L += [f'v_sub_f32 v{r}, v{r}, v{T}' for r in (X, X+1, X+2, X+3, MV)]
        L += [f'v_exp_f32 v{r}, v{r}' for r in (X, X+1, X+2, X+3, MV)]
        L += [f'v_add_f32 v{T}, v{X}, v{X+1}', f'v_add_f32 v{T+1}, v{X+2}, v{X+3}', f'v_add_f32 v{T}, v{T}, v{MV}', f'v_add_f32 v{T}, v{T}, v{T+1}']
        L += red('v_add_f32')
        L += [f'v_rcp_f32 v{T}, v{T}', f's_nop 0\nv_mul_f32 v{T}, v{T}, v{G2}']
        L += [f'v_mul_f32 v{r}, v{r}, v{T}' for r in (MV, X, X+1, X+2, X+3)]
        L += [f'v_mov_b32_dpp v{MV+1}, v{MV} {dpp}', f'v_cvt_pk_bf16_f32 v{MV}, v{MV+1}, v{MV}',
              f'v_cvt_pk_bf16_f32 v{X+4}, v{X}, v{X+1}', f'v_cvt_pk_bf16_f32 v{X+5}, v{X+2}, v{X+3}',
              f'v_mov_b32_dpp v{X+4}, v{MV} quad_perm:[0,1,2,3] row_mask:0xf bank_mask:0x4',
              f'v_mov_b32_dpp v{X+5}, v{MV} row_shl:4 row_mask:0xf bank_mask:0x4',
              W('store_dwordx2', vr(X+4, 2), vPo, f's{sPp}', 0, 'sc1')]
        return L
    def flush(a):
        a.nop(8)
        for s in soft():
            if s != '@': a(s)
        a(f"""s_mov_b32 s{sPp}, {OOB}
        s_mov_b32 s{sDone}, s{sD1}
        s_waitcnt vmcnt(0)
        s_barrier""")
        after_bar(a)
    def post(a, acc):
        up = P['q_update'](PR)
        for s in up: a(s)
        a(f's_mov_b32 s{sDone}, s{sD1}\ns_add_u32 s{sD1}, s{S_STEP}, 1\ns_mov_b32 s{sPp}, s{sP}\nv_sub_f32 v{G2}, 1.0, v{GT}')
        a.nop(max(0, 4-len(up)))
        for t in range(3):
            for xq in range(2):
                b = acc + 4*(2*t+xq)
                a(f"""v_pk_mul_f32 v[{b}:{b+1}], v[{b}:{b+1}], s[{sC2}:{sC2+1}]
                v_pk_mul_f32 v[{b+2}:{b+3}], v[{b+2}:{b+3}], s[{sC2}:{sC2+1}]
                v_cvt_pk_bf16_f32 v{QF+8*xq+2*t}, v{b}, v{b+1}
                v_cvt_pk_bf16_f32 v{QF+8*xq+2*t+1}, v{b+2}, v{b+3}""")
        prods = [(D, KF, QF), (D+4, KF, QF+8), (D+8, KF+8, QF+8), (D+12, KM, QF), (D+16, KM, QF+8)]
        def mm():
            for d, A, B in prods:
                a(f'v_mfma_f32_16x16x32_bf16 {vr(d)}, {vr(A)}, {vr(B)}, 0')
                a(f'v_mfma_f32_16x16x32_bf16 {vr(d)}, {vr(A+4)}, {vr(B+4)}, {vr(d)}')
        l = a.lab('qh')
        a(f's_cmp_lg_u32 s{sHave}, 0\ns_cbranch_scc1 {l}')
        a(f's_waitcnt vmcnt(0)\ns_barrier')
        after_bar(a)
        P['q_wait'](a, PR)
        for s in late: a(s)
        a('s_waitcnt vmcnt(0)')
        for s in shuf: a(s)
        a('s_nop 1')
        mm()
        flush(a)
        a(f's_branch {l}_e\n{l}:')
        mm()
        a(f'{l}_e:')
    def after_bar(a):
        a(f's_add_u32 s{sT1}, s{sDone}, s{sFb}')
        set_flag(a, f's{sT1}')
    a(f's_mov_b32 s{sPp}, {OOB}\ns_mov_b32 s{sD1}, s{sDone}\ns_mov_b32 s{sKl}, s{sKn}')
    gemm_loop(a, 'q', 3, 'T', None, post=post, early=early, after_bar=after_bar, late_fill=lambda: list(shuf), strided=True,
              defer=soft, relaxed=True)
    l = a.lab('qf')
    a(f's_cmp_eq_u32 s{sPp}, {OOB}\ns_cbranch_scc1 {l}')
    flush(a)
    a(f'{l}:')

def final_role(a, P):
    a('L_final:')
    a(f"""s_mul_i32 s{S_STEP}, s{sWk}, 0x199a
    s_lshr_b32 s{S_STEP}, s{S_STEP}, 16
    s_mul_i32 s{sCb}, s{S_STEP}, 10
    s_sub_u32 s{sCb}, s{sWk}, s{sCb}""")
    srd(a, SRD_A, P_WOA, 640*640*2)
    a(f"""s_mul_i32 s{sCol}, s{S_WAVE}, {160*1280}
    s_lshl_b32 s{sT0}, s{sCb}, 7
    s_add_u32 s{sCol}, s{sCol}, s{sT0}""")
    load_w(a, 1280, 1, 160, 1, 1, 'B', 4, '0', lambda t, k, v: ar((k*4+t)*4+2*v, 2), private=True)
    srd(a, SRD_B, P_OUT, 2048*1280)
    q_flags(a)
    ACC, PF, PM, OF = 16, 48, 112, 128
    YA, UA = 80, 208
    TS = 1056
    WSZ = 8*TS
    a(f"""v_add_u32 v13, 4096, v{vL16}
    s_mul_i32 s{sT0}, s{S_WAVE}, {WSZ}
    v_add_u32 v14, s{sT0}, v{vL16}
    v_lshrrev_b32 v10, 3, v{vLn}
    s_lshl_b32 s{sT0}, s{S_WAVE}, 3
    v_add_u32 v10, s{sT0}, v10              ; token 0..31
    v_and_b32 v11, 7, v{vLn}
    v_mul_u32_u24 v{vXs}, 1280, v10
    v_lshl_add_u32 v{vXs}, v11, 4, v{vXs}
    v_lshrrev_b32 v15, 4, v10
    v_and_b32 v12, 6, v11
    v_add_u32 v15, v12, v15
    v_mul_u32_u24 v15, {TS}, v15
    v_and_b32 v10, 15, v10
    v_lshl_add_u32 v15, v10, 4, v15
    v_and_b32 v11, 1, v11
    v_lshl_add_u32 v15, v11, 9, v15
    s_mov_b32 s{sMask}, 0
    s_mov_b32 s{sMask+1}, -1
    s_barrier""")
    def early_addr(step):
        return f"""s_lshl_b32 s{sT0}, {step}, 5
        s_lshl_b32 s{sT1}, s{S_WAVE}, 3
        s_add_u32 s{sT0}, s{sT0}, s{sT1}
        s_lshl_b32 s{sT2}, s{sCb}, 12
        s_mul_i32 s{sY}, s{sT0}, 40960
        s_add_u32 s{sY}, s{sY}, s{sT2}
        s_add_u32 s{sY}, s{sY}, {Y_OFF}
        s_mul_i32 s{sO}, s{sT0}, 1280
        s_add_u32 s{sO}, s{sO}, {O_OFF}"""
    def oload():
        L = []
        for i in range(10):
            L.append((f's_add_u32 s{sT0}, s{sO}, {1024*i}\n' if i % 8 == 0 else '') + W('load_dwordx4', vr(OF+4*i), vL16 if i % 8 < 4 else 13, f's{sT0}', 1024*(i & 3), 'sc1'))
        return L
    def yload(h):
        return [(f's_add_u32 s{sT0}, s{sY}, {40960*h}\n' if t == 0 else '') + W('load_dwordx4', ar(YA+16*h+4*t), vYp, f's{sT0}', 1024*t, 'sc1') for t in range(4)]
    a('L_final_fetch:')
    P['final_waity'](a)
    a(early_addr(f's{S_STEP}'))
    for s in oload(): a(s)
    for h in range(8):
        for s in yload(h): a(s)
    a(f"""L_final_loop:
    s_mov_b32 s{sHave}, 1""")
    P['final_wait'](a)
    a(f"""s_lshl_b32 s{sT0}, s{S_STEP}, 5
    s_lshl_b32 s{sT1}, s{S_WAVE}, 3
    s_add_u32 s{sT0}, s{sT0}, s{sT1}
    s_lshl_b32 s{sP}, s{sT0}, 11
    s_add_u32 s{sP}, s{sP}, {PX_OFF}
    s_lshl_b32 s{sT2}, s{sCb}, 12
    s_mul_i32 s{sU}, s{sT0}, 10240
    s_add_u32 s{sU}, s{sU}, s{sT2}
    s_add_u32 s{sU}, s{sU}, {U_OFF}
    s_waitcnt vmcnt(0)""")
    for i in range(16):
        if i % 8 == 0: a(f's_add_u32 s{sT0}, s{sP}, {1024*i}')
        a(W('load_dwordx4', vr(PF+4*i), vL16 if i % 8 < 4 else 13, f's{sT0}', 1024*(i & 3), 'sc1'))
    for u in range(2):
        a(f's_add_u32 s{sT0}, s{sU}, {40960*u}')
        for t in range(4): a(W('load_dwordx4', ar(UA+16*u+4*t), vYp, f's{sT0}', 1024*t, 'sc1'))
    for k in range(5):
        a(f'v_swap_b32 v{OF+8*k+2}, v{OF+8*k+4}\nv_swap_b32 v{OF+8*k+3}, v{OF+8*k+5}')
    a(f"""s_mul_i32 s{sOut}, s{S_STEP}, 40960
    s_lshl_b32 s{sT2}, s{sCb}, 7
    s_add_u32 s{sOut}, s{sOut}, s{sT2}
    s_add_u32 s{S_STEP}, s{S_STEP}, 6""")
    a(early_addr(f's{S_STEP}'))
    a(f"""s_cmp_lt_u32 s{S_STEP}, 64
    s_cselect_b32 s{sHave}, s{sHave}, 0
    s_cmp_lg_u32 s{sHave}, 0
    s_cselect_b32 s{sY}, s{sY}, {OOB}
    s_cselect_b32 s{sO}, s{sO}, {OOB}""")
    ol = oload()
    for k in range(5):
        for t in range(4):
            for xq in range(2):
                d = vr(ACC+8*t+4*xq)
                a(f'v_mfma_f32_16x16x32_bf16 {d}, {ar((k*4+t)*4)}, {vr(OF+8*k+4*xq)}, {"0" if k == 0 else d}')
        a(ol[2*k]); a(ol[2*k+1])
    for h in range(8):
        a(f's_waitcnt vmcnt({18 + 2*(7-h) + 4*h})')
        for xq in range(2):
            a(f'v_mov_b32 v{PM+8*(h>>2)+4*xq+(h&3)}, v{PF+8*h+2+xq}')
        a(f'v_mov_b32 v{PF+8*h+2}, 0\nv_mov_b32 v{PF+8*h+3}, 0')
        yl = yload(h)
        for xq in (1, 0):
            for t in range(4):
                d = vr(ACC+8*t+4*xq)
                a(f'v_mfma_f32_16x16x32_bf16 {d}, {ar(YA+16*h+4*t)}, {vr(PF+8*h+4*xq)}, {d}')
                if xq == 0: a(yl[t])
    a('s_waitcnt vmcnt(42)')
    for u in range(2):
        for t in range(4):
            for xq in range(2):
                d = vr(ACC+8*t+4*xq)
                a(f'v_mfma_f32_16x16x32_bf16 {d}, {ar(UA+16*u+4*t)}, {vr(PM+8*u+4*xq)}, {d}')
    a('s_nop 0')
    for i in range(8): a(f'ds_write_b128 v14, {vr(ACC+4*i)} offset:{TS*i}')
    a('s_waitcnt lgkmcnt(0)\ns_barrier')
    for w in range(4):
        for g in range(2): a(f'ds_read_b128 {vr(ACC+8*w+4*g)}, v15 offset:{WSZ*w+256*g}')
    a('s_waitcnt lgkmcnt(0)\ns_barrier')
    for w in (1, 3):
        for i in range(4):
            d = ACC+8*(w-1)+2*i
            a(f'v_pk_add_f32 v[{d}:{d+1}], v[{d}:{d+1}], v[{d+8}:{d+9}]')
    for i in range(4):
        d = ACC+2*i
        a(f'v_pk_add_f32 v[{d}:{d+1}], v[{d}:{d+1}], v[{d+16}:{d+17}]\nv_cvt_pk_bf16_f32 v{200+i}, v{d}, v{d+1}')
    a(f"""buffer_store_dwordx4 v[200:203], v{vXs}, s[{SRD_B}:{SRD_B+3}], s{sOut} offen
    s_cmp_lg_u32 s{sHave}, 0
    s_cbranch_scc1 L_final_loop
    s_cmp_lt_u32 s{S_STEP}, 64
    s_cbranch_scc1 L_final_fetch
    s_branch L_exit""")
```

```python
from asmb import *
from lay import *
S_WAVE, S_X, S_J, S_STEP, S_TO = 3, 4, 5, 6, 7
P_X, P_WQKV, P_WOA, P_MEM0, P_WQ, P_WK, P_WV, P_WO, P_GATE, P_OUT, P_DBG, P_WS = 8, 10, 12, 16, 18, 20, 22, 24, 28, 30, 32, 34
SRD_W = 36
SRD_A = 40
SRD_B = 44
SRD_D = 48
TO_LIMIT = 400000
sMr, sMw, sMp, sSw, sSr, sG, sGL, sGp, sGLp, sY, sK, sU, sKm = range(52, 65)
sTag, sTag3, sC, sT0, sT1, sT2, sPar = range(65, 72)
sSelT1, sSelT2, sSelU1, sSelU2 = range(72, 76)
sHalf = 76
sEx   = 78
sExLo = 80
sH, sCg, sHs, sCs = 82, 83, 84, 85
sGb, sMb = 86, 87
sKnY, sKnK, sFy, sFk, sFl = 90, 91, 92, 93, 94
vFy, vFk, vFd, vFa = 36, 101, 102, 103
sC2 = 88
MB, QB, KB, DB, RB, UB = 0, 10240, 11264, 13312, 25600, 26112
FM, FQ, FK, FD, YB = 29184, 30208, 31232, 32256, 33280
vL16, vIdx, vQw, vY = 0, 1, 2, 3
vKw, vD2 = 4, 5
vDr, vGst = 6, 7
vG0, vG1 = 6, 7
vUP = 8
vAq, vAk = 16, 20
vUa = 24
SETA, SETB = [16, 20, 36, 40], [80, 84, 88, 92]
vYt = 44
vMF = 56
vWq, vWk = 96, 176
aSel, aMst = 240, 244
vQr, vKr, vPG, vPM, vL8 = 96, 97, 98, 99, 100
vNeg = 104
vKF = 108
vKS = 124
vQf, vKf = 136, 144
vD0, vD1, vDm, vPk = 152, 156, 160, 164
vPU, vPK = 168, 180
OWN = [[0,1,2],[3,4,5],[6,7,8],[9]]

def srd(a, base, ptr, nbytes):
    a(f"""s_mov_b32 s{base}, s{ptr}
    s_and_b32 s{base+1}, s{ptr+1}, 0xffff
    s_mov_b32 s{base+2}, {nbytes}
    s_mov_b32 s{base+3}, 0x20000""")

def W(op, data, va, so, off=0, fl=''):
    return f'buffer_{op} {data}, v{va}, s[{SRD_W}:{SRD_W+3}], {so} offen offset:{off} {fl}'.rstrip()

def retry(a, tail, lab_retry, lab_back):
    tail(f"""{lab_retry}:
    s_add_u32 s{S_TO}, s{S_TO}, 1
    s_cmp_gt_u32 s{S_TO}, {TO_LIMIT}
    s_cbranch_scc1 L_exit
    s_branch {lab_back}""")

def build_sel(a, dst, vn, vg, goff, tmp):
    a(f"""v_and_b32 v{tmp}, 1, v{vn}
    v_lshlrev_b32 v{tmp}, 4, v{tmp}
    v_mov_b32 v{tmp+1}, 0x3f80
    v_lshlrev_b32 v{tmp}, v{tmp}, v{tmp+1}
    v_lshrrev_b32 v{tmp+1}, 1, v{vn}
    v_add_u32 v{tmp+1}, {4*goff}, v{tmp+1}
    v_lshlrev_b32 v{tmp+2}, 2, v{vg}
    v_sub_u32 v{tmp+1}, v{tmp+1}, v{tmp+2}""")
    for r in range(4):
        a(f"""v_cmp_eq_u32 vcc, {r}, v{tmp+1}
        s_nop 1
        v_cndmask_b32 v{dst+r}, 0, v{tmp}, vcc""")

def phys(a, v, tmp):
    a(f"""v_lshrrev_b32 v{tmp}, 13, v{v}
    v_lshl_add_u32 v{v}, v{tmp}, 13, v{v}""")

def dma(srdb, va, so, fl=''):
    return f'buffer_load_dwordx4 v{va}, s[{srdb}:{srdb+3}], {so} offen {fl} lds'

def rec_prologue(a, P):
    n, g, ln = 60, 61, 62
    a(f"""v_and_b32 v{ln}, 63, v0
    v_and_b32 v{n}, 15, v{ln}
    v_lshrrev_b32 v{g}, 4, v{ln}
    v_lshlrev_b32 v{vL16}, 4, v{ln}
    s_and_b32 s{sT0}, s{S_J}, 1
    s_lshl_b32 s{sT0}, s{sT0}, 2
    s_add_u32 s{sT0}, s{sT0}, s{S_WAVE}
    s_lshl_b32 s{sH}, s{S_X}, 3
    s_add_u32 s{sH}, s{sH}, s{sT0}
    s_lshr_b32 s{sCg}, s{S_J}, 1
    s_lshr_b32 s{sHs}, s{S_J}, 2
    s_and_b32 s{sCs}, s{S_J}, 3
    s_lshl_b32 s{sT1}, s{S_X}, 3
    s_add_u32 s{sHs}, s{sHs}, s{sT1}
    s_lshl_b32 s{sT1}, s{S_X}, 5
    s_add_u32 s{sT1}, s{sT1}, s{S_J}
    s_mul_i32 s{sGb}, s{sT1}, 768
    s_lshl_b32 s{sSw}, s{sT1}, 10
    s_add_u32 s{sSw}, s{sSw}, {S_OFF}
    s_lshl_b32 s{sSr}, s{sH}, 12
    s_add_u32 s{sSr}, s{sSr}, {S_OFF}
    s_mov_b32 s{sSelT1}, 0x0c0c0400
    s_mov_b32 s{sSelT2}, 0x05040100
    s_mov_b32 s{sSelU1}, 0x0c04000c
    s_mov_b32 s{sSelU2}, 0x0402010c
    s_mov_b32 s{sC2}, {P['cexp']}
    s_mov_b32 s{sC2+1}, {P['cexp']}
    s_mov_b32 s{sHalf}, 0xff00ff00
    s_mov_b32 s{sHalf+1}, 0xff00ff00
    s_mov_b32 s{sExLo}, 0x00ff00ff
    s_mov_b32 s{sExLo+1}, 0x00ff00ff
    s_mul_i32 s{sMb}, s{S_X}, 10240
    s_add_u32 s{sMb}, s{sMb}, {M_OFF}""")
    ps = P.get('pstamp', lambda i: '')
    a(ps(0))
    NB = 4; WB = NB*6144; IMG = 4*WB
    frag = [8+4*i for i in range(12)] + [64+4*i for i in range(6)]
    F = lambda tc, kap: frag[tc*6+kap]
    srd(a, SRD_A, P_WO, 32*192*640*2)
    srd(a, SRD_B, P_WV, 640*6144*2)
    a(f"""v_mul_u32_u24 v56, 0x3334, v{ln}
    v_lshrrev_b32 v56, 16, v56              ; lane/5
    v_mul_u32_u24 v57, 5, v56
    v_sub_u32 v57, v{ln}, v57
    v_mul_u32_u24 v56, 1280, v56
    v_lshl_add_u32 v56, v57, 4, v56
    s_mul_i32 s{sT0}, s{sH}, {192*1280}
    s_mul_i32 s{sT1}, s{sCg}, 80
    s_add_u32 s{sT0}, s{sT0}, s{sT1}
    s_mul_i32 s{sMr}, s{S_WAVE}, 15360
    s_add_u32 s{sMr}, s{sMr}, {IMG}
    s_mul_i32 s{sT2}, s{S_WAVE}, {WB}
    s_mov_b32 s{sEx}, -1
    s_mov_b32 s{sEx+1}, 0x0fffffff
    s_mov_b64 exec, s[{sEx}:{sEx+1}]""")
    for i in range(16):
        a(f"""s_add_u32 m0, s{sMr}, {960*i}
        s_add_u32 s{sT1}, s{sT0}, {12*i*1280}
        {dma(SRD_A, 56, f's{sT1}')}""")
    a('s_mov_b64 exec, -1')
    if P['touchv']:
        a(f"""s_lshl_b32 s{sT0}, s{S_J}, 2
        s_add_u32 s{sT0}, s{sT0}, s{S_WAVE}
        s_mul_i32 s{sT0}, s{sT0}, {5*12288}
        s_mul_i32 s{sT1}, s{S_X}, 3072
        s_add_u32 s{sT0}, s{sT0}, s{sT1}""")
        for i in range(2):
            a(f"""v_min_u32 v57, 59, v{ln}
            v_add_u32 v57, {60*i}, v57
            v_mul_u32_u24 v58, 0xaab, v57
            v_lshrrev_b32 v58, 16, v58
            v_mul_u32_u24 v59, 24, v58
            v_sub_u32 v57, v57, v59
            v_mul_u32_u24 v58, 12288, v58
            v_lshl_add_u32 v57, v57, 7, v58
            buffer_load_dword v255, v57, s[{SRD_B}:{SRD_B+3}], s{sT0} offen""")
    a(f"""v_mov_b32 v64, -1
    v_mov_b32 v65, -1
    v_mov_b32 v66, -1
    v_mov_b32 v67, -1
    v_min_u32 v68, 47, v{ln}
    v_lshlrev_b32 v68, 4, v68
    v_add_u32 v68, s{sGb}, v68""")
    phys(a, 68, 69)
    a(f"""s_mul_i32 s{sT0}, s{S_WAVE}, {G_SLOT}
    s_add_u32 s{sT0}, s{sT0}, {G_OFF}
    s_add_u32 s{sT1}, s{sT0}, 8192""")
    a(W('store_dwordx4', 'v[64:67]', 68, f's{sT0}', 0, 'sc1'))
    a(W('store_dwordx4', 'v[64:67]', 68, f's{sT1}', 0, 'sc1'))
    a(f"""v_min_u32 v69, 19, v{ln}
    v_lshlrev_b32 v69, 4, v69
    s_mul_i32 s{sT0}, s{S_WAVE}, {M_SLOT}
    s_add_u32 s{sT0}, s{sT0}, s{sMb}
    s_mul_i32 s{sT1}, s{S_J}, 320
    s_add_u32 s{sT0}, s{sT0}, s{sT1}""")
    a(W('store_dwordx4', 'v[64:67]', 69, f's{sT0}', 0))
    a(W('store_dwordx4', 'v[64:67]', vL16, f's{sSw}', 0))
    if P['live']:
        a(f"""s_lshl_b32 s{sFl}, s{S_X}, 5
        s_add_u32 s{sFl}, s{sFl}, s{S_J}
        s_lshl_b32 s{sFl}, s{sFl}, 7
        s_add_u32 s{sFl}, s{sFl}, {FL_OFF}
        s_lshl_b32 s{sFy}, s{sH}, 9
        s_add_u32 s{sFy}, s{sFy}, {FL_OFF + (128+2)*128}
        s_lshl_b32 s{sFk}, s{sHs}, 9
        s_add_u32 s{sFk}, s{sFk}, {FL_OFF + 128*128}
        v_mov_b32 v70, 0""")
        a(W('store_dword', 'v70', 70, f's{sFl}', 0, 'sc1'))
    a(f"""v_lshrrev_b32 v58, 3, v{ln}
    v_bfe_u32 v57, v58, 1, 1
    v_lshlrev_b32 v56, 3, v57
    v_bfe_u32 v57, v58, 2, 1
    v_lshl_add_u32 v56, v57, 2, v56
    v_and_b32 v57, 1, v58
    v_add_u32 v56, v56, v57
    v_mul_u32_u24 v56, 12288, v56
    v_lshrrev_b32 v58, 1, v58
    v_and_b32 v57, 7, v{ln}
    v_xor_b32 v57, v57, v58
    v_lshl_add_u32 v1, v57, 4, v56          ; rows 0..7
    v_xor_b32 v57, 4, v57
    v_lshl_add_u32 v2, v57, 4, v56
    v_add_u32 v2, {16*12288}, v2            ; rows 8..15
    s_mul_i32 s{sMw}, s{sH}, 384""")
    Q = []
    cfl = ('', 'sc1', 'nt')[P.get('cfl', 0)]
    def cload(tau):
        t, v = tau >> 2, tau & 3
        L = [(None, f's_add_u32 s{sT1}, s{sMw}, {(64*t+32*(v>>1)+2*(v&1))*12288}')]
        for k in range(6):
            L += [(None, f's_add_u32 m0, s{sT2}, {6144*(tau % NB)+1024*k-128*(k%3)}'),
                  (('c', tau), f'buffer_load_dwordx4 v{1 if k < 3 else 2}, s[{SRD_B}:{SRD_B+3}], s{sT1} offen offset:{128*(k%3)} {cfl} lds')]
        return L
    def put(it, pad=False):
        if it[0]:
            Q.append(it[0])
            if pad: a('s_nop 0')
        a(it[1])
    def younger(tag): return min(63, len(Q) - 1 - max(i for i, x in enumerate(Q) if x == tag))
    for tau in range(NB):
        for it in cload(tau): put(it, True)
    a(f"""v_lshrrev_b32 v56, 3, v{n}
    v_mul_u32_u24 v56, 3072, v56
    v_and_b32 v57, 7, v{n}
    v_lshl_add_u32 v56, v57, 7, v56
    v_add_u32 v56, s{sT2}, v56
    v_lshrrev_b32 v57, 1, v{n}
    v_xor_b32 v57, v57, v{g}
    v_lshl_add_u32 v3, v57, 4, v56
    v_xor_b32 v57, 4, v57
    v_lshl_add_u32 v4, v57, 4, v56""")
    for i in range(3):
        a(f"""v_add_u32 v57, {64*i}, v{ln}
        v_mul_u32_u24 v56, 0x2aab, v57
        v_lshrrev_b32 v56, 16, v56
        v_mul_u32_u24 v58, 6, v56
        v_sub_u32 v57, v57, v58
        v_mul_u32_u24 v56, 12288, v56
        v_lshl_add_u32 v{5+i}, v57, 4, v56""")
    a(f"""s_mul_i32 s{sMp}, s{sHs}, 384
    s_mul_i32 s{sT0}, s{sCs}, 96
    s_add_u32 s{sMp}, s{sMp}, s{sT0}
    s_mul_i32 s{sT0}, s{S_WAVE}, {160*12288}
    s_add_u32 s{sMp}, s{sMp}, s{sT0}""")
    def wload(tag, i):
        return [(None, f's_add_u32 m0, s{sMr}, {1024*i}'), (None, f's_add_u32 s{sT0}, s{sMp}, {32*(i//3)*12288}'),
                (tag, dma(SRD_A, 5 + i % 3, f's{sT0}', 'nt' if P['wnt'] else ''))] if not (P.get('nowk') and i > 0) else []
    a(f"""v_lshrrev_b32 v56, 2, v{n}
    v_lshl_add_u32 v56, v{g}, 3, v56
    v_mul_u32_u24 v56, 80, v56
    v_add_u32 v56, s{sMr}, v56
    v_and_b32 v57, 1, v{n}
    v_lshl_add_u32 v58, v57, 3, v56
    v_and_b32 v57, 3, v{n}
    v_lshl_add_u32 v56, v57, 3, v56
    s_waitcnt vmcnt({6*NB})""")
    a(ps(1))
    for kap in range(6):
        for v in range(2):
            for tc in range(3):
                a(f'ds_read_b64_tr_b16 {vr(F(tc,kap)+2*v,2)}, v{56 if tc < 2 else 58} offset:{(32*kap+4*v)*80+32*tc}')
        a('s_waitcnt lgkmcnt(6)')
    srd(a, SRD_A, P_WK, 640*6144*2)
    a(f"""v_lshrrev_b32 v88, 1, v{g}
    v_lshlrev_b32 v88, 4, v88
    v_and_b32 v57, 1, v{g}
    v_lshl_add_u32 v88, v57, 2, v88
    v_bfe_u32 v57, v{n}, 2, 1
    v_add_u32 v88, v88, v57
    v_lshrrev_b32 v57, 3, v{n}
    v_lshl_add_u32 v88, v57, 3, v88
    v_mul_u32_u24 v88, 96, v88
    v_and_b32 v57, 3, v{n}
    v_lshl_add_u32 v88, v57, 3, v88
    s_min_u32 s{sT0}, s{S_WAVE}, 2
    s_lshl_b32 s{sT0}, s{sT0}, 5
    s_add_u32 s{sT0}, s{sT0}, {IMG}
    v_add_u32 v88, s{sT0}, v88
    v_mov_b32 v89, {DBG_INIT}
    v_mov_b32 v90, 1
    s_waitcnt lgkmcnt(0)
    s_barrier
    s_and_b32 s{sG}, s{S_J}, 7
    s_cmp_eq_u32 s{S_WAVE}, 3
    s_cselect_b32 s{sG}, s{sG}, 99
    v_min_u32 v91, 1, v{ln}
    v_lshl_add_u32 v89, v91, 12, v89""")
    a(ps(2))
    def trd(base):
        return [f'ds_read_b64_tr_b16 {vr(base+2*i,2)}, v88 offset:{(64*(i>>2) + 32*((i&3) >> 1) + 2*(i & 1))*96}' for i in range(40)]
    AF = lambda tau, k: 96 + 24*(tau & 1) + 4*k
    AC = lambda tau, tc: 144 + 12*(tau & 1) + 4*tc
    rd = lambda tau, k: f'ds_read_b128 {vr(AF(tau,k))}, v{3 + (k & 1)} offset:{6144*(tau % NB) + 1024*(k >> 1)}'
    def cstore(tau):
        t, v = tau >> 2, tau & 3
        L = []
        for tc in range(3):
            d = (tc*10+t)*8 + 2*v; ac = AC(tau, tc)
            L += [f'v_cvt_pk_bf16_f32 v{168+2*tc}, v{ac}, v{ac+1}', f'v_cvt_pk_bf16_f32 v{169+2*tc}, v{ac+2}, v{ac+3}',
                  f'v_accvgpr_write_b32 a{d}, v{168+2*tc}', f'v_accvgpr_write_b32 a{d+1}, v{169+2*tc}']
        return L
    a(f"s_waitcnt vmcnt({younger(('c', 0))})")
    for k in range(6): a(rd(0, k))
    k0, kb, q0 = P['pk0'], P['pkb'], P['pkb']+3
    ktr = trd(vWk)
    for tau in range(40):
        a('s_waitcnt lgkmcnt(0)')
        if tau == kb:
            a(f"s_waitcnt vmcnt({younger('k')})\ns_barrier")
        if tau == q0:
            a('s_barrier')
            srd(a, SRD_A, P_WQ, 640*6144*2)
        first = cload(tau+NB) if tau+NB < 40 else []
        if tau < 16 and tau % 2 == 0:
            first += [(None, f's_cmp_eq_u32 s{sG}, {tau//2}\ns_cselect_b32 s{sT0}, 0, 0x1000'),
                      ('at', f'buffer_atomic_add v90, v89, s[{SRD_D}:{SRD_D+3}], s{sT0} offen sc1')]
        if k0 <= tau < k0+15: first += wload('k', tau-k0)
        if tau >= q0:
            for i in (2*(tau-q0), 2*(tau-q0)+1):
                if i < 15: first += wload('q', i)
        mm = []
        for k in range(6):
            for tc in range(3):
                d = vr(AC(tau, tc))
                mm.append(f'v_mfma_f32_16x16x32_bf16 {d}, {vr(AF(tau,k))}, {vr(F(tc,k))}, {"0" if k == 0 else d}')
        if P.get('nomm'): mm = ['s_nop 0']*18
        second = cstore(tau-1) if tau > 0 else []
        nk = 0
        for i, m in enumerate(mm):
            a(m)
            if i < 10:
                for _ in range(2):
                    if first:
                        it = first.pop(0); put(it)
                        if 'm0' in it[1] and first and first[0][0]: break
                if kb <= tau < q0 and i < 7:
                    for _ in range(2):
                        if ktr: a(ktr.pop(0)); nk += 1
                if i == 9:
                    while first: put(first.pop(0), True)
                    if tau < 39: a(f"s_waitcnt vmcnt({younger(('c', tau+1))})" + (' lgkmcnt(6)' if nk else ''))
            else:
                if tau < 39 and i-10 < 6: a(rd(tau+1, i-10))
            if i >= 8:
                for _ in range(1 if i < 16 else 2):
                    if second: a(second.pop(0))
        while second: a(second.pop(0))
    assert not ktr
    a(ps(3))
    a.nop(8)
    for s in cstore(39): a(s)
    a('s_waitcnt vmcnt(0)\ns_barrier')
    for i, s in enumerate(trd(vWq)):
        a(s)
        if i % 8 == 7: a('s_waitcnt lgkmcnt(6)')
    a('s_waitcnt lgkmcnt(0)')
    a(ps(4))
    lp = a.lab('wini')
    a(f"""v_mov_b32 v64, {DBG_INIT}
    v_mov_b32 v65, {DBG_PAR}
    {lp}:
    buffer_load_dword v66, v64, s[{SRD_D}:{SRD_D+3}], 0 offen sc1
    buffer_load_dwordx4 v[68:71], v65, s[{SRD_D}:{SRD_D+3}], 0 offen sc1
    s_add_u32 s{S_TO}, s{S_TO}, 1
    s_cmp_gt_u32 s{S_TO}, {TO_LIMIT}
    s_cbranch_scc1 L_exit
    s_waitcnt vmcnt(0)
    v_readfirstlane_b32 s{sT0}, v66
    v_readfirstlane_b32 s{sPar}, v68
    v_readfirstlane_b32 s{sT1}, v69
    v_readfirstlane_b32 s{sT2}, v70
    s_cmp_lt_u32 s{sT0}, {P['ninit']}
    s_cbranch_scc1 {lp}
    s_cmp_lt_u32 s{sPar}, 32
    s_cbranch_scc1 {lp}
    s_cmp_gt_u32 s{sT1}, s{sT2}
    s_cselect_b32 s{sPar}, 8192, 0
    s_barrier""")
    a(f"""v_mov_b32 v64, 0x4444
    v_mov_b32 v65, 0xeeee
    v_cndmask_b32 v{vIdx}, v64, v65, s[{sHalf}:{sHalf+1}]
    s_lshl_b32 s{sT0}, s{S_WAVE}, 4
    v_add_u32 v64, s{sT0}, v{n}
    v_lshlrev_b32 v64, 4, v64
    v_and_b32 v65, 1, v{g}
    v_lshl_add_u32 v64, v65, 3, v64
    v_lshrrev_b32 v65, 1, v{g}
    v_lshl_add_u32 v{vQw}, v65, 2, v64
    v_lshlrev_b32 v{vKw}, 1, v{vQw}
    v_lshrrev_b32 v64, 3, v{n}
    v_lshlrev_b32 v64, 9, v64
    v_lshl_add_u32 v64, v{g}, 7, v64
    v_and_b32 v65, 7, v{n}
    v_lshl_add_u32 v{vY}, v65, 4, v64""")
    for r in range(vUP, vUP+8): a(f'v_mov_b32 v{r}, 0')
    a(f"""v_and_b32 v64, 0x1ff, v{vY}
    v_lshrrev_b32 v65, 3, v{n}
    v_lshl_add_u32 v{vD2}, v65, 3, v64""")
    a(f"""s_mov_b32 s{S_STEP}, 0
    s_mul_i32 s{sY}, s{sH}, 40960
    s_mul_i32 s{sT0}, s{sCg}, 2560
    s_add_u32 s{sY}, s{sY}, s{sT0}
    s_add_u32 s{sY}, s{sY}, {Y_OFF}
    s_lshr_b32 s{sU}, s{sH}, 2
    s_mul_i32 s{sU}, s{sU}, 40960
    s_add_u32 s{sU}, s{sU}, s{sT0}
    s_add_u32 s{sU}, s{sU}, {U_OFF - 8*40960}
    s_mul_i32 s{sK}, s{sHs}, 12288
    s_mul_i32 s{sT0}, s{sCs}, 3072
    s_add_u32 s{sK}, s{sK}, s{sT0}
    s_add_u32 s{sK}, s{sK}, {K_OFF}
    s_mul_i32 s{sKm}, s{sHs}, 6144
    s_mul_i32 s{sT0}, s{sCs}, 1536
    s_add_u32 s{sKm}, s{sKm}, s{sT0}
    s_add_u32 s{sKm}, s{sKm}, {KM_OFF - 32*6144}""")
    srd(a, SRD_A, P_MEM0, 8*640*2)
    a(f"""v_and_b32 v63, 7, v{n}
    v_mul_u32_u24 v63, 1280, v63
    v_lshl_add_u32 v63, v{g}, 5, v63
    v_lshrrev_b32 v64, 3, v{n}
    v_lshl_add_u32 v40, v64, 4, v63
    v_mov_b32 v41, v{n}
    v_mov_b32 v42, v{g}
    v_mov_b32 v43, v{ln}
    s_cmp_eq_u32 s{S_WAVE}, 0
    s_cbranch_scc1 L_rec_0
    s_cmp_eq_u32 s{S_WAVE}, 1
    s_cbranch_scc1 L_rec_1
    s_cmp_eq_u32 s{S_WAVE}, 2
    s_cbranch_scc1 L_rec_2
    s_branch L_rec_3""")

def step_scalars(w):
    L = [f's_and_b32 s{sT0}, s{S_STEP}, 3',
         f's_mul_i32 s{sMr}, s{sT0}, {M_SLOT}',
         f's_add_u32 s{sMr}, s{sMr}, s{sMb}',
         f's_add_u32 s{sMr}, s{sMr}, {OWN[w][0]*1024}',
         f's_mul_i32 s{sG}, s{sT0}, {G_SLOT}',
         f's_add_u32 s{sTag}, s{S_STEP}, 1',
         f's_mul_i32 s{sTag3}, s{sTag}, 0x01010101']
    if w >= 2:
        L += [f's_add_u32 s{sG}, s{sG}, s{sPar}',
              f's_xor_b32 s{sGL}, s{sG}, 8192']
    if w == 3:
        L += [f's_xor_b32 s{sT0}, s{sT0}, 2',
              f's_mul_i32 s{sGp}, s{sT0}, {G_SLOT}',
              f's_add_u32 s{sGp}, s{sGp}, s{sPar}',
              f's_xor_b32 s{sGLp}, s{sGp}, 8192',
              f's_add_u32 s{sT0}, s{S_STEP}, 3',
              f's_and_b32 s{sT0}, s{sT0}, 3',
              f's_mul_i32 s{sMp}, s{sT0}, {M_SLOT}',
              f's_add_u32 s{sMp}, s{sMp}, s{sMb}',
              f'v_mov_b32 v{vFd}, s{S_STEP}']
    return L

def poll_known(o, lab, sKn, sF, thr, tmp):
    o(f"""{lab}:
    s_add_u32 s{S_TO}, s{S_TO}, 1
    s_cmp_gt_u32 s{S_TO}, {TO_LIMIT}
    s_cbranch_scc1 L_exit
    {W('load_dword', f'v{tmp}', 9, f's{sF}', 0, 'sc1')}
    s_waitcnt vmcnt(0)
    v_readfirstlane_b32 s{sKn}, v{tmp}
    s_cmp_lt_u32 s{sKn}, {thr}
    s_cbranch_scc1 {lab}""")

def kx_load():
    return [W('load_dwordx4', vr(vKS+4*i), vL16, f's{sK}', 1024*i, 'sc1') for i in range(3)] + [f's_add_u32 s{sK}, s{sK}, {32*12288}']
def kx_copy():
    return [f'v_mov_b32 v{vKF+8*xt+2*i+r}, v{vKS+4*i+2*xt+r}' for i in range(3) for xt in range(2) for r in range(2)]

def y_dma(w, tmp):
    d = lambda va, off: f'buffer_load_dwordx4 v{va}, s[{SRD_W}:{SRD_W+3}], s{sY} offen offset:{off} sc1 lds'
    return [f's_mov_b32 m0, {YB+3072*w}', f'v_and_b32 v{tmp}, 0x1ff, v{vL16}', d(vL16, 0), d(vL16, 1024), d(tmp, 2048), f's_add_u32 s{sY}, s{sY}, {32*40960}']
def y_read(w):
    return [f'ds_read_b128 {vr(vYt+4*t)}, v{vY} offset:{YB+3072*w+1024*t}' for t in range(3)]
def flag_w(base, w):
    return f'ds_write_b32 v{vL16}, v{vTag} offset:{base+4*w}'
def flag_r(dst, base):
    return f'ds_read_b128 {vr(dst)}, v{vZ} offset:{base}'
def flag_chk(dst, nf):
    L = [f'v_min3_u32 v{dst}, v{dst}, v{dst+1}, v{dst+2}']
    if nf == 4: L.append(f'v_min_u32 v{dst}, v{dst}, v{dst+3}')
    return L + [f'v_cmp_ne_u32 vcc, s{sTag}, v{dst}']

def fold(acc, dst):
    return [f'v_permlane32_swap_b32 v{acc}, v{acc+2}', f'v_permlane32_swap_b32 v{acc+1}, v{acc+3}',
            f'v_pk_add_f32 v[{acc}:{acc+1}], v[{acc}:{acc+1}], v[{acc+2}:{acc+3}]',
            f'v_cvt_pk_bf16_f32 v{dst}, v{acc}, v{acc+1}']

def smf(acc, t, breg):
    return f'v_smfmac_f32_16x16x64_bf16 {vr(acc)}, {vr(vMF+4*t)}, {breg}, v{vIdx}'

def pub_reads():
    return [f'ds_read_b128 {vr(vPU+4*t)}, v{vL16} offset:{UB+1024*t}' for t in range(3)]
def pub_stores():
    L = [W('store_dwordx4', vr(vPU+4*t), vY, f's{sU}', 1024*t, 'sc1') for t in range(2)]
    L += [f's_mov_b64 exec, s[{sExLo}:{sExLo+1}]\n' + W('store_dwordx4', vr(vPU+8), vY, f's{sU}', 2048, 'sc1') + '\ns_mov_b64 exec, -1']
    L += [W('store_dwordx4', vr(vKf), vL16, f's{sKm}', 0, 'sc1'), W('store_dwordx2', vr(vKf+4, 2), vL8, f's{sKm}', 1024, 'sc1')]
    return L

def rec_wave(a, tail, w, P):
    n, g, ln = 41, 42, 43
    nm = str(w)
    st = P['stamp']
    own = OWN[w]; oth = [t for t in range(10) if t not in own]
    a(f'L_rec_{nm}:')
    if w < 2:
        a(f"""v_min_u32 v64, 9, v{n}
        v_add_u32 v65, {10*w}, v64
        v_lshlrev_b32 v65, 4, v65
        s_and_b32 s{sT0}, s{S_J}, 1
        s_mul_i32 s{sT1}, s{sT0}, 384
        s_mul_i32 s{sT2}, s{sCg}, 1536
        s_add_u32 s{sT1}, s{sT1}, s{sT2}
        v_add_u32 v65, s{sT1}, v65
        v_and_b32 v66, 1, v{g}
        v_mul_u32_u24 v66, 768, v66
        v_add_u32 v65, v65, v66""")
        for rho, dst in ((0, vG0), (1, vG1)):
            a(f"""v_lshrrev_b32 v66, 1, v{g}
            v_add_u32 v66, {2*rho}, v66
            v_mul_u32_u24 v67, {32*768}, v66
            v_add_u32 v{dst}, v65, v67""")
            phys(a, dst, 67)
            a(f"""v_add_u32 v{dst}, s{sPar}, v{dst}
            v_xor_b32 v67, 8192, v{dst}
            v_cmp_eq_u32 vcc, s{S_X}, v66
            s_nop 1
            v_cndmask_b32 v{dst}, v{dst}, v67, vcc""")
        a(f"""v_lshrrev_b32 v66, 1, v64
        v_lshlrev_b32 v66, 7, v66
        v_and_b32 v67, 1, v64
        v_lshl_add_u32 v66, v67, 4, v66
        v_lshl_add_u32 v66, v{g}, 3, v66
        s_mul_i32 s{sT1}, s{sCg}, 640
        s_lshl_b32 s{sT0}, s{sT0}, 6
        s_add_u32 s{sT1}, s{sT1}, s{sT0}
        s_add_u32 s{sT1}, s{sT1}, {32*w}
        v_add_u32 v66, s{sT1}, v66
        v_accvgpr_write_b32 a{aMst}, v66
        s_mov_b32 s{sEx}, 0x03ff03ff
        s_mov_b32 s{sEx+1}, 0
        v_mov_b32 v68, 0""")
        build_sel(a, 72, n, 68, 0, 64)
        for r in range(4): a(f'v_accvgpr_write_b32 a{aSel+r}, v{72+r}')
    else:
        z = w - 2
        a(f"""v_min_u32 v64, 39, v{ln}
        v_lshlrev_b32 v{vGst}, 3, v64
        v_add_u32 v{vGst}, s{sGb}, v{vGst}
        v_add_u32 v{vGst}, {384*z}, v{vGst}""")
        phys(a, vGst, 65)
        a(f"""v_lshrrev_b32 v65, 1, v64
        v_cmp_le_u32 vcc, 10, v65
        s_nop 1
        v_cndmask_b32 v66, 0, 1, vcc          ; om
        v_mul_u32_u24 v67, 10, v66
        v_sub_u32 v65, v65, v67               ; r
        v_and_b32 v67, 1, v65
        v_lshl_add_u32 v67, v66, 1, v67
        v_add_u32 v67, {4*z}, v67             ; q
        v_lshlrev_b32 v67, 4, v67
        v_lshrrev_b32 v65, 1, v65             ; o'
        v_and_b32 v64, 1, v64                 ; hb
        v_and_b32 v66, 1, v65
        v_lshl_add_u32 v66, v66, 1, v64       ; g
        v_lshlrev_b32 v66, 8, v66
        v_bfe_u32 v68, v65, 1, 1
        v_lshl_add_u32 v66, v68, 7, v66       ; g*256 + t*128
        v_lshlrev_b32 v64, 7, v64
        v_add_u32 v64, 1024, v64
        v_cmp_eq_u32 vcc, 4, v65
        s_nop 1
        v_cndmask_b32 v66, v66, v64, vcc
        v_add_u32 v{vDr}, v66, v67
        s_mov_b32 s{sEx}, -1
        s_mov_b32 s{sEx+1}, 0xff""")
    if w == 3:
        a(f"""v_lshrrev_b32 v64, 2, v{n}
        v_lshl_add_u32 v64, v{g}, 2, v64
        v_lshlrev_b32 v64, 4, v64
        v_and_b32 v65, 1, v{n}
        v_lshl_add_u32 v{vQr}, v65, 3, v64
        v_bfe_u32 v65, v{n}, 1, 1
        v_lshlrev_b32 v65, 3, v65
        v_lshl_add_u32 v{vKr}, v{vQr}, 1, v65
        v_lshlrev_b32 v{vL8}, 3, v{ln}
        v_min_u32 v64, 47, v{ln}
        v_lshlrev_b32 v64, 4, v64
        v_add_u32 v{vPG}, s{sGb}, v64""")
        phys(a, vPG, 65)
        a(f"""v_min_u32 v64, 19, v{ln}
        v_lshrrev_b32 v65, 2, v64
        v_lshlrev_b32 v65, 7, v65
        v_and_b32 v64, 3, v64
        v_lshl_add_u32 v65, v64, 4, v65
        s_and_b32 s{sT0}, s{S_J}, 1
        s_lshl_b32 s{sT0}, s{sT0}, 6
        s_mul_i32 s{sT1}, s{sCg}, 640
        s_add_u32 s{sT1}, s{sT1}, s{sT0}
        v_add_u32 v{vPM}, s{sT1}, v65""")
        for r in range(4): a(f'v_mov_b32 v{vNeg+r}, -1')
        for r in (vKF+6, vKF+7, vKF+14, vKF+15, vQf+6, vQf+7, vKf+6, vKf+7): a(f'v_mov_b32 v{r}, 0')
        for s in P['wait_k0'](): a(s)
        if P['live']:
            a(f"""v_mov_b32 v64, 0xf0000000
            v_cmp_eq_u32 vcc, 0, v{ln}
            s_nop 1
            v_cndmask_b32 v{vFa}, v64, 0, vcc""")
            poll_known(a, a.lab('k0'), sKnK, sFk, 1, vFk)
        for s in kx_load(): a(s)
        a('s_waitcnt vmcnt(0)')
        for s in kx_copy(): a(s)
    for s in step_scalars(w): a(s)
    if P['live']: poll_known(a, a.lab('y0'), sKnY, sFy, 1, vFy)
    a(P.get('after_y0', ''))
    for s in y_dma(w, 44): a(s)
    for i, t in enumerate(own):
        a(f'buffer_load_dwordx4 {vr(vMF+4*t)}, v40, s[{SRD_A}:{SRD_A+3}], 0 offen offset:{128*t}')
    uz = [f'v_mov_b32 v{vUa+r}, 0' for r in range(12)]
    az = ([f'v_mov_b32 v{vAq+r}, 0' for r in range(8)] if w < 3 else []) + uz
    for s in az: a(s)
    a('s_waitcnt vmcnt(0)')
    for t in own: a(f'ds_write_b128 v{vL16}, {vr(vMF+4*t)} offset:{MB+1024*t}')
    o = []
    if w < 3:
        for t in own: o += [smf(vAq, t, vr(vWq+8*t, 8)), smf(vAk, t, vr(vWk+8*t, 8))]
    nb = P['own_before'] if w < 3 else 0
    for s in o[:nb]: a(s)
    a(f"""s_waitcnt lgkmcnt(0)
    s_branch L_rec_{nm}_m""")
    a(f'.p2align 6\nL_rec_{nm}_top0:')
    a(st(0))
    mld = [f'buffer_load_dwordx4 v{vL16}, s[{SRD_W}:{SRD_W+3}], s{sMr} offen offset:{1024*i} sc1 lds' for i, t in enumerate(own)]
    md = P['mdepth']
    for r in range(md-1):
        for s in mld: a(s)
        a.nop(P['mgap'])
    a(f'L_rec_{nm}_top:')
    for s in mld: a(s)
    for i, t in enumerate(own):
        a(f's_waitcnt vmcnt({len(own)*(md-1) + len(own)-1-i})')
        a(f'ds_read_b128 {vr(vMF+4*t)}, v{vL16} offset:{MB+1024*t}')
    b0 = vMF+4*own[0]
    lr = a.lab('rm')
    if w < 3:
        oo = list(o[:nb])
        pop = lambda: oo.pop(0) if oo else ''
        a(f"""s_waitcnt lgkmcnt(2)
        {pop()}
        v_max3_u32 v40, v{b0}, v{b0+1}, v{b0+2}
        s_waitcnt lgkmcnt(1)
        v_max3_u32 v41, v{b0+3}, v{b0+4}, v{b0+5}
        {pop()}
        v_max3_u32 v40, v40, v{b0+6}, v{b0+7}
        s_waitcnt lgkmcnt(0)
        v_max3_u32 v41, v41, v{b0+8}, v{b0+9}
        v_max3_u32 v40, v40, v{b0+10}, v{b0+11}
        {pop()}
        v_max_u32 v40, v40, v41
        v_cmp_eq_u32 vcc, -1, v40""")
        while oo: a(oo.pop(0))
        tail(f'{lr}_z:\ns_nop 7')
        for r in range(8): tail(f'v_mov_b32 v{vAq+r}, 0')
        tail(f's_branch L_rec_{nm}_top')
        retry(a, tail, lr, f'{lr}_z')
    else:
        a(f"""s_waitcnt lgkmcnt(0)
        v_max3_u32 v40, v{b0}, v{b0+1}, v{b0+2}
        v_max_u32 v40, v40, v{b0+3}
        v_cmp_eq_u32 vcc, -1, v40""")
        retry(a, tail, lr, f'L_rec_{nm}_top')
    a(f's_cbranch_vccnz {lr}')
    a(f'L_rec_{nm}_m:')
    a(st(1))
    reads = [f'ds_read_b128 {vr(vMF+4*t)}, v{vL16} offset:{MB+1024*t}' for t in oth]
    sld = lambda S: [W('load_dwordx4', vr(r), vL16, f's{sSr}', 1024*i, 'sc1') for i, r in enumerate(S)]
    uch = [smf(vUa+4*tc, t, ar((tc*10+t)*8, 8)) for tc in range(3) for t in range(10)]
    ufold = lambda tc: fold(vUa+4*tc, vUP+2*tc) + [f'ds_write_b32 v{vL16}, v{vUP+2*tc} offset:{UB+1024*tc+4*w}']
    nb_ = P.get('nobg', 0)
    a('s_barrier')
    a(st(2))
    if w < 3:
        for s in reads[:3]: a(s)
        for s in interleave(o[nb:], reads[3:], 2): a(s)
        for i, t in enumerate(oth):
            a(f's_waitcnt lgkmcnt({len(oth)-1-i})\n' + smf(vAq, t, vr(vWq+8*t, 8)))
        kch = [smf(vAk, t, vr(vWk+8*t, 8)) for t in oth]
        fq = fold(vAq, 40) + [f'ds_write_b32 v{vQw}, v40 offset:{QB}']
        sc = f'v_pk_mul_f32 v[{vAq}:{vAq+1}], v[{vAq}:{vAq+1}], s[{sC2}:{sC2+1}]'
        a(kch[0]); a('s_nop 1'); a(kch[1]); a('s_nop 1'); a(kch[2]); a('s_nop 0')
        a(fq[0]); a(kch[3]); a(fq[1]); a(fq[2]); a(kch[4]); a(sc); a(fq[3]); a(fq[4]); a(kch[5]); a(kch[6])
        if P['b2a']:
            a('s_nop 5\ns_waitcnt lgkmcnt(0)\ns_barrier')
        else:
            a.nop(8)
        for s in fold(vAk, 41): a(s)
        a(f'ds_write_b32 v{vKw}, v41 offset:{KB}')
        np_ = P['u_early']
        for s in uch[:np_]: a(s)
        a('s_waitcnt lgkmcnt(0)\ns_barrier')
        a(st(3)); a(st(4))
        upos, spos = np_, P['spos_o']
        pend = y_read(w)
    else:
        for s in reads: a(s)
        lb = a.lab('np')
        slow = []
        if P['live']:
            lk = a.lab('wk')
            slow = [f's_cmp_gt_u32 s{sKnK}, s{sTag}\ns_cbranch_scc0 {lk}\n{lk}_b:', W('load_dword', f'v{vFk}', 9, f's{sFk}', 0, 'sc1')]
            tail(f'{lk}:\ns_add_u32 s{sT1}, s{sTag}, 1\ns_min_u32 s{sT1}, s{sT1}, 64')
            poll_known(tail, f'{lk}_p', sKnK, sFk, f's{sT1}', vFk)
            tail(f's_branch {lk}_b')
        slow += ([] if nb_ & 2 else kx_load())
        if not nb_ & 8: slow += [W('store_dwordx4', vr(vNeg), vPG, f's{sGp}', 0, 'sc1')]
        for s in slow: a(s)
        a(f's_cmp_eq_u32 s{S_STEP}, 0\ns_cbranch_scc1 {lb}')
        for s in ([] if nb_ & 1 else pub_stores()): a(s)
        a(f'{lb}:\ns_add_u32 s{sU}, s{sU}, {8*40960}\ns_add_u32 s{sKm}, s{sKm}, {32*6144}')
        plain = [] if nb_ & 4 else [W('store_dwordx4', vr(vNeg), vPG, f's{sGLp}'), W('store_dwordx4', vr(vNeg), vPM, f's{sMp}')]
        a('s_waitcnt lgkmcnt(0)')
        np_ = P['u_pre']
        for s in interleave(uch[:np_], plain, 1): a(s)
        qrd = [f'ds_read_b64_tr_b16 {vr(vQf+2*i,2)}, v{vQr} offset:{QB+256*i}' for i in range(3)]
        krd = [f'ds_read_b64_tr_b16 {vr(vKf+2*i,2)}, v{vKr} offset:{KB+512*i}' for i in range(3)]
        xm = [f'v_mfma_f32_16x16x32_bf16 {vr(vD0)}, {vr(vKF)}, {vr(vQf)}, 0',
              f'v_mfma_f32_16x16x32_bf16 {vr(vD1)}, {vr(vKF+8)}, {vr(vQf)}, 0',
              f'v_mfma_f32_16x16x32_bf16 {vr(vD0)}, {vr(vKF+4)}, {vr(vQf+4)}, {vr(vD0)}',
              f'v_mfma_f32_16x16x32_bf16 {vr(vD1)}, {vr(vKF+12)}, {vr(vQf+4)}, {vr(vD1)}']
        mm_ = [f'v_mfma_f32_16x16x32_bf16 {vr(vDm)}, {vr(vKf)}, {vr(vQf)}, 0',
               f'v_mfma_f32_16x16x32_bf16 {vr(vDm)}, {vr(vKf+4)}, {vr(vQf+4)}, {vr(vDm)}']
        sel = [f'v_cndmask_b32 v{vPk+i}, v{vD0+i}, v{vD1+i}, s[{sHalf}:{sHalf+1}]' for i in range(4)]
        sel += [f'v_mov_b32_sdwa v{vPk}, s{sTag} dst_sel:BYTE_0 dst_unused:UNUSED_PRESERVE src0_sel:BYTE_0']
        a('s_barrier')
        if P['b2a']:
            for s in qrd: a(s)
            a('s_waitcnt lgkmcnt(0)')
            a(xm[0]); a(xm[1])
            a('s_barrier')
            a(st(3))
            for s in krd: a(s)
            a(xm[2]); a(xm[3])
            a('s_waitcnt lgkmcnt(0)')
            a(mm_[0]); a(mm_[1])
            a.nop(5)
            for s in sel: a(s)
        else:
            a(st(3))
            for s in qrd + krd: a(s)
            a('s_waitcnt lgkmcnt(3)')
            for s in xm: a(s)
            a('s_waitcnt lgkmcnt(0)')
            a(mm_[0]); a(mm_[1])
            a.nop(5)
            for s in sel: a(s)
        a(f"""v_cndmask_b32 v{vDm}, v{vDm}, v{vDm+1}, s[{sHalf}:{sHalf+1}]
        v_mov_b32_sdwa v{vPk+1}, v{vDm} dst_sel:BYTE_0 dst_unused:UNUSED_PRESERVE src0_sel:BYTE_1
        v_mov_b32_sdwa v{vPk+2}, v{vDm} dst_sel:BYTE_0 dst_unused:UNUSED_PRESERVE src0_sel:BYTE_2
        v_mov_b32_sdwa v{vPk+3}, v{vDm} dst_sel:BYTE_0 dst_unused:UNUSED_PRESERVE src0_sel:BYTE_3
        s_nop 0""")
        a(W('store_dwordx4', vr(vPk), vL16, f's{sSw}'))
        a(st(4))
        upos, spos = np_, P['spos_s']
        pend = y_read(w)
    if P['live']: pend.append(f'v_readfirstlane_b32 s{sKnY}, v{vFy}')
    done0 = done1 = False
    for i in range(upos, 30):
        a(uch[i])
        if i == spos: pend += sld(SETA)
        if not done0 and i >= 17: pend += ufold(0); done0 = True
        if not done1 and i >= 27: pend += ufold(1); done1 = True
        for _ in range(2):
            if pend: a(pend.pop(0))
    k = len(pend)
    while pend: a(pend.pop(0))
    if spos >= 30:
        if spos > 30: a.nop(spos-30)
        for s in sld(SETA): a(s)
        k += 4
    a.nop(max(0, 8-k))
    for s in ufold(2): a(s)
    a(f"""s_cmp_eq_u32 s{S_STEP}, 63
    s_cbranch_scc1 L_rec_{nm}_fin""")
    a.nop(P['sgap_s'] if w == 3 else P['sgap_o'])
    X, MV, T = 68, 72, 73
    ls = a.lab('ps')
    def scheck(o, S, fail):
        A, B, C, D = S
        o(f"""v_perm_b32 v{T}, v{A}, v{B}, s{sSelT1}
        v_perm_b32 v{T+1}, v{C}, v{D}, s{sSelT1}
        v_pk_add_f32 v[{X}:{X+1}], v[{A}:{A+1}], v[{B}:{B+1}]
        v_perm_b32 v{T}, v{T+1}, v{T}, s{sSelT2}
        v_pk_add_f32 v[{X+2}:{X+3}], v[{A+2}:{A+3}], v[{B+2}:{B+3}]
        v_cmp_ne_u32 vcc, s{sTag3}, v{T}
        v_perm_b32 v{MV}, v{A+2}, v{A+1}, s{sSelU1}
        v_perm_b32 v{T}, v{B+2}, v{B+1}, s{sSelU1}
        v_perm_b32 v{T+1}, v{C+2}, v{C+1}, s{sSelU1}
        v_perm_b32 v{T+2}, v{D+2}, v{D+1}, s{sSelU1}
        v_perm_b32 v{MV}, v{A+3}, v{MV}, s{sSelU2}
        v_perm_b32 v{T}, v{B+3}, v{T}, s{sSelU2}
        s_cbranch_vccnz {fail}
        v_perm_b32 v{T+1}, v{C+3}, v{T+1}, s{sSelU2}
        v_perm_b32 v{T+2}, v{D+3}, v{T+2}, s{sSelU2}
        v_pk_add_f32 v[{X}:{X+1}], v[{X}:{X+1}], v[{C}:{C+1}]
        v_pk_add_f32 v[{X+2}:{X+3}], v[{X+2}:{X+3}], v[{C+2}:{C+3}]
        v_pk_add_f32 v[{MV}:{MV+1}], v[{MV}:{MV+1}], v[{T+1}:{T+2}]
        v_pk_add_f32 v[{X}:{X+1}], v[{X}:{X+1}], v[{D}:{D+1}]
        v_pk_add_f32 v[{X+2}:{X+3}], v[{X+2}:{X+3}], v[{D+2}:{D+3}]""")
    a(st(5))
    if P['sdepth'] == 2:
        a(f'{ls}_a:')
        for s in sld(SETB): a(s)
        a('s_waitcnt vmcnt(4) lgkmcnt(0)')
        scheck(a, SETA, f'{ls}_b')
        tail(f'{ls}_b:')
        for s in sld(SETA): tail(s)
        tail('s_waitcnt vmcnt(4)')
        scheck(tail, SETB, f'{ls}_r')
        tail(f's_branch {ls}_j')
        retry(a, tail, f'{ls}_r', f'{ls}_a')
    else:
        a(f'{ls}_a:\ns_waitcnt vmcnt(0) lgkmcnt(0)')
        scheck(a, SETA, f'{ls}_r')
        tail(f'{ls}_b:')
        for s in sld(SETA): tail(s)
        tail(f's_branch {ls}_a')
        retry(a, tail, f'{ls}_r', f'{ls}_b')
    PB = 76
    yd = ([] if nb_ & 16 else y_dma(w, 25))
    nw2 = 3
    if P['live']:
        ly = a.lab('wy')
        yd[1] = yd[1] + f'\ns_cmp_gt_u32 s{sKnY}, s{sTag}\ns_cbranch_scc0 {ly}\n{ly}_b:'
        tail(f'{ly}:\ns_add_u32 s{sT1}, s{sTag}, 1')
        poll_known(tail, f'{ly}_p', sKnY, sFy, f's{sT1}', vFy)
        tail(f's_branch {ly}_b')
        yd.append(W('load_dword', f'v{vFy}', 9, f's{sFy}', 0, 'sc1')); nw2 += 1
        if w == 3:
            yd.append(W('store_dword', f'v{vFd}', vFa, f's{sFl}', 0, 'sc1')); nw2 += 1
    def two(k=2):
        o = []
        for _ in range(k): o.append(yd.pop(0) if yd else 's_nop 0')
        return '\n'.join(o)
    a(f"""{ls}_j:
    {'s_barrier' if P['b2c'] else ''}
    {st(6)}
    v_add_f32 v{MV}, v{MV}, v{MV+1}
    v_max3_f32 v{T}, v{X}, v{X+1}, v{X+2}
    v_max3_f32 v{T}, v{T}, v{X+3}, v{MV}
    {two()}
    v_max_f32_dpp v{T+1}, v{T}, v{T} row_ror:8 row_mask:0xf bank_mask:0xf
    v_max_f32_dpp v{T+2}, v{T}, v{T} row_ror:8 row_mask:0xf bank_mask:0xf
    {two(1) if P['yspread'] else two()}
    {'s_nop 0' if P['yspread'] else ''}
    v_permlane16_swap_b32 v{T+1}, v{T+2}
    v_max_f32 v{T}, v{T+1}, v{T+2}
    v_max_f32 v{T+1}, v{T+1}, v{T+2}
    {'s_nop 1' if P['yspread'] else two(max(2, len(yd)))}
    v_permlane32_swap_b32 v{T}, v{T+1}
    v_max_f32 v{T+1}, v{T}, v{T+1}
    v_pk_add_f32 v[{X}:{X+1}], v[{X}:{X+1}], v[{T+1}:{T+2}] op_sel_hi:[1,0] neg_lo:[0,1] neg_hi:[0,1]
    v_pk_add_f32 v[{X+2}:{X+3}], v[{X+2}:{X+3}], v[{T+1}:{T+2}] op_sel_hi:[1,0] neg_lo:[0,1] neg_hi:[0,1]
    v_sub_f32 v{MV}, v{MV}, v{T+1}
    v_exp_f32 v{X}, v{X}
    v_exp_f32 v{X+1}, v{X+1}
    v_exp_f32 v{X+2}, v{X+2}
    v_exp_f32 v{X+3}, v{X+3}
    v_cvt_pk_bf16_f32 v{PB}, v{X}, v{X+1}
    v_exp_f32 v{MV}, v{MV}
    v_cvt_pk_bf16_f32 v{PB+1}, v{X+2}, v{X+3}
    v_mov_b32_dpp v{PB+2}, v{PB} row_ror:8 row_mask:0xf bank_mask:0xf
    v_add_f32 v{T}, v{X}, v{X+1}
    v_mov_b32_dpp v{PB+3}, v{PB+1} row_ror:8 row_mask:0xf bank_mask:0xf
    v_mov_b32_dpp v{T+1}, v{MV} row_ror:8 row_mask:0xf bank_mask:0xf
    v_add_f32 v{T+2}, v{X+2}, v{X+3}
    v_mfma_f32_16x16x32_bf16 {vr(60)}, {vr(vYt+4)}, {vr(PB)}, 0
    v_cvt_pk_bf16_f32 v{vUP+6}, v{MV}, v{T+1}
    v_add_f32 v{T}, v{T}, v{MV}
    v_mfma_f32_16x16x32_bf16 {vr(56)}, {vr(vYt)}, {vr(PB)}, 0
    v_add_f32 v{T}, v{T}, v{T+2}
    {two(1)}
    v_mfma_f32_16x16x32_bf16 {vr(64)}, {vr(vYt+8)}, {vr(PB)}, 0
    v_add_f32_dpp v{T+1}, v{T}, v{T} row_ror:8 row_mask:0xf bank_mask:0xf
    v_add_f32_dpp v{T+2}, v{T}, v{T} row_ror:8 row_mask:0xf bank_mask:0xf
    v_mfma_f32_16x16x16_bf16 {vr(60)}, {vr(vUP+2,2)}, {vr(vUP+6,2)}, {vr(60)}
    v_and_b32 v26, 0x1ff, v{vY}
    v_permlane16_swap_b32 v{T+1}, v{T+2}
    v_mfma_f32_16x16x16_bf16 {vr(56)}, {vr(vUP,2)}, {vr(vUP+6,2)}, {vr(56)}
    v_add_f32 v{T}, v{T+1}, v{T+2}
    v_add_f32 v{T+1}, v{T+1}, v{T+2}
    v_mfma_f32_16x16x16_bf16 {vr(64)}, {vr(vUP+4,2)}, {vr(vUP+6,2)}, {vr(64)}
    {two(1)}
    v_permlane32_swap_b32 v{T}, v{T+1}
    v_add_f32 v{T}, v{T}, v{T+1}
    v_rcp_f32 v{T}, v{T}
    {f'v_and_b32 v24, 0x70, v{vDr}' if w >= 2 else 's_nop 0'}
    v_mov_b32_dpp v56, v60 row_ror:8 row_mask:0xf bank_mask:0xc
    v_mov_b32_dpp v57, v61 row_ror:8 row_mask:0xf bank_mask:0xc
    v_mov_b32_dpp v58, v62 row_ror:8 row_mask:0xf bank_mask:0xc
    v_mov_b32_dpp v59, v63 row_ror:8 row_mask:0xf bank_mask:0xc
    ds_write_b128 v{vL16}, {vr(56)} offset:{DB+1536*w}
    v_mov_b32_dpp v64, v66 row_ror:8 row_mask:0xf bank_mask:0xc
    v_mov_b32_dpp v65, v67 row_ror:8 row_mask:0xf bank_mask:0xc
    ds_write_b32 v26, v{T} offset:{RB+4*w}
    ds_write_b64 v{vD2}, v[64:65] offset:{DB+1536*w+1024}
    {two(len(yd))}
    {f's_mov_b64 exec, s[{sEx}:{sEx+1}]' if w >= 2 else ''}
    s_waitcnt lgkmcnt(0)
    s_barrier""")
    a(st(7))
    nxt = [f's_add_u32 s{S_STEP}, s{S_STEP}, 1'] + step_scalars(w)
    if w >= 2:
        a(f'ds_read_b128 {vr(72)}, v24 offset:{RB}')
        for i in range(4): a(f'ds_read_b128 {vr(56+4*i)}, v{vDr} offset:{DB+1536*i}')
        a(f"""s_waitcnt lgkmcnt(3)
        v_pk_mul_f32 v[76:77], v[56:57], v[72:73] op_sel_hi:[1,0]
        v_pk_mul_f32 v[78:79], v[58:59], v[72:73] op_sel_hi:[1,0]
        s_waitcnt lgkmcnt(2)
        v_pk_fma_f32 v[76:77], v[60:61], v[72:73], v[76:77] op_sel:[0,1,0] op_sel_hi:[1,1,1]
        v_pk_fma_f32 v[78:79], v[62:63], v[72:73], v[78:79] op_sel:[0,1,0] op_sel_hi:[1,1,1]
        s_waitcnt lgkmcnt(1)
        v_pk_fma_f32 v[76:77], v[64:65], v[74:75], v[76:77] op_sel_hi:[1,0,1]
        v_pk_fma_f32 v[78:79], v[66:67], v[74:75], v[78:79] op_sel_hi:[1,0,1]
        s_waitcnt lgkmcnt(0)
        v_pk_fma_f32 v[76:77], v[68:69], v[74:75], v[76:77] op_sel:[0,1,0] op_sel_hi:[1,1,1]
        v_pk_fma_f32 v[78:79], v[70:71], v[74:75], v[78:79] op_sel:[0,1,0] op_sel_hi:[1,1,1]
        v_cvt_pk_bf16_f32 v76, v76, v77
        v_cvt_pk_bf16_f32 v77, v78, v79
        v_min_u32 v76, -2, v76""")
        a(W('store_dwordx2', 'v[76:77]', vGst, f's{sG}', 0, 'sc1'))
        a(W('store_dwordx2', 'v[76:77]', vGst, f's{sGL}'))
        a(st(8)); a(st(9))
        a(f's_mov_b64 exec, -1\ns_waitcnt vmcnt({nw2+2})')
        if w == 3:
            for s in pub_reads() + kx_copy(): a(s)
            if P['live']: a(f'v_readfirstlane_b32 s{sKnK}, v{vFk}')
        for s in P['progress'](w): a(s)
        for s in nxt + az: a(s)
        a('s_waitcnt lgkmcnt(0)')
    else:
        a(f's_waitcnt vmcnt({nw2}) lgkmcnt(0)')
        for s in az: a(s)
        a(f"""v_accvgpr_read_b32 v42, a{aMst}
        s_and_b32 s{sT0}, s{sTag}, 3
        s_mul_i32 s{sMw}, s{sT0}, {M_SLOT}
        s_add_u32 s{sMw}, s{sMw}, s{sMb}
        s_mov_b32 s{sGp}, s{sG}""")
        for s in nxt: a(s)
        if P['sleep_g']: a(f"s_sleep {P['sleep_g']}")
        a.nop(P['nop_g'])
        dep = P['gdepth']
        gl = lambda r: [W('load_dwordx4', vr(60+8*r), vG0, f's{sGp}', 0, 'sc1'), W('load_dwordx4', vr(64+8*r), vG1, f's{sGp}', 0, 'sc1')]
        lg = a.lab('pg')
        a(st(8))
        for r in range(dep-1):
            for s in gl(r): a(s)
            a.nop(P['ggap'])
        a(f'{lg}:')
        for r in range(dep):
            for s in gl((r+dep-1) % dep): a(s)
            b = 60+8*r
            a(f"""s_waitcnt vmcnt({2*(dep-1)})
            v_mfma_f32_16x16x32_bf16 {vr(56)}, {ar(aSel)}, {vr(b)}, 0
            v_max3_u32 v40, v{b}, v{b+2}, v{b+4}
            v_max_u32 v40, v40, v{b+6}
            v_mfma_f32_16x16x32_bf16 {vr(56)}, {ar(aSel)}, {vr(b+4)}, {vr(56)}
            v_cmp_eq_u32 vcc, -1, v40
            s_nop 4
            s_cbranch_vccz {lg}_ok""")
        a(f"""s_add_u32 s{S_TO}, s{S_TO}, 1
        s_cmp_gt_u32 s{S_TO}, {TO_LIMIT}
        s_cbranch_scc1 L_exit
        s_branch {lg}
        {lg}_ok:
        {st(9)}
        s_mov_b64 exec, s[{sEx}:{sEx+1}]
        v_cvt_pk_bf16_f32 v40, v56, v57
        v_cvt_pk_bf16_f32 v41, v58, v59
        v_min_u32 v40, -2, v40
        v_min_u32 v41, -2, v41""")
        a(W('store_dwordx2', 'v[40:41]', 42, f's{sMw}'))
        a('s_mov_b64 exec, -1')
    a('s_barrier')
    a(st(10))
    a(P['dump'](a, w))
    a(f's_mov_b32 m0, {MB+1024*own[0]}')
    a.nop(P['dm'])
    a(f's_branch L_rec_{nm}_top0')
    a(f"""L_rec_{nm}_fin:
    s_waitcnt lgkmcnt(0)
    s_barrier""")
    if w == 3:
        for s in pub_reads(): a(s)
        a('s_waitcnt lgkmcnt(0)')
        for s in pub_stores(): a(s)
        if P['live']:
            a(f'v_mov_b32 v{vFd}, 64\ns_waitcnt vmcnt(0)')
            a(W('store_dword', f'v{vFd}', vFa, f's{sFl}', 0, 'sc1'))
    a('s_branch L_rec_done')

def rec_role(a, P):
    tail = Asm(); tail.uid = 100000
    a('L_rec:')
    rec_prologue(a, P)
    for w in range(4):
        rec_wave(a, tail, w, P)
    a.lines += tail.lines
    a(f"""L_rec_done:
    s_waitcnt vmcnt(0)
    s_barrier""")
    for s in P['done'](): a(s)
    a('s_branch L_exit')
```

```python
from gen_common import *
import gen_par as gp
import gen_rec as gr

def worker_id(a):
    a(f"""L_tofinal:
    s_and_b32 s{gp.sT0}, s{S_J}, 2
    s_lshl_b32 s{gp.sT0}, s{gp.sT0}, 4
    s_add_u32 s{gp.sWk}, s{gp.sH}, s{gp.sT0}
    s_cmp_ge_u32 s{gp.sWk}, 60
    s_cbranch_scc1 L_exit""")

def staged(stage, P, tstamp=True):
    a = Asm(); P = dict(P)
    P.update(after_k='s_branch L_exit', after_v='s_branch L_exit', after_y='s_branch L_exit', pre_y=lambda a: None, v_known=100, pre_beta=lambda a: None, r_known=100,
             q_refresh=lambda r: [], q_wait=lambda a, r: None, q_update=lambda r: [], final_wait=lambda a: None, final_waity=lambda a: a('s_waitcnt vmcnt(0)'), y_refresh='', y_update='')
    a('s_memrealtime s[96:97]')
    common_entry(a)
    if stage == 'rec':
        a(f"""s_cmp_lt_u32 s{S_X}, 4
        s_cbranch_scc1 L_rec
        s_cmp_lg_u32 s{S_X}, 4
        s_cbranch_scc1 L_exit
        s_cmp_lg_u32 s{S_WAVE}, 0
        s_cbranch_scc1 L_exit""")
        cal_store(a, S_J); cal_sample(a)
        a('s_branch L_exit')
        rec_role(a, P)
    else:
        a(f's_cmp_lt_u32 s{S_X}, 4\ns_cbranch_scc1 L_exit')
        gp.lanes(a); gp.head_ids(a)
        a(f's_and_b32 s{gp.sT0}, s{S_J}, 3\ns_mov_b32 s{S_STEP}, 0\ns_mov_b32 s{gp.sEnd}, 64\ns_mov_b32 s{gp.sFb}, 2\ns_mov_b32 s{gp.sStr}, 1\ns_mov_b32 s{gp.sDone}, 0')
        tgt = {'s1': ['L_k', 'L_v', 'L_exit', 'L_alpha'], 's2': ['L_exit', 'L_exit', 'L_y', 'L_beta'],
               'q': ['L_exit']*3 + ['L_q'], 'fin': ['L_exit', 'L_tofinal', 'L_tofinal', 'L_exit']}[stage]
        for i in range(3): a(f's_cmp_eq_u32 s{gp.sT0}, {i}\ns_cbranch_scc1 {tgt[i]}')
        a(f's_branch {tgt[3]}')
        if stage == 's1':
            gp.kv_role(a, 'k', P_WK, K_OFF, 'sc1', P); gp.kv_role(a, 'v', P_WV, V_OFF, '', P)
            gp.alpha_role(a, P)
        if stage == 's2':
            gp.y_role(a, P); gp.beta_role(a, P)
        if stage == 'q': gp.q_role(a, P)
        if stage == 'fin':
            worker_id(a); gp.final_role(a, P)
    a(f"""L_exit:
    s_waitcnt vmcnt(0)
    s_memrealtime s[98:99]
    s_memtime s[90:91]
    s_lshl_b32 s94, s{S_X}, 5
    s_add_u32 s94, s94, s{S_J}
    s_lshl_b32 s94, s94, 4
    s_add_u32 s94, s94, {FL_OFF+0x10000}
    s_waitcnt lgkmcnt(0)
    s_sub_u32 s90, s90, s92
    v_mov_b32 v12, s96
    v_mov_b32 v13, s98
    v_mov_b32 v14, s100
    v_mov_b32 v15, s90
    v_mov_b32 v10, 0
    {W('store_dwordx4', 'v[12:15]', 10, 's94')}
    s_waitcnt vmcnt(0)
    s_endpgm""")
    return a

def merged(P, diag=False):
    a = Asm(); P = dict(P)
    def pre_beta(a):
        gp.wait_init(a, 256)
        a(f"""v_and_b32 v12, 7, v{gp.vLn}
        v_lshlrev_b32 v12, 9, v12
        s_lshl_b32 s{gp.sT2}, s{S_X}, 12
        s_add_u32 s{gp.sT2}, s{gp.sT2}, {FL_OFF+384}""")
        gp.wait_flags(a, 12, f's{gp.sT2}', 1)
    def pre_y(a):
        l = a.lab('cal')
        a(f's_cmp_lg_u32 s{S_WAVE}, 0\ns_cbranch_scc1 {l}')
        cal_sample(a)
        a(f'{l}:\ns_barrier')
        gp.wait_init(a, 256)
    def q_wait(a, r):
        a(f's_add_u32 s{gp.sT1}, s{S_STEP}, 1')
        gp.wait_flags(a, gp.vFa, 0, f's{gp.sT1}', sleep=1)
    def q_update(r):
        L = [f'v_readlane_b32 s{gp.sT0+i}, v{r}, {i}' for i in range(4)]
        return L + [f's_min_u32 s{gp.sT0}, s{gp.sT0}, s{gp.sT1}', f's_min_u32 s{gp.sT2}, s{gp.sT2}, s{gp.sT3}', f's_min_u32 s{gp.sKl}, s{gp.sT0}, s{gp.sT2}']
    def final_waity(a):
        a(f"""v_add_u32 v200, 384, v{gp.vFa}
        v_add_u32 v201, 256, v{gp.vFa}
        v_cndmask_b32 v200, v200, v201, s[{gp.sMask}:{gp.sMask+1}]
        s_add_u32 s{gp.sT1}, s{S_STEP}, 1
        v_mov_b32 v202, s{gp.sT1}
        v_cndmask_b32 v201, 2, v202, s[{gp.sMask}:{gp.sMask+1}]""")
        gp.wait_flags(a, 200, 0, 'v201', sleep=8)
    def final_wait(a):
        l = a.lab('fw')
        a(f"""s_and_b32 s{gp.sT0}, s{S_STEP}, 1
        s_cmp_lt_u32 s{S_STEP}, {P['qsplit']}
        s_cselect_b32 s{gp.sT0}, 1, s{gp.sT0}
        s_cmp_lg_u32 s{gp.sT0}, 0
        s_cselect_b32 s{gp.sT1}, 3, 65
        s_cselect_b32 s{gp.sT2}, 384, 0
        s_add_u32 s{gp.sT1}, s{gp.sT1}, s{S_STEP}
        s_add_u32 s{gp.sT3}, s{S_STEP}, 7
        v_add_u32 v204, s{gp.sT2}, v{gp.vFa}
        v_add_u32 v205, 256, v{gp.vFa}
        v_cndmask_b32 v204, v204, v205, s[{gp.sMask}:{gp.sMask+1}]
        v_mov_b32 v205, s{gp.sT1}
        v_mov_b32 v206, s{gp.sT3}
        v_cndmask_b32 v205, v205, v206, s[{gp.sMask}:{gp.sMask+1}]
        s_branch {l}_go
        {l}:
        s_sleep {P.get('fsleep', 2)}
        s_add_u32 s{S_TO}, s{S_TO}, 1
        s_cmp_gt_u32 s{S_TO}, {TO_LIMIT}
        s_cbranch_scc1 L_exit
        {l}_go:
        {W('load_dword', 'v10', 204, 0, 0, 'sc1')}
        s_waitcnt vmcnt(0)
        v_cmp_gt_u32 vcc, v205, v10
        s_nop 4
        s_cmp_lg_u32 vcc_lo, 0
        s_cbranch_scc1 {l}
        s_cmp_eq_u32 vcc_hi, 0
        s_cselect_b32 s{gp.sHave}, 1, 0""")
    P.update(live=1, ninit=256, after_k='s_branch L_k2q', after_v='s_branch L_tofinal', after_y='s_branch L_tofinal', pre_y=pre_y, v_known=0, pre_beta=pre_beta, r_known=0,
             q_refresh=lambda r: [W('load_dword', f'v{r}', gp.vFa, 0, 0, 'sc1')], q_wait=q_wait, q_update=q_update, final_wait=final_wait, final_waity=final_waity, y_refresh=W('load_dword', 'v11', gp.vZ, f's{gp.sFv}', 0, 'sc1'), y_update=f'v_readfirstlane_b32 s{gp.sKn}, v11')
    mark = (lambda i: a(f's_memrealtime s[{96+2*i}:{97+2*i}]')) if diag else (lambda i: None)
    mark(0)
    if diag:
        a('s_mov_b32 s98, 0')
        P['wait_k0'] = lambda: ['s_memrealtime s[98:99]']
        P['after_y0'] = 's_memrealtime s[100:101]\ns_waitcnt lgkmcnt(0)\ns_mov_b32 s99, s100'
    common_entry(a, P['touch'])
    a(f's_cmp_lt_u32 s{S_X}, 4\ns_cbranch_scc1 L_rec')
    gp.lanes(a); gp.head_ids(a)
    l = a.lab('ini')
    a(f"""s_cmp_lg_u32 s{S_WAVE}, 0
    s_cbranch_scc1 {l}
    s_mov_b64 exec, 1
    {W('store_dword', f'v{gp.vZ}', gp.vZ, f's{gp.sFl}', 0, 'sc1')}
    s_mov_b64 exec, -1
    s_and_b32 s{gp.sT0}, s{S_J}, 3
    s_cmp_lg_u32 s{gp.sT0}, 2
    s_cbranch_scc1 {l}""")
    cal_store(a, gp.sH)
    a(f'{l}:')
    if P['help']:
        a(f's_and_b32 s{gp.sT3}, s{S_J}, 3')
        gp.touch_rows(a, P_WV, f's{gp.sT3}', 4)
    a(f"""s_and_b32 s{gp.sT0}, s{S_J}, 3
    s_cmp_eq_u32 s{gp.sT0}, 0
    s_cbranch_scc1 L_k
    s_cmp_eq_u32 s{gp.sT0}, 1
    s_cbranch_scc1 L_v
    s_cmp_eq_u32 s{gp.sT0}, 2
    s_cbranch_scc1 L_y""")
    gp.alpha_role(a, P)
    gp.beta_role(a, P)
    a(f"""s_mov_b32 s{S_STEP}, 0
    s_mov_b32 s{gp.sEnd}, {P['qsplit']}
    s_mov_b32 s{gp.sFb}, 2
    s_mov_b32 s{gp.sStr}, 1
    s_branch L_toq
    L_k2q:""")
    gp.q_flags(a)
    gp.wait_init(a, 256)
    a(f's_mov_b32 s{gp.sT2}, 384')
    gp.wait_flags(a, gp.vFa, f's{gp.sT2}', 2)
    a(f"""s_mov_b32 s{S_STEP}, {P['qsplit']}
    s_mov_b32 s{gp.sEnd}, 64
    s_mov_b32 s{gp.sFb}, 64
    s_mov_b32 s{gp.sStr}, 2
    L_toq:
    s_mov_b32 s{gp.sDone}, 0""")
    mark(1)
    a(f"""v_and_b32 v{gp.vFa}, 3, v{gp.vLn}
    s_lshl_b32 s{gp.sT0}, s{gp.sH}, 2
    v_add_u32 v{gp.vFa}, s{gp.sT0}, v{gp.vFa}
    v_lshlrev_b32 v{gp.vFa}, 7, v{gp.vFa}
    v_add_u32 v{gp.vFa}, {FL_OFF}, v{gp.vFa}""")
    gp.q_role(a, P)
    a(f"""s_cmp_eq_u32 s{gp.sStr}, 2
    s_cbranch_scc1 L_exit
    s_mov_b32 s{S_STEP}, {P['qsplit']+1}
    s_mov_b32 s{gp.sEnd}, 64
    s_mov_b32 s{gp.sStr}, 2
    s_branch L_q_again""")
    gp.kv_role(a, 'k', P_WK, K_OFF, 'sc1', P); gp.kv_role(a, 'v', P_WV, V_OFF, '', P)
    gp.y_role(a, P)
    worker_id(a)
    mark(1)
    gp.wait_init(a, 256)
    gp.final_role(a, P)
    a('L_exit:')
    if diag:
        a(f"""s_waitcnt vmcnt(0)
        s_cmp_lg_u32 s{S_WAVE}, 3
        s_cbranch_scc1 L_exit2
        s_memrealtime s[100:101]
        s_lshl_b32 s94, s{S_X}, 5
        s_add_u32 s94, s94, s{S_J}
        s_lshl_b32 s94, s94, 4
        s_add_u32 s94, s94, {FL_OFF+0x10000}
        s_waitcnt lgkmcnt(0)
        v_mov_b32 v12, s96
        v_mov_b32 v13, s98
        v_mov_b32 v14, s100
        v_mov_b32 v15, s{S_TO}
        v_mov_b32 v10, 0
        {W('store_dwordx4', 'v[12:15]', 10, 's94')}
        v_mov_b32 v16, s99
        s_add_u32 s94, s94, 0x2000
        {W('store_dword', 'v16', 10, 's94')}
        L_exit2:""")
    a('s_waitcnt vmcnt(0)\ns_endpgm')
    rec_role(a, P)
    return a

KNAME = 'gated_mix__linear_attn_block__memory_aug_recurrent_mem_tr__prompt_kernel'
def final_text(P):
    ref = open('gated_mix__linear_attn_block__memory_aug_recurrent_mem_tr__prompt.s.ref').read()
    top = ''.join(l+'\n' for l in ref.split('\n') if l.startswith(';') and '@launch' not in l)
    return top + head(KNAME, 163840) + merged(P).text() + KD.format(name=KNAME)
if __name__ == '__main__':
    import sys
    out = sys.argv[1] if len(sys.argv) > 1 else 'gated_mix__linear_attn_block__memory_aug_recurrent_mem_tr__prompt.s'
    P = dict(DEFP)
    for spec in sys.argv[2:]:
        for kv in spec.split(','):
            k, v = kv.split('='); P[k] = int(v)
    open(out, 'w').write(final_text(P))
```

```python
from asmb import *
from lay import *
from gen_rec import (S_WAVE, S_X, S_J, S_STEP, S_TO, P_X, P_WQKV, P_WOA, P_WQ, P_WK, P_WV, P_WO, P_GATE, P_OUT,
                     SRD_W, SRD_A, SRD_B, SRD_D, TO_LIMIT, srd, W)
import struct, math
def fbits(x): return '0x%08x' % struct.unpack('<I', struct.pack('<f', x))[0]
OOB = 0xF0000000
EXP = {}
sH, sI, sCol, sT0, sT1, sT2, sT3, sXo, sBufW, sBufR, sOut, sOutN, sEnd, sFl, sFv, sKn, sHave = range(52, 69)
sK, sKm, sGt, sWk, sCb, sY, sU, sP, sO, sB, sQt = range(69, 80)
sMask = 80
sC2 = 88
sEx = 90
sDl, sFb = 94, 95
sStr, sXs, sDone, sD1, sPp, sKl = 90, 91, 78, 79, 74, 75
vN, vG, vLn, vL16, vYp, vXs, vR0, vR1, vZ, vFa = range(0, 10)

def lanes(a, tid=True):
    a(f"""{f'v_and_b32 v{vLn}, 63, v0' if tid else f'v_mbcnt_lo_u32_b32 v{vLn}, -1, 0'}
    {'' if tid else f'v_mbcnt_hi_u32_b32 v{vLn}, -1, v{vLn}'}
    v_lshrrev_b32 v{vG}, 4, v{vLn}
    v_and_b32 v{vN}, 15, v{vLn}
    v_lshlrev_b32 v{vL16}, 4, v{vLn}
    v_lshrrev_b32 v10, 3, v{vN}
    v_lshlrev_b32 v10, 9, v10
    v_lshl_add_u32 v10, v{vG}, 7, v10
    v_and_b32 v11, 7, v{vN}
    v_lshl_add_u32 v{vYp}, v11, 4, v10
    v_mov_b32 v{vZ}, 0""")

def dmark(a, i):
    if not EXP.get('marks'): return
    a(f"""s_memrealtime s[100:101]
    s_add_u32 s99, s{sFl}, {0x20000 + 4*i}
    s_waitcnt lgkmcnt(0)
    v_mov_b32 v10, s100
    {W('store_dword', 'v10', vZ, 's99')}""")

def dtrace(a, slot, extra=0):
    if not EXP.get('trace'): return
    a(f"""s_memrealtime s[100:101]
    s_sub_u32 s99, s{sFl}, {FL_OFF}
    s_lshl_b32 s99, s99, 3
    s_lshl_b32 s93, s{S_STEP}, 4
    s_add_u32 s99, s99, s93
    s_add_u32 s99, s99, {FL_OFF + 0x50000 + 4*slot + extra}
    s_waitcnt lgkmcnt(0)
    v_mov_b32 v10, s100
    {W('store_dword', 'v10', vZ, 's99')}""")

def flag_addr(x, j):
    return FL_OFF + (32*x + j)*128

def set_flag(a, val, fl='sc1'):
    l = a.lab('sf')
    a(f"""s_cmp_lg_u32 s{S_WAVE}, 0
    s_cbranch_scc1 {l}
    v_mov_b32 v10, {val}
    s_mov_b64 exec, 1
    {W('store_dword', 'v10', vZ, f's{sFl}', 0, fl)}
    s_mov_b64 exec, -1
    {l}:""")

def wait_flags(a, va, so, thr, tmp=10, sleep=2):
    l = a.lab('wf')
    a(f"""s_branch {l}_go
    {l}:
    s_sleep {sleep}
    s_add_u32 s{S_TO}, s{S_TO}, 1
    s_cmp_gt_u32 s{S_TO}, {TO_LIMIT}
    s_cbranch_scc1 L_exit
    {l}_go:
    {W('load_dword', f'v{tmp}', va, so, 0, 'sc1')}
    s_waitcnt vmcnt(0)
    v_cmp_gt_u32 vcc, {thr}, v{tmp}
    s_cbranch_vccnz {l}""")

def init_done(a, P):
    if not P['live']: return
    l = a.lab('idn')
    a(f"""s_cmp_lg_u32 s{S_WAVE}, 0
    s_cbranch_scc1 {l}
    v_mov_b32 v10, {DBG_INIT}
    v_mov_b32 v11, 1
    s_waitcnt vmcnt(0)
    s_mov_b64 exec, 1
    buffer_atomic_add v11, v10, s[{SRD_D}:{SRD_D+3}], 0 offen sc1
    s_mov_b64 exec, -1
    {l}:""")

def wait_init(a, n):
    l = a.lab('wi')
    a(f"""v_mov_b32 v11, {DBG_INIT}
    s_branch {l}_go
    {l}:
    s_sleep 4
    s_add_u32 s{S_TO}, s{S_TO}, 1
    s_cmp_gt_u32 s{S_TO}, {TO_LIMIT}
    s_cbranch_scc1 L_exit
    {l}_go:
    buffer_load_dword v10, v11, s[{SRD_D}:{SRD_D+3}], 0 offen sc1
    s_waitcnt vmcnt(0)
    v_cmp_gt_u32 vcc, {n}, v10
    s_cbranch_vccnz {l}""")

def load_w(a, rstride, nblk, RC, nchunk, nbuf, mapt, ntile, pr0, dest, private=False, tv=16):
    csz = nblk*RC*128
    vS, vB, vT = tv, tv+1, tv+2
    tmp = tv+2+ntile
    a(f"""v_lshrrev_b32 v{tmp}, 3, v{vLn}
    v_mul_u32_u24 v{vS}, {rstride}, v{tmp}""")
    if mapt == 'A':
        a(f"""v_bfe_u32 v{tmp}, v{tmp}, 1, 1
        s_and_b32 s{sT0}, s{S_WAVE}, 1
        s_lshl_b32 s{sT0}, s{sT0}, 1
        v_add_u32 v{tmp}, s{sT0}, v{tmp}""")
    else:
        a(f'v_lshrrev_b32 v{tmp}, 1, v{tmp}')
    a(f"""v_lshlrev_b32 v{tmp}, 1, v{tmp}
    v_and_b32 v{tmp+1}, 7, v{vLn}
    v_xor_b32 v{tmp}, v{tmp}, v{tmp+1}
    v_lshl_add_u32 v{vS}, v{tmp}, 4, v{vS}
    v_lshrrev_b32 v{tmp}, 2, v{vN}
    v_lshl_add_u32 v{vB}, v{vG}, {3 if mapt == 'A' else 2}, v{tmp}
    v_lshlrev_b32 v{vB}, 7, v{vB}
    v_and_b32 v{tmp+1}, 3, v{vN}
    v_lshl_add_u32 v{vB}, v{tmp+1}, 3, v{vB}
    v_lshrrev_b32 v{tmp}, 1, v{tmp}
    v_and_b32 v{tmp+1}, 1, v{vG}
    v_lshl_add_u32 v{tmp}, v{tmp+1}, 1, v{tmp}""")
    if private:
        assert mapt == 'B' and nchunk == 1
        a(f's_mul_i32 s{sT3}, s{S_WAVE}, {csz}\ns_mov_b32 s{sT2}, s{sCol}\nv_add_u32 v{vB}, s{sT3}, v{vB}')
    else:
        a(f"""s_lshl_b32 s{sT3}, s{S_WAVE}, 10
        s_mul_i32 s{sT2}, s{S_WAVE}, {8*rstride}
        s_add_u32 s{sT2}, s{sT2}, s{sCol}""")
    for t in range(ntile):
        a(f"""s_add_u32 s{sT0}, {pr0}, {t}
        s_and_b32 s{sT1}, s{sT0}, 3
        s_lshr_b32 s{sT0}, s{sT0}, 2
        s_mul_i32 s{sT0}, s{sT0}, {RC*128}
        v_xor_b32 v{tmp+1}, s{sT1}, v{tmp}
        v_lshl_add_u32 v{tmp+1}, v{tmp+1}, 5, v{vB}
        v_add_u32 v{vT+t}, s{sT0}, v{tmp+1}""")
    nq = RC//8 if private else RC//32
    rsk = 8 if private else 32
    per = nblk*nq
    def issue(c):
        for q in range(nq):
            for b in range(nblk):
                a(f"""s_add_u32 m0, s{sT3}, {(c % nbuf)*csz + b*RC*128 + q*rsk*128}
                s_add_u32 s{sT0}, s{sT2}, {(c*RC + q*rsk)*rstride + b*128}
                buffer_load_dwordx4 v{vS}, s[{SRD_A}:{SRD_A+3}], s{sT0} offen lds""")
    assert per*min(nbuf, nchunk) <= 63
    for c in range(min(nbuf, nchunk)): issue(c)
    for c in range(nchunk):
        left = min(nchunk, c+nbuf) - c - 1
        a(f's_waitcnt vmcnt({per*left})')
        if not private: a('s_barrier')
        cnt = 0
        for t in range(ntile):
            a(f'v_add_u32 v{tmp+1+(t&1)}, {(c % nbuf)*csz}, v{vT+t}')
            for k in range(RC//32):
                for v in range(2):
                    off = (32*k + (4 if mapt == 'A' else 16)*v)*128
                    a(f'ds_read_b64_tr_b16 {dest(t, c*(RC//32)+k, v)}, v{tmp+1+(t&1)} offset:{off}')
                    cnt += 1
                    if cnt % 8 == 0: a('s_waitcnt lgkmcnt(6)')
        a('s_waitcnt lgkmcnt(0)')
        if not private: a('s_barrier')
        if c+nbuf < nchunk: issue(c+nbuf)

XBUF = 40960
FR = 16
AC = 48
EP = 96

def x_setup(a):
    srd(a, SRD_B, P_X, 2048*1280)
    a(f"""v_lshrrev_b32 v10, 3, v{vLn}
    v_mul_u32_u24 v{vXs}, 1280, v10
    v_lshrrev_b32 v10, 1, v10
    s_and_b32 s{sT0}, s{S_WAVE}, 1
    s_lshl_b32 s{sT0}, s{sT0}, 2
    v_add_u32 v10, s{sT0}, v10
    v_and_b32 v11, 7, v{vLn}
    v_xor_b32 v10, v10, v11
    v_lshl_add_u32 v{vXs}, v10, 4, v{vXs}
    s_mul_i32 s{sT0}, s{S_WAVE}, {8*1280}
    s_add_u32 s{sXo}, s{sXo}, s{sT0}
    s_mul_i32 s{sBufW}, s{S_WAVE}, 10240
    v_lshrrev_b32 v10, 3, v{vN}
    v_mul_u32_u24 v10, 10240, v10
    v_and_b32 v11, 7, v{vN}
    v_lshl_add_u32 v10, v11, 7, v10
    v_lshrrev_b32 v11, 1, v{vN}
    v_xor_b32 v11, v11, v{vG}
    v_lshl_add_u32 v{vR0}, v11, 4, v10
    v_xor_b32 v11, 4, v11
    v_lshl_add_u32 v{vR1}, v11, 4, v10
    s_mov_b32 s{sBufR}, 0""")

def x_dma(strided=False):
    L = [f's_add_u32 m0, s{sBufW}, {896*l}\ns_nop 0\nbuffer_load_dwordx4 v{vXs}, s[{SRD_B}:{SRD_B+3}], s{sXo} offen offset:{128*l} lds' for l in range(10)]
    L.append(f"""s_add_u32 s{sXo}, s{sXo}, {f's{sXs}' if strided else XBUF}
    s_add_u32 s{sBufW}, s{sBufW}, {XBUF}
    s_cmp_ge_u32 s{sBufW}, {3*XBUF}
    s_cselect_b32 s{sT0}, {3*XBUF}, 0
    s_sub_u32 s{sBufW}, s{sBufW}, s{sT0}""")
    return L

def x_rd(k):
    return [f'ds_read_b128 {vr(FR+8*(k%4)+4*xt)}, v{vR0+(k&1)} offset:{20480*xt+1024*(k>>1)}' for xt in range(2)]

def serial(a, x):
    if x.startswith('G|'): return
    if x[0] == 'W':
        a.nop(int(x[1])); x = x[3:]
    a(x)

def gemm_loop(a, name, nt, orient, epi, post=None, early=None, after_bar=None, cinit='0', relaxed=False, late_fill=None, strided=False, defer=None, drain=True):
    for s in x_dma(strided): a(s)
    for s in x_dma(strided): a(s)
    a('s_waitcnt vmcnt(10)\ns_barrier')
    for s in x_rd(0) + x_rd(1): a(s)
    a(f's_mov_b32 s{sOut}, {OOB}\ns_waitcnt lgkmcnt(2)')
    if EXP.get('stamp'): a('s_memtime s[92:93]\ns_memrealtime s[100:101]\ns_waitcnt lgkmcnt(0)')
    a(f'.p2align 6\nL_{name}_loop:')
    for p in range(2 if epi else 1):
        acc = AC + 24*p; prev = AC + 24*(1-p)
        head = early() if early else []
        main = (epi(prev) if epi else []) + (defer() if defer else [])
        dm = x_dma(strided)
        dl = []
        for x in dm[:-1]:
            m0, _, ld = x.split('\n')
            dl += [ld, m0][::-1]
        tl = [y.strip() for y in dm[-1].split('\n')]
        dl += [tl[0], tl[1], tl[2]+'\n'+tl[3], tl[4]]
        side = [f's_add_u32 s{sBufR}, s{sBufR}, {XBUF}', f's_cmp_ge_u32 s{sBufR}, {3*XBUF}\ns_cselect_b32 s{sDl}, {3*XBUF}, 0',
                f's_sub_u32 s{sBufR}, s{sBufR}, s{sDl}', f's_sub_u32 s{sDl}, {XBUF}, s{sDl}']
        nst = sum('buffer_store' in x for x in main)
        nwait = 10 + (nst if relaxed else 0)
        nmf = 2*nt
        g0 = 8 if nmf > 2 else 8
        ngap = 18*nmf
        side = head + side + dl
        nfree = len(head) + 4
        lf = late_fill() if late_fill else []
        S = dict(since=0, ins=99, hold=0, t=0)
        def put(x, ismain=False):
            for y in x.split('\n'):
                y = y.strip()
                if y.endswith(':'): a(y); continue
                v = y.startswith('v_')
                S['t'] = (max(S['t'], 8) if v else S['t']) + (8 if ('v_exp' in y or 'v_rcp' in y or 'permlane' in y) else 4)
                if ismain and y.startswith('ds_'): S['since'] = 0
                a(y.replace('lgkmcnt(0)', f"lgkmcnt({min(S['since'], 15)})") if ismain else y)
                S['ins'] += 1
            if ismain: S['ins'] = 0
        def fits(x):
            y = x.split('\n')[0]
            v = y.startswith('v_')
            return (max(S['t'], 8) if v else S['t']) + (8 if ('v_exp' in y or 'v_rcp' in y or 'permlane' in y) else 4) <= over[0]
        over = [16]
        need = sum(2 if ('v_exp' in x or 'v_rcp' in x or 'permlane' in x) else 1 for x in main) + len(side)
        have = (ngap-g0)*2 + (ngap*(nmf-3))//nmf + g0
        gi = 0; dstart = None
        for k in range(20):
            if k == 18:
                for x in side: put(x); a('s_nop 0')
                for x in main: serial(a, x)
                side, main = [], []
                a(f"""s_waitcnt vmcnt({nwait}) lgkmcnt(0)
                s_barrier""")
            rd = x_rd(k+2) if k < 18 else x_rd(k-18)
            i = 0
            for t in range(nt):
                for xt in range(2):
                    d = vr(acc + 4*(2*t+xt)); wv = ar((t*20+k)*4); xv = vr(FR+8*(k%4)+4*xt)
                    c = cinit if k == 0 else d
                    a(f'v_mfma_f32_16x16x32_bf16 {d}, {wv}, {xv}, {c}' if orient == 'T' else f'v_mfma_f32_16x16x32_bf16 {d}, {xv}, {wv}, {c}')
                    S['t'] = 4; S['ins'] += 1
                    if i < 2: put(rd[i]); S['since'] += 1
                    if i == nmf-1 and k not in (17, 18): put('s_waitcnt lgkmcnt(2)')
                    if k == 17 and i == 0: put(f'v_add_u32 v{vR0}, s{sDl}, v{vR0}')
                    if k == 17 and i == 1: put(f'v_add_u32 v{vR1}, s{sDl}, v{vR1}')
                    if k < 18:
                        over[0] = 20 if (need > have*0.9 and gi % 2) else 16
                        stores_left = any('buffer_store' in x for x in main)
                        n = 0
                        while side and fits(side[0]) and n < 2:
                            if nfree > 0: nfree -= 1
                            else:
                                if not relaxed and stores_left: break
                                if dstart is None: dstart = (gi, len(side))
                                if (dstart[1]-len(side))*(ngap-2-dstart[0]) > (gi-dstart[0]+1)*dstart[1]: break
                                if main and gi >= g0 and S['t'] > 4 and (ngap-gi)*max(nmf-3, 0) >= len(side)*nmf: break
                            x = side.pop(0); put(x); n += 1
                            if 'm0' in x: break
                        if S['hold'] > 0: S['hold'] -= 1
                        while main and gi >= g0-1 and S['hold'] == 0:
                            x = main[0]
                            if x.startswith('G|'):
                                S['hold'] = int(x[2:]); main.pop(0); break
                            if x[0] == 'W':
                                if S['ins'] < int(x[1]): break
                                x = x[3:]
                            if not fits(x): break
                            main.pop(0); put(x, True)
                            if 'ds_write_b128' in x: S['hold'] = 2; break
                        gi += 1
                    else:
                        while lf and fits(lf[0]): put(lf.pop(0))
                    if k == 19 and i == 2 and after_bar: after_bar(a)
                    i += 1
        while lf: a(lf.pop(0))
        if post: post(a, acc)
        a(f's_mov_b32 s{sOut}, s{sOutN}')
        a(f's_add_u32 s{S_STEP}, s{S_STEP}, ' + (f's{sStr}' if strided else '1'))
    a(f"""s_cmp_lt_u32 s{S_STEP}, s{sEnd}
    s_cbranch_scc1 L_{name}_loop""")
    if epi:
        a.nop(8)
        for s in epi(AC+24): serial(a, s)
    if drain: a('s_waitcnt vmcnt(0) lgkmcnt(0)\ns_barrier')

def epi_plain(nt, stride, fl, phi=False):
    def f(acc):
        L = []
        for t in range(nt):
            o = EP + 4*t
            for xt in range(2):
                b = acc + 4*(2*t+xt)
                if phi:
                    e = EP + 16
                    L += [f'v_fma_f32 v{e+i}, v{b+i}, s{sC2}, v{EP+24}' for i in range(4)]
                    L += [f'v_exp_f32 v{e+i}, v{e+i} clamp' for i in range(4)]
                    L += [f'v_max_f32 v{b+i}, v{EP+20}, v{b+i}' for i in range(4)]
                    L += [f'v_add_f32 v{b+i}, v{b+i}, v{e+i}' for i in range(4)]
                L += [f'v_cvt_pk_bf16_f32 v{o+2*xt}, v{b}, v{b+1}', f'v_cvt_pk_bf16_f32 v{o+2*xt+1}, v{b+2}, v{b+3}']
            L.append(W('store_dwordx4', vr(o), vL16, f's{sOut}', 1024*t, fl))
        L.append(f's_add_u32 s{sOutN}, s{sOutN}, {stride}')
        return L
    return f

def head_ids(a):
    a(f"""s_sub_u32 s{sH}, s{S_X}, 4
    s_lshl_b32 s{sH}, s{sH}, 3
    s_lshr_b32 s{sT0}, s{S_J}, 2
    s_add_u32 s{sH}, s{sH}, s{sT0}
    s_lshl_b32 s{sFl}, s{S_X}, 5
    s_add_u32 s{sFl}, s{sFl}, s{S_J}
    s_lshl_b32 s{sFl}, s{sFl}, 7
    s_add_u32 s{sFl}, s{sFl}, {FL_OFF}""")

def touch_rows(a, ptr, part, nparts):
    rows = 640//(8*nparts)//4
    srd(a, SRD_A, ptr, 640*6144*2)
    a(f"""s_and_b32 s{sT0}, s{sH}, 7
    s_mul_i32 s{sT0}, s{sT0}, {nparts}
    s_add_u32 s{sT0}, s{sT0}, {part}
    s_lshl_b32 s{sT0}, s{sT0}, 2
    s_add_u32 s{sT0}, s{sT0}, s{S_WAVE}
    s_mul_i32 s{sT0}, s{sT0}, {rows*12288}
    s_lshr_b32 s{sT1}, s{sH}, 3
    s_mul_i32 s{sT1}, s{sT1}, 3072
    s_add_u32 s{sT0}, s{sT0}, s{sT1}""")
    for i in range(2):
        a(f"""v_min_u32 v10, 59, v{vLn}
        v_add_u32 v10, {60*i}, v10
        v_mul_u32_u24 v11, 0xaab, v10
        v_lshrrev_b32 v11, 16, v11
        v_mul_u32_u24 v12, 24, v11
        v_sub_u32 v10, v10, v12
        v_mul_u32_u24 v11, 12288, v11
        v_lshl_add_u32 v{13+i}, v10, 7, v11""")
    for r in range(rows//5):
        a(f"""buffer_load_dword v255, v13, s[{SRD_A}:{SRD_A+3}], s{sT0} offen
        buffer_load_dword v255, v14, s[{SRD_A}:{SRD_A+3}], s{sT0} offen
        s_add_u32 s{sT0}, s{sT0}, {5*12288}""")

def touch_x(a):
    srd(a, SRD_A, P_X, 2048*1280)
    a(f"""s_lshl_b32 s{sT0}, s{sH}, 2
    s_add_u32 s{sT0}, s{sT0}, s{S_WAVE}
    s_lshl_b32 s{sT0}, s{sT0}, 7
    v_lshlrev_b32 v10, 14, v{vLn}""")
    for i in range(3):
        a(f'buffer_load_dword v255, v10, s[{SRD_A}:{SRD_A+3}], s{sT0} offen\ns_add_u32 s{sT0}, s{sT0}, {1<<20}')

def w_head(a, ptr):
    srd(a, SRD_A, ptr, 640*6144*2)
    a(f's_mul_i32 s{sCol}, s{sH}, 384\ns_mul_i32 s{sI}, s{S_WAVE}, 3')
    load_w(a, 12288, 3, 160, 4, 2, 'A', 3, f's{sI}', lambda t, k, v: ar((t*20+k)*4+2*v, 2))

def kv_role(a, name, ptr, off, fl, P):
    a(f'L_{name}:')
    if name == 'k' and P['help']:
        a('s_waitcnt vmcnt(0)\ns_barrier')
        init_done(a, P)
        touch_rows(a, P_WK, 0, 2)
    w_head(a, ptr)
    if not (name == 'k' and P['help']): init_done(a, P)
    a(f"""s_mov_b32 s{S_STEP}, 0
    s_mov_b32 s{sEnd}, 64
    s_mov_b32 s{sXo}, 0
    s_mul_i32 s{sOutN}, s{sH}, 12288
    s_mul_i32 s{sT0}, s{S_WAVE}, 3072
    s_add_u32 s{sOutN}, s{sOutN}, s{sT0}
    s_add_u32 s{sOutN}, s{sOutN}, {off - 32*12288}""")
    dmark(a, 0)
    x_setup(a)
    gemm_loop(a, name, 3, 'T', epi_plain(3, 32*12288, fl), after_bar=lambda a: set_flag(a, f's{S_STEP}', fl))
    set_flag(a, 64, fl)
    a(P['after_'+name])

def y_role(a, P):
    a('L_y:')
    srd(a, SRD_A, P_WO, 32*192*640*2)
    a(f's_mul_i32 s{sCol}, s{sH}, {192*1280}\ns_mul_i32 s{sI}, s{S_WAVE}, 10')
    load_w(a, 1280, 10, 32, 6, 3, 'B', 10, f's{sI}', lambda t, k, v: ar((t*6+k)*4+2*v, 2))
    dmark(a, 0)
    init_done(a, P)
    if P['help'] & 2: touch_rows(a, P_WQ, 0, 2)
    if P['help'] & 4: touch_rows(a, P_WQ, 0, 1)
    a('s_waitcnt vmcnt(0)\ns_barrier')
    P['pre_y'](a)
    VB = 12288; NBUF = 4
    FA = 16
    a(f"""s_mov_b32 s{S_STEP}, 0
    s_mov_b32 s{sKn}, {P['v_known']}
    s_sub_u32 s{sFv}, s{sFl}, 128
    s_mul_i32 s{sXo}, s{sH}, 12288
    s_mul_i32 s{sT0}, s{S_WAVE}, 3072
    s_add_u32 s{sXo}, s{sXo}, s{sT0}
    s_add_u32 s{sXo}, s{sXo}, {V_OFF}
    s_mov_b32 s{sBufW}, s{sT0}
    s_mul_i32 s{sOut}, s{sH}, 40960
    s_mul_i32 s{sT0}, s{S_WAVE}, 10240
    s_add_u32 s{sOut}, s{sOut}, s{sT0}
    s_add_u32 s{sOut}, s{sOut}, {Y_OFF}
    s_mov_b32 s{sOutN}, {OOB}
    s_mov_b32 s{sEnd}, 0
    v_mov_b32 v{vR0}, v{vL16}
    v_add_u32 v{vR1}, 8, v{vL16}
    v_add_u32 v12, 4096, v{vYp}
    v_add_u32 v13, 8192, v{vYp}
    s_lshl_b32 s{sT0}, s{S_WAVE}, 6
    v_add_u32 v15, s{sT0}, v{vLn}
    v_min_u32 v15, 1, v15
    v_mul_u32_u24 v15, 0xf00000, v15
    v_lshlrev_b32 v15, 8, v15""")
    def need():
        l = a.lab('nv')
        a(f"""s_cmp_gt_u32 s{sKn}, s{sEnd}
        s_cbranch_scc1 {l}
        s_add_u32 s{sT1}, s{sEnd}, 1
        s_min_u32 s{sT1}, s{sT1}, 64""")
        wait_flags(a, vZ, f's{sFv}', f's{sT1}', sleep=1)
        a(f'v_readfirstlane_b32 s{sKn}, v10\n{l}:')
    def vdma():
        L = [f's_mov_b32 m0, s{sBufW}\ns_nop 0'] + [f'buffer_load_dwordx4 v{vL16}, s[{SRD_W}:{SRD_W+3}], s{sXo} offen offset:{1024*i} sc1 lds' for i in range(3)]
        L.append(f"""s_add_u32 s{sXo}, s{sXo}, {32*12288}
        s_add_u32 s{sEnd}, s{sEnd}, 1
        s_add_u32 s{sBufW}, s{sBufW}, {VB}
        s_cmp_ge_u32 s{sBufW}, {2*VB}
        s_cselect_b32 s{sT0}, {2*VB}, 0
        s_sub_u32 s{sBufW}, s{sBufW}, s{sT0}""")
        return L
    def vrd(p):
        return [f'ds_read2st64_b64 {vr(FA+48*p+8*k+4*xt)}, v{vR0+xt} offset0:{24*p+4*k} offset1:{24*p+4*k+2}' for k in range(6) for xt in range(2)]
    need()
    for s in vdma(): a(s)
    a('s_waitcnt vmcnt(0)\ns_barrier')
    for s in vrd(0): a(s)
    dmark(a, 1)
    if EXP.get('stamp'): a('s_memtime s[92:93]\ns_memrealtime s[100:101]\ns_waitcnt lgkmcnt(0)')
    a('.p2align 6\nL_y_loop:')
    def ep(t, so):
        b = 112 + 8*(t & 1); o = 128 + 4*(t & 1)
        return [f'v_cvt_pk_bf16_f32 v{o}, v{b}, v{b+1}', f'v_cvt_pk_bf16_f32 v{o+1}, v{b+2}, v{b+3}',
                f'v_cvt_pk_bf16_f32 v{o+2}, v{b+4}, v{b+5}', f'v_cvt_pk_bf16_f32 v{o+3}, v{b+6}, v{b+7}',
                W('store_dwordx4', vr(o), (vYp, 12, 13)[t >> 2], so, 1024*(t & 3), 'sc1')]
    for p in range(2):
        need()
        a('s_waitcnt lgkmcnt(0)')
        vd = vdma(); tl = vd[-1].split('\n')
        for t in range(10):
            fill = ep(9, f's{sOutN}') if t == 0 else ep(t-1, f's{sOut}')
            pre = ['']*7
            if t == 0: pre = [f's_mov_b32 m0, s{sBufW}', vd[1], '', vd[2], '', vd[3], P['y_refresh']]
            if t == 1: pre = [tl[0], tl[1], tl[2], tl[3]+'\n'+tl[4], tl[5], '', '']
            if t == 6:
                a('s_waitcnt vmcnt(5)\ns_barrier')
                pre[5] = P['y_update']
            if t >= 6:
                r = vrd(1-p)[3*(t-6):3*(t-6)+3]
                pre[0], pre[3], pre[6] = r
            mm = []
            for k in range(6):
                for xt in range(2):
                    d = vr(112+8*(t & 1)+4*xt)
                    mm.append(f'v_mfma_f32_16x16x32_bf16 {d}, {vr(FA+48*p+8*k+4*xt)}, {ar((t*6+k)*4)}, {"0" if k == 0 else d}')
            if t == 7:
                pre[1] = f'v_mov_b32 v14, s{S_STEP}'
                pre[4] = W('store_dword', 'v14', 15, f's{sFl}', 0, 'sc1')
            if t == 9:
                fill[4] += f'\ns_mov_b32 s{sOutN}, s{sOut}\ns_add_u32 s{sOut}, s{sOut}, {32*40960}'
                pre[1] = f's_add_u32 s{S_STEP}, s{S_STEP}, 1'
            seq = interleave(mm[:7], pre, 1) + interleave(mm[7:], fill, 1)
            for s in seq: a(s)
    a(f"""s_cmp_lt_u32 s{S_STEP}, 64
    s_cbranch_scc1 L_y_loop""")
    a.nop(8)
    for s in ep(9, f's{sOutN}'): a(s)
    a('s_waitcnt vmcnt(0) lgkmcnt(0)\ns_barrier')
    set_flag(a, 64)
    a(P['after_y'])

def q_flags(a):
    a(f"""v_and_b32 v{vFa}, 31, v{vLn}
    v_lshlrev_b32 v{vFa}, 9, v{vFa}
    v_add_u32 v{vFa}, {flag_addr(4, 0)}, v{vFa}""")

def alpha_role(a, P):
    a('L_alpha:')
    init_done(a, P)
    if P['help']:
        a('s_waitcnt vmcnt(0)\ns_barrier')
        touch_x(a)
        touch_rows(a, P_WK, 1, 2)
        if P['help'] & 2:
            a('s_waitcnt vmcnt(0)')
            touch_rows(a, P_WQ, 1, 2)
    a(f"""s_and_b32 s{sT0}, s{sH}, 1
    s_lshl_b32 s{S_STEP}, s{sT0}, 5
    s_add_u32 s{sEnd}, s{S_STEP}, 32
    s_mul_i32 s{sXo}, s{S_STEP}, {XBUF}
    s_and_b32 s{sB}, s{sH}, 6
    s_lshl_b32 s{sB}, s{sB}, 1
    s_add_u32 s{sB}, s{sB}, s{S_WAVE}
    s_mul_i32 s{sQt}, s{sB}, 0x3334
    s_lshr_b32 s{sQt}, s{sQt}, 16              ; 0 q, 1 k, 2 v, 3 gate
    s_mul_i32 s{sT2}, s{sQt}, 5
    s_sub_u32 s{sT2}, s{sB}, s{sT2}
    s_lshr_b32 s{sT1}, s{sH}, 3
    s_mul_i32 s{sT1}, s{sT1}, 5
    s_add_u32 s{sT2}, s{sT2}, s{sT1}
    s_mul_i32 s{sCol}, s{sQt}, 1280
    s_lshl_b32 s{sT1}, s{sT2}, 6
    s_add_u32 s{sCol}, s{sCol}, s{sT1}
    s_mul_i32 s{sOutN}, s{sQt}, {PK_OFF-PQ_OFF}
    s_lshl_b32 s{sT2}, s{sT2}, 11
    s_add_u32 s{sOutN}, s{sOutN}, s{sT2}
    s_add_u32 s{sOutN}, s{sOutN}, s{sXo}
    s_add_u32 s{sOutN}, s{sOutN}, {PQ_OFF - 40960}
    s_mov_b32 s{sC2}, {fbits(math.log2(math.e))}
    v_mov_b32 v{EP+20}, {fbits(1e-6)}
    v_mov_b32 v{EP+21}, {fbits(1e-6)}
    v_mov_b32 v{EP+22}, {fbits(1e-6)}
    v_mov_b32 v{EP+23}, {fbits(1e-6)}
    v_mov_b32 v{EP+24}, {fbits(-1e-6*math.log2(math.e))}
    s_cmp_eq_u32 s{sQt}, 3
    s_cbranch_scc1 L_gate""")
    srd(a, SRD_A, P_WQKV, 640*1920*2)
    a(f"""v_lshrrev_b32 v16, 2, v{vLn}
    v_mul_u32_u24 v17, 3840, v16
    v_lshrrev_b32 v16, 3, v16
    v_lshlrev_b32 v16, 1, v16
    v_and_b32 v18, 3, v{vLn}
    v_xor_b32 v16, v16, v18
    v_lshl_add_u32 v17, v16, 4, v17
    s_mul_i32 s{sT3}, s{S_WAVE}, 40960
    v_lshrrev_b32 v16, 2, v{vN}
    v_lshl_add_u32 v16, v{vG}, 3, v16
    v_lshlrev_b32 v16, 6, v16
    v_and_b32 v18, 3, v{vN}
    v_lshl_add_u32 v16, v18, 3, v16
    v_add_u32 v16, s{sT3}, v16
    v_and_b32 v18, 1, v{vG}
    v_lshl_add_u32 v19, v18, 5, v16
    v_xor_b32 v18, 1, v18
    v_lshl_add_u32 v20, v18, 5, v16""")
    for i in range(40):
        a(f"""s_add_u32 m0, s{sT3}, {1024*i}
        s_add_u32 s{sT0}, s{sCol}, {16*i*3840}
        buffer_load_dwordx4 v17, s[{SRD_A}:{SRD_A+3}], s{sT0} offen lds""")
    for k in range(20):
        a(f's_waitcnt vmcnt({38-2*k}) lgkmcnt(8)')
        for t in range(2):
            for v in range(2):
                a(f'ds_read_b64_tr_b16 {ar((t*20+k)*4+2*v, 2)}, v{19+t} offset:{(32*k+4*v)*64}')
    a('s_waitcnt lgkmcnt(0)\ns_barrier')
    dmark(a, 0)
    x_setup(a)
    a(f"""s_cmp_eq_u32 s{sQt}, 1
    s_cbranch_scc1 L_alk
    s_cmp_eq_u32 s{sQt}, 2
    s_cbranch_scc1 L_alv""")
    gemm_loop(a, 'alq', 2, 'T', epi_plain(2, 40960, '', True), cinit=vr(EP+20), relaxed=True)
    a('s_branch L_alpha_done\nL_alk:')
    gemm_loop(a, 'alk', 2, 'N', epi_plain(2, 40960, '', True), cinit=vr(EP+20), relaxed=True)
    a('s_branch L_alpha_done\nL_alv:')
    gemm_loop(a, 'alv', 2, 'N', epi_plain(2, 40960, '', False), relaxed=True)
    a('s_branch L_alpha_done\nL_gate:')
    srd(a, SRD_A, P_GATE, 1280)
    a(f'v_lshlrev_b32 v10, 4, v{vG}')
    for k in range(20): a(f'buffer_load_dwordx4 {ar(4*k)}, v10, s[{SRD_A}:{SRD_A+3}], 0 offen offset:{64*k}')
    a(f"""s_lshl_b32 s{sOutN}, s{S_STEP}, 7
    s_lshl_b32 s{sT0}, s{S_X}, 13
    s_add_u32 s{sOutN}, s{sOutN}, s{sT0}
    s_add_u32 s{sOutN}, s{sOutN}, {GT_OFF - 128}
    v_lshlrev_b32 v{vFa}, 2, v{vN}
    s_waitcnt vmcnt(0)
    s_barrier""")
    x_setup(a)
    def epi_gate(acc):
        L = []
        for xt in range(2):
            b = acc + 4*xt; o = EP + xt
            L += [f'v_mul_f32 v{o}, s{sC2}, v{b}', f'v_exp_f32 v{o}, -v{o}', f'W1|v_add_f32 v{o}, 1.0, v{o}', f'v_rcp_f32 v{o}, v{o}',
                  'W1|' + W('store_dword', f'v{o}', vFa, f's{sOut}', 64*xt)]
        L.append(f's_add_u32 s{sOutN}, s{sOutN}, 128')
        return L
    gemm_loop(a, 'gate', 1, 'T', epi_gate, relaxed=True)
    a('L_alpha_done:')
    dmark(a, 1)
    set_flag(a, 1)

PAIRS = [(i, j) for i in range(5) for j in range(5) if abs(i-j) <= 1]

def beta_role(a, P):
    a('L_beta:')
    q_flags(a)
    P['pre_beta'](a)
    dmark(a, 2)
    ACC = 16
    RING = 96
    a(f"""s_lshr_b32 s{sB}, s{sH}, 2
    s_and_b32 s{sQt}, s{sH}, 3
    s_lshl_b32 s{sT0}, s{sQt}, 2
    s_add_u32 s{sT0}, s{sT0}, s{S_WAVE}
    s_lshl_b32 s{sT0}, s{sT0}, 2
    s_lshl_b32 s{sGt}, s{sT0}, 7
    s_lshl_b32 s{sT1}, s{S_X}, 13
    s_add_u32 s{sGt}, s{sGt}, s{sT1}
    s_add_u32 s{sGt}, s{sGt}, {GT_OFF}
    s_mul_i32 s{sO}, s{sT0}, 40960
    s_mul_i32 s{sT2}, s{sB}, 5120
    s_add_u32 s{sO}, s{sO}, s{sT2}
    v_add_u32 v11, 4096, v{vL16}
    v_mov_b32 v12, 0x3f803f80
    v_mov_b32 v13, 0x3f803f80
    v_mov_b32 v14, 0x3f803f80
    v_mov_b32 v15, 0x3f803f80""")
    for i in range(4):
        b = RING + 40*i
        a(f's_add_u32 s{sT0}, s{sO}, {PK_OFF + i*40960}\ns_add_u32 s{sT1}, s{sO}, {VV_OFF + i*40960}')
        for h, so in ((0, sT0), (1, sT1)):
            for t in range(5): a(W('load_dwordx4', vr(b+20*h+4*t), vL16 if t < 4 else 11, f's{so}', 1024*(t & 3), 'sc1'))
    for i in range(4):
        a(f's_waitcnt vmcnt({10*(3-i)})')
        b = RING + 40*i
        for n_, (p, q) in enumerate(PAIRS):
            d = vr(ACC+4*n_)
            a(f'v_mfma_f32_16x16x32_bf16 {d}, {vr(b+4*p)}, {vr(b+20+4*q)}, {"0" if i == 0 else d}')
        for p in range(5):
            d = vr(ACC+4*(13+p))
            a(f'v_mfma_f32_16x16x32_bf16 {d}, {vr(b+4*p)}, v[12:15], {"0" if i == 0 else d}')
    a(f"""s_mul_i32 s{sT0}, s{S_WAVE}, 20480
    v_add_u32 v88, s{sT0}, v{vL16}
    s_lshl_b32 s{sT0}, s{S_WAVE}, 10
    v_add_u32 v89, s{sT0}, v{vL16}
    v_add_u32 v90, 40960, v89
    s_mul_i32 s{sK}, s{sB}, {4*20480}
    s_add_u32 s{sK}, s{sK}, {KV_OFF}""")
    for n_ in range(18):
        a(f'ds_write_b128 v88, {vr(ACC+4*n_)} offset:{1024*n_}')
        if n_ % 8 == 7: a('s_waitcnt lgkmcnt(4)')
    a('s_waitcnt lgkmcnt(0)\ns_barrier')
    def sum4(d):
        for x, y in ((d, d+4), (d+8, d+12), (d, d+8)):
            a(f'v_pk_add_f32 v[{x}:{x+1}], v[{x}:{x+1}], v[{y}:{y+1}]\nv_pk_add_f32 v[{x+2}:{x+3}], v[{x+2}:{x+3}], v[{y+2}:{y+3}]')
    SM = 176
    for m in range(5):
        for w in range(4): a(f'ds_read_b128 {vr(SM+16*m+4*w)}, v{89 + (w >> 1)} offset:{20480*(w & 1) + 4096*m}')
        if m >= 2: a('s_waitcnt lgkmcnt(8)')
    a(f's_mul_i32 s{sT0}, s{sQt}, 20480\ns_add_u32 s{sT0}, s{sT0}, s{sK}\ns_waitcnt lgkmcnt(0)')
    for m in range(5):
        sum4(SM+16*m)
        a(W('store_dwordx4', vr(SM+16*m), 89, f's{sT0}'))
        a(f's_add_u32 s{sT0}, s{sT0}, 4096')
    a('s_waitcnt vmcnt(0)\ns_barrier')
    set_flag(a, 2)
    dmark(a, 3)
    P['mid_beta'](a)
    for c in range(4):
        for m in range(5):
            a(f's_add_u32 s{sT0}, s{sK}, {20480*c + 4096*m}')
            a(W('load_dwordx4', vr(SM+16*m+4*c), 89, f's{sT0}', 0, 'sc1'))
    PQ = 96
    a(f'v_lshlrev_b32 v10, 2, v{vN}')
    for i in range(4):
        a(f's_add_u32 s{sT0}, s{sO}, {PQ_OFF + i*40960}')
        for t in range(5): a(W('load_dwordx4', vr(PQ+20*i+4*t), vL16 if t < 4 else 11, f's{sT0}', 1024*(t & 3), 'sc1'))
        for xt in range(2): a(W('load_dword', f'a{2*i+xt}', 10, f's{sGt}', 128*i+64*xt, 'sc1'))
    a(f'v_lshrrev_b32 v88, 1, v89\nv_lshrrev_b32 v90, 1, v{vL16}\ns_waitcnt vmcnt(28)')
    for m in range(5):
        d = SM+16*m
        sum4(d)
        a(f'v_cvt_pk_bf16_f32 v{d}, v{d}, v{d+1}\nv_cvt_pk_bf16_f32 v{d+1}, v{d+2}, v{d+3}\nds_write_b64 v88, v[{d}:{d+1}] offset:{2048*m}')
    a('s_waitcnt lgkmcnt(0)\ns_barrier')
    for n_ in range(18):
        a(f'ds_read_b64 v[{ACC+2*n_}:{ACC+2*n_+1}], v90 offset:{512*n_}')
        if n_ == 9: a('s_waitcnt lgkmcnt(4)')
    zt = lambda i: ACC + 2*(13+i)
    T = 184
    KA, ZA = 200, 226
    for p in range(5):
        a(f"""v_lshlrev_b32 v{T+p}, 2, v{vG}
        v_add_u32 v{T+p}, {16*p}, v{T+p}
        v_mul_u32_u24 v{T+p}, 0xccd, v{T+p}
        v_lshrrev_b32 v{T+p}, 16, v{T+p}
        v_add_u32 v{T+5+p}, {16*p}, v{vN}
        v_mul_u32_u24 v{T+5+p}, 0xccd, v{T+5+p}
        v_lshrrev_b32 v{T+5+p}, 16, v{T+5+p}""")
    a('s_waitcnt lgkmcnt(0)')
    for n_, (p, q) in enumerate(PAIRS):
        d = ACC+2*n_
        a(f"""v_cmp_eq_u32 vcc, v{T+p}, v{T+5+q}
        s_nop 1
        v_cndmask_b32 v{KA+2*n_}, 0, v{d}, vcc
        v_cndmask_b32 v{KA+2*n_+1}, 0, v{d+1}, vcc
        v_cndmask_b32 v{ZA+2*n_}, 0, v{zt(p)}, vcc
        v_cndmask_b32 v{ZA+2*n_+1}, 0, v{zt(p)+1}, vcc""")
    a(f's_mov_b32 s{sT3}, {fbits(1e-6)}\ns_waitcnt vmcnt(0)')
    for i in range(4):
        for q in range(5):
            for xt in range(2):
                for base, A in ((16, KA), (56, ZA)):
                    d = vr(base+8*q+4*xt); first = True
                    for n_, (p, q2) in enumerate(PAIRS):
                        if q2 != q: continue
                        a(f'v_mfma_f32_16x16x16_bf16 {d}, {vr(A+2*n_,2)}, {vr(PQ+20*i+4*p+2*xt,2)}, {"0" if first else d}')
                        first = False
        a(f"""s_add_u32 s{sT0}, s{sO}, {O_OFF + i*40960}
        v_accvgpr_read_b32 v176, a{2*i}
        v_accvgpr_read_b32 v177, a{2*i+1}""")
        a.nop(5)
        for j in range(10): a(f'v_add_f32 v{56+4*j}, s{sT3}, v{56+4*j}')
        for j in range(10): a(f'v_rcp_f32 v{56+4*j}, v{56+4*j}')
        for j in range(10): a(f'v_mul_f32 v{56+4*j}, v{56+4*j}, v{176+(j & 1)}')
        for q in range(5):
            o = T + 4*(q & 1)
            for xt in range(2):
                nb, db = 16+8*q+4*xt, 56+8*q+4*xt
                a(f"""v_pk_mul_f32 v[{nb}:{nb+1}], v[{nb}:{nb+1}], v[{db}:{db+1}] op_sel_hi:[1,0]
                v_pk_mul_f32 v[{nb+2}:{nb+3}], v[{nb+2}:{nb+3}], v[{db}:{db+1}] op_sel_hi:[1,0]
                v_cvt_pk_bf16_f32 v{o+2*xt}, v{nb}, v{nb+1}
                v_cvt_pk_bf16_f32 v{o+2*xt+1}, v{nb+2}, v{nb+3}""")
            a(W('store_dwordx4', vr(o), vL16 if q < 4 else 11, f's{sT0}', 1024*(q & 3), 'sc1'))
    a('s_barrier')
    dmark(a, 4)

def q_role(a, P):
    a('L_q:')
    w_head(a, P_WQ)
    KS, KF, KM, QF, D, GT, PR = 96, 108, 124, 132, 148, 168, 170
    vXr, vMr, vPo, vGa, NEG = 171, 172, 173, 13, 174
    SB = 3*XBUF
    a(f"""s_mov_b32 s{sC2}, {P['cexp']}
    s_mov_b32 s{sC2+1}, {P['cexp']}
    s_mov_b32 s{sKn}, {P['r_known']}
    v_lshrrev_b32 v12, 2, v{vLn}
    v_and_b32 v16, 1, v{vLn}
    v_lshl_add_u32 v12, v12, 1, v16
    v_lshlrev_b32 v205, 4, v12
    v_lshlrev_b32 v12, 3, v12
    s_lshl_b32 s{sT0}, s{S_WAVE}, 12
    s_add_u32 s{sT0}, s{sT0}, {SB}
    v_add_u32 v14, s{sT0}, v{vL16}
    s_lshl_b32 s{sT0}, s{S_WAVE}, 2
    v_and_b32 v16, 3, v{vN}
    v_add_u32 v16, s{sT0}, v16               ; row
    v_bfe_u32 v17, v{vN}, 2, 1               ; xq
    v_lshrrev_b32 v18, 3, v{vN}              ; half
    v_lshl_add_u32 v19, v{vG}, 4, v16
    v_lshlrev_b32 v19, 4, v19
    v_add_u32 v20, v17, v18
    v_lshl_add_u32 v{vXr}, v20, 10, v19
    v_add_u32 v{vXr}, {SB}, v{vXr}
    v_lshl_add_u32 v20, v17, 1, v18
    v_lshl_add_u32 v{vMr}, v20, 2, v19
    v_add_u32 v{vMr}, {SB+3072}, v{vMr}
    v_lshl_add_u32 v{vPo}, v17, 10, v19
    v_lshl_add_u32 v{vPo}, v18, 3, v{vPo}
    v_lshl_add_u32 v16, v17, 4, v16          ; query 0..31
    v_lshlrev_b32 v{vGa}, 2, v16
    s_lshl_b32 s{sT1}, s{S_X}, 13
    v_add_u32 v{vGa}, s{sT1}, v{vGa}
    v_lshlrev_b32 v20, 2, v{vG}
    v_lshl_add_u32 v20, v18, 4, v20
    v_mov_b32 v{NEG}, {fbits(-1e9*math.log2(math.e))}
    v_min_u32 v15, 1, v{vLn}
    v_mul_u32_u24 v15, 0xf00000, v15
    v_lshlrev_b32 v15, 8, v15
    v_add_u32 v15, s{sT0}, v15""")
    for i in range(4):
        a(f'v_add_u32 v11, {i}, v20\nv_cmp_le_u32 s[{sMask+2*i}:{sMask+2*i+1}], v11, v16')
    for r in (KF+6, KF+7, KF+14, KF+15, KM+6, KM+7, QF+6, QF+7, QF+14, QF+15): a(f'v_mov_b32 v{r}, 0')
    dmark(a, 5)
    a(f"""L_q_again:
    s_mul_i32 s{sXo}, s{S_STEP}, {XBUF}
    s_mul_i32 s{sXs}, s{sStr}, {XBUF}""")
    x_setup(a)
    late = [W('load_dwordx4', vr(KS+4*i), vL16, f's{sK}', 1024*i, 'sc1') for i in range(3)]
    late += [W('load_dwordx4', vr(KM), 205, f's{sKm}', 0, 'sc1'), W('load_dwordx2', vr(KM+4, 2), 12, f's{sKm}', 512, 'sc1')]
    if EXP.get('qnoload'): late = []
    shuf = [f'v_mov_b32 v{KF+8*xt+2*i+r}, v{KS+4*i+2*xt+r}' for i in range(3) for xt in range(2) for r in range(2)]
    def early():
        l = a.lab('qe')
        L = [f's_lshl_b32 s{sP}, s{S_STEP}, 5', f's_add_u32 s{sP}, s{sP}, s{sH}', f's_lshl_b32 s{sK}, s{sP}, 2', f's_add_u32 s{sK}, s{sK}, s{S_WAVE}',
             f's_mul_i32 s{sKm}, s{sK}, 768', f's_lshl_b32 s{sK}, s{sKm}, 2', f's_add_u32 s{sK}, s{sK}, {K_OFF}', f's_add_u32 s{sKm}, s{sKm}, {KM_OFF}',
             f's_lshl_b32 s{sP}, s{sP}, 11', f's_add_u32 s{sP}, s{sP}, {PX_OFF}', f's_lshl_b32 s{sGt}, s{S_STEP}, 7', f's_add_u32 s{sGt}, s{sGt}, {GT_OFF}']
        L += [f's_cmp_gt_u32 s{sKn}, s{S_STEP}\ns_cselect_b32 s{sHave}, 1, 0\ns_cbranch_scc0 {l}\n' + '\n'.join(late) + f'\n{l}:']
        L += [W('load_dword', f'v{GT}', vGa, f's{sGt}', 0, 'sc1')]
        L += P['q_refresh'](PR)
        return L
    R = 176; X = R; MV = R+16; T = R+20; G2 = 204
    dpp = 'row_ror:8 row_mask:0xf bank_mask:0xf'
    def soft():
        L = [f'ds_write_b128 v14, {vr(D)}', f'v_mov_b32 v{D+14}, v{D+16}', f'ds_write_b128 v14, {vr(D+4)} offset:1024', f'v_mov_b32 v{D+15}, v{D+17}',
             f'ds_write_b128 v14, {vr(D+8)} offset:2048', f'ds_write_b128 v14, {vr(D+12)} offset:3072',
             'G|6', 's_waitcnt lgkmcnt(0)\ns_barrier']
        L += [f'ds_read_b128 {vr(R+4*w)}, v{vXr} offset:{4096*w}' for w in range(4)]
        L += [f'ds_read_b32 v{MV+w}, v{vMr} offset:{4096*w}' for w in range(4)]
        L += ['G|6', 's_waitcnt lgkmcnt(0)']
        for d, o in ((X, 4), (X+8, 4), (X, 8)):
            L += [f'v_add_f32 v{d+i}, v{d+i}, v{d+o+i}' for i in range(4)]
        L += [f'v_add_f32 v{MV}, v{MV}, v{MV+1}', f'v_add_f32 v{MV+2}, v{MV+2}, v{MV+3}', f'v_add_f32 v{MV}, v{MV}, v{MV+2}']
        L += [f'v_cndmask_b32 v{X+i}, v{NEG}, v{X+i}, s[{sMask+2*i}:{sMask+2*i+1}]' for i in range(4)]
        L += [f'v_max3_f32 v{T}, v{X}, v{X+1}, v{X+2}', f'v_max3_f32 v{T}, v{T}, v{X+3}, v{MV}']
        red = lambda op: [f'W2|{op}_dpp v{T+1}, v{T}, v{T} {dpp}', f'{op}_dpp v{T+2}, v{T}, v{T} {dpp}',
                          f'W2|v_permlane16_swap_b32 v{T+1}, v{T+2}', f'{op} v{T}, v{T+1}, v{T+2}', f'{op} v{T+1}, v{T+1}, v{T+2}',
                          f'W2|v_permlane32_swap_b32 v{T}, v{T+1}', f'{op} v{T}, v{T}, v{T+1}']
        L += red('v_max_f32')
        L += [f'v_sub_f32 v{r}, v{r}, v{T}' for r in (X, X+1, X+2, X+3, MV)]
        L += [f'v_exp_f32 v{r}, v{r}' for r in (X, X+1, X+2, X+3, MV)]
        L += [f'v_add_f32 v{T}, v{X}, v{X+1}', f'v_add_f32 v{T+1}, v{X+2}, v{X+3}', f'v_add_f32 v{T}, v{T}, v{MV}', f'v_add_f32 v{T}, v{T}, v{T+1}']
        L += red('v_add_f32')
        L += [f'v_rcp_f32 v{T}, v{T}', f'W1|v_mul_f32 v{T}, v{T}, v{G2}']
        L += [f'v_mul_f32 v{r}, v{r}, v{T}' for r in (MV, X, X+1, X+2, X+3)]
        L += [f'v_mov_b32_dpp v{MV+1}, v{MV} {dpp}', f'v_cvt_pk_bf16_f32 v{MV}, v{MV+1}, v{MV}',
              f'v_cvt_pk_bf16_f32 v{X+4}, v{X}, v{X+1}', f'v_cvt_pk_bf16_f32 v{X+5}, v{X+2}, v{X+3}',
              f'v_mov_b32_dpp v{X+4}, v{MV} quad_perm:[0,1,2,3] row_mask:0xf bank_mask:0x4',
              f'v_mov_b32_dpp v{X+5}, v{MV} row_shl:4 row_mask:0xf bank_mask:0x4',
              W('store_dwordx2', vr(X+4, 2), vPo, f's{sPp}', 0, 'sc1')]
        return L
    def pub():
        return [f's_add_u32 s{sT1}, s{sDone}, s{sFb}', f'v_mov_b32 v175, s{sT1}', W('store_dword', 'v175', 15, f's{sFl}', 0, 'sc1')]
    def post(a, acc):
        dtrace(a, 0)
        a(f's_mov_b32 s{sDone}, s{sD1}\ns_add_u32 s{sD1}, s{S_STEP}, 1\ns_mov_b32 s{sPp}, s{sP}\nv_sub_f32 v{G2}, 1.0, v{GT}')
        l = a.lab('qh')
        a(f's_cmp_lg_u32 s{sHave}, 0\ns_cbranch_scc1 {l}')
        P['q_wait'](a, PR, pub())
        dtrace(a, 1)
        for s in late: a(s)
        a(f'{l}:\ns_nop 1')
        for t in range(3):
            for xq in range(2):
                b = acc + 4*(2*t+xq)
                a(f"""v_pk_mul_f32 v[{b}:{b+1}], v[{b}:{b+1}], s[{sC2}:{sC2+1}]
                v_pk_mul_f32 v[{b+2}:{b+3}], v[{b+2}:{b+3}], s[{sC2}:{sC2+1}]
                v_cvt_pk_bf16_f32 v{QF+8*xq+2*t}, v{b}, v{b+1}
                v_cvt_pk_bf16_f32 v{QF+8*xq+2*t+1}, v{b+2}, v{b+3}""")
        a(f's_cmp_lg_u32 s{sHave}, 0\ns_cbranch_scc1 {l}_b\ns_waitcnt vmcnt(0)')
        for s in shuf: a(s)
        a(f's_nop 1\n{l}_b:')
        up = P['q_update'](PR)
        for d, A, B in [(D, KF, QF), (D+4, KF, QF+8), (D+8, KF+8, QF+8), (D+12, KM, QF), (D+16, KM, QF+8)]:
            a(f'v_mfma_f32_16x16x32_bf16 {vr(d)}, {vr(A)}, {vr(B)}, 0')
            if up: a(up.pop(0))
            a(f'v_mfma_f32_16x16x32_bf16 {vr(d)}, {vr(A+4)}, {vr(B+4)}, {vr(d)}')
            if up: a(up.pop(0))
    a(f's_mov_b32 s{sPp}, {OOB}\ns_mov_b32 s{sD1}, s{sDone}')
    gemm_loop(a, 'q', 3, 'T', None, post=post, early=early, late_fill=lambda: list(shuf) + pub(), strided=True, defer=soft, relaxed=True, drain=False)
    a.nop(8)
    for s in soft(): serial(a, s)
    a(f's_mov_b32 s{sDone}, s{sD1}\ns_waitcnt vmcnt(0)')
    for s in pub(): a(s)
    a(f's_sub_u32 s{S_STEP}, s{S_STEP}, s{sStr}')
    dtrace(a, 2)
    a('s_barrier')

def final_role(a, P):
    a('L_final:')
    a(f"""s_mul_i32 s{S_STEP}, s{sWk}, 0x199a
    s_lshr_b32 s{S_STEP}, s{S_STEP}, 16
    s_mul_i32 s{sCb}, s{S_STEP}, 10
    s_sub_u32 s{sCb}, s{sWk}, s{sCb}
    s_cmp_ge_u32 s{S_STEP}, 3
    s_cselect_b32 s{sT0}, {P['fhead']}, 0
    s_add_u32 s{S_STEP}, s{S_STEP}, s{sT0}
    s_mov_b32 s{sStr}, 6
    s_mov_b32 s{sXs}, {12*P['frec']}
    s_branch L_final_go
    L_final_rec:
    s_mul_i32 s{S_STEP}, s{sWk}, 0x199a
    s_lshr_b32 s{S_STEP}, s{S_STEP}, 16
    s_mul_i32 s{sCb}, s{S_STEP}, 10
    s_sub_u32 s{sCb}, s{sWk}, s{sCb}
    s_add_u32 s{S_STEP}, s{S_STEP}, {P['fskip']}
    s_mov_b32 s{sStr}, 12
    s_mov_b32 s{sXs}, 0
    L_final_go:""")
    srd(a, SRD_A, P_WOA, 640*640*2)
    a(f"""s_mul_i32 s{sCol}, s{S_WAVE}, {160*1280}
    s_lshl_b32 s{sT0}, s{sCb}, 7
    s_add_u32 s{sCol}, s{sCol}, s{sT0}""")
    load_w(a, 1280, 1, 160, 1, 1, 'B', 4, '0', lambda t, k, v: ar((k*4+t)*4+2*v, 2), private=True)
    srd(a, SRD_B, P_OUT, 2048*1280)
    q_flags(a)
    ACC, PF, PM, OF = 16, 48, 112, 128
    YA, UA = 80, 208
    TS = 1056
    WSZ = 8*TS
    a(f"""v_add_u32 v13, 4096, v{vL16}
    s_mul_i32 s{sT0}, s{S_WAVE}, {WSZ}
    v_add_u32 v14, s{sT0}, v{vL16}
    v_lshrrev_b32 v10, 3, v{vLn}
    s_lshl_b32 s{sT0}, s{S_WAVE}, 3
    v_add_u32 v10, s{sT0}, v10              ; token 0..31
    v_and_b32 v11, 7, v{vLn}
    v_mul_u32_u24 v{vXs}, 1280, v10
    v_lshl_add_u32 v{vXs}, v11, 4, v{vXs}
    v_lshrrev_b32 v15, 4, v10
    v_and_b32 v12, 6, v11
    v_add_u32 v15, v12, v15
    v_mul_u32_u24 v15, {TS}, v15
    v_and_b32 v10, 15, v10
    v_lshl_add_u32 v15, v10, 4, v15
    v_and_b32 v11, 1, v11
    v_lshl_add_u32 v15, v11, 9, v15
    s_mov_b32 s{sMask}, 0
    s_mov_b32 s{sMask+1}, -1
    s_barrier""")
    if 'final_pre' in P: P['final_pre'](a)
    FQ = 208
    def addr(step):
        return f"""s_lshl_b32 s{sT0}, {step}, 5
        s_lshl_b32 s{sT1}, s{S_WAVE}, 3
        s_add_u32 s{sT0}, s{sT0}, s{sT1}
        s_lshl_b32 s{sT2}, s{sCb}, 12
        s_mul_i32 s{sY}, s{sT0}, 40960
        s_add_u32 s{sY}, s{sY}, s{sT2}
        s_add_u32 s{sY}, s{sY}, {Y_OFF}
        s_mul_i32 s{sO}, s{sT0}, 1280
        s_add_u32 s{sO}, s{sO}, {O_OFF}
        s_lshl_b32 s{sP}, s{sT0}, 11
        s_add_u32 s{sP}, s{sP}, {PX_OFF}
        s_mul_i32 s{sU}, s{sT0}, 10240
        s_add_u32 s{sU}, s{sU}, s{sT2}
        s_add_u32 s{sU}, s{sU}, {U_OFF}"""
    def oload(k):
        return [(f's_add_u32 s{sT0}, s{sO}, {2048*k}\n' if i == 0 else '') + W('load_dwordx4', vr(OF+8*k+4*i), vL16, f's{sT0}', 1024*i, 'sc1') for i in range(2)]
    def yload(h):
        return [(f's_add_u32 s{sT0}, s{sY}, {40960*h}\n' if t == 0 else '') + W('load_dwordx4', ar(YA+16*h+4*t), vYp, f's{sT0}', 1024*t, 'sc1') for t in range(4)]
    def pload(h):
        return [(f's_add_u32 s{sT0}, s{sP}, {2048*h}\n' if i == 0 else '') + W('load_dwordx4', vr(PF+8*h+4*i), vL16, f's{sT0}', 1024*i, 'sc1') for i in range(2)]
    def uload(u):
        return [(f's_add_u32 s{sT0}, s{sU}, {40960*u}\n' if t == 0 else '') + W('load_dwordx4', ar(UA+16*u+4*t), vYp, f's{sT0}', 1024*t, 'sc1') for t in range(4)]
    def nxt():
        a(f"""s_mul_i32 s{sOut}, s{S_STEP}, 40960
        s_lshl_b32 s{sT2}, s{sCb}, 7
        s_add_u32 s{sOut}, s{sOut}, s{sT2}
        s_cmp_lt_u32 s{S_STEP}, {P['fhead']}
        s_cselect_b32 s{sT0}, 3, s{sStr}
        s_add_u32 s{S_STEP}, s{S_STEP}, s{sT0}
        s_sub_u32 s{sT0}, s{S_STEP}, {P['fskip']}
        s_cmp_lt_u32 s{sT0}, {12*P['frec']}
        s_cselect_b32 s{sT0}, s{sXs}, 0
        s_cselect_b32 s{sT1}, 6, s{sStr}
        s_add_u32 s{S_STEP}, s{S_STEP}, s{sT0}
        s_cmp_eq_u32 s{sT1}, 12
        s_cselect_b32 s{S_STEP}, 64, s{S_STEP}""")
    class VQ:
        def __init__(self, q): self.q = list(q)
        def put(self, tag, x):
            if len(self.q) >= 62:
                a('s_waitcnt vmcnt(56)'); self.q = self.q[-56:]
            self.q.append(tag); a(x)
        def wait(self, tag):
            if tag in self.q:
                n = len(self.q) - 1 - max(i for i, x in enumerate(self.q) if x == tag)
                a(f's_waitcnt vmcnt({n})'); self.q = self.q[len(self.q)-n:]
    def apart(Q, pf):
        for k in range(5):
            Q.wait(('o', k))
            a(f'v_swap_b32 v{OF+8*k+2}, v{OF+8*k+4}\nv_swap_b32 v{OF+8*k+3}, v{OF+8*k+5}\ns_nop 1')
            for t in range(4):
                for xq in range(2):
                    d = vr(ACC+8*t+4*xq)
                    a(f'v_mfma_f32_16x16x32_bf16 {d}, {ar((k*4+t)*4)}, {vr(OF+8*k+4*xq)}, {"0" if k == 0 else d}')
            if pf:
                for x in oload(k): Q.put(('O', k), x)
    def bpart(Q, pf):
        for h in range(8):
            Q.wait(('p', h)); Q.wait(('y', h))
            for xq in range(2):
                a(f'v_mov_b32 v{PM+8*(h>>2)+4*xq+(h&3)}, v{PF+8*h+2+xq}')
            a(f'v_mov_b32 v{PF+8*h+2}, 0\nv_mov_b32 v{PF+8*h+3}, 0')
            yl = yload(h)
            for xq in (1, 0):
                for t in range(4):
                    d = vr(ACC+8*t+4*xq)
                    a(f'v_mfma_f32_16x16x32_bf16 {d}, {ar(YA+16*h+4*t)}, {vr(PF+8*h+4*xq)}, {d}')
                    if pf and xq == 0: Q.put(('Y', h), yl[t])
            if pf:
                for x in pload(h): Q.put(('P', h), x)
        for u in range(2):
            Q.wait(('u', u))
            ul = uload(u)
            for t in range(4):
                for xq in range(2):
                    d = vr(ACC+8*t+4*xq)
                    a(f'v_mfma_f32_16x16x32_bf16 {d}, {ar(UA+16*u+4*t)}, {vr(PM+8*u+4*xq)}, {d}')
                if pf: Q.put(('U', u), ul[t])
    def finish(Q):
        a('s_nop 0')
        for i in range(8): a(f'ds_write_b128 v14, {vr(ACC+4*i)} offset:{TS*i}')
        a('s_waitcnt lgkmcnt(0)\ns_barrier')
        for w in range(4):
            for g in range(2): a(f'ds_read_b128 {vr(ACC+8*w+4*g)}, v15 offset:{WSZ*w+256*g}')
        a('s_waitcnt lgkmcnt(0)\ns_barrier')
        for w in (1, 3):
            for i in range(4):
                d = ACC+8*(w-1)+2*i
                a(f'v_pk_add_f32 v[{d}:{d+1}], v[{d}:{d+1}], v[{d+8}:{d+9}]')
        for i in range(4):
            d = ACC+2*i
            a(f'v_pk_add_f32 v[{d}:{d+1}], v[{d}:{d+1}], v[{d+16}:{d+17}]\nv_cvt_pk_bf16_f32 v{200+i}, v{d}, v{d+1}')
        Q.put('st', f'buffer_store_dwordx4 v[200:203], v{vXs}, s[{SRD_B}:{SRD_B+3}], s{sOut} offen')
    lower = lambda q: [(x[0].lower(), x[1]) if isinstance(x, tuple) else x for x in q]
    a('L_final_fetch:')
    dtrace(a, 0)
    P['final_waity'](a)
    a(addr(f's{S_STEP}'))
    Q = VQ([])
    for k in range(5):
        for x in oload(k): Q.put(('o', k), x)
    for h in range(8):
        for x in yload(h): Q.put(('y', h), x)
    apart(Q, False)
    P['final_wait'](a, FQ)
    dtrace(a, 1)
    Q = VQ([])
    for h in range(8):
        for x in pload(h): Q.put(('p', h), x)
    for u in range(2):
        for x in uload(u): Q.put(('u', u), x)
    nxt()
    P['final_ready'](a, FQ)
    a('s_cbranch_scc1 L_final_warm')
    Q0 = list(Q.q)
    bpart(Q, False)
    finish(Q)
    a(f"""L_final_next:
    s_cmp_lt_u32 s{S_STEP}, 64
    s_cbranch_scc1 L_final_fetch
    s_branch L_exit""")
    a('L_final_warm:')
    a(addr(f's{S_STEP}'))
    Q = VQ(Q0)
    for x in P['final_refresh'](FQ): Q.put('F', x)
    for k in range(5):
        for x in oload(k): Q.put(('O', k), x)
    bpart(Q, True)
    finish(Q)
    full = ['f']*len(P['final_refresh'](FQ)) + [('o', k) for k in range(5) for _ in range(2)]
    for h in range(8): full += [('y', h)]*4 + [('p', h)]*2
    full += [('u', u) for u in range(2) for _ in range(4)] + ['st']
    a('.p2align 6\nL_final_loop:')
    dtrace(a, 3)
    a(f's_waitcnt vmcnt({min(60, len(full))})')
    full = full[-60:]
    nxt()
    P['final_ready'](a, FQ)
    a('s_cbranch_scc0 L_final_last')
    a(addr(f's{S_STEP}'))
    Q = VQ(full)
    for x in P['final_refresh'](FQ): Q.put('F', x)
    apart(Q, True); bpart(Q, True); finish(Q)
    a('s_branch L_final_loop\nL_final_last:')
    Q = VQ(full)
    apart(Q, False); bpart(Q, False); finish(Q)
    a('s_branch L_final_next')
```

```python
from asmb import *
from lay import *
S_WAVE, S_X, S_J, S_STEP, S_TO = 3, 4, 5, 6, 7
P_X, P_WQKV, P_WOA, P_MEM0, P_WQ, P_WK, P_WV, P_WO, P_GATE, P_OUT, P_DBG, P_WS = 8, 10, 12, 16, 18, 20, 22, 24, 28, 30, 32, 34
SRD_W = 36
SRD_A = 40
SRD_B = 44
SRD_D = 48
TO_LIMIT = 400000
sMr, sMw, sMp, sSw, sSr, sG, sGL, sGp, sGLp, sY, sK, sU, sKm = range(52, 65)
sTag, sTag3, sC, sT0, sT1, sT2, sPar = range(65, 72)
sSelT1, sSelT2, sSelU1, sSelU2 = range(72, 76)
sHalf = 76
sEx   = 78
sExLo = 80
sH, sCg, sHs, sCs = 82, 83, 84, 85
sGb, sMb = 86, 87
sKnY, sKnK, sFy, sFk, sFl = 90, 91, 92, 93, 94
vFk, vFd, vFa, vFp, vKc, vKd = 101, 102, 103, 184, 185, 186
sExK = 34
sSelT3 = 89
sC2 = 88
MB, QB, KB, DB, RB, UB = 0, 10240, 11264, 13312, 25600, 26112
FM, FQ, FK, FD, YB = 29184, 30208, 31232, 32256, 33280
vL16, vIdx, vQw, vY = 0, 1, 2, 3
vKw, vD2 = 4, 5
vDr, vGst = 6, 7
vG0, vG1 = 6, 7
vUP = 8
vAq, vAk = 16, 20
vUa = 24
SETA, SETB = [16, 20, 36, 40], [80, 84, 88, 92]
vYt = 44
vMF = 56
vWq, vWk = 96, 176
aSel = 240
aU = 244
vMst, vDq = 8, 12
vQr, vKr, vPG, vPM, vL8 = 96, 97, 98, 99, 100
vNeg = 104
vKF = 108
vKS = 124
vQf, vKf = 136, 144
vD0, vD1, vDm, vPk = 152, 156, 160, 164
vPU, vPK = 168, 180
OWN = [[0,1,2],[3,4,5],[6,7,8],[9]]

def srd(a, base, ptr, nbytes):
    a(f"""s_mov_b32 s{base}, s{ptr}
    s_and_b32 s{base+1}, s{ptr+1}, 0xffff
    s_mov_b32 s{base+2}, {nbytes}
    s_mov_b32 s{base+3}, 0x20000""")

def W(op, data, va, so, off=0, fl=''):
    return f'buffer_{op} {data}, v{va}, s[{SRD_W}:{SRD_W+3}], {so} offen offset:{off} {fl}'.rstrip()

def retry(a, tail, lab_retry, lab_back):
    tail(f"""{lab_retry}:
    s_add_u32 s{S_TO}, s{S_TO}, 1
    s_cmp_gt_u32 s{S_TO}, {TO_LIMIT}
    s_cbranch_scc1 L_exit
    s_branch {lab_back}""")

def build_sel(a, dst, vn, vg, goff, tmp):
    a(f"""v_and_b32 v{tmp}, 1, v{vn}
    v_lshlrev_b32 v{tmp}, 4, v{tmp}
    v_mov_b32 v{tmp+1}, 0x3f80
    v_lshlrev_b32 v{tmp}, v{tmp}, v{tmp+1}
    v_lshrrev_b32 v{tmp+1}, 1, v{vn}
    v_add_u32 v{tmp+1}, {4*goff}, v{tmp+1}
    v_lshlrev_b32 v{tmp+2}, 2, v{vg}
    v_sub_u32 v{tmp+1}, v{tmp+1}, v{tmp+2}""")
    for r in range(4):
        a(f"""v_cmp_eq_u32 vcc, {r}, v{tmp+1}
        s_nop 1
        v_cndmask_b32 v{dst+r}, 0, v{tmp}, vcc""")

def phys(a, v, tmp):
    a(f"""v_lshrrev_b32 v{tmp}, 13, v{v}
    v_lshl_add_u32 v{v}, v{tmp}, 13, v{v}""")

def dma(srdb, va, so, fl=''):
    return f'buffer_load_dwordx4 v{va}, s[{srdb}:{srdb+3}], {so} offen {fl} lds'

def rec_prologue(a, P):
    n, g, ln = 60, 61, 62
    a(f"""v_and_b32 v{ln}, 63, v0
    v_and_b32 v{n}, 15, v{ln}
    v_lshrrev_b32 v{g}, 4, v{ln}
    v_lshlrev_b32 v{vL16}, 4, v{ln}
    s_and_b32 s{sT0}, s{S_J}, 1
    s_lshl_b32 s{sT0}, s{sT0}, 2
    s_add_u32 s{sT0}, s{sT0}, s{S_WAVE}
    s_lshl_b32 s{sH}, s{S_X}, 3
    s_add_u32 s{sH}, s{sH}, s{sT0}
    s_lshr_b32 s{sCg}, s{S_J}, 1
    s_lshr_b32 s{sHs}, s{S_J}, 2
    s_and_b32 s{sCs}, s{S_J}, 3
    s_lshl_b32 s{sT1}, s{S_X}, 3
    s_add_u32 s{sHs}, s{sHs}, s{sT1}
    s_lshl_b32 s{sT1}, s{S_X}, 5
    s_add_u32 s{sT1}, s{sT1}, s{S_J}
    s_mul_i32 s{sGb}, s{sT1}, 768
    s_lshl_b32 s{sSw}, s{sT1}, 10
    s_add_u32 s{sSw}, s{sSw}, {S_OFF}
    s_lshl_b32 s{sSr}, s{sH}, 12
    s_add_u32 s{sSr}, s{sSr}, {S_OFF}
    s_mov_b32 s{sSelT1}, 0x0c0c0400
    s_mov_b32 s{sSelT2}, 0x0c040100
    s_mov_b32 s{sSelT3}, 0x04020100
    s_mov_b32 s{sSelU1}, 0x0c04000c
    s_mov_b32 s{sSelU2}, 0x0402010c
    s_mov_b32 s{sC2}, {P['cexp']}
    s_mov_b32 s{sHalf}, 0xff00ff00
    s_mov_b32 s{sHalf+1}, 0xff00ff00
    s_mov_b32 s{sExK}, 0x33333333
    s_mov_b32 s{sExK+1}, 0x33333333
    s_mov_b32 s{sExLo}, 0x00ff00ff
    s_mov_b32 s{sExLo+1}, 0x00ff00ff
    s_mul_i32 s{sMb}, s{S_X}, 10240
    s_add_u32 s{sMb}, s{sMb}, {M_OFF}""")
    ps = P.get('pstamp', lambda i: '')
    a(ps(0))
    NB = 4; WB = NB*6144; IMG = 4*WB
    frag = [8+4*i for i in range(12)] + [64+4*i for i in range(6)]
    F = lambda tc, kap: frag[tc*6+kap]
    srd(a, SRD_A, P_WO, 32*192*640*2)
    srd(a, SRD_B, P_WV, 640*6144*2)
    a(f"""v_mul_u32_u24 v56, 0x3334, v{ln}
    v_lshrrev_b32 v56, 16, v56              ; lane/5
    v_mul_u32_u24 v57, 5, v56
    v_sub_u32 v57, v{ln}, v57
    v_mul_u32_u24 v56, 1280, v56
    v_lshl_add_u32 v56, v57, 4, v56
    s_mul_i32 s{sT0}, s{sH}, {192*1280}
    s_mul_i32 s{sT1}, s{sCg}, 80
    s_add_u32 s{sT0}, s{sT0}, s{sT1}
    s_mul_i32 s{sMr}, s{S_WAVE}, 15360
    s_add_u32 s{sMr}, s{sMr}, {IMG}
    s_mul_i32 s{sT2}, s{S_WAVE}, {WB}
    s_mov_b32 s{sEx}, -1
    s_mov_b32 s{sEx+1}, 0x0fffffff
    s_mov_b64 exec, s[{sEx}:{sEx+1}]""")
    for i in range(16):
        a(f"""s_add_u32 m0, s{sMr}, {960*i}
        s_add_u32 s{sT1}, s{sT0}, {12*i*1280}
        {dma(SRD_A, 56, f's{sT1}')}""")
    a('s_mov_b64 exec, -1')
    if P['touchv']:
        a(f"""s_lshl_b32 s{sT0}, s{S_J}, 2
        s_add_u32 s{sT0}, s{sT0}, s{S_WAVE}
        s_mul_i32 s{sT0}, s{sT0}, {5*12288}
        s_mul_i32 s{sT1}, s{S_X}, 3072
        s_add_u32 s{sT0}, s{sT0}, s{sT1}""")
        for i in range(2):
            a(f"""v_min_u32 v57, 59, v{ln}
            v_add_u32 v57, {60*i}, v57
            v_mul_u32_u24 v58, 0xaab, v57
            v_lshrrev_b32 v58, 16, v58
            v_mul_u32_u24 v59, 24, v58
            v_sub_u32 v57, v57, v59
            v_mul_u32_u24 v58, 12288, v58
            v_lshl_add_u32 v57, v57, 7, v58
            buffer_load_dword v255, v57, s[{SRD_B}:{SRD_B+3}], s{sT0} offen""")
    a(f"""v_mov_b32 v64, -1
    v_mov_b32 v65, -1
    v_mov_b32 v66, -1
    v_mov_b32 v67, -1
    v_min_u32 v68, 47, v{ln}
    v_lshlrev_b32 v68, 4, v68
    v_add_u32 v68, s{sGb}, v68""")
    phys(a, 68, 69)
    a(f"""s_mul_i32 s{sT0}, s{S_WAVE}, {G_SLOT}
    s_add_u32 s{sT0}, s{sT0}, {G_OFF}
    s_add_u32 s{sT1}, s{sT0}, 8192""")
    a(W('store_dwordx4', 'v[64:67]', 68, f's{sT0}', 0, 'sc1'))
    a(W('store_dwordx4', 'v[64:67]', 68, f's{sT1}', 0, 'sc1'))
    a(f"""v_min_u32 v69, 19, v{ln}
    v_lshlrev_b32 v69, 4, v69
    s_mul_i32 s{sT0}, s{S_WAVE}, {M_SLOT}
    s_add_u32 s{sT0}, s{sT0}, s{sMb}
    s_mul_i32 s{sT1}, s{S_J}, 320
    s_add_u32 s{sT0}, s{sT0}, s{sT1}""")
    a(W('store_dwordx4', 'v[64:67]', 69, f's{sT0}', 0))
    a(W('store_dwordx4', 'v[64:67]', vL16, f's{sSw}', 0))
    if P['live']:
        a(f"""s_lshl_b32 s{sFl}, s{S_X}, 5
        s_add_u32 s{sFl}, s{sFl}, s{S_J}
        s_lshl_b32 s{sFl}, s{sFl}, 7
        s_add_u32 s{sFl}, s{sFl}, {FL_OFF}
        s_lshl_b32 s{sFy}, s{sH}, 9
        s_add_u32 s{sFy}, s{sFy}, {FL_OFF + (128+2)*128}
        s_lshl_b32 s{sFk}, s{sHs}, 9
        s_add_u32 s{sFk}, s{sFk}, {FL_OFF + 128*128}
        v_mov_b32 v70, 0""")
        a(W('store_dword', 'v70', 70, f's{sFl}', 0, 'sc1'))
    a(f"""v_lshrrev_b32 v58, 3, v{ln}
    v_bfe_u32 v57, v58, 1, 1
    v_lshlrev_b32 v56, 3, v57
    v_bfe_u32 v57, v58, 2, 1
    v_lshl_add_u32 v56, v57, 2, v56
    v_and_b32 v57, 1, v58
    v_add_u32 v56, v56, v57
    v_mul_u32_u24 v56, 12288, v56
    v_lshrrev_b32 v58, 1, v58
    v_and_b32 v57, 7, v{ln}
    v_xor_b32 v57, v57, v58
    v_lshl_add_u32 v1, v57, 4, v56          ; rows 0..7
    v_xor_b32 v57, 4, v57
    v_lshl_add_u32 v2, v57, 4, v56
    v_add_u32 v2, {16*12288}, v2            ; rows 8..15
    s_mul_i32 s{sMw}, s{sH}, 384""")
    Q = []
    cfl = ('', 'sc1', 'nt')[P.get('cfl', 0)]
    def cload(tau):
        t, v = tau >> 2, tau & 3
        L = [(None, f's_add_u32 s{sT1}, s{sMw}, {(64*t+32*(v>>1)+2*(v&1))*12288}')]
        for k in range(6):
            L += [(None, f's_add_u32 m0, s{sT2}, {6144*(tau % NB)+1024*k-128*(k%3)}'),
                  (('c', tau), f'buffer_load_dwordx4 v{1 if k < 3 else 2}, s[{SRD_B}:{SRD_B+3}], s{sT1} offen offset:{128*(k%3)} {cfl} lds')]
        return L
    def put(it, pad=False):
        if it[0]:
            Q.append(it[0])
            if pad: a('s_nop 0')
        a(it[1])
    def younger(tag): return min(63, len(Q) - 1 - max(i for i, x in enumerate(Q) if x == tag))
    for tau in range(NB):
        for it in cload(tau): put(it, True)
    a(f"""v_lshrrev_b32 v56, 3, v{n}
    v_mul_u32_u24 v56, 3072, v56
    v_and_b32 v57, 7, v{n}
    v_lshl_add_u32 v56, v57, 7, v56
    v_add_u32 v56, s{sT2}, v56
    v_lshrrev_b32 v57, 1, v{n}
    v_xor_b32 v57, v57, v{g}
    v_lshl_add_u32 v3, v57, 4, v56
    v_xor_b32 v57, 4, v57
    v_lshl_add_u32 v4, v57, 4, v56""")
    for i in range(3):
        a(f"""v_add_u32 v57, {64*i}, v{ln}
        v_mul_u32_u24 v56, 0x2aab, v57
        v_lshrrev_b32 v56, 16, v56
        v_mul_u32_u24 v58, 6, v56
        v_sub_u32 v57, v57, v58
        v_mul_u32_u24 v56, 12288, v56
        v_lshl_add_u32 v{5+i}, v57, 4, v56""")
    a(f"""s_mul_i32 s{sMp}, s{sHs}, 384
    s_mul_i32 s{sT0}, s{sCs}, 96
    s_add_u32 s{sMp}, s{sMp}, s{sT0}
    s_mul_i32 s{sT0}, s{S_WAVE}, {160*12288}
    s_add_u32 s{sMp}, s{sMp}, s{sT0}""")
    def wload(tag, i):
        return [(None, f's_add_u32 m0, s{sMr}, {1024*i}'), (None, f's_add_u32 s{sT0}, s{sMp}, {32*(i//3)*12288}'),
                (tag, dma(SRD_A, 5 + i % 3, f's{sT0}', 'nt' if P['wnt'] else ''))] if not (P.get('nowk') and i > 0) else []
    a(f"""v_lshrrev_b32 v56, 2, v{n}
    v_lshl_add_u32 v56, v{g}, 3, v56
    v_mul_u32_u24 v56, 80, v56
    v_add_u32 v56, s{sMr}, v56
    v_and_b32 v57, 1, v{n}
    v_lshl_add_u32 v58, v57, 3, v56
    v_and_b32 v57, 3, v{n}
    v_lshl_add_u32 v56, v57, 3, v56
    s_waitcnt vmcnt({6*NB})""")
    a(ps(1))
    for kap in range(6):
        for v in range(2):
            for tc in range(3):
                a(f'ds_read_b64_tr_b16 {vr(F(tc,kap)+2*v,2)}, v{56 if tc < 2 else 58} offset:{(32*kap+4*v)*80+32*tc}')
        a('s_waitcnt lgkmcnt(6)')
    srd(a, SRD_A, P_WK, 640*6144*2)
    a(f"""v_lshrrev_b32 v88, 1, v{g}
    v_lshlrev_b32 v88, 4, v88
    v_and_b32 v57, 1, v{g}
    v_lshl_add_u32 v88, v57, 2, v88
    v_bfe_u32 v57, v{n}, 2, 1
    v_add_u32 v88, v88, v57
    v_lshrrev_b32 v57, 3, v{n}
    v_lshl_add_u32 v88, v57, 3, v88
    v_mul_u32_u24 v88, 96, v88
    v_and_b32 v57, 3, v{n}
    v_lshl_add_u32 v88, v57, 3, v88
    s_min_u32 s{sT0}, s{S_WAVE}, 2
    s_lshl_b32 s{sT0}, s{sT0}, 5
    s_add_u32 s{sT0}, s{sT0}, {IMG}
    v_add_u32 v88, s{sT0}, v88
    v_mov_b32 v89, {DBG_INIT}
    v_mov_b32 v90, 1
    s_waitcnt lgkmcnt(0)
    s_barrier
    s_and_b32 s{sG}, s{S_J}, 7
    s_cmp_eq_u32 s{S_WAVE}, 3
    s_cselect_b32 s{sG}, s{sG}, 99
    v_min_u32 v91, 1, v{ln}
    v_lshl_add_u32 v89, v91, 12, v89""")
    a(ps(2))
    def trd(base):
        return [f'ds_read_b64_tr_b16 {vr(base+2*i,2)}, v88 offset:{(64*(i>>2) + 32*((i&3) >> 1) + 2*(i & 1))*96}' for i in range(40)]
    AF = lambda tau, k: 96 + 24*(tau & 1) + 4*k
    AC = lambda tau, tc: 144 + 12*(tau & 1) + 4*tc
    rd = lambda tau, k: f'ds_read_b128 {vr(AF(tau,k))}, v{3 + (k & 1)} offset:{6144*(tau % NB) + 1024*(k >> 1)}'
    def cstore(tau):
        t, v = tau >> 2, tau & 3
        L = []
        for tc in range(3):
            d = (tc*10+t)*8 + 2*v; ac = AC(tau, tc)
            L += [f'v_cvt_pk_bf16_f32 v{168+2*tc}, v{ac}, v{ac+1}', f'v_cvt_pk_bf16_f32 v{169+2*tc}, v{ac+2}, v{ac+3}',
                  f'v_accvgpr_write_b32 a{d}, v{168+2*tc}', f'v_accvgpr_write_b32 a{d+1}, v{169+2*tc}']
        return L
    a(f"s_waitcnt vmcnt({younger(('c', 0))})")
    for k in range(6): a(rd(0, k))
    k0, kb, q0 = P['pk0'], P['pkb'], P['pkb']+3
    ktr = trd(vWk)
    for tau in range(40):
        a('s_waitcnt lgkmcnt(0)')
        if tau == kb:
            a(f"s_waitcnt vmcnt({younger('k')})\ns_barrier")
        if tau == q0:
            a('s_barrier')
            srd(a, SRD_A, P_WQ, 640*6144*2)
        first = cload(tau+NB) if tau+NB < 40 else []
        if tau < 16 and tau % 2 == 0:
            first += [(None, f's_cmp_eq_u32 s{sG}, {tau//2}\ns_cselect_b32 s{sT0}, 0, 0x1000'),
                      ('at', f'buffer_atomic_add v90, v89, s[{SRD_D}:{SRD_D+3}], s{sT0} offen sc1')]
        if k0 <= tau < k0+15: first += wload('k', tau-k0)
        if tau >= q0:
            for i in (2*(tau-q0), 2*(tau-q0)+1):
                if i < 15: first += wload('q', i)
        mm = []
        for k in range(6):
            for tc in range(3):
                d = vr(AC(tau, tc))
                mm.append(f'v_mfma_f32_16x16x32_bf16 {d}, {vr(AF(tau,k))}, {vr(F(tc,k))}, {"0" if k == 0 else d}')
        if P.get('nomm'): mm = ['s_nop 0']*18
        second = cstore(tau-1) if tau > 0 else []
        nk = 0
        for i, m in enumerate(mm):
            a(m)
            if i < 10:
                for _ in range(2):
                    if first:
                        it = first.pop(0); put(it)
                        if 'm0' in it[1] and first and first[0][0]: break
                if kb <= tau < q0 and i < 7:
                    for _ in range(2):
                        if ktr: a(ktr.pop(0)); nk += 1
                if i == 9:
                    while first: put(first.pop(0), True)
                    if tau < 39: a(f"s_waitcnt vmcnt({younger(('c', tau+1))})" + (' lgkmcnt(6)' if nk else ''))
            else:
                if tau < 39 and i-10 < 6: a(rd(tau+1, i-10))
            if i >= 8:
                for _ in range(1 if i < 16 else 2):
                    if second: a(second.pop(0))
        while second: a(second.pop(0))
    assert not ktr
    a(ps(3))
    a.nop(8)
    for s in cstore(39): a(s)
    a('s_waitcnt vmcnt(0)\ns_barrier')
    for i, s in enumerate(trd(vWq)):
        a(s)
        if i % 8 == 7: a('s_waitcnt lgkmcnt(6)')
    a('s_waitcnt lgkmcnt(0)')
    a(ps(4))
    lp = a.lab('wini')
    a(f"""v_mov_b32 v64, {DBG_INIT}
    v_mov_b32 v65, {DBG_PAR}
    {lp}:
    buffer_load_dword v66, v64, s[{SRD_D}:{SRD_D+3}], 0 offen sc1
    buffer_load_dwordx4 v[68:71], v65, s[{SRD_D}:{SRD_D+3}], 0 offen sc1
    s_add_u32 s{S_TO}, s{S_TO}, 1
    s_cmp_gt_u32 s{S_TO}, {TO_LIMIT}
    s_cbranch_scc1 L_exit
    s_waitcnt vmcnt(0)
    v_readfirstlane_b32 s{sT0}, v66
    v_readfirstlane_b32 s{sPar}, v68
    v_readfirstlane_b32 s{sT1}, v69
    v_readfirstlane_b32 s{sT2}, v70
    s_cmp_lt_u32 s{sT0}, {P['ninit']}
    s_cbranch_scc1 {lp}
    s_cmp_lt_u32 s{sPar}, 32
    s_cbranch_scc1 {lp}
    s_cmp_gt_u32 s{sT1}, s{sT2}
    s_cselect_b32 s{sPar}, 8192, 0
    s_barrier""")
    a(f"""v_mov_b32 v64, 0x4444
    v_mov_b32 v65, 0xeeee
    v_cndmask_b32 v{vIdx}, v64, v65, s[{sHalf}:{sHalf+1}]
    s_lshl_b32 s{sT0}, s{S_WAVE}, 4
    v_add_u32 v64, s{sT0}, v{n}
    v_lshlrev_b32 v64, 4, v64
    v_and_b32 v65, 1, v{g}
    v_lshl_add_u32 v64, v65, 3, v64
    v_lshrrev_b32 v65, 1, v{g}
    v_lshl_add_u32 v{vQw}, v65, 2, v64
    v_lshlrev_b32 v{vKw}, 1, v{vQw}
    v_lshrrev_b32 v64, 3, v{n}
    v_lshlrev_b32 v64, 9, v64
    v_lshl_add_u32 v64, v{g}, 7, v64
    v_and_b32 v65, 7, v{n}
    v_lshl_add_u32 v{vY}, v65, 4, v64""")
    for r in range(vUP, vUP+8): a(f'v_mov_b32 v{r}, 0')
    for r in range(aU, aU+12): a(f'v_accvgpr_write_b32 a{r}, 0')
    a(f"""v_and_b32 v64, 0x1ff, v{vY}
    v_lshrrev_b32 v65, 3, v{n}
    v_lshl_add_u32 v{vD2}, v65, 3, v64""")
    a(f"""s_mov_b32 s{S_STEP}, 0
    s_mul_i32 s{sY}, s{sH}, 40960
    s_mul_i32 s{sT0}, s{sCg}, 2560
    s_add_u32 s{sY}, s{sY}, s{sT0}
    s_add_u32 s{sY}, s{sY}, {Y_OFF}
    s_lshr_b32 s{sU}, s{sH}, 2
    s_mul_i32 s{sU}, s{sU}, 40960
    s_add_u32 s{sU}, s{sU}, s{sT0}
    s_add_u32 s{sU}, s{sU}, {U_OFF - 8*40960}
    s_mul_i32 s{sK}, s{sHs}, 12288
    s_mul_i32 s{sT0}, s{sCs}, 3072
    s_add_u32 s{sK}, s{sK}, s{sT0}
    s_add_u32 s{sK}, s{sK}, {K_OFF}
    s_mul_i32 s{sKm}, s{sHs}, 3072
    s_mul_i32 s{sT0}, s{sCs}, 768
    s_add_u32 s{sKm}, s{sKm}, s{sT0}
    s_add_u32 s{sKm}, s{sKm}, {KM_OFF - 32*3072}""")
    srd(a, SRD_A, P_MEM0, 8*640*2)
    a(f"""v_and_b32 v63, 7, v{n}
    v_mul_u32_u24 v63, 1280, v63
    v_lshl_add_u32 v63, v{g}, 5, v63
    v_lshrrev_b32 v64, 3, v{n}
    v_lshl_add_u32 v40, v64, 4, v63
    v_mov_b32 v41, v{n}
    v_mov_b32 v42, v{g}
    v_mov_b32 v43, v{ln}
    s_cmp_eq_u32 s{S_WAVE}, 0
    s_cbranch_scc1 L_rec_0
    s_cmp_eq_u32 s{S_WAVE}, 1
    s_cbranch_scc1 L_rec_1
    s_cmp_eq_u32 s{S_WAVE}, 2
    s_cbranch_scc1 L_rec_2
    s_branch L_rec_3""")

def step_scalars(w):
    L = [f's_and_b32 s{sT0}, s{S_STEP}, 3',
         f's_mul_i32 s{sMr}, s{sT0}, {M_SLOT}',
         f's_add_u32 s{sMr}, s{sMr}, s{sMb}',
         f's_add_u32 s{sMr}, s{sMr}, {OWN[w][0]*1024}',
         f's_mul_i32 s{sG}, s{sT0}, {G_SLOT}',
         f's_add_u32 s{sTag}, s{S_STEP}, 1',
         f's_mul_i32 s{sTag3}, s{sTag}, 0x01010101']
    if w >= 2:
        L += [f's_add_u32 s{sG}, s{sG}, s{sPar}',
              f's_xor_b32 s{sGL}, s{sG}, 8192']
    if w == 3:
        L += [f's_xor_b32 s{sT0}, s{sT0}, 2',
              f's_mul_i32 s{sGp}, s{sT0}, {G_SLOT}',
              f's_add_u32 s{sGp}, s{sGp}, s{sPar}',
              f's_xor_b32 s{sGLp}, s{sGp}, 8192',
              f's_add_u32 s{sT0}, s{S_STEP}, 3',
              f's_and_b32 s{sT0}, s{sT0}, 3',
              f's_mul_i32 s{sMp}, s{sT0}, {M_SLOT}',
              f's_add_u32 s{sMp}, s{sMp}, s{sMb}',
              f'v_mov_b32 v{vFd}, s{S_STEP}']
    return L

def known_upd():
    L = [f'v_readlane_b32 s{r}, v{vFk}, {i}' for i, r in enumerate((sKnK, sT0, sT1, sT2, sKnY))]
    return L + [f's_min_u32 s{sKnK}, s{sKnK}, s{sT0}', f's_min_u32 s{sT1}, s{sT1}, s{sT2}', f's_min_u32 s{sKnK}, s{sKnK}, s{sKnY}', f's_min_u32 s{sKnK}, s{sKnK}, s{sT1}']

def poll_known(o, lab, thr):
    o(f"""{lab}:
    s_add_u32 s{S_TO}, s{S_TO}, 1
    s_cmp_gt_u32 s{S_TO}, {TO_LIMIT}
    s_cbranch_scc1 L_exit
    {W('load_dword', f'v{vFk}', vFp, 0, 0, 'sc1')}
    s_waitcnt vmcnt(0)""")
    for x in known_upd(): o(x)
    o(f"""s_cmp_lt_u32 s{sKnK}, {thr}
    s_cbranch_scc1 {lab}""")

def kx_load():
    return [W('load_dwordx4', vr(vKS+4*i), vL16, f's{sK}', 1024*i, 'sc1') for i in range(3)] + [f's_add_u32 s{sK}, s{sK}, {32*12288}']
def kx_copy():
    return [f'v_mov_b32 v{vKF+8*xt+2*i+r}, v{vKS+4*i+2*xt+r}' for i in range(3) for xt in range(2) for r in range(2)]

def y_dma(w, tmp):
    d = lambda va, off: f'buffer_load_dwordx4 v{va}, s[{SRD_W}:{SRD_W+3}], s{sY} offen offset:{off} sc1 lds'
    return [f's_mov_b32 m0, {YB+3072*w}', f'v_and_b32 v{tmp}, 0x1ff, v{vL16}', d(vL16, 0), d(vL16, 1024), d(tmp, 2048), f's_add_u32 s{sY}, s{sY}, {32*40960}']
def y_read(w):
    return [f'ds_read_b128 {vr(vYt+4*t)}, v{vY} offset:{YB+3072*w+1024*t}' for t in range(3)]
def flag_w(base, w):
    return f'ds_write_b32 v{vL16}, v{vTag} offset:{base+4*w}'
def flag_r(dst, base):
    return f'ds_read_b128 {vr(dst)}, v{vZ} offset:{base}'
def flag_chk(dst, nf):
    L = [f'v_min3_u32 v{dst}, v{dst}, v{dst+1}, v{dst+2}']
    if nf == 4: L.append(f'v_min_u32 v{dst}, v{dst}, v{dst+3}')
    return L + [f'v_cmp_ne_u32 vcc, s{sTag}, v{dst}']

def fold(acc, dst, pk=False):
    return [f'v_permlane32_swap_b32 v{acc}, v{acc+2}', f'v_permlane32_swap_b32 v{acc+1}, v{acc+3}'] + (
            [f'v_pk_add_f32 v[{acc}:{acc+1}], v[{acc}:{acc+1}], v[{acc+2}:{acc+3}]'] if pk else
            [f'v_add_f32 v{acc}, v{acc}, v{acc+2}', f'v_add_f32 v{acc+1}, v{acc+1}, v{acc+3}']) + [
            f'v_cvt_pk_bf16_f32 v{dst}, v{acc}, v{acc+1}']

def smf(acc, t, breg):
    if NOQK[0] and breg.startswith('v'): return 's_nop 3'
    return f'v_smfmac_f32_16x16x64_bf16 {vr(acc)}, {vr(vMF+4*t)}, {breg}, v{vIdx}'

def pub_reads():
    return [f'ds_read_b128 {vr(vPU+4*t)}, v{vL16} offset:{UB+1024*t}' for t in range(3)]
def pub_stores():
    L = [W('store_dwordx4', vr(vPU+4*t), vY, f's{sU}', 1024*t, 'sc1') for t in range(2)]
    L += [f's_mov_b64 exec, s[{sExLo}:{sExLo+1}]\n' + W('store_dwordx4', vr(vPU+8), vY, f's{sU}', 2048, 'sc1') + '\ns_mov_b64 exec, -1']
    L[-1] = L[-1].replace('s_mov_b64 exec, -1', f's_mov_b64 exec, s[{sExK}:{sExK+1}]')
    L += [W('store_dwordx4', vr(vKf), vKc, f's{sKm}', 0, 'sc1'), W('store_dwordx2', vr(vKf+4, 2), vKd, f's{sKm}', 512, 'sc1') + '\ns_mov_b64 exec, -1']
    return L

def rec_wave(a, tail, w, P):
    n, g, ln = 41, 42, 43
    nm = str(w)
    st0 = P['stamp']; fine = P.get('fine', 0)
    st = lambda i: '' if (fine and 5 <= i <= 9) else st0(i)
    sf = lambda i: st0(i) if fine else ''
    own = OWN[w]; oth = [t for t in range(10) if t not in own]
    a(f'L_rec_{nm}:')
    if w < 2:
        a(f"""v_min_u32 v64, 9, v{n}
        v_add_u32 v65, {10*w}, v64
        v_lshlrev_b32 v65, 4, v65
        s_and_b32 s{sT0}, s{S_J}, 1
        s_mul_i32 s{sT1}, s{sT0}, 384
        s_mul_i32 s{sT2}, s{sCg}, 1536
        s_add_u32 s{sT1}, s{sT1}, s{sT2}
        v_add_u32 v65, s{sT1}, v65
        v_and_b32 v66, 1, v{g}
        v_mul_u32_u24 v66, 768, v66
        v_add_u32 v65, v65, v66""")
        for rho, dst in ((0, vG0), (1, vG1)):
            a(f"""v_lshrrev_b32 v66, 1, v{g}
            v_add_u32 v66, {2*rho}, v66
            v_mul_u32_u24 v67, {32*768}, v66
            v_add_u32 v{dst}, v65, v67""")
            phys(a, dst, 67)
            a(f"""v_add_u32 v{dst}, s{sPar}, v{dst}
            v_xor_b32 v67, 8192, v{dst}
            v_cmp_eq_u32 vcc, s{S_X}, v66
            s_nop 1
            v_cndmask_b32 v{dst}, v{dst}, v67, vcc""")
        a(f"""v_lshrrev_b32 v66, 1, v64
        v_lshlrev_b32 v66, 7, v66
        v_and_b32 v67, 1, v64
        v_lshl_add_u32 v66, v67, 4, v66
        v_lshl_add_u32 v66, v{g}, 3, v66
        s_mul_i32 s{sT1}, s{sCg}, 640
        s_lshl_b32 s{sT0}, s{sT0}, 6
        s_add_u32 s{sT1}, s{sT1}, s{sT0}
        s_add_u32 s{sT1}, s{sT1}, {32*w}
        v_add_u32 v{vMst}, s{sT1}, v66
        s_mov_b32 s{sEx}, 0x03ff03ff
        s_mov_b32 s{sEx+1}, 0
        v_mov_b32 v68, 0""")
        build_sel(a, 72, n, 68, 0, 64)
        for r in range(4): a(f'v_accvgpr_write_b32 a{aSel+r}, v{72+r}')
    else:
        z = w - 2
        a(f"""v_min_u32 v64, 39, v{ln}
        v_lshlrev_b32 v{vGst}, 3, v64
        v_add_u32 v{vGst}, s{sGb}, v{vGst}
        v_add_u32 v{vGst}, {384*z}, v{vGst}""")
        phys(a, vGst, 65)
        a(f"""v_lshrrev_b32 v65, 1, v64
        v_cmp_le_u32 vcc, 10, v65
        s_nop 1
        v_cndmask_b32 v66, 0, 1, vcc          ; om
        v_mul_u32_u24 v67, 10, v66
        v_sub_u32 v65, v65, v67               ; r
        v_and_b32 v67, 1, v65
        v_lshl_add_u32 v67, v66, 1, v67
        v_add_u32 v67, {4*z}, v67             ; q
        v_lshlrev_b32 v67, 4, v67
        v_lshrrev_b32 v65, 1, v65             ; o'
        v_and_b32 v64, 1, v64                 ; hb
        v_and_b32 v66, 1, v65
        v_lshl_add_u32 v66, v66, 1, v64       ; g
        v_lshlrev_b32 v66, 8, v66
        v_bfe_u32 v68, v65, 1, 1
        v_lshl_add_u32 v66, v68, 7, v66       ; g*256 + t*128
        v_lshlrev_b32 v64, 7, v64
        v_add_u32 v64, 1024, v64
        v_cmp_eq_u32 vcc, 4, v65
        s_nop 1
        v_cndmask_b32 v66, v66, v64, vcc
        v_add_u32 v{vDr}, v66, v67
        s_mov_b32 s{sEx}, -1
        s_mov_b32 s{sEx+1}, 0xff""")
    if w == 3:
        a(f"""v_lshrrev_b32 v64, 2, v{n}
        v_lshl_add_u32 v64, v{g}, 2, v64
        v_lshlrev_b32 v64, 4, v64
        v_and_b32 v65, 1, v{n}
        v_lshl_add_u32 v{vQr}, v65, 3, v64
        v_bfe_u32 v65, v{n}, 1, 1
        v_lshlrev_b32 v65, 3, v65
        v_lshl_add_u32 v{vKr}, v{vQr}, 1, v65
        v_lshlrev_b32 v{vL8}, 3, v{ln}
        v_min_u32 v64, 47, v{ln}
        v_lshlrev_b32 v64, 4, v64
        v_add_u32 v{vPG}, s{sGb}, v64""")
        phys(a, vPG, 65)
        a(f"""v_min_u32 v64, 19, v{ln}
        v_lshrrev_b32 v65, 2, v64
        v_lshlrev_b32 v65, 7, v65
        v_and_b32 v64, 3, v64
        v_lshl_add_u32 v65, v64, 4, v65
        s_and_b32 s{sT0}, s{S_J}, 1
        s_lshl_b32 s{sT0}, s{sT0}, 6
        s_mul_i32 s{sT1}, s{sCg}, 640
        s_add_u32 s{sT1}, s{sT1}, s{sT0}
        v_add_u32 v{vPM}, s{sT1}, v65""")
        for r in range(4): a(f'v_mov_b32 v{vNeg+r}, -1')
        for r in (vKF+6, vKF+7, vKF+14, vKF+15, vQf+6, vQf+7, vKf+6, vKf+7): a(f'v_mov_b32 v{r}, 0')
        for s in P['wait_k0'](): a(s)
        if P['live']:
            a(f"""v_mov_b32 v64, 0xf0000000
            v_cmp_eq_u32 vcc, 0, v{ln}
            s_nop 1
            v_cndmask_b32 v{vFa}, v64, 0, vcc""")
            a(f"""v_and_b32 v64, 3, v{ln}
            v_lshlrev_b32 v64, 9, v64
            s_sub_u32 s{sT0}, s{sFy}, {3*512}
            v_add_u32 v64, s{sT0}, v64
            v_mov_b32 v65, s{sFk}
            v_cmp_gt_u32 vcc, 4, v{ln}
            s_nop 1
            v_cndmask_b32 v{vFp}, v65, v64, vcc""")
            poll_known(a, a.lab('k0'), 1)
        a(f"""v_lshrrev_b32 v64, 2, v{ln}
        v_and_b32 v65, 1, v{ln}
        v_lshl_add_u32 v64, v64, 1, v65
        v_lshlrev_b32 v{vKc}, 4, v64
        v_lshlrev_b32 v{vKd}, 3, v64""")
        for s in kx_load(): a(s)
    a('s_barrier')
    for s in step_scalars(w): a(s)
    a(P.get('after_y0', ''))
    for s in y_dma(w, 44): a(s)
    for i, t in enumerate(own):
        a(f'buffer_load_dwordx4 {vr(vMF+4*t)}, v40, s[{SRD_A}:{SRD_A+3}], 0 offen offset:{128*t}')
    uz = [f'v_mov_b32 v{vUa+r}, 0' for r in range(12)]
    az = ([f'v_mov_b32 v{vAq+r}, 0' for r in range(8)] if w < 3 else []) + uz
    for s in az: a(s)
    a('s_waitcnt vmcnt(0)')
    if w == 3:
        for s in kx_copy(): a(s)
    for t in own: a(f'ds_write_b128 v{vL16}, {vr(vMF+4*t)} offset:{MB+1024*t}')
    o = []
    if w < 3:
        for t in own: o += [smf(vAq, t, vr(vWq+8*t, 8)), smf(vAk, t, vr(vWk+8*t, 8))]
    nb = P['own_before'] if w < 3 else 0
    for s in o[:nb]: a(s)
    a(f"""s_waitcnt lgkmcnt(0)
    s_branch L_rec_{nm}_m""")
    a(f'.p2align 6\nL_rec_{nm}_top0:')
    a(st(0))
    mld = [f'buffer_load_dwordx4 v{vL16}, s[{SRD_W}:{SRD_W+3}], s{sMr} offen offset:{1024*i} sc1 lds' for i, t in enumerate(own)]
    md = P['mdepth']
    for r in range(md-1):
        for s in mld: a(s)
        a.nop(P['mgap'])
    a(f'L_rec_{nm}_top:')
    for s in mld: a(s)
    for i, t in enumerate(own):
        a(f's_waitcnt vmcnt({len(own)*(md-1) + len(own)-1-i})')
        a(f'ds_read_b128 {vr(vMF+4*t)}, v{vL16} offset:{MB+1024*t}')
    b0 = vMF+4*own[0]
    lr = a.lab('rm')
    if w < 3:
        oo = list(o[:nb])
        pop = lambda: oo.pop(0) if oo else ''
        a(f"""s_waitcnt lgkmcnt(2)
        {pop()}
        v_max3_u32 v40, v{b0}, v{b0+1}, v{b0+2}
        s_waitcnt lgkmcnt(1)
        v_max3_u32 v41, v{b0+3}, v{b0+4}, v{b0+5}
        {pop()}
        v_max3_u32 v40, v40, v{b0+6}, v{b0+7}
        s_waitcnt lgkmcnt(0)
        v_max3_u32 v41, v41, v{b0+8}, v{b0+9}
        v_max3_u32 v40, v40, v{b0+10}, v{b0+11}
        {pop()}
        v_max_u32 v40, v40, v41
        v_cmp_eq_u32 vcc, -1, v40""")
        while oo: a(oo.pop(0))
        tail(f'{lr}_z:\ns_nop 7')
        for r in range(8): tail(f'v_mov_b32 v{vAq+r}, 0')
        tail(f's_branch L_rec_{nm}_top')
        retry(a, tail, lr, f'{lr}_z')
    else:
        a(f"""s_waitcnt lgkmcnt(0)
        v_max3_u32 v40, v{b0}, v{b0+1}, v{b0+2}
        v_max_u32 v40, v40, v{b0+3}
        v_cmp_eq_u32 vcc, -1, v40""")
        retry(a, tail, lr, f'L_rec_{nm}_top')
    a(f's_cbranch_vccnz {lr}')
    a(f'L_rec_{nm}_m:')
    a(st(1))
    reads = [f'ds_read_b128 {vr(vMF+4*t)}, v{vL16} offset:{MB+1024*t}' for t in oth]
    sld = lambda S: [W('load_dwordx4', vr(r), vL16, f's{sSr}', 1024*i, 'sc1') for i, r in enumerate(S)]
    uch = [smf(vUa+4*tc, t, ar((tc*10+t)*8, 8)) for tc in range(3) for t in range(10)]
    if P.get('nou'): uch = ['s_nop 3']*30
    ufold = lambda tc: fold(vUa+4*tc, 10+(tc & 1), tc == 2) + [f'ds_write_b32 v{vL16}, v{10+(tc & 1)} offset:{UB+1024*tc+4*w}', f'v_accvgpr_write_b32 a{aU+4*tc}, v{10+(tc & 1)}']
    nb_ = P.get('nobg', 0)
    a('s_barrier')
    a(st(2))
    if w < 3:
        for s in reads[:3]: a(s)
        oq = o[nb:]; held = []
        for _ in range(P['khold']):
            i = max(i for i, x in enumerate(oq) if f' {vr(vAk)},' in x or 'nop' in x); held.insert(0, oq.pop(i))
        for s in interleave(oq, reads[3:], 2): a(s)
        for i, t in enumerate(oth):
            a(f's_waitcnt lgkmcnt({len(oth)-1-i})\n' + smf(vAq, t, vr(vWq+8*t, 8)))
        a(sf(5))
        kch = [smf(vAk, t, vr(vWk+8*t, 8)) for t in oth]
        fq = fold(vAq, 40) + [f'ds_write_b32 v{vQw}, v40 offset:{QB}']
        kch = held + kch
        sc = [f'v_mul_f32 v{vAq+i}, s{sC2}, v{vAq+i}' for i in range(2)]
        gapf = [['s_nop 1'], ['s_nop 1'], ['s_nop 0', fq[0]], [fq[1]], [fq[2], fq[3]], sc, [fq[4], fq[5]]]
        for i, s in enumerate(kch):
            a(s)
            if i < len(gapf):
                for x in gapf[i]: a(x)
        pad = 2 if len(kch) == len(gapf) else 0
        if P['b2a']:
            a.nop(6-pad)
            a('s_waitcnt lgkmcnt(0)')
            a(sf(6))
            a('s_barrier')
            a(sf(7))
        else:
            a.nop(8-pad)
        for s in fold(vAk, 41, True): a(s)
        a(f'ds_write_b32 v{vKw}, v41 offset:{KB}')
        np_ = P['u_early']
        for s in uch[:np_]: a(s)
        a('s_waitcnt lgkmcnt(0)')
        a(sf(8)); a(sf(9))
        a('s_barrier')
        a(st(3)); a(st(4))
        upos, spos = np_, P['spos_o']
        pend = y_read(w)
    else:
        for s in reads: a(s)
        lb = a.lab('np')
        slow = []
        if P['live']:
            lk = a.lab('wk')
            slow = [f's_cmp_gt_u32 s{sKnK}, s{sTag}\ns_cbranch_scc0 {lk}\n{lk}_b:', W('load_dword', f'v{vFk}', vFp, 0, 0, 'sc1')]
            tail(f'{lk}:\ns_cmp_eq_u32 s{sTag}, 64\ns_cbranch_scc1 {lk}_b\ns_add_u32 s{sC}, s{sTag}, 1')
            poll_known(tail, f'{lk}_p', f's{sC}')
            tail(f's_branch {lk}_b')
        slow += ([] if nb_ & 2 else kx_load())
        if not nb_ & 8: slow += [W('store_dwordx4', vr(vNeg), vPG, f's{sGp}', 0, 'sc1')]
        for s in slow: a(s)
        a(f's_cmp_eq_u32 s{S_STEP}, 0\ns_cbranch_scc1 {lb}')
        for s in ([] if nb_ & 1 else pub_stores()): a(s)
        a(f'{lb}:\ns_add_u32 s{sU}, s{sU}, {8*40960}\ns_add_u32 s{sKm}, s{sKm}, {32*3072}')
        plain = [] if nb_ & 4 else [W('store_dwordx4', vr(vNeg), vPG, f's{sGLp}'), W('store_dwordx4', vr(vNeg), vPM, f's{sMp}')]
        a(sf(5))
        a('s_waitcnt lgkmcnt(0)')
        np_ = P['u_pre']
        for s in interleave(uch[:np_], plain, 1): a(s)
        qrd = [f'ds_read_b64_tr_b16 {vr(vQf+2*i,2)}, v{vQr} offset:{QB+256*i}' for i in range(3)]
        krd = [f'ds_read_b64_tr_b16 {vr(vKf+2*i,2)}, v{vKr} offset:{KB+512*i}' for i in range(3)]
        xm = [f'v_mfma_f32_16x16x32_bf16 {vr(vD0)}, {vr(vKF)}, {vr(vQf)}, 0',
              f'v_mfma_f32_16x16x32_bf16 {vr(vD1)}, {vr(vKF+8)}, {vr(vQf)}, 0',
              f'v_mfma_f32_16x16x32_bf16 {vr(vD0)}, {vr(vKF+4)}, {vr(vQf+4)}, {vr(vD0)}',
              f'v_mfma_f32_16x16x32_bf16 {vr(vD1)}, {vr(vKF+12)}, {vr(vQf+4)}, {vr(vD1)}']
        mm_ = [f'v_mfma_f32_16x16x32_bf16 {vr(vDm)}, {vr(vKf)}, {vr(vQf)}, 0',
               f'v_mfma_f32_16x16x32_bf16 {vr(vDm)}, {vr(vKf+4)}, {vr(vQf+4)}, {vr(vDm)}']
        sel = [f'v_cndmask_b32 v{vPk+i}, v{vD0+i}, v{vD1+i}, s[{sHalf}:{sHalf+1}]' for i in range(4)]
        sel += [f'v_mov_b32_sdwa v{vPk}, s{sTag} dst_sel:BYTE_0 dst_unused:UNUSED_PRESERVE src0_sel:BYTE_0']
        a(sf(6))
        a('s_barrier')
        a(sf(7))
        if P['b2a']:
            for s in qrd: a(s)
            a('s_waitcnt lgkmcnt(0)')
            a(sf(8))
            nx = P['xpre']
            for s in xm[:nx]: a(s)
            a(sf(9))
            a('s_barrier')
            a(st(3))
            for s in krd: a(s)
            for s in xm[nx:]: a(s)
            a.nop(5 if nx < 4 else 1)
            a('s_waitcnt lgkmcnt(0)')
            a(mm_[0]); a(mm_[1])
            for s in sel: a(s)
            a.nop(3)
        else:
            a(st(3))
            for s in qrd + krd: a(s)
            a('s_waitcnt lgkmcnt(3)')
            for s in xm: a(s)
            a('s_waitcnt lgkmcnt(0)')
            a(mm_[0]); a(mm_[1])
            a.nop(5)
            for s in sel: a(s)
        a(f"""v_cndmask_b32 v{vDm}, v{vDm}, v{vDm+1}, s[{sHalf}:{sHalf+1}]
        v_mov_b32_sdwa v{vPk+1}, v{vDm} dst_sel:BYTE_0 dst_unused:UNUSED_PRESERVE src0_sel:BYTE_1
        v_mov_b32_sdwa v{vPk+2}, v{vDm} dst_sel:BYTE_0 dst_unused:UNUSED_PRESERVE src0_sel:BYTE_2
        v_mov_b32_sdwa v{vPk+3}, v{vDm} dst_sel:BYTE_0 dst_unused:UNUSED_PRESERVE src0_sel:BYTE_3
        s_nop 0""")
        a(W('store_dwordx4', vr(vPk), vL16, f's{sSw}'))
        a(st(4))
        upos, spos = np_, P['spos_s']
        pend = y_read(w)
    done0 = done1 = False
    for i in range(upos, 30):
        a(uch[i])
        if i == spos: pend = sld(SETA) + pend
        if not done0 and i >= 17: pend += ufold(0); done0 = True
        if not done1 and i >= 25: pend += ['s_nop 1'] + ufold(1); done1 = True
        for _ in range(2):
            if pend:
                x = pend.pop(0); a(x)
                if 'permlane' in x or (pend and 'permlane' in pend[0]): break
    k = len(pend)
    while pend: a(pend.pop(0))
    if spos >= 30:
        if spos > 30: a.nop(spos-30)
        for s in sld(SETA): a(s)
        k += 4
    a.nop(max(0, 8-k))
    for s in ufold(2): a(s)
    a(f"""s_cmp_eq_u32 s{S_STEP}, 63
    s_cbranch_scc1 L_rec_{nm}_fin""")
    a.nop(P['sgap_s'] if w == 3 else P['sgap_o'])
    X, MV, T = 68, 72, 73
    ls = a.lab('ps')
    def scheck(o, S, fail, nleft, first=''):
        A, B, C, D = S
        o(f"""s_waitcnt vmcnt({nleft+3}) {first}
        v_perm_b32 v{MV}, v{A+2}, v{A+1}, s{sSelU1}
        v_perm_b32 v{MV}, v{A+3}, v{MV}, s{sSelU2}
        s_waitcnt vmcnt({nleft+2})
        v_perm_b32 v{T}, v{B+2}, v{B+1}, s{sSelU1}
        v_pk_add_f32 v[{X}:{X+1}], v[{A}:{A+1}], v[{B}:{B+1}]
        v_perm_b32 v{T}, v{B+3}, v{T}, s{sSelU2}
        v_pk_add_f32 v[{X+2}:{X+3}], v[{A+2}:{A+3}], v[{B+2}:{B+3}]
        v_add_f32 v{MV}, v{MV}, v{T}
        v_perm_b32 v{T+1}, v{A}, v{B}, s{sSelT1}
        s_waitcnt vmcnt({nleft+1})
        v_perm_b32 v{T}, v{C+2}, v{C+1}, s{sSelU1}
        v_pk_add_f32 v[{X}:{X+1}], v[{X}:{X+1}], v[{C}:{C+1}]
        v_perm_b32 v{T}, v{C+3}, v{T}, s{sSelU2}
        v_pk_add_f32 v[{X+2}:{X+3}], v[{X+2}:{X+3}], v[{C+2}:{C+3}]
        v_add_f32 v{MV}, v{MV}, v{T}
        v_perm_b32 v{T+1}, v{C}, v{T+1}, s{sSelT2}
        s_waitcnt vmcnt({nleft})
        v_perm_b32 v{T+1}, v{D}, v{T+1}, s{sSelT3}
        v_perm_b32 v{T}, v{D+2}, v{D+1}, s{sSelU1}
        v_cmp_ne_u32 vcc, s{sTag3}, v{T+1}
        v_perm_b32 v{T}, v{D+3}, v{T}, s{sSelU2}
        v_pk_add_f32 v[{X}:{X+1}], v[{X}:{X+1}], v[{D}:{D+1}]
        v_pk_add_f32 v[{X+2}:{X+3}], v[{X+2}:{X+3}], v[{D+2}:{D+3}]
        v_add_f32 v{MV}, v{MV}, v{T}
        v_max3_f32 v{T}, v{X}, v{X+1}, v{X+2}
        v_max3_f32 v{T}, v{T}, v{X+3}, v{MV}
        s_cbranch_vccnz {fail}""")
    yd = ([] if nb_ & 16 else y_dma(w, 25))
    for s in yd[:2]: a(s)
    a(f'v_and_b32 v26, 0x1ff, v{vY}')
    if w >= 2: a(f'v_and_b32 v24, 0x70, v{vDr}')
    yd = yd[2:]; nw2 = 3
    if P['live'] and w == 3:
        yd.insert(1, W('store_dword', f'v{vFd}', vFa, f's{sFl}', 0, 'sc1')); nw2 += 1
    a(st(5))
    if P['sdepth'] == 2:
        a(f'{ls}_a:')
        for s in sld(SETB): a(s)
        scheck(a, SETA, f'{ls}_b', 4, 'lgkmcnt(0)')
        tail(f'{ls}_b:')
        for s in sld(SETA): tail(s)
        scheck(tail, SETB, f'{ls}_r', 4)
        tail(f's_branch {ls}_j')
        retry(a, tail, f'{ls}_r', f'{ls}_a')
    else:
        a(f'{ls}_a:')
        scheck(a, SETA, f'{ls}_r', 0, 'lgkmcnt(0)')
        tail(f'{ls}_b:')
        for s in sld(SETA): tail(s)
        tail(f's_branch {ls}_a')
        retry(a, tail, f'{ls}_r', f'{ls}_b')
    PB = 76
    def one(): return yd.pop(0) if yd else 's_nop 0'
    ys = P['yspread']
    dpp = 'row_ror:8 row_mask:0xf bank_mask:0xf'
    dpc = 'row_ror:8 row_mask:0xf bank_mask:0xc'
    a(f"""{ls}_j:
    s_barrier
    {st(6)}
    v_max_f32_dpp v{T+1}, v{T}, v{T} {dpp}
    v_max_f32_dpp v{T+2}, v{T}, v{T} {dpp}
    {one()}
    {one() if (not ys or nw2 == 4) else 's_nop 0'}
    v_permlane16_swap_b32 v{T+1}, v{T+2}
    v_max_f32 v{T}, v{T+1}, v{T+2}
    v_max_f32 v{T+1}, v{T+1}, v{T+2}
    {one()}
    {one() if not ys else 's_nop 0'}
    v_permlane32_swap_b32 v{T}, v{T+1}
    v_max_f32 v{T+1}, v{T}, v{T+1}
    v_sub_f32 v{MV}, v{MV}, v{T+1}
    v_pk_add_f32 v[{X}:{X+1}], v[{X}:{X+1}], v[{T+1}:{T+2}] op_sel_hi:[1,0] neg_lo:[0,1] neg_hi:[0,1]
    v_pk_add_f32 v[{X+2}:{X+3}], v[{X+2}:{X+3}], v[{T+1}:{T+2}] op_sel_hi:[1,0] neg_lo:[0,1] neg_hi:[0,1]
    v_exp_f32 v{MV}, v{MV}
    v_exp_f32 v{X}, v{X}
    v_exp_f32 v{X+1}, v{X+1}
    v_mov_b32_dpp v{T+1}, v{MV} {dpp}
    v_cvt_pk_bf16_f32 v{vDq}, v{MV}, v{T+1}
    v_exp_f32 v{X+2}, v{X+2}
    v_cvt_pk_bf16_f32 v{PB}, v{X}, v{X+1}
    v_mfma_f32_16x16x32_bf16 {vr(60)}, {ar(aU+4)}, {vr(vDq)}, 0
    v_exp_f32 v{X+3}, v{X+3}
    v_mfma_f32_16x16x32_bf16 {vr(56)}, {ar(aU)}, {vr(vDq)}, 0
    v_cvt_pk_bf16_f32 v{PB+1}, v{X+2}, v{X+3}
    v_mov_b32_dpp v{PB+2}, v{PB} {dpp}
    v_mfma_f32_16x16x32_bf16 {vr(64)}, {ar(aU+8)}, {vr(vDq)}, 0
    v_mov_b32_dpp v{PB+3}, v{PB+1} {dpp}
    v_add_f32 v{T}, v{X}, v{X+1}
    v_add_f32 v{T+2}, v{X+2}, v{X+3}
    v_mfma_f32_16x16x32_bf16 {vr(60)}, {vr(vYt+4)}, {vr(PB)}, {vr(60)}
    v_add_f32 v{T}, v{T}, v{MV}
    v_add_f32 v{T}, v{T}, v{T+2}
    v_mfma_f32_16x16x32_bf16 {vr(56)}, {vr(vYt)}, {vr(PB)}, {vr(56)}
    {one()}
    v_add_f32_dpp v{T+1}, v{T}, v{T} {dpp}
    v_mfma_f32_16x16x32_bf16 {vr(64)}, {vr(vYt+8)}, {vr(PB)}, {vr(64)}
    v_add_f32_dpp v{T+2}, v{T}, v{T} {dpp}
    s_nop 1
    v_permlane16_swap_b32 v{T+1}, v{T+2}
    v_add_f32 v{T}, v{T+1}, v{T+2}
    v_add_f32 v{T+1}, v{T+1}, v{T+2}
    v_mov_b32_dpp v56, v60 {dpc}
    v_mov_b32_dpp v57, v61 {dpc}
    v_permlane32_swap_b32 v{T}, v{T+1}
    v_mov_b32_dpp v58, v62 {dpc}
    v_mov_b32_dpp v59, v63 {dpc}
    ds_write_b128 v{vL16}, {vr(56)} offset:{DB+1536*w}
    v_add_f32 v{T}, v{T}, v{T+1}
    v_rcp_f32 v{T}, v{T}
    v_mov_b32_dpp v64, v66 {dpc}
    v_mov_b32_dpp v65, v67 {dpc}
    ds_write_b32 v26, v{T} offset:{RB+4*w}
    ds_write_b64 v{vD2}, v[64:65] offset:{DB+1536*w+1024}""")
    while yd: a(yd.pop(0))
    a(f"""{f's_mov_b64 exec, s[{sEx}:{sEx+1}]' if w >= 2 else ''}
    s_waitcnt lgkmcnt(0)
    s_barrier""")
    a(st(7))
    nxt = [f's_add_u32 s{S_STEP}, s{S_STEP}, 1'] + step_scalars(w)
    if w >= 2:
        a(f'ds_read_b128 {vr(72)}, v24 offset:{RB}')
        for i in range(4): a(f'ds_read_b128 {vr(56+4*i)}, v{vDr} offset:{DB+1536*i}')
        a(f"""s_waitcnt lgkmcnt(3)
        v_pk_mul_f32 v[76:77], v[56:57], v[72:73] op_sel_hi:[1,0]
        v_pk_mul_f32 v[78:79], v[58:59], v[72:73] op_sel_hi:[1,0]
        s_waitcnt lgkmcnt(2)
        v_pk_fma_f32 v[76:77], v[60:61], v[72:73], v[76:77] op_sel:[0,1,0] op_sel_hi:[1,1,1]
        v_pk_fma_f32 v[78:79], v[62:63], v[72:73], v[78:79] op_sel:[0,1,0] op_sel_hi:[1,1,1]
        s_waitcnt lgkmcnt(1)
        v_pk_fma_f32 v[76:77], v[64:65], v[74:75], v[76:77] op_sel_hi:[1,0,1]
        v_pk_fma_f32 v[78:79], v[66:67], v[74:75], v[78:79] op_sel_hi:[1,0,1]
        s_waitcnt lgkmcnt(0)
        v_pk_fma_f32 v[76:77], v[68:69], v[74:75], v[76:77] op_sel:[0,1,0] op_sel_hi:[1,1,1]
        v_pk_fma_f32 v[78:79], v[70:71], v[74:75], v[78:79] op_sel:[0,1,0] op_sel_hi:[1,1,1]
        v_cvt_pk_bf16_f32 v76, v76, v77
        v_cvt_pk_bf16_f32 v77, v78, v79
        v_min_u32 v76, -2, v76""")
        a(W('store_dwordx2', 'v[76:77]', vGst, f's{sG}', 0, 'sc1'))
        a(W('store_dwordx2', 'v[76:77]', vGst, f's{sGL}'))
        a(st(8)); a(st(9))
        a(f's_mov_b64 exec, -1\ns_waitcnt vmcnt({nw2+2})')
        if w == 3:
            for s in pub_reads() + kx_copy(): a(s)
            if P['live']:
                for s in known_upd(): a(s)
        for s in P['progress'](w): a(s)
        for s in nxt + az: a(s)
        a('s_waitcnt lgkmcnt(0)')
    else:
        a(f's_waitcnt vmcnt({nw2}) lgkmcnt(0)')
        for s in az: a(s)
        a(f"""s_and_b32 s{sT0}, s{sTag}, 3
        s_mul_i32 s{sMw}, s{sT0}, {M_SLOT}
        s_add_u32 s{sMw}, s{sMw}, s{sMb}
        s_mov_b32 s{sGp}, s{sG}""")
        for s in nxt: a(s)
        if P['sleep_g']: a(f"s_sleep {P['sleep_g']}")
        a.nop(P['nop_g'])
        dep = P['gdepth']
        gl = lambda r: [W('load_dwordx4', vr(60+8*r), vG0, f's{sGp}', 0, 'sc1'), W('load_dwordx4', vr(64+8*r), vG1, f's{sGp}', 0, 'sc1')]
        lg = a.lab('pg')
        a(st(8))
        for r in range(dep-1):
            for s in gl(r): a(s)
            a.nop(P['ggap'])
        a(f'{lg}:')
        for r in range(dep):
            for s in gl((r+dep-1) % dep): a(s)
            b = 60+8*r
            a(f"""s_waitcnt vmcnt({2*(dep-1)})
            v_mfma_f32_16x16x32_bf16 {vr(56)}, {ar(aSel)}, {vr(b)}, 0
            v_max3_u32 v40, v{b}, v{b+2}, v{b+4}
            v_max_u32 v40, v40, v{b+6}
            v_mfma_f32_16x16x32_bf16 {vr(56)}, {ar(aSel)}, {vr(b+4)}, {vr(56)}
            v_cmp_eq_u32 vcc, -1, v40
            s_nop 4
            s_cbranch_vccz {lg}_ok""")
        a(f"""s_add_u32 s{S_TO}, s{S_TO}, 1
        s_cmp_gt_u32 s{S_TO}, {TO_LIMIT}
        s_cbranch_scc1 L_exit
        s_branch {lg}
        {lg}_ok:
        {st(9)}
        s_mov_b64 exec, s[{sEx}:{sEx+1}]
        v_cvt_pk_bf16_f32 v40, v56, v57
        v_cvt_pk_bf16_f32 v41, v58, v59
        v_min_u32 v40, -2, v40
        v_min_u32 v41, -2, v41""")
        a(W('store_dwordx2', 'v[40:41]', vMst, f's{sMw}'))
        a('s_mov_b64 exec, -1')
    a('s_barrier')
    a(st(10))
    a(P['dump'](a, w))
    a(f's_mov_b32 m0, {MB+1024*own[0]}')
    a.nop(P['dm'])
    a(f's_branch L_rec_{nm}_top0')
    a(f"""L_rec_{nm}_fin:
    s_waitcnt lgkmcnt(0)
    s_barrier""")
    if w == 3:
        for s in pub_reads(): a(s)
        a('s_waitcnt lgkmcnt(0)')
        for s in pub_stores(): a(s)
        if P['live']:
            a(f'v_mov_b32 v{vFd}, 64\ns_waitcnt vmcnt(0)')
            a(W('store_dword', f'v{vFd}', vFa, f's{sFl}', 0, 'sc1'))
    a('s_branch L_rec_done')

NOQK = [0]
def rec_role(a, P):
    NOQK[0] = P.get('noqk', 0)
    tail = Asm(); tail.uid = 100000
    a('L_rec:')
    rec_prologue(a, P)
    for w in range(4):
        rec_wave(a, tail, w, P)
    a.lines += tail.lines
    a(f"""L_rec_done:
    s_waitcnt vmcnt(0)
    s_barrier""")
    for s in P['done'](): a(s)
    a('s_branch L_exit')
```

```python
from gen_common import *
import gen_par as gp
import gen_rec as gr

def worker_id(a):
    a(f"""L_tofinal:
    s_and_b32 s{gp.sT0}, s{S_J}, 2
    s_mul_i32 s{gp.sT0}, s{gp.sT0}, 15
    s_add_u32 s{gp.sWk}, s{gp.sH}, s{gp.sT0}
    s_cmp_ge_u32 s{gp.sH}, 30
    s_cbranch_scc1 L_exit""")

def mid_beta(a):
    a(f"""v_and_b32 v12, 3, v{gp.vLn}
    v_lshlrev_b32 v12, 9, v12
    s_lshl_b32 s{gp.sT2}, s{gp.sB}, 11
    s_add_u32 s{gp.sT2}, s{gp.sT2}, {gp.flag_addr(4, 3)}""")
    gp.wait_flags(a, 12, f's{gp.sT2}', 2, sleep=1)

def staged(stage, P, tstamp=True):
    a = Asm(); P = dict(P)
    P.update(frec=0, after_k='s_branch L_exit', after_v='s_branch L_exit', after_y='s_branch L_exit', pre_y=lambda a: None, v_known=100, pre_beta=lambda a: None, mid_beta=mid_beta, r_known=100,
             q_refresh=lambda r: [], q_wait=lambda a, r, pub: None, q_update=lambda r: [], final_wait=lambda a, f: a('s_waitcnt vmcnt(0)'), final_waity=lambda a: a('s_waitcnt vmcnt(0)'), final_refresh=lambda f: [], final_ready=lambda a, f: a(f's_cmp_lt_u32 s{S_STEP}, 64'), y_refresh='', y_update='')
    a('s_memrealtime s[96:97]')
    common_entry(a)
    if stage == 'rec':
        a(f"""s_cmp_lt_u32 s{S_X}, 4
        s_cbranch_scc1 L_rec
        s_cmp_lg_u32 s{S_X}, 4
        s_cbranch_scc1 L_exit
        s_cmp_lg_u32 s{S_WAVE}, 0
        s_cbranch_scc1 L_exit""")
        cal_store(a, S_J); cal_sample(a)
        a('s_branch L_exit')
        rec_role(a, P)
    else:
        a(f's_cmp_lt_u32 s{S_X}, 4\ns_cbranch_scc1 L_exit')
        gp.lanes(a); gp.head_ids(a)
        a(f's_and_b32 s{gp.sT0}, s{S_J}, 3\ns_mov_b32 s{S_STEP}, 0\ns_mov_b32 s{gp.sEnd}, 64\ns_mov_b32 s{gp.sFb}, 2\ns_mov_b32 s{gp.sStr}, 1\ns_mov_b32 s{gp.sDone}, 0')
        tgt = {'s1': ['L_k', 'L_v', 'L_exit', 'L_alpha'], 's2': ['L_exit', 'L_exit', 'L_y', 'L_beta'],
               'q': ['L_exit']*3 + ['L_q'], 'fin': ['L_exit', 'L_tofinal', 'L_tofinal', 'L_exit']}[stage]
        for i in range(3): a(f's_cmp_eq_u32 s{gp.sT0}, {i}\ns_cbranch_scc1 {tgt[i]}')
        a(f's_branch {tgt[3]}')
        if stage == 's1':
            gp.kv_role(a, 'k', P_WK, K_OFF, 'sc1', P); gp.kv_role(a, 'v', P_WV, V_OFF, '', P)
            gp.alpha_role(a, P)
        if stage == 's2':
            gp.y_role(a, P); gp.beta_role(a, P)
        if stage == 'q': gp.q_role(a, P)
        if stage == 'fin':
            worker_id(a); gp.final_role(a, P)
    a(f"""L_exit:
    s_waitcnt vmcnt(0)
    s_memrealtime s[98:99]
    s_memtime s[90:91]
    s_lshl_b32 s94, s{S_X}, 5
    s_add_u32 s94, s94, s{S_J}
    s_lshl_b32 s94, s94, 4
    s_add_u32 s94, s94, {FL_OFF+0x10000}
    s_waitcnt lgkmcnt(0)
    s_sub_u32 s90, s90, s92
    v_mov_b32 v12, s96
    v_mov_b32 v13, s98
    v_mov_b32 v14, s100
    v_mov_b32 v15, s90
    v_mov_b32 v10, 0
    {W('store_dwordx4', 'v[12:15]', 10, 's94')}
    s_waitcnt vmcnt(0)
    s_endpgm""")
    return a

def merged(P, diag=False):
    a = Asm(); P = dict(P)
    def pre_beta(a):
        gp.wait_init(a, 256)
        a(f"""v_and_b32 v12, 7, v{gp.vLn}
        v_lshlrev_b32 v12, 9, v12
        s_lshl_b32 s{gp.sT2}, s{S_X}, 12
        s_add_u32 s{gp.sT2}, s{gp.sT2}, {FL_OFF+384}""")
        gp.wait_flags(a, 12, f's{gp.sT2}', 1)
    def pre_y(a):
        l = a.lab('cal')
        a(f's_cmp_lg_u32 s{S_WAVE}, 0\ns_cbranch_scc1 {l}')
        cal_sample(a)
        a(f'{l}:\ns_barrier')
        gp.wait_init(a, 256)
    def spin(a, l, sleep):
        a(f"""s_branch {l}_go
        {l}:
        s_sleep {sleep}
        s_add_u32 s{S_TO}, s{S_TO}, 1
        s_cmp_gt_u32 s{S_TO}, {TO_LIMIT}
        s_cbranch_scc1 L_exit
        {l}_go:""")
    def q_wait(a, r, pub):
        l = a.lab('qw')
        a(W('load_dword', f'v{r}', gp.vFa, 0, 0, 'sc1'))
        a('s_waitcnt vmcnt(0)')
        for x in pub: a(x)
        a(f"""v_cmp_ge_u32 vcc, s{S_STEP}, v{r}
        s_cbranch_vccz {l}_ok""")
        spin(a, l, 1)
        a(f"""{W('load_dword', f'v{r}', gp.vFa, 0, 0, 'sc1')}
        s_waitcnt vmcnt(0)
        v_cmp_ge_u32 vcc, s{S_STEP}, v{r}
        s_cbranch_vccnz {l}
        {l}_ok:""")
    def q_update(r):
        L = [f'v_readlane_b32 s{gp.sT0+i}, v{r}, {i}' for i in range(4)]
        return L + [f's_min_u32 s{gp.sT0}, s{gp.sT0}, s{gp.sT1}', f's_min_u32 s{gp.sT2}, s{gp.sT2}, s{gp.sT3}', f's_min_u32 s{gp.sKn}, s{gp.sT0}, s{gp.sT2}']
    def wait4(a, va, so, thr, sleep):
        l = a.lab('w4')
        spin(a, l, sleep)
        a(f"""{W('load_dwordx4', 'v[204:207]', va, so, 0, 'sc1')}
        s_waitcnt vmcnt(0)
        v_min3_u32 v204, v204, v205, v206
        v_min_u32 v204, v204, v207
        v_cmp_gt_u32 vcc, {thr}, v204
        s_cbranch_vccnz {l}""")
    def final_waity(a):
        a(f's_add_u32 s{gp.sT1}, s{S_STEP}, 1\ns_mov_b32 s{gp.sT2}, 256')
        gp.wait_flags(a, gp.vFa, f's{gp.sT2}', f's{gp.sT1}', sleep=8)
    def final_refresh(F):
        return [W('load_dwordx4', vr(F), 213, 0, 0, 'sc1')]
    def final_ready(a, F):
        a(f"""v_min3_u32 v212, v{F}, v{F+1}, v{F+2}
        v_min_u32 v212, v212, v{F+3}
        v_sub_u32 v212, v212, v214
        v_cmp_ge_i32 vcc, s{S_STEP}, v212
        s_and_b32 s{gp.sT0}, s{S_STEP}, 1
        s_cmp_lt_u32 s{S_STEP}, {P['qsplit']}
        s_cselect_b32 s{gp.sT0}, 1, s{gp.sT0}
        s_cmp_lg_u32 s{gp.sT0}, 0
        s_nop 0
        s_cselect_b32 s{gp.sT0}, vcc_lo, vcc_hi
        s_cmp_eq_u32 s{gp.sT0}, 0""")
    def final_wait(a, F):
        l = a.lab('fw')
        spin(a, l, P.get('fsleep', 1))
        a(final_refresh(F)[0])
        a('s_waitcnt vmcnt(0)')
        final_ready(a, F)
        a(f's_cbranch_scc0 {l}')
    def final_pre(a):
        a(f"""v_add_u32 v213, 384, v{gp.vFa}
        v_cndmask_b32 v213, v213, v{gp.vFa}, s[{gp.sMask}:{gp.sMask+1}]
        v_cndmask_b32 v214, 3, 64, s[{gp.sMask}:{gp.sMask+1}]
        s_mov_b32 s{gp.sT2}, 384""")
        wait4(a, gp.vFa, f's{gp.sT2}', 3, 8)
    P.update(live=1, ninit=256, after_k='s_branch L_k2q', after_v='s_branch L_tofinal', after_y='s_branch L_tofinal', pre_y=pre_y, v_known=0, pre_beta=pre_beta, mid_beta=mid_beta, r_known=0,
             q_refresh=lambda r: [W('load_dword', f'v{r}', gp.vFa, 0, 0, 'sc1')], q_wait=q_wait, q_update=q_update, final_wait=final_wait, final_waity=final_waity, final_refresh=final_refresh, final_ready=final_ready, final_pre=final_pre, y_refresh=W('load_dword', 'v11', gp.vZ, f's{gp.sFv}', 0, 'sc1'), y_update=f'v_readfirstlane_b32 s{gp.sKn}, v11')
    mark = (lambda i: a(f's_memrealtime s[{96+2*i}:{97+2*i}]')) if diag else (lambda i: None)
    if P['frec']:
        def rec_done():
            b = Asm()
            if diag: b('s_memrealtime s[92:93]')
            gp.lanes(b, False)
            b(f"""s_lshl_b32 s{gp.sWk}, s{S_X}, 5
            s_add_u32 s{gp.sWk}, s{gp.sWk}, s{S_J}
            s_lshl_b32 s{gp.sFl}, s{gp.sWk}, 7
            s_add_u32 s{gp.sFl}, s{gp.sFl}, {FL_OFF}
            s_mul_i32 s{gp.sWk}, s{S_X}, 30
            s_add_u32 s{gp.sWk}, s{gp.sWk}, s{S_J}
            s_cmp_lt_u32 s{S_J}, 30
            s_cbranch_scc1 L_final_rec""")
            return [b.text()]
        P['done'] = rec_done
    ds = P.get('diagspin')
    if ds:
        a('s_memrealtime s[96:97]')
        P['wait_k0'] = lambda: ['s_memrealtime s[100:101]\ns_waitcnt lgkmcnt(0)\ns_mov_b32 s98, s100']
        P['after_y0'] = 's_memrealtime s[100:101]\ns_waitcnt lgkmcnt(0)\ns_mov_b32 s99, s100'
        src = {1: 's96', 2: 's99', 3: 's100', 4: 's98'}[ds]
        P['done'] = lambda: [f"""s_cmp_lg_u32 s{S_WAVE}, 3
        s_cbranch_scc1 L_exit
        s_memrealtime s[100:101]
        s_waitcnt lgkmcnt(0)
        s_sub_u32 s95, {src}, s96
        s_add_u32 s95, s95, {P.get('dlen', 30000)}
        L_dspin:
        s_sleep 8
        s_memrealtime s[100:101]
        s_waitcnt lgkmcnt(0)
        s_sub_u32 s100, s100, s96
        s_cmp_lt_u32 s100, s95
        s_cbranch_scc1 L_dspin"""]
    mark(0)
    if diag:
        a('s_mov_b32 s98, 0')
        P['wait_k0'] = lambda: ['s_memrealtime s[98:99]']
        P['after_y0'] = 's_memrealtime s[100:101]\ns_waitcnt lgkmcnt(0)\ns_mov_b32 s97, s100'
        if not P['frec']: P['done'] = lambda: ['s_memrealtime s[92:93]']
    common_entry(a, P['touch'])
    a(f's_cmp_lt_u32 s{S_X}, 4\ns_cbranch_scc1 L_rec')
    gp.lanes(a); gp.head_ids(a)
    l = a.lab('ini')
    a(f"""s_cmp_lg_u32 s{S_WAVE}, 0
    s_cbranch_scc1 {l}
    v_lshlrev_b32 v10, 2, v{gp.vLn}
    s_mov_b64 exec, 15
    {W('store_dword', f'v{gp.vZ}', 10, f's{gp.sFl}', 0, 'sc1')}
    s_mov_b64 exec, -1
    s_and_b32 s{gp.sT0}, s{S_J}, 3
    s_cmp_lg_u32 s{gp.sT0}, 2
    s_cbranch_scc1 {l}""")
    cal_store(a, gp.sH)
    a(f'{l}:')
    if P['help']:
        a(f's_and_b32 s{gp.sT3}, s{S_J}, 3')
        gp.touch_rows(a, P_WV, f's{gp.sT3}', 4)
    a(f"""s_and_b32 s{gp.sT0}, s{S_J}, 3
    s_cmp_eq_u32 s{gp.sT0}, 0
    s_cbranch_scc1 L_k
    s_cmp_eq_u32 s{gp.sT0}, 1
    s_cbranch_scc1 L_v
    s_cmp_eq_u32 s{gp.sT0}, 2
    s_cbranch_scc1 L_y""")
    gp.alpha_role(a, P)
    gp.beta_role(a, P)
    a(f"""s_mov_b32 s{S_STEP}, 0
    s_mov_b32 s{gp.sEnd}, {P['qsplit']}
    s_mov_b32 s{gp.sFb}, 3
    s_mov_b32 s{gp.sStr}, 1
    s_branch L_toq
    L_k2q:""")
    gp.q_flags(a)
    gp.wait_init(a, 256)
    a(f's_mov_b32 s{gp.sT2}, 384')
    gp.wait_flags(a, gp.vFa, f's{gp.sT2}', 1)
    a(f"""s_mov_b32 s{S_STEP}, {P['qsplit']}
    s_mov_b32 s{gp.sEnd}, 64
    s_mov_b32 s{gp.sFb}, 64
    s_mov_b32 s{gp.sStr}, 2
    L_toq:
    s_mov_b32 s{gp.sDone}, 0""")
    mark(1)
    a(f"""v_and_b32 v{gp.vFa}, 3, v{gp.vLn}
    s_lshl_b32 s{gp.sT0}, s{gp.sH}, 2
    v_add_u32 v{gp.vFa}, s{gp.sT0}, v{gp.vFa}
    v_lshlrev_b32 v{gp.vFa}, 7, v{gp.vFa}
    v_add_u32 v{gp.vFa}, {FL_OFF}, v{gp.vFa}""")
    gp.q_role(a, P)
    a(f"""s_cmp_eq_u32 s{gp.sStr}, 2
    s_cbranch_scc1 L_exit
    s_mov_b32 s{S_STEP}, {P['qsplit']+1}
    s_mov_b32 s{gp.sEnd}, 64
    s_mov_b32 s{gp.sStr}, 2
    s_branch L_q_again""")
    gp.kv_role(a, 'k', P_WK, K_OFF, 'sc1', P); gp.kv_role(a, 'v', P_WV, V_OFF, '', P)
    gp.y_role(a, P)
    worker_id(a)
    mark(1)
    gp.wait_init(a, 256)
    gp.final_role(a, P)
    a('L_exit:')
    if diag:
        a(f"""s_waitcnt vmcnt(0)
        s_cmp_lg_u32 s{S_WAVE}, 3
        s_cbranch_scc1 L_exit2
        s_memrealtime s[100:101]
        s_lshl_b32 s94, s{S_X}, 5
        s_add_u32 s94, s94, s{S_J}
        s_lshl_b32 s94, s94, 4
        s_add_u32 s94, s94, {FL_OFF+0x10000}
        s_waitcnt lgkmcnt(0)
        v_mov_b32 v12, s96
        v_mov_b32 v13, s98
        v_mov_b32 v14, s100
        v_mov_b32 v15, s{S_TO}
        v_mov_b32 v10, 0
        {W('store_dwordx4', 'v[12:15]', 10, 's94')}
        v_mov_b32 v16, s97
        v_mov_b32 v17, s92
        s_add_u32 s94, s94, 0x2000
        {W('store_dwordx2', 'v[16:17]', 10, 's94')}
        L_exit2:""")
    a('s_waitcnt vmcnt(0)\ns_endpgm')
    rec_role(a, P)
    return a

KNAME = 'gated_mix__linear_attn_block__memory_aug_recurrent_mem_tr__prompt_kernel'
def final_text(P):
    ref = open('gated_mix__linear_attn_block__memory_aug_recurrent_mem_tr__prompt.s.ref').read()
    top = ''.join(l+'\n' for l in ref.split('\n') if l.startswith(';') and '@launch' not in l)
    return top + head(KNAME, 163840) + merged(P).text() + KD.format(name=KNAME)
if __name__ == '__main__':
    import sys
    out = sys.argv[1] if len(sys.argv) > 1 else 'gated_mix__linear_attn_block__memory_aug_recurrent_mem_tr__prompt.s'
    P = dict(DEFP)
    for spec in sys.argv[2:]:
        for kv in spec.split(','):
            k, v = kv.split('='); P[k] = int(v)
    open(out, 'w').write(final_text(P))
```

```python
from asmb import *
from lay import *
from gen_rec import (S_WAVE, S_X, S_J, S_STEP, S_TO, P_X, P_WQKV, P_WOA, P_WQ, P_WK, P_WV, P_WO, P_GATE, P_OUT,
                     SRD_W, SRD_A, SRD_B, SRD_D, TO_LIMIT, srd, W)
import struct, math
def fbits(x): return '0x%08x' % struct.unpack('<I', struct.pack('<f', x))[0]
OOB = 0xF0000000
EXP = {}
sH, sI, sCol, sT0, sT1, sT2, sT3, sXo, sBufW, sBufR, sOut, sOutN, sEnd, sFl, sFv, sKn, sHave = range(52, 69)
sK, sKm, sGt, sWk, sCb, sY, sU, sP, sO, sB, sQt = range(69, 80)
sMask = 80
sC2 = 88
sEx = 90
sDl, sFb = 94, 95
sStr, sXs, sDone, sD1, sPp, sKl = 90, 91, 78, 79, 74, 75
vN, vG, vLn, vL16, vYp, vXs, vR0, vR1, vZ, vFa = range(0, 10)

def lanes(a, tid=True):
    a(f"""{f'v_and_b32 v{vLn}, 63, v0' if tid else f'v_mbcnt_lo_u32_b32 v{vLn}, -1, 0'}
    {'' if tid else f'v_mbcnt_hi_u32_b32 v{vLn}, -1, v{vLn}'}
    v_lshrrev_b32 v{vG}, 4, v{vLn}
    v_and_b32 v{vN}, 15, v{vLn}
    v_lshlrev_b32 v{vL16}, 4, v{vLn}
    v_lshrrev_b32 v10, 3, v{vN}
    v_lshlrev_b32 v10, 9, v10
    v_lshl_add_u32 v10, v{vG}, 7, v10
    v_and_b32 v11, 7, v{vN}
    v_lshl_add_u32 v{vYp}, v11, 4, v10
    v_mov_b32 v{vZ}, 0""")

def dmark(a, i):
    if EXP.get('dsmark') and EXP['dsmark'][0] == i: a(EXP['dsmark'][1])
    if not EXP.get('marks'): return
    a(f"""s_memrealtime s[100:101]
    s_add_u32 s99, s{sFl}, {0x20000 + 4*i}
    s_waitcnt lgkmcnt(0)
    v_mov_b32 v10, s100
    {W('store_dword', 'v10', vZ, 's99')}""")

def dtrace(a, slot, extra=0):
    if not EXP.get('trace'): return
    a(f"""s_memrealtime s[100:101]
    s_sub_u32 s99, s{sFl}, {FL_OFF}
    s_lshl_b32 s99, s99, 3
    s_lshl_b32 s93, s{S_STEP}, 4
    s_add_u32 s99, s99, s93
    s_add_u32 s99, s99, {FL_OFF + 0x50000 + 4*slot + extra}
    s_waitcnt lgkmcnt(0)
    v_mov_b32 v10, s100
    {W('store_dword', 'v10', vZ, 's99')}""")

def flag_addr(x, j):
    return FL_OFF + (32*x + j)*128

def set_flag(a, val, fl='sc1'):
    l = a.lab('sf')
    a(f"""s_cmp_lg_u32 s{S_WAVE}, 0
    s_cbranch_scc1 {l}
    v_mov_b32 v10, {val}
    s_mov_b64 exec, 1
    {W('store_dword', 'v10', vZ, f's{sFl}', 0, fl)}
    s_mov_b64 exec, -1
    {l}:""")

def wait_flags(a, va, so, thr, tmp=10, sleep=2):
    l = a.lab('wf')
    a(f"""s_branch {l}_go
    {l}:
    s_sleep {sleep}
    s_add_u32 s{S_TO}, s{S_TO}, 1
    s_cmp_gt_u32 s{S_TO}, {TO_LIMIT}
    s_cbranch_scc1 L_exit
    {l}_go:
    {W('load_dword', f'v{tmp}', va, so, 0, 'sc1')}
    s_waitcnt vmcnt(0)
    v_cmp_gt_u32 vcc, {thr}, v{tmp}
    s_cbranch_vccnz {l}""")

def init_done(a, P):
    if not P['live']: return
    l = a.lab('idn')
    a(f"""s_cmp_lg_u32 s{S_WAVE}, 0
    s_cbranch_scc1 {l}
    v_mov_b32 v10, {DBG_INIT}
    v_mov_b32 v11, 1
    s_waitcnt vmcnt(0)
    s_mov_b64 exec, 1
    buffer_atomic_add v11, v10, s[{SRD_D}:{SRD_D+3}], 0 offen sc1
    s_mov_b64 exec, -1
    {l}:""")

def wait_init(a, n):
    l = a.lab('wi')
    a(f"""v_mov_b32 v11, {DBG_INIT}
    s_branch {l}_go
    {l}:
    s_sleep 4
    s_add_u32 s{S_TO}, s{S_TO}, 1
    s_cmp_gt_u32 s{S_TO}, {TO_LIMIT}
    s_cbranch_scc1 L_exit
    {l}_go:
    buffer_load_dword v10, v11, s[{SRD_D}:{SRD_D+3}], 0 offen sc1
    s_waitcnt vmcnt(0)
    v_cmp_gt_u32 vcc, {n}, v10
    s_cbranch_vccnz {l}""")

def load_w(a, rstride, nblk, RC, nchunk, nbuf, mapt, ntile, pr0, dest, private=False, tv=16):
    csz = nblk*RC*128
    vS, vB, vT = tv, tv+1, tv+2
    tmp = tv+2+ntile
    a(f"""v_lshrrev_b32 v{tmp}, 3, v{vLn}
    v_mul_u32_u24 v{vS}, {rstride}, v{tmp}""")
    if mapt == 'A':
        a(f"""v_bfe_u32 v{tmp}, v{tmp}, 1, 1
        s_and_b32 s{sT0}, s{S_WAVE}, 1
        s_lshl_b32 s{sT0}, s{sT0}, 1
        v_add_u32 v{tmp}, s{sT0}, v{tmp}""")
    else:
        a(f'v_lshrrev_b32 v{tmp}, 1, v{tmp}')
    a(f"""v_lshlrev_b32 v{tmp}, 1, v{tmp}
    v_and_b32 v{tmp+1}, 7, v{vLn}
    v_xor_b32 v{tmp}, v{tmp}, v{tmp+1}
    v_lshl_add_u32 v{vS}, v{tmp}, 4, v{vS}
    v_lshrrev_b32 v{tmp}, 2, v{vN}
    v_lshl_add_u32 v{vB}, v{vG}, {3 if mapt == 'A' else 2}, v{tmp}
    v_lshlrev_b32 v{vB}, 7, v{vB}
    v_and_b32 v{tmp+1}, 3, v{vN}
    v_lshl_add_u32 v{vB}, v{tmp+1}, 3, v{vB}
    v_lshrrev_b32 v{tmp}, 1, v{tmp}
    v_and_b32 v{tmp+1}, 1, v{vG}
    v_lshl_add_u32 v{tmp}, v{tmp+1}, 1, v{tmp}""")
    if private:
        assert mapt == 'B' and nchunk == 1
        a(f's_mul_i32 s{sT3}, s{S_WAVE}, {csz}\ns_mov_b32 s{sT2}, s{sCol}\nv_add_u32 v{vB}, s{sT3}, v{vB}')
    else:
        a(f"""s_lshl_b32 s{sT3}, s{S_WAVE}, 10
        s_mul_i32 s{sT2}, s{S_WAVE}, {8*rstride}
        s_add_u32 s{sT2}, s{sT2}, s{sCol}""")
    for t in range(ntile):
        a(f"""s_add_u32 s{sT0}, {pr0}, {t}
        s_and_b32 s{sT1}, s{sT0}, 3
        s_lshr_b32 s{sT0}, s{sT0}, 2
        s_mul_i32 s{sT0}, s{sT0}, {RC*128}
        v_xor_b32 v{tmp+1}, s{sT1}, v{tmp}
        v_lshl_add_u32 v{tmp+1}, v{tmp+1}, 5, v{vB}
        v_add_u32 v{vT+t}, s{sT0}, v{tmp+1}""")
    nq = RC//8 if private else RC//32
    rsk = 8 if private else 32
    per = nblk*nq
    def issue(c):
        for q in range(nq):
            for b in range(nblk):
                a(f"""s_add_u32 m0, s{sT3}, {(c % nbuf)*csz + b*RC*128 + q*rsk*128}
                s_add_u32 s{sT0}, s{sT2}, {(c*RC + q*rsk)*rstride + b*128}
                buffer_load_dwordx4 v{vS}, s[{SRD_A}:{SRD_A+3}], s{sT0} offen lds""")
    assert per*min(nbuf, nchunk) <= 63
    for c in range(min(nbuf, nchunk)): issue(c)
    for c in range(nchunk):
        left = min(nchunk, c+nbuf) - c - 1
        a(f's_waitcnt vmcnt({per*left})')
        if not private: a('s_barrier')
        cnt = 0
        for t in range(ntile):
            a(f'v_add_u32 v{tmp+1+(t&1)}, {(c % nbuf)*csz}, v{vT+t}')
            for k in range(RC//32):
                for v in range(2):
                    off = (32*k + (4 if mapt == 'A' else 16)*v)*128
                    a(f'ds_read_b64_tr_b16 {dest(t, c*(RC//32)+k, v)}, v{tmp+1+(t&1)} offset:{off}')
                    cnt += 1
                    if cnt % 8 == 0: a('s_waitcnt lgkmcnt(6)')
        a('s_waitcnt lgkmcnt(0)')
        if not private: a('s_barrier')
        if c+nbuf < nchunk: issue(c+nbuf)

XBUF = 40960
FR = 16
AC = 48
EP = 96

def x_setup(a):
    srd(a, SRD_B, P_X, 2048*1280)
    a(f"""v_lshrrev_b32 v10, 3, v{vLn}
    v_mul_u32_u24 v{vXs}, 1280, v10
    v_lshrrev_b32 v10, 1, v10
    s_and_b32 s{sT0}, s{S_WAVE}, 1
    s_lshl_b32 s{sT0}, s{sT0}, 2
    v_add_u32 v10, s{sT0}, v10
    v_and_b32 v11, 7, v{vLn}
    v_xor_b32 v10, v10, v11
    v_lshl_add_u32 v{vXs}, v10, 4, v{vXs}
    s_mul_i32 s{sT0}, s{S_WAVE}, {8*1280}
    s_add_u32 s{sXo}, s{sXo}, s{sT0}
    s_mul_i32 s{sBufW}, s{S_WAVE}, 10240
    v_lshrrev_b32 v10, 3, v{vN}
    v_mul_u32_u24 v10, 10240, v10
    v_and_b32 v11, 7, v{vN}
    v_lshl_add_u32 v10, v11, 7, v10
    v_lshrrev_b32 v11, 1, v{vN}
    v_xor_b32 v11, v11, v{vG}
    v_lshl_add_u32 v{vR0}, v11, 4, v10
    v_xor_b32 v11, 4, v11
    v_lshl_add_u32 v{vR1}, v11, 4, v10
    s_mov_b32 s{sBufR}, 0""")

def x_dma(strided=False):
    L = [f's_add_u32 m0, s{sBufW}, {896*l}\ns_nop 0\nbuffer_load_dwordx4 v{vXs}, s[{SRD_B}:{SRD_B+3}], s{sXo} offen offset:{128*l} lds' for l in range(10)]
    L.append(f"""s_add_u32 s{sXo}, s{sXo}, {f's{sXs}' if strided else XBUF}
    s_add_u32 s{sBufW}, s{sBufW}, {XBUF}
    s_cmp_ge_u32 s{sBufW}, {3*XBUF}
    s_cselect_b32 s{sT0}, {3*XBUF}, 0
    s_sub_u32 s{sBufW}, s{sBufW}, s{sT0}""")
    return L

def x_rd(k):
    return [f'ds_read_b128 {vr(FR+8*(k%4)+4*xt)}, v{vR0+(k&1)} offset:{20480*xt+1024*(k>>1)}' for xt in range(2)]

def serial(a, x):
    if x.startswith('G|'): return
    if x[0] == 'W':
        a.nop(int(x[1])); x = x[3:]
    a(x)

def gemm_loop(a, name, nt, orient, epi, post=None, early=None, after_bar=None, cinit='0', relaxed=False, late_fill=None, strided=False, defer=None, drain=True, mid=None):
    for s in x_dma(strided): a(s)
    for s in x_dma(strided): a(s)
    a('s_waitcnt vmcnt(10)\ns_barrier')
    for s in x_rd(0) + x_rd(1): a(s)
    a(f's_mov_b32 s{sOut}, {OOB}\ns_waitcnt lgkmcnt(2)')
    if EXP.get('stamp'): a('s_memtime s[92:93]\ns_memrealtime s[100:101]\ns_waitcnt lgkmcnt(0)')
    a(f'.p2align 6\nL_{name}_loop:')
    for p in range(2 if epi else 1):
        acc = AC + 24*p; prev = AC + 24*(1-p)
        head = early() if early else []
        main = (epi(prev) if epi else []) + (defer() if defer else [])
        dm = x_dma(strided)
        dl = []
        for x in dm[:-1]:
            m0, _, ld = x.split('\n')
            dl += [ld, m0][::-1]
        tl = [y.strip() for y in dm[-1].split('\n')]
        dl += [tl[0], tl[1], tl[2]+'\n'+tl[3], tl[4]]
        side = [f's_add_u32 s{sBufR}, s{sBufR}, {XBUF}', f's_cmp_ge_u32 s{sBufR}, {3*XBUF}\ns_cselect_b32 s{sDl}, {3*XBUF}, 0',
                f's_sub_u32 s{sBufR}, s{sBufR}, s{sDl}', f's_sub_u32 s{sDl}, {XBUF}, s{sDl}']
        nst = sum('buffer_store' in x for x in main)
        nwait = 10 + (nst if relaxed else 0)
        nmf = 2*nt
        g0 = 8 if nmf > 2 else 8
        ngap = 18*nmf
        if mid: dl = dl[:10] + mid + dl[10:]
        side = head + side + dl
        nfree = len(head) + 4
        lf = late_fill() if late_fill else []
        S = dict(since=0, ins=99, hold=0, t=0, vm=None)
        def put(x, ismain=False):
            for y in x.split('\n'):
                y = y.strip()
                if y.endswith(':'): a(y); continue
                v = y.startswith('v_')
                S['t'] = (max(S['t'], 8) if v else S['t']) + (8 if ('v_exp' in y or 'v_rcp' in y or 'permlane' in y) else 4)
                if ismain and y.startswith('ds_'): S['since'] = 0
                a(y.replace('lgkmcnt(0)', f"lgkmcnt({min(S['since'], 15)})") if ismain else y)
                S['ins'] += 1
                if y.startswith('buffer_') and S['vm'] is not None: S['vm'] += 1
            if mid and x == mid[-1]: S['vm'] = 0
            if ismain: S['ins'] = 0
        def fits(x):
            y = x.split('\n')[0]
            v = y.startswith('v_')
            return (max(S['t'], 8) if v else S['t']) + (8 if ('v_exp' in y or 'v_rcp' in y or 'permlane' in y) else 4) <= over[0]
        over = [16]
        need = sum(2 if ('v_exp' in x or 'v_rcp' in x or 'permlane' in x) else 1 for x in main) + len(side)
        have = (ngap-g0)*2 + (ngap*(nmf-3))//nmf + g0
        gi = 0; dstart = None
        for k in range(20):
            if k == 18:
                for x in side: put(x); a('s_nop 0')
                for x in main: serial(a, x)
                if mid: nwait = min(nwait, S['vm'])
                side, main = [], []
                a(f"""s_waitcnt vmcnt({nwait}) lgkmcnt(0)
                s_barrier""")
            rd = x_rd(k+2) if k < 18 else x_rd(k-18)
            i = 0
            for t in range(nt):
                for xt in range(2):
                    d = vr(acc + 4*(2*t+xt)); wv = ar((t*20+k)*4); xv = vr(FR+8*(k%4)+4*xt)
                    c = cinit if k == 0 else d
                    a(f'v_mfma_f32_16x16x32_bf16 {d}, {wv}, {xv}, {c}' if orient == 'T' else f'v_mfma_f32_16x16x32_bf16 {d}, {xv}, {wv}, {c}')
                    S['t'] = 4; S['ins'] += 1
                    if i < 2: put(rd[i]); S['since'] += 1
                    if i == nmf-1 and k not in (17, 18): put('s_waitcnt lgkmcnt(2)')
                    if k == 17 and i == 0: put(f'v_add_u32 v{vR0}, s{sDl}, v{vR0}')
                    if k == 17 and i == 1: put(f'v_add_u32 v{vR1}, s{sDl}, v{vR1}')
                    if k < 18:
                        over[0] = 20 if (need > have*0.9 and gi % 2) else 16
                        stores_left = any('buffer_store' in x for x in main)
                        n = 0
                        while side and fits(side[0]) and n < 2:
                            if nfree > 0: nfree -= 1
                            else:
                                if not relaxed and stores_left: break
                                if dstart is None: dstart = (gi, len(side))
                                if (dstart[1]-len(side))*(ngap-2-dstart[0]) > (gi-dstart[0]+1)*dstart[1]: break
                                if main and gi >= g0 and S['t'] > 4 and (ngap-gi)*max(nmf-3, 0) >= len(side)*nmf: break
                            x = side.pop(0); put(x); n += 1
                            if 'm0' in x: break
                        if S['hold'] > 0: S['hold'] -= 1
                        while main and gi >= g0-1 and S['hold'] == 0:
                            x = main[0]
                            if x.startswith('G|'):
                                S['hold'] = int(x[2:]); main.pop(0); break
                            if x[0] == 'W':
                                if S['ins'] < int(x[1]): break
                                x = x[3:]
                            if not fits(x): break
                            main.pop(0); put(x, True)
                            if 'ds_write_b128' in x: S['hold'] = 2; break
                        gi += 1
                    else:
                        while lf and fits(lf[0]): put(lf.pop(0))
                    if k == 19 and i == 2 and after_bar: after_bar(a)
                    i += 1
        while lf: a(lf.pop(0))
        if post: post(a, acc)
        a(f's_mov_b32 s{sOut}, s{sOutN}')
        a(f's_add_u32 s{S_STEP}, s{S_STEP}, ' + (f's{sStr}' if strided else '1'))
    a(f"""s_cmp_lt_u32 s{S_STEP}, s{sEnd}
    s_cbranch_scc1 L_{name}_loop""")
    if epi:
        a.nop(8)
        for s in epi(AC+24): serial(a, s)
    if drain: a('s_waitcnt vmcnt(0) lgkmcnt(0)\ns_barrier')

def epi_plain(nt, stride, fl, phi=False):
    def f(acc):
        L = []
        for t in range(nt):
            o = EP + 4*t
            for xt in range(2):
                b = acc + 4*(2*t+xt)
                if phi:
                    e = EP + 16
                    L += [f'v_fma_f32 v{e+i}, v{b+i}, s{sC2}, v{EP+24}' for i in range(4)]
                    L += [f'v_exp_f32 v{e+i}, v{e+i} clamp' for i in range(4)]
                    L += [f'v_max_f32 v{b+i}, v{EP+20}, v{b+i}' for i in range(4)]
                    L += [f'v_add_f32 v{b+i}, v{b+i}, v{e+i}' for i in range(4)]
                L += [f'v_cvt_pk_bf16_f32 v{o+2*xt}, v{b}, v{b+1}', f'v_cvt_pk_bf16_f32 v{o+2*xt+1}, v{b+2}, v{b+3}']
            L.append(W('store_dwordx4', vr(o), vL16, f's{sOut}', 1024*t, fl))
        L.append(f's_add_u32 s{sOutN}, s{sOutN}, {stride}')
        return L
    return f

def head_ids(a):
    a(f"""s_sub_u32 s{sH}, s{S_X}, 4
    s_lshl_b32 s{sH}, s{sH}, 3
    s_lshr_b32 s{sT0}, s{S_J}, 2
    s_add_u32 s{sH}, s{sH}, s{sT0}
    s_lshl_b32 s{sFl}, s{S_X}, 5
    s_add_u32 s{sFl}, s{sFl}, s{S_J}
    s_lshl_b32 s{sFl}, s{sFl}, 7
    s_add_u32 s{sFl}, s{sFl}, {FL_OFF}""")

def touch_rows(a, ptr, part, nparts):
    rows = 640//(8*nparts)//4
    srd(a, SRD_A, ptr, 640*6144*2)
    a(f"""s_and_b32 s{sT0}, s{sH}, 7
    s_mul_i32 s{sT0}, s{sT0}, {nparts}
    s_add_u32 s{sT0}, s{sT0}, {part}
    s_lshl_b32 s{sT0}, s{sT0}, 2
    s_add_u32 s{sT0}, s{sT0}, s{S_WAVE}
    s_mul_i32 s{sT0}, s{sT0}, {rows*12288}
    s_lshr_b32 s{sT1}, s{sH}, 3
    s_mul_i32 s{sT1}, s{sT1}, 3072
    s_add_u32 s{sT0}, s{sT0}, s{sT1}""")
    for i in range(2):
        a(f"""v_min_u32 v10, 59, v{vLn}
        v_add_u32 v10, {60*i}, v10
        v_mul_u32_u24 v11, 0xaab, v10
        v_lshrrev_b32 v11, 16, v11
        v_mul_u32_u24 v12, 24, v11
        v_sub_u32 v10, v10, v12
        v_mul_u32_u24 v11, 12288, v11
        v_lshl_add_u32 v{13+i}, v10, 7, v11""")
    for r in range(rows//5):
        a(f"""buffer_load_dword v255, v13, s[{SRD_A}:{SRD_A+3}], s{sT0} offen
        buffer_load_dword v255, v14, s[{SRD_A}:{SRD_A+3}], s{sT0} offen
        s_add_u32 s{sT0}, s{sT0}, {5*12288}""")

def touch_lin(a, ptr, nbytes):
    srd(a, SRD_A, ptr, nbytes)
    a(f"""s_lshl_b32 s{sT0}, s{sH}, 2
    s_add_u32 s{sT0}, s{sT0}, s{S_WAVE}
    s_lshl_b32 s{sT0}, s{sT0}, 13
    v_lshlrev_b32 v10, 7, v{vLn}""")
    for i in range((nbytes + (1 << 20) - 1) >> 20):
        a(f'buffer_load_dword v255, v10, s[{SRD_A}:{SRD_A+3}], s{sT0} offen\ns_add_u32 s{sT0}, s{sT0}, {1<<20}')

def touch_x(a):
    srd(a, SRD_A, P_X, 2048*1280)
    a(f"""s_lshl_b32 s{sT0}, s{sH}, 2
    s_add_u32 s{sT0}, s{sT0}, s{S_WAVE}
    s_lshl_b32 s{sT0}, s{sT0}, 7
    v_lshlrev_b32 v10, 14, v{vLn}""")
    for i in range(3):
        a(f'buffer_load_dword v255, v10, s[{SRD_A}:{SRD_A+3}], s{sT0} offen\ns_add_u32 s{sT0}, s{sT0}, {1<<20}')

def w_head(a, ptr):
    srd(a, SRD_A, ptr, 640*6144*2)
    a(f's_mul_i32 s{sCol}, s{sH}, 384\ns_mul_i32 s{sI}, s{S_WAVE}, 3')
    load_w(a, 12288, 3, 160, 4, 2, 'A', 3, f's{sI}', lambda t, k, v: ar((t*20+k)*4+2*v, 2))

def kv_role(a, name, ptr, off, fl, P):
    a(f'L_{name}:')
    if name == 'k' and P['help']:
        a('s_waitcnt vmcnt(0)\ns_barrier')
        init_done(a, P)
        if P['help'] & 2: touch_rows(a, P_WK, 0, 2)
    w_head(a, ptr)
    if not (name == 'k' and P['help']): init_done(a, P)
    a(f"""s_mov_b32 s{S_STEP}, 0
    s_mov_b32 s{sEnd}, 64
    s_mov_b32 s{sXo}, 0
    s_mul_i32 s{sOutN}, s{sH}, 12288
    s_mul_i32 s{sT0}, s{S_WAVE}, 3072
    s_add_u32 s{sOutN}, s{sOutN}, s{sT0}
    s_add_u32 s{sOutN}, s{sOutN}, {off - 32*12288}""")
    dmark(a, 0)
    x_setup(a)
    gemm_loop(a, name, 3, 'T', epi_plain(3, 32*12288, fl), after_bar=lambda a: set_flag(a, f's{S_STEP}', fl))
    set_flag(a, 64, fl)
    dmark(a, 1)
    a(P['after_'+name])

def y_role(a, P):
    a('L_y:')
    srd(a, SRD_A, P_WO, 32*192*640*2)
    a(f's_mul_i32 s{sCol}, s{sH}, {192*1280}\ns_mul_i32 s{sI}, s{S_WAVE}, 10')
    load_w(a, 1280, 10, 32, 6, 3, 'B', 10, f's{sI}', lambda t, k, v: ar((t*6+k)*4+2*v, 2))
    dmark(a, 0)
    P['y_init'](a)
    init_done(a, P)
    if P['help'] & 4: touch_rows(a, P_WQ, 1, 2)
    a('s_waitcnt vmcnt(0)\ns_barrier')
    P['pre_y'](a)
    VB = 12288; NBUF = 4
    FA = 16
    a(f"""s_mov_b32 s{S_STEP}, 0
    s_mov_b32 s{sKn}, {P['v_known']}
    s_sub_u32 s{sFv}, s{sFl}, 128
    s_mul_i32 s{sXo}, s{sH}, 12288
    s_mul_i32 s{sT0}, s{S_WAVE}, 3072
    s_add_u32 s{sXo}, s{sXo}, s{sT0}
    s_add_u32 s{sXo}, s{sXo}, {V_OFF}
    s_mov_b32 s{sBufW}, s{sT0}
    s_mul_i32 s{sOut}, s{sH}, 40960
    s_mul_i32 s{sT0}, s{S_WAVE}, 10240
    s_add_u32 s{sOut}, s{sOut}, s{sT0}
    s_add_u32 s{sOut}, s{sOut}, {Y_OFF}
    s_mov_b32 s{sOutN}, {OOB}
    s_mov_b32 s{sEnd}, 0
    v_mov_b32 v{vR0}, v{vL16}
    v_add_u32 v{vR1}, 8, v{vL16}
    v_add_u32 v12, 4096, v{vYp}
    v_add_u32 v13, 8192, v{vYp}
    s_lshl_b32 s{sT0}, s{S_WAVE}, 6
    v_add_u32 v15, s{sT0}, v{vLn}
    v_min_u32 v15, 1, v15
    v_mul_u32_u24 v15, 0xf00000, v15
    v_lshlrev_b32 v15, 8, v15""")
    def need():
        l = a.lab('nv')
        a(f"""s_cmp_gt_u32 s{sKn}, s{sEnd}
        s_cbranch_scc1 {l}
        s_add_u32 s{sT1}, s{sEnd}, 1
        s_min_u32 s{sT1}, s{sT1}, 64""")
        wait_flags(a, vZ, f's{sFv}', f's{sT1}', sleep=1)
        a(f'v_readfirstlane_b32 s{sKn}, v10\n{l}:')
    def vdma():
        L = [f's_mov_b32 m0, s{sBufW}\ns_nop 0'] + [f'buffer_load_dwordx4 v{vL16}, s[{SRD_W}:{SRD_W+3}], s{sXo} offen offset:{1024*i} sc1 lds' for i in range(3)]
        L.append(f"""s_add_u32 s{sXo}, s{sXo}, {32*12288}
        s_add_u32 s{sEnd}, s{sEnd}, 1
        s_add_u32 s{sBufW}, s{sBufW}, {VB}
        s_cmp_ge_u32 s{sBufW}, {2*VB}
        s_cselect_b32 s{sT0}, {2*VB}, 0
        s_sub_u32 s{sBufW}, s{sBufW}, s{sT0}""")
        return L
    def vrd(p):
        return [f'ds_read2st64_b64 {vr(FA+48*p+8*k+4*xt)}, v{vR0+xt} offset0:{24*p+4*k} offset1:{24*p+4*k+2}' for k in range(6) for xt in range(2)]
    need()
    for s in vdma(): a(s)
    a('s_waitcnt vmcnt(0)\ns_barrier')
    for s in vrd(0): a(s)
    dmark(a, 1)
    if EXP.get('stamp'): a('s_memtime s[92:93]\ns_memrealtime s[100:101]\ns_waitcnt lgkmcnt(0)')
    a('.p2align 6\nL_y_loop:')
    def ep(t, so):
        b = 112 + 8*(t & 1); o = 128 + 4*(t & 1)
        return [f'v_cvt_pk_bf16_f32 v{o}, v{b}, v{b+1}', f'v_cvt_pk_bf16_f32 v{o+1}, v{b+2}, v{b+3}',
                f'v_cvt_pk_bf16_f32 v{o+2}, v{b+4}, v{b+5}', f'v_cvt_pk_bf16_f32 v{o+3}, v{b+6}, v{b+7}',
                W('store_dwordx4', vr(o), (vYp, 12, 13)[t >> 2], so, 1024*(t & 3), 'sc1')]
    for p in range(2):
        need()
        a('s_waitcnt lgkmcnt(0)')
        vd = vdma(); tl = vd[-1].split('\n')
        for t in range(10):
            fill = ep(9, f's{sOutN}') if t == 0 else ep(t-1, f's{sOut}')
            pre = ['']*7
            if t == 0: pre = [f's_mov_b32 m0, s{sBufW}', vd[1], '', vd[2], '', vd[3], P['y_refresh']]
            if t == 1: pre = [tl[0], tl[1], tl[2], tl[3]+'\n'+tl[4], tl[5], '', '']
            if t == 6:
                a('s_waitcnt vmcnt(5)\ns_barrier')
                pre[5] = P['y_update']
            if t >= 6:
                r = vrd(1-p)[3*(t-6):3*(t-6)+3]
                pre[0], pre[3], pre[6] = r
            mm = []
            for k in range(6):
                for xt in range(2):
                    d = vr(112+8*(t & 1)+4*xt)
                    mm.append(f'v_mfma_f32_16x16x32_bf16 {d}, {vr(FA+48*p+8*k+4*xt)}, {ar((t*6+k)*4)}, {"0" if k == 0 else d}')
            if t == 7:
                pre[1] = f'v_mov_b32 v14, s{S_STEP}'
                pre[4] = W('store_dword', 'v14', 15, f's{sFl}', 0, 'sc1')
            if t == 9:
                fill[4] += f'\ns_mov_b32 s{sOutN}, s{sOut}\ns_add_u32 s{sOut}, s{sOut}, {32*40960}'
                pre[1] = f's_add_u32 s{S_STEP}, s{S_STEP}, 1'
            seq = interleave(mm[:7], pre, 1) + interleave(mm[7:], fill, 1)
            for s in seq: a(s)
    a(f"""s_cmp_lt_u32 s{S_STEP}, 64
    s_cbranch_scc1 L_y_loop""")
    a.nop(8)
    for s in ep(9, f's{sOutN}'): a(s)
    a('s_waitcnt vmcnt(0) lgkmcnt(0)\ns_barrier')
    set_flag(a, 64)
    a(P['after_y'])

def q_flags(a):
    a(f"""v_and_b32 v{vFa}, 31, v{vLn}
    v_lshlrev_b32 v{vFa}, 9, v{vFa}
    v_add_u32 v{vFa}, {flag_addr(4, 0)}, v{vFa}""")

def alpha_role(a, P):
    a('L_alpha:')
    a(f"""s_and_b32 s{sT0}, s{sH}, 1
    s_lshl_b32 s{S_STEP}, s{sT0}, 5
    s_bitcmp1_b32 s{S_J}, 0
    s_cselect_b32 s{sT0}, 0, {P['asplit']}
    s_cselect_b32 s{sT1}, {P['asplit']}, 32
    s_add_u32 s{sEnd}, s{S_STEP}, s{sT1}
    s_add_u32 s{S_STEP}, s{S_STEP}, s{sT0}
    s_mul_i32 s{sXo}, s{S_STEP}, {XBUF}
    s_and_b32 s{sB}, s{sH}, 6
    s_lshl_b32 s{sB}, s{sB}, 1
    s_add_u32 s{sB}, s{sB}, s{S_WAVE}
    s_mul_i32 s{sQt}, s{sB}, 0x3334
    s_lshr_b32 s{sQt}, s{sQt}, 16              ; 0 q, 1 k, 2 v, 3 gate
    s_mul_i32 s{sT2}, s{sQt}, 5
    s_sub_u32 s{sT2}, s{sB}, s{sT2}
    s_lshr_b32 s{sT1}, s{sH}, 3
    s_mul_i32 s{sT1}, s{sT1}, 5
    s_add_u32 s{sT2}, s{sT2}, s{sT1}
    s_mul_i32 s{sCol}, s{sQt}, 1280
    s_lshl_b32 s{sT1}, s{sT2}, 6
    s_add_u32 s{sCol}, s{sCol}, s{sT1}
    s_mul_i32 s{sOutN}, s{sQt}, {PK_OFF-PQ_OFF}
    s_lshl_b32 s{sT2}, s{sT2}, 11
    s_add_u32 s{sOutN}, s{sOutN}, s{sT2}
    s_add_u32 s{sOutN}, s{sOutN}, s{sXo}
    s_add_u32 s{sOutN}, s{sOutN}, {PQ_OFF - 40960}
    s_mov_b32 s{sC2}, {fbits(math.log2(math.e))}
    v_mov_b32 v{EP+20}, {fbits(1e-6)}
    v_mov_b32 v{EP+21}, {fbits(1e-6)}
    v_mov_b32 v{EP+22}, {fbits(1e-6)}
    v_mov_b32 v{EP+23}, {fbits(1e-6)}
    v_mov_b32 v{EP+24}, {fbits(-1e-6*math.log2(math.e))}
    s_cmp_eq_u32 s{sQt}, 3
    s_cbranch_scc1 L_gate""")
    srd(a, SRD_A, P_WQKV, 640*1920*2)
    a(f"""v_lshrrev_b32 v16, 2, v{vLn}
    v_mul_u32_u24 v17, 3840, v16
    v_lshrrev_b32 v16, 3, v16
    v_lshlrev_b32 v16, 1, v16
    v_and_b32 v18, 3, v{vLn}
    v_xor_b32 v16, v16, v18
    v_lshl_add_u32 v17, v16, 4, v17
    s_mul_i32 s{sT3}, s{S_WAVE}, 40960
    v_lshrrev_b32 v16, 2, v{vN}
    v_lshl_add_u32 v16, v{vG}, 3, v16
    v_lshlrev_b32 v16, 6, v16
    v_and_b32 v18, 3, v{vN}
    v_lshl_add_u32 v16, v18, 3, v16
    v_add_u32 v16, s{sT3}, v16
    v_and_b32 v18, 1, v{vG}
    v_lshl_add_u32 v19, v18, 5, v16
    v_xor_b32 v18, 1, v18
    v_lshl_add_u32 v20, v18, 5, v16""")
    for i in range(40):
        a(f"""s_add_u32 m0, s{sT3}, {1024*i}
        s_add_u32 s{sT0}, s{sCol}, {16*i*3840}
        buffer_load_dwordx4 v17, s[{SRD_A}:{SRD_A+3}], s{sT0} offen lds""")
    for k in range(20):
        a(f's_waitcnt vmcnt({38-2*k}) lgkmcnt(8)')
        for t in range(2):
            for v in range(2):
                a(f'ds_read_b64_tr_b16 {ar((t*20+k)*4+2*v, 2)}, v{19+t} offset:{(32*k+4*v)*64}')
    a('s_waitcnt lgkmcnt(0)\ns_barrier')
    x_setup(a)
    a(f"""s_cmp_eq_u32 s{sQt}, 1
    s_cbranch_scc1 L_alk
    s_cmp_eq_u32 s{sQt}, 2
    s_cbranch_scc1 L_alv""")
    gemm_loop(a, 'alq', 2, 'T', epi_plain(2, 40960, '', True), cinit=vr(EP+20), relaxed=True)
    a('s_branch L_alpha_done\nL_alk:')
    gemm_loop(a, 'alk', 2, 'N', epi_plain(2, 40960, '', True), cinit=vr(EP+20), relaxed=True)
    a('s_branch L_alpha_done\nL_alv:')
    gemm_loop(a, 'alv', 2, 'N', epi_plain(2, 40960, '', False), relaxed=True)
    a('s_branch L_alpha_done\nL_gate:')
    srd(a, SRD_A, P_GATE, 1280)
    a(f'v_lshlrev_b32 v10, 4, v{vG}')
    for k in range(20): a(f'buffer_load_dwordx4 {ar(4*k)}, v10, s[{SRD_A}:{SRD_A+3}], 0 offen offset:{64*k}')
    a(f"""s_lshl_b32 s{sOutN}, s{S_STEP}, 7
    s_lshl_b32 s{sT0}, s{S_X}, 13
    s_add_u32 s{sOutN}, s{sOutN}, s{sT0}
    s_add_u32 s{sOutN}, s{sOutN}, {GT_OFF - 128}
    v_lshlrev_b32 v{vFa}, 2, v{vN}
    s_waitcnt vmcnt(0)
    s_barrier""")
    x_setup(a)
    def epi_gate(acc):
        L = []
        for xt in range(2):
            b = acc + 4*xt; o = EP + xt
            L += [f'v_mul_f32 v{o}, s{sC2}, v{b}', f'v_exp_f32 v{o}, -v{o}', f'W1|v_add_f32 v{o}, 1.0, v{o}', f'v_rcp_f32 v{o}, v{o}',
                  'W1|' + W('store_dword', f'v{o}', vFa, f's{sOut}', 64*xt)]
        L.append(f's_add_u32 s{sOutN}, s{sOutN}, 128')
        return L
    gemm_loop(a, 'gate', 1, 'T', epi_gate, relaxed=True)
    a('L_alpha_done:')
    dmark(a, 2)
    set_flag(a, 65)

PAIRS = [(i, j) for i in range(5) for j in range(5) if abs(i-j) <= 1]

def beta_role(a, P):
    a('L_beta:')
    q_flags(a)
    P['pre_beta'](a)
    ACC = 16
    RING = 96
    a(f"""s_lshr_b32 s{sB}, s{sH}, 2
    s_and_b32 s{sQt}, s{sH}, 3
    s_lshl_b32 s{sT0}, s{sQt}, 2
    s_add_u32 s{sT0}, s{sT0}, s{S_WAVE}
    s_lshl_b32 s{sT0}, s{sT0}, 2
    s_lshl_b32 s{sGt}, s{sT0}, 7
    s_lshl_b32 s{sT1}, s{S_X}, 13
    s_add_u32 s{sGt}, s{sGt}, s{sT1}
    s_add_u32 s{sGt}, s{sGt}, {GT_OFF}
    s_mul_i32 s{sO}, s{sT0}, 40960
    s_mul_i32 s{sT2}, s{sB}, 5120
    s_add_u32 s{sO}, s{sO}, s{sT2}
    v_add_u32 v11, 4096, v{vL16}
    v_mov_b32 v12, 0x3f803f80
    v_mov_b32 v13, 0x3f803f80
    v_mov_b32 v14, 0x3f803f80
    v_mov_b32 v15, 0x3f803f80""")
    for i in range(4):
        b = RING + 40*i
        a(f's_add_u32 s{sT0}, s{sO}, {PK_OFF + i*40960}\ns_add_u32 s{sT1}, s{sO}, {VV_OFF + i*40960}')
        for h, so in ((0, sT0), (1, sT1)):
            for t in range(5): a(W('load_dwordx4', vr(b+20*h+4*t), vL16 if t < 4 else 11, f's{so}', 1024*(t & 3), 'sc1'))
    for i in range(4):
        a(f's_waitcnt vmcnt({10*(3-i)})')
        b = RING + 40*i
        for n_, (p, q) in enumerate(PAIRS):
            d = vr(ACC+4*n_)
            a(f'v_mfma_f32_16x16x32_bf16 {d}, {vr(b+4*p)}, {vr(b+20+4*q)}, {"0" if i == 0 else d}')
        for p in range(5):
            d = vr(ACC+4*(13+p))
            a(f'v_mfma_f32_16x16x32_bf16 {d}, {vr(b+4*p)}, v[12:15], {"0" if i == 0 else d}')
    a(f"""s_mul_i32 s{sT0}, s{S_WAVE}, 20480
    v_add_u32 v88, s{sT0}, v{vL16}
    s_lshl_b32 s{sT0}, s{S_WAVE}, 10
    v_add_u32 v89, s{sT0}, v{vL16}
    v_add_u32 v90, 40960, v89
    s_mul_i32 s{sK}, s{sB}, {4*20480}
    s_add_u32 s{sK}, s{sK}, {KV_OFF}""")
    for n_ in range(18):
        a(f'ds_write_b128 v88, {vr(ACC+4*n_)} offset:{1024*n_}')
        if n_ % 8 == 7: a('s_waitcnt lgkmcnt(4)')
    a('s_waitcnt lgkmcnt(0)\ns_barrier')
    def sum4(d):
        for x, y in ((d, d+4), (d+8, d+12), (d, d+8)):
            a(f'v_pk_add_f32 v[{x}:{x+1}], v[{x}:{x+1}], v[{y}:{y+1}]\nv_pk_add_f32 v[{x+2}:{x+3}], v[{x+2}:{x+3}], v[{y+2}:{y+3}]')
    SM = 176
    for m in range(5):
        for w in range(4): a(f'ds_read_b128 {vr(SM+16*m+4*w)}, v{89 + (w >> 1)} offset:{20480*(w & 1) + 4096*m}')
        if m >= 2: a('s_waitcnt lgkmcnt(8)')
    a(f's_mul_i32 s{sT0}, s{sQt}, 20480\ns_add_u32 s{sT0}, s{sT0}, s{sK}\ns_waitcnt lgkmcnt(0)')
    for m in range(5):
        sum4(SM+16*m)
        a(W('store_dwordx4', vr(SM+16*m), 89, f's{sT0}'))
        a(f's_add_u32 s{sT0}, s{sT0}, 4096')
    a('s_waitcnt vmcnt(0)\ns_barrier')
    set_flag(a, 66)
    dmark(a, 3)
    P['mid_beta'](a)
    for c in range(4):
        for m in range(5):
            a(f's_add_u32 s{sT0}, s{sK}, {20480*c + 4096*m}')
            a(W('load_dwordx4', vr(SM+16*m+4*c), 89, f's{sT0}', 0, 'sc1'))
    PQ = 96
    a(f'v_lshlrev_b32 v10, 2, v{vN}')
    for i in range(4):
        a(f's_add_u32 s{sT0}, s{sO}, {PQ_OFF + i*40960}')
        for t in range(5): a(W('load_dwordx4', vr(PQ+20*i+4*t), vL16 if t < 4 else 11, f's{sT0}', 1024*(t & 3), 'sc1'))
        for xt in range(2): a(W('load_dword', f'a{2*i+xt}', 10, f's{sGt}', 128*i+64*xt, 'sc1'))
    a(f'v_lshrrev_b32 v88, 1, v89\nv_lshrrev_b32 v90, 1, v{vL16}\ns_waitcnt vmcnt(28)')
    for m in range(5):
        d = SM+16*m
        sum4(d)
        a(f'v_cvt_pk_bf16_f32 v{d}, v{d}, v{d+1}\nv_cvt_pk_bf16_f32 v{d+1}, v{d+2}, v{d+3}\nds_write_b64 v88, v[{d}:{d+1}] offset:{2048*m}')
    a('s_waitcnt lgkmcnt(0)\ns_barrier')
    for n_ in range(18):
        a(f'ds_read_b64 v[{ACC+2*n_}:{ACC+2*n_+1}], v90 offset:{512*n_}')
        if n_ == 9: a('s_waitcnt lgkmcnt(4)')
    zt = lambda i: ACC + 2*(13+i)
    T = 184
    KA, ZA = 200, 226
    for p in range(5):
        a(f"""v_lshlrev_b32 v{T+p}, 2, v{vG}
        v_add_u32 v{T+p}, {16*p}, v{T+p}
        v_mul_u32_u24 v{T+p}, 0xccd, v{T+p}
        v_lshrrev_b32 v{T+p}, 16, v{T+p}
        v_add_u32 v{T+5+p}, {16*p}, v{vN}
        v_mul_u32_u24 v{T+5+p}, 0xccd, v{T+5+p}
        v_lshrrev_b32 v{T+5+p}, 16, v{T+5+p}""")
    a('s_waitcnt lgkmcnt(0)')
    for n_, (p, q) in enumerate(PAIRS):
        d = ACC+2*n_
        a(f"""v_cmp_eq_u32 vcc, v{T+p}, v{T+5+q}
        s_nop 1
        v_cndmask_b32 v{KA+2*n_}, 0, v{d}, vcc
        v_cndmask_b32 v{KA+2*n_+1}, 0, v{d+1}, vcc
        v_cndmask_b32 v{ZA+2*n_}, 0, v{zt(p)}, vcc
        v_cndmask_b32 v{ZA+2*n_+1}, 0, v{zt(p)+1}, vcc""")
    a(f's_mov_b32 s{sT3}, {fbits(1e-6)}\ns_waitcnt vmcnt(0)')
    for i in range(4):
        for q in range(5):
            for xt in range(2):
                for base, A in ((16, KA), (56, ZA)):
                    d = vr(base+8*q+4*xt); first = True
                    for n_, (p, q2) in enumerate(PAIRS):
                        if q2 != q: continue
                        a(f'v_mfma_f32_16x16x16_bf16 {d}, {vr(A+2*n_,2)}, {vr(PQ+20*i+4*p+2*xt,2)}, {"0" if first else d}')
                        first = False
        a(f"""s_add_u32 s{sT0}, s{sO}, {O_OFF + i*40960}
        v_accvgpr_read_b32 v176, a{2*i}
        v_accvgpr_read_b32 v177, a{2*i+1}""")
        a.nop(5)
        for j in range(10): a(f'v_add_f32 v{56+4*j}, s{sT3}, v{56+4*j}')
        for j in range(10): a(f'v_rcp_f32 v{56+4*j}, v{56+4*j}')
        for j in range(10): a(f'v_mul_f32 v{56+4*j}, v{56+4*j}, v{176+(j & 1)}')
        for q in range(5):
            o = T + 4*(q & 1)
            for xt in range(2):
                nb, db = 16+8*q+4*xt, 56+8*q+4*xt
                a(f"""v_pk_mul_f32 v[{nb}:{nb+1}], v[{nb}:{nb+1}], v[{db}:{db+1}] op_sel_hi:[1,0]
                v_pk_mul_f32 v[{nb+2}:{nb+3}], v[{nb+2}:{nb+3}], v[{db}:{db+1}] op_sel_hi:[1,0]
                v_cvt_pk_bf16_f32 v{o+2*xt}, v{nb}, v{nb+1}
                v_cvt_pk_bf16_f32 v{o+2*xt+1}, v{nb+2}, v{nb+3}""")
            a(W('store_dwordx4', vr(o), vL16 if q < 4 else 11, f's{sT0}', 1024*(q & 3), 'sc1'))
    a('s_waitcnt vmcnt(0)\ns_barrier')
    set_flag(a, 67)
    dmark(a, 4)

def q_role(a, P):
    a('L_q:')
    w_head(a, P_WQ)
    P['pre_q'](a)
    KS, KF, KM, QF, D, GT, PR = 96, 108, 124, 132, 148, 168, 170
    vXr, vMr, vPo, vGa, NEG = 171, 172, 173, 13, 174
    SB = 3*XBUF
    a(f"""s_mov_b32 s{sC2}, {P['cexp']}
    s_mov_b32 s{sC2+1}, {P['cexp']}
    s_mov_b32 s{sKn}, {P['r_known']}
    s_mov_b32 s{sKl}, {P['r_known']}
    v_lshrrev_b32 v12, 2, v{vLn}
    v_and_b32 v16, 1, v{vLn}
    v_lshl_add_u32 v12, v12, 1, v16
    v_lshlrev_b32 v205, 4, v12
    v_lshlrev_b32 v12, 3, v12
    s_lshl_b32 s{sT0}, s{S_WAVE}, 12
    s_add_u32 s{sT0}, s{sT0}, {SB}
    v_add_u32 v14, s{sT0}, v{vL16}
    s_lshl_b32 s{sT0}, s{S_WAVE}, 2
    v_and_b32 v16, 3, v{vN}
    v_add_u32 v16, s{sT0}, v16               ; row
    v_bfe_u32 v17, v{vN}, 2, 1               ; xq
    v_lshrrev_b32 v18, 3, v{vN}              ; half
    v_lshl_add_u32 v19, v{vG}, 4, v16
    v_lshlrev_b32 v19, 4, v19
    v_add_u32 v20, v17, v18
    v_lshl_add_u32 v{vXr}, v20, 10, v19
    v_add_u32 v{vXr}, {SB}, v{vXr}
    v_lshl_add_u32 v20, v17, 1, v18
    v_lshl_add_u32 v{vMr}, v20, 2, v19
    v_add_u32 v{vMr}, {SB+3072}, v{vMr}
    v_lshl_add_u32 v{vPo}, v17, 10, v19
    v_lshl_add_u32 v{vPo}, v18, 3, v{vPo}
    v_lshl_add_u32 v16, v17, 4, v16          ; query 0..31
    v_lshlrev_b32 v20, 2, v{vG}
    v_lshl_add_u32 v20, v18, 4, v20
    v_mov_b32 v{NEG}, {fbits(-1e9*math.log2(math.e))}
    v_min_u32 v15, 1, v{vLn}
    v_mul_u32_u24 v15, 0xf00000, v15
    v_lshlrev_b32 v15, 8, v15
    v_add_u32 v15, s{sT0}, v15""")
    for i in range(4):
        a(f'v_add_u32 v11, {i}, v20\nv_cmp_le_u32 s[{sMask+2*i}:{sMask+2*i+1}], v11, v16')
    for r in (KF+6, KF+7, KF+14, KF+15, KM+6, KM+7, QF+6, QF+7, QF+14, QF+15): a(f'v_mov_b32 v{r}, 0')
    dmark(a, 5)
    a(f"""L_q_again:
    s_mul_i32 s{sXo}, s{S_STEP}, {XBUF}
    s_mul_i32 s{sXs}, s{sStr}, {XBUF}""")
    x_setup(a)
    kld = [W('load_dwordx4', vr(KS+4*i), vL16, f's{sK}', 1024*i, 'sc1') for i in range(3)]
    late = [W('load_dwordx4', vr(KM), 205, f's{sKm}', 0, 'sc1'), W('load_dwordx2', vr(KM+4, 2), 12, f's{sKm}', 512, 'sc1')]
    shuf = [f'v_mov_b32 v{KF+8*xt+2*i+r}, v{KS+4*i+2*xt+r}' for i in range(3) for xt in range(2) for r in range(2)]
    tail = Asm(); tail.uid = 50000
    def early():
        l = a.lab('qe')
        L = [f's_lshl_b32 s{sP}, s{S_STEP}, 5', f's_add_u32 s{sP}, s{sP}, s{sH}', f's_lshl_b32 s{sK}, s{sP}, 2', f's_add_u32 s{sK}, s{sK}, s{S_WAVE}',
             f's_mul_i32 s{sKm}, s{sK}, 768', f's_lshl_b32 s{sK}, s{sKm}, 2', f's_add_u32 s{sK}, s{sK}, {K_OFF}', f's_add_u32 s{sKm}, s{sKm}, {KM_OFF}',
             f's_lshl_b32 s{sP}, s{sP}, 11', f's_add_u32 s{sP}, s{sP}, {PX_OFF}']
        L += [f's_cmp_gt_u32 s{sKl}, s{S_STEP}\ns_cbranch_scc0 {l}_k\n{l}_b:'] + kld
        tail(f'{l}_k:')
        P['q_waitk'](tail, PR)
        tail(f's_branch {l}_b')
        L += [f's_cmp_gt_u32 s{sKn}, s{S_STEP}\ns_cselect_b32 s{sHave}, 1, 0\ns_cbranch_scc0 {l}\n' + '\n'.join(late) + f'\n{l}:']
        return L
    def at18():
        l = a.lab('qm')
        L = P['q_update'](PR)
        L += [f's_cmp_lg_u32 s{sHave}, 0\ns_cbranch_scc1 {l}\ns_cmp_gt_u32 s{sKn}, s{S_STEP}\ns_cselect_b32 s{sHave}, 1, 0\ns_cbranch_scc0 {l}\n' + '\n'.join(late) + f'\n{l}:']
        return L + shuf
    R = 176; X = R; MV = R+16; T = R+20; G2 = 204
    dpp = 'row_ror:8 row_mask:0xf bank_mask:0xf'
    def soft():
        L = [f'ds_write_b128 v14, {vr(D)}', f'v_mov_b32 v{D+14}, v{D+16}', f'ds_write_b128 v14, {vr(D+4)} offset:1024', f'v_mov_b32 v{D+15}, v{D+17}',
             f'ds_write_b128 v14, {vr(D+8)} offset:2048', f'ds_write_b128 v14, {vr(D+12)} offset:3072',
             'G|6', 's_waitcnt lgkmcnt(0)\ns_barrier']
        L += [f'ds_read_b128 {vr(R+4*w)}, v{vXr} offset:{4096*w}' for w in range(4)]
        L += [f'ds_read_b32 v{MV+w}, v{vMr} offset:{4096*w}' for w in range(4)]
        L += ['G|6', 's_waitcnt lgkmcnt(0)']
        for d, o in ((X, 4), (X+8, 4), (X, 8)):
            L += [f'v_add_f32 v{d+i}, v{d+i}, v{d+o+i}' for i in range(4)]
        L += [f'v_add_f32 v{MV}, v{MV}, v{MV+1}', f'v_add_f32 v{MV+2}, v{MV+2}, v{MV+3}', f'v_add_f32 v{MV}, v{MV}, v{MV+2}']
        L += [f'v_cndmask_b32 v{X+i}, v{NEG}, v{X+i}, s[{sMask+2*i}:{sMask+2*i+1}]' for i in range(4)]
        L += [f'v_max3_f32 v{T}, v{X}, v{X+1}, v{X+2}', f'v_max3_f32 v{T}, v{T}, v{X+3}, v{MV}']
        red = lambda op: [f'W2|{op}_dpp v{T+1}, v{T}, v{T} {dpp}', f'{op}_dpp v{T+2}, v{T}, v{T} {dpp}',
                          f'W2|v_permlane16_swap_b32 v{T+1}, v{T+2}', f'{op} v{T}, v{T+1}, v{T+2}', f'{op} v{T+1}, v{T+1}, v{T+2}',
                          f'W2|v_permlane32_swap_b32 v{T}, v{T+1}', f'{op} v{T}, v{T}, v{T+1}']
        L += red('v_max_f32')
        L += [f'v_sub_f32 v{r}, v{r}, v{T}' for r in (X, X+1, X+2, X+3, MV)]
        L += [f'v_exp_f32 v{r}, v{r}' for r in (X, X+1, X+2, X+3, MV)]
        L += [f'v_add_f32 v{T}, v{X}, v{X+1}', f'v_add_f32 v{T+1}, v{X+2}, v{X+3}', f'v_add_f32 v{T}, v{T}, v{MV}', f'v_add_f32 v{T}, v{T}, v{T+1}']
        L += red('v_add_f32')
        L += [f'v_rcp_f32 v{T}, v{T}', f'W1|v_mul_f32 v{MV}, v{MV}, v{T}']
        L += [f'v_mul_f32 v{r}, v{r}, v{T}' for r in (X, X+1, X+2, X+3)]
        L += [f'v_mov_b32_dpp v{MV+1}, v{MV} {dpp}', f'v_cvt_pk_bf16_f32 v{MV}, v{MV+1}, v{MV}',
              f'v_cvt_pk_bf16_f32 v{X+4}, v{X}, v{X+1}', f'v_cvt_pk_bf16_f32 v{X+5}, v{X+2}, v{X+3}',
              f'v_mov_b32_dpp v{X+4}, v{MV} quad_perm:[0,1,2,3] row_mask:0xf bank_mask:0x4',
              f'v_mov_b32_dpp v{X+5}, v{MV} row_shl:4 row_mask:0xf bank_mask:0x4',
              W('store_dwordx2', vr(X+4, 2), vPo, f's{sPp}', 0, 'sc1')]
        return L
    def pub():
        return [f's_add_u32 s{sT1}, s{sDone}, s{sFb}', f'v_mov_b32 v175, s{sT1}', W('store_dword', 'v175', 15, f's{sFl}', 0, 'sc1')]
    def post(a, acc):
        dtrace(a, 0)
        a(f's_mov_b32 s{sDone}, s{sD1}\ns_add_u32 s{sD1}, s{S_STEP}, 1\ns_mov_b32 s{sPp}, s{sP}\ns_nop 0')
        l = a.lab('qh')
        a(f's_cmp_lg_u32 s{sHave}, 0\ns_cbranch_scc1 {l}')
        P['q_wait'](a, PR, pub())
        dtrace(a, 1)
        for s in late: a(s)
        a(f'{l}:\ns_nop 1')
        for t in range(3):
            for xq in range(2):
                b = acc + 4*(2*t+xq)
                a(f"""v_pk_mul_f32 v[{b}:{b+1}], v[{b}:{b+1}], s[{sC2}:{sC2+1}]
                v_pk_mul_f32 v[{b+2}:{b+3}], v[{b+2}:{b+3}], s[{sC2}:{sC2+1}]
                v_cvt_pk_bf16_f32 v{QF+8*xq+2*t}, v{b}, v{b+1}
                v_cvt_pk_bf16_f32 v{QF+8*xq+2*t+1}, v{b+2}, v{b+3}""")
        a('s_nop 1')
        up = []
        for d, A, B in [(D, KF, QF), (D+4, KF, QF+8), (D+8, KF+8, QF+8), (D+12, KM, QF), (D+16, KM, QF+8)]:
            if d == D+12:
                a('s_waitcnt vmcnt(0)'); up = pub()
                up[2] = f's_cmp_eq_u32 s{sHave}, 0\ns_cbranch_scc1 {l}_p\n' + up[2] + f'\n{l}_p:'
            a(f'v_mfma_f32_16x16x32_bf16 {vr(d)}, {vr(A)}, {vr(B)}, 0')
            if up: a(up.pop(0))
            a(f'v_mfma_f32_16x16x32_bf16 {vr(d)}, {vr(A+4)}, {vr(B+4)}, {vr(d)}')
            if up: a(up.pop(0))
    a(f's_mov_b32 s{sPp}, {OOB}\ns_mov_b32 s{sD1}, s{sDone}')
    gemm_loop(a, 'q', 3, 'T', None, post=post, early=early, late_fill=at18, strided=True, defer=soft, relaxed=True, drain=False, mid=P['q_refresh'](PR))
    a.nop(8)
    for s in soft(): serial(a, s)
    a(f's_mov_b32 s{sDone}, s{sD1}\ns_waitcnt vmcnt(0)')
    for s in pub(): a(s)
    a(f's_sub_u32 s{S_STEP}, s{S_STEP}, s{sStr}')
    dtrace(a, 2)
    a('s_barrier\ns_branch L_q_end')
    a.lines += tail.lines
    a('L_q_end:')

def final_role(a, P):
    nl = 63 - P['lag']
    a('L_final:')
    a(f"""s_mul_i32 s{S_STEP}, s{sWk}, 0x199a
    s_lshr_b32 s{S_STEP}, s{S_STEP}, 16
    s_mul_i32 s{sCb}, s{S_STEP}, 10
    s_sub_u32 s{sCb}, s{sWk}, s{sCb}
    s_add_u32 s{sStr}, s{S_STEP}, {P['fshare']}
    s_add_u32 s{sXs}, s{S_STEP}, {nl-P['flight']}
    s_cmp_lt_u32 s{S_STEP}, {P['flight']}
    s_cselect_b32 s{sDl}, {P['flight']}, {6-P['flight']}
    s_cselect_b32 s{sXs}, s{sStr}, s{sXs}
    s_cselect_b32 s{sEnd}, {nl}, 64""")
    srd(a, SRD_A, P_WOA, 640*640*2)
    a(f"""s_mul_i32 s{sCol}, s{S_WAVE}, {160*1280}
    s_lshl_b32 s{sT0}, s{sCb}, 7
    s_add_u32 s{sCol}, s{sCol}, s{sT0}""")
    load_w(a, 1280, 1, 160, 1, 1, 'B', 4, '0', lambda t, k, v: ar((k*4+t)*4+2*v, 2), private=True)
    srd(a, SRD_B, P_OUT, 2048*1280)
    q_flags(a)
    ACC, PF, PM, OF = 16, 48, 112, 128
    YA, UA = 80, 208
    TS = 1056
    WSZ = 8*TS
    a(f"""v_add_u32 v13, 4096, v{vL16}
    s_mul_i32 s{sT0}, s{S_WAVE}, {WSZ}
    v_add_u32 v14, s{sT0}, v{vL16}
    v_lshrrev_b32 v10, 3, v{vLn}
    s_lshl_b32 s{sT0}, s{S_WAVE}, 3
    v_add_u32 v10, s{sT0}, v10              ; token 0..31
    v_and_b32 v11, 7, v{vLn}
    v_mul_u32_u24 v{vXs}, 1280, v10
    v_lshl_add_u32 v{vXs}, v11, 4, v{vXs}
    v_lshrrev_b32 v15, 4, v10
    v_and_b32 v12, 6, v11
    v_add_u32 v15, v12, v15
    v_mul_u32_u24 v15, {TS}, v15
    v_and_b32 v10, 15, v10
    v_lshl_add_u32 v15, v10, 4, v15
    v_and_b32 v11, 1, v11
    v_lshl_add_u32 v15, v11, 9, v15
    s_mov_b32 s{sMask}, 0
    s_mov_b32 s{sMask+1}, -1
    s_barrier""")
    if 'final_pre' in P: P['final_pre'](a)
    FQ = 208
    ACB, GT, SEL = 168, 216, 220
    a(f"""v_lshrrev_b32 v10, 2, v{vN}
    v_cmp_eq_u32 vcc, v10, v{vG}
    v_and_b32 v10, 1, v{vN}
    v_lshlrev_b32 v10, 4, v10
    v_mov_b32 v11, 0x3f80
    v_lshlrev_b32 v10, v10, v11
    v_cndmask_b32 v10, 0, v10, vcc
    v_and_b32 v11, 2, v{vN}
    v_cmp_eq_u32 vcc, 0, v11
    v_mov_b32 v{SEL+2}, 0
    v_mov_b32 v{SEL+3}, 0
    v_cndmask_b32 v{SEL}, 0, v10, vcc
    v_cndmask_b32 v{SEL+1}, v10, 0, vcc
    v_mov_b32 v{SEL+4}, 0
    v_mov_b32 v{SEL+5}, 0
    v_mov_b32 v{SEL+6}, v{SEL}
    v_mov_b32 v{SEL+7}, v{SEL+1}
    v_lshlrev_b32 v215, 2, v{vN}
    s_lshl_b32 s{sT1}, s{S_X}, 13
    v_add_u32 v215, s{sT1}, v215""")
    def addr(step):
        return f"""s_lshl_b32 s{sT0}, {step}, 5
        s_lshl_b32 s{sT1}, s{S_WAVE}, 3
        s_add_u32 s{sT0}, s{sT0}, s{sT1}
        s_lshl_b32 s{sT2}, s{sCb}, 12
        s_mul_i32 s{sY}, s{sT0}, 40960
        s_add_u32 s{sY}, s{sY}, s{sT2}
        s_add_u32 s{sY}, s{sY}, {Y_OFF}
        s_mul_i32 s{sO}, s{sT0}, 1280
        s_add_u32 s{sO}, s{sO}, {O_OFF}
        s_lshl_b32 s{sP}, s{sT0}, 11
        s_add_u32 s{sP}, s{sP}, {PX_OFF}
        s_mul_i32 s{sU}, s{sT0}, 10240
        s_add_u32 s{sU}, s{sU}, s{sT2}
        s_add_u32 s{sK}, s{sU}, {BP_OFF}
        s_add_u32 s{sU}, s{sU}, {U_OFF}
        s_lshl_b32 s{sGt}, {step}, 7
        s_add_u32 s{sGt}, s{sGt}, {GT_OFF}"""
    def oload(k):
        return [(f's_add_u32 s{sT0}, s{sO}, {2048*k}\n' if i == 0 else '') + W('load_dwordx4', vr(OF+8*k+4*i), vL16, f's{sT0}', 1024*i, 'sc1') for i in range(2)]
    def yload(h):
        return [(f's_add_u32 s{sT0}, s{sY}, {40960*h}\n' if t == 0 else '') + W('load_dwordx4', ar(YA+16*h+4*t), vYp, f's{sT0}', 1024*t, 'sc1') for t in range(4)]
    def pload(h):
        return [(f's_add_u32 s{sT0}, s{sP}, {2048*h}\n' if i == 0 else '') + W('load_dwordx4', vr(PF+8*h+4*i), vL16, f's{sT0}', 1024*i, 'sc1') for i in range(2)]
    def uload(u):
        return [(f's_add_u32 s{sT0}, s{sU}, {40960*u}\n' if t == 0 else '') + W('load_dwordx4', ar(UA+16*u+4*t), vYp, f's{sT0}', 1024*t, 'sc1') for t in range(4)]
    def bload(u):
        return [(f's_add_u32 s{sT0}, s{sK}, {40960*u}\n' if t == 0 else '') + W('load_dwordx4', vr(PF+16*u+4*t), vL16, f's{sT0}', 1024*t, 'sc1') for t in range(4)]
    def gload():
        return [W('load_dword', f'v{GT+xq}', 215, f's{sGt}', 64*xq, 'sc1') for xq in range(2)]
    def nxt():
        a(f"""s_mul_i32 s{sOut}, s{S_STEP}, 40960
        s_lshl_b32 s{sT2}, s{sCb}, 7
        s_add_u32 s{sOut}, s{sOut}, s{sT2}
        s_cmp_lt_u32 s{S_STEP}, {P['fshare']}
        s_cselect_b32 s{sT0}, 6, s{sDl}
        s_add_u32 s{S_STEP}, s{S_STEP}, s{sT0}
        s_cmp_eq_u32 s{S_STEP}, s{sStr}
        s_cselect_b32 s{S_STEP}, s{sXs}, s{S_STEP}
        s_cmp_ge_u32 s{S_STEP}, s{sEnd}
        s_cselect_b32 s{S_STEP}, 64, s{S_STEP}""")
    class VQ:
        def __init__(self, q): self.q = list(q)
        def put(self, tag, x):
            if len(self.q) >= 62:
                a('s_waitcnt vmcnt(56)'); self.q = self.q[-56:]
            self.q.append(tag); a(x)
        def wait(self, tag):
            if tag in self.q:
                n = len(self.q) - 1 - max(i for i, x in enumerate(self.q) if x == tag)
                a(f's_waitcnt vmcnt({n})'); self.q = self.q[len(self.q)-n:]
    def apart(Q, pf):
        for k in range(5):
            Q.wait(('o', k))
            a(f'v_swap_b32 v{OF+8*k+2}, v{OF+8*k+4}\nv_swap_b32 v{OF+8*k+3}, v{OF+8*k+5}\ns_nop 1')
            for t in range(4):
                for xq in range(2):
                    d = vr(ACC+8*t+4*xq)
                    a(f'v_mfma_f32_16x16x32_bf16 {d}, {ar((k*4+t)*4)}, {vr(OF+8*k+4*xq)}, {"0" if k == 0 else d}')
            if pf:
                for x in oload(k): Q.put(('O', k), x)
    def gate(Q):
        Q.wait(('g', 0))
        a(f'v_sub_f32 v{GT+2}, 1.0, v{GT}\nv_sub_f32 v{GT+3}, 1.0, v{GT+1}')
    def bheavy(Q):
        for h in range(8):
            Q.wait(('p', h))
            for xq in range(2):
                a(f'v_mov_b32 v{PM+8*(h>>2)+4*xq+(h&3)}, v{PF+8*h+2+xq}')
            a(f'v_mov_b32 v{PF+8*h+2}, 0\nv_mov_b32 v{PF+8*h+3}, 0')
            for xq in (1, 0):
                for t in range(4):
                    d = vr(ACB+8*t+4*xq)
                    a(f'v_mfma_f32_16x16x32_bf16 {d}, {ar(YA+16*h+4*t)}, {vr(PF+8*h+4*xq)}, {"0" if h == 0 else d}')
        for u in range(2):
            Q.wait(('u', u))
            for t in range(4):
                for xq in range(2):
                    d = vr(ACB+8*t+4*xq)
                    a(f'v_mfma_f32_16x16x32_bf16 {d}, {ar(UA+16*u+4*t)}, {vr(PM+8*u+4*xq)}, {d}')
    def blight(Q, pf):
        for u in range(2):
            Q.wait(('b', u))
            bl = bload(u)
            for t in range(4):
                for xq in range(2):
                    d = vr(ACB+8*t+4*xq)
                    a(f'v_mfma_f32_16x16x32_bf16 {d}, {vr(SEL+4*xq)}, {vr(PF+16*u+4*t)}, {"0" if u == 0 else d}')
                if pf: Q.put(('B', u), bl[t])
    def finish(Q):
        a('s_nop 0')
        for i in range(8):
            for r in range(4): a(f'v_fmac_f32 v{ACC+4*i+r}, v{ACB+4*i+r}, v{GT+2+(i & 1)}')
        for i in range(8): a(f'ds_write_b128 v14, {vr(ACC+4*i)} offset:{TS*i}')
        a('s_waitcnt lgkmcnt(0)\ns_barrier')
        for w in range(4):
            for g in range(2): a(f'ds_read_b128 {vr(ACC+8*w+4*g)}, v15 offset:{WSZ*w+256*g}')
        a('s_waitcnt lgkmcnt(0)\ns_barrier')
        for w in (1, 3):
            for i in range(4):
                d = ACC+8*(w-1)+2*i
                a(f'v_pk_add_f32 v[{d}:{d+1}], v[{d}:{d+1}], v[{d+8}:{d+9}]')
        for i in range(4):
            d = ACC+2*i
            a(f'v_pk_add_f32 v[{d}:{d+1}], v[{d}:{d+1}], v[{d+16}:{d+17}]\nv_cvt_pk_bf16_f32 v{200+i}, v{d}, v{d+1}')
        Q.put('st', f'buffer_store_dwordx4 v[200:203], v{vXs}, s[{SRD_B}:{SRD_B+3}], s{sOut} offen')
    rf = P['light_refresh']
    full = ['f']*len(rf) + [('g', 0)]*2 + [('o', k) for k in range(5) for _ in range(2)] + [('b', u) for u in range(2) for _ in range(4)]
    a(f"""L_final_next:
    s_cmp_ge_u32 s{S_STEP}, {nl}
    s_cbranch_scc1 L_final_heavy""")
    dtrace(a, 0)
    P['light_wait'](a)
    a(addr(f's{S_STEP}'))
    for x in rf + gload(): a(x)
    for k in range(5):
        for x in oload(k): a(x)
    for u in range(2):
        for x in bload(u): a(x)
    a(W('load_dword', 'v10', vZ, f's{sFl}'))
    full.append('st')
    a('.p2align 6\nL_final_loop:')
    dtrace(a, 3)
    Q = VQ(full)
    gate(Q)
    nxt()
    P['light_ready'](a)
    a('s_cbranch_scc0 L_final_last')
    Q0 = list(Q.q)
    a(addr(f's{S_STEP}'))
    for x in rf: Q.put('F', x)
    for x in gload(): Q.put(('G', 0), x)
    apart(Q, True); blight(Q, True); finish(Q)
    a('s_branch L_final_loop\nL_final_last:')
    Q = VQ(Q0)
    apart(Q, False); blight(Q, False); finish(Q)
    a('s_branch L_final_next')
    a(f"""L_final_heavy:
    s_cmp_ge_u32 s{S_STEP}, 64
    s_cbranch_scc1 L_exit""")
    dtrace(a, 0)
    P['final_waity'](a)
    a(addr(f's{S_STEP}'))
    Q = VQ([])
    for x in gload(): Q.put(('g', 0), x)
    for k in range(5):
        for x in oload(k): Q.put(('o', k), x)
    for h in range(8):
        for x in yload(h): Q.put(('y', h), x)
    gate(Q)
    apart(Q, False)
    P['final_wait'](a, FQ)
    dtrace(a, 1)
    Q = VQ([])
    for h in range(8):
        for x in pload(h): Q.put(('p', h), x)
    for u in range(2):
        for x in uload(u): Q.put(('u', u), x)
    nxt()
    bheavy(Q)
    finish(Q)
    a('s_branch L_final_heavy')
```

```python
from asmb import *
from lay import *
S_WAVE, S_X, S_J, S_STEP, S_TO = 3, 4, 5, 6, 7
P_X, P_WQKV, P_WOA, P_MEM0, P_WQ, P_WK, P_WV, P_WO, P_GATE, P_OUT, P_DBG, P_WS = 8, 10, 12, 16, 18, 20, 22, 24, 28, 30, 32, 34
SRD_W = 36
SRD_A = 40
SRD_B = 44
SRD_D = 48
TO_LIMIT = 400000
sMr, sMw, sMp, sSw, sSr, sG, sGL, sGp, sGLp, sY, sK, sU, sKm = range(52, 65)
sTag, sTag3, sC, sT0, sT1, sT2, sPar = range(65, 72)
sSelT1, sSelT2, sSelU1, sSelU2 = range(72, 76)
sHalf = 76
sEx   = 78
sExLo = 80
sH, sCg, sHs, sCs = 82, 83, 84, 85
sGb, sMb = 86, 87
sKnY, sKnK, sFy, sFk, sFl = 90, 91, 92, 93, 94
vFk, vFd, vFa, vFp, vKc, vKd = 101, 102, 103, 184, 185, 186
vBP = 44
sExK = 34
sSelT3 = 89
sC2 = 88
MB, QB, KB, DB, RB, UB = 0, 10240, 11264, 13312, 19456, 19968
RING0, SLOT, NSLOT = 23040, 15360, 9
sYr, sYw, sYo, sPx, sBp, sBad, sLo = 45, 46, 47, 44, 67, 90, 32
vPF, vPM8, vTA, vThr, vL4k = 188, 220, 228, 187, 183
vL16, vIdx, vQw, vY = 0, 1, 2, 3
vKw, vD2 = 4, 5
vDr, vGst = 6, 7
vG0, vG1 = 6, 7
vUP = 8
vAq, vAk = 16, 20
vUa = 24
SETA, SETB = [16, 20, 36, 40], [80, 84, 88, 92]
vYt = 44
vMF = 56
vWq, vWk = 96, 176
aSel = 240
aU = 244
vMst, vDq = 8, 12
vQr, vKr, vPG, vPM, vL8 = 96, 97, 98, 99, 100
vNeg = 104
vKF = 108
vKS = 124
vQf, vKf = 136, 144
vD0, vD1, vDm, vPk = 152, 156, 160, 164
vPU, vPK = 168, 180
OWN = [[0,1,2],[3,4,5],[6,7,8],[9]]

def srd(a, base, ptr, nbytes):
    a(f"""s_mov_b32 s{base}, s{ptr}
    s_and_b32 s{base+1}, s{ptr+1}, 0xffff
    s_mov_b32 s{base+2}, {nbytes}
    s_mov_b32 s{base+3}, 0x20000""")

def W(op, data, va, so, off=0, fl=''):
    return f'buffer_{op} {data}, v{va}, s[{SRD_W}:{SRD_W+3}], {so} offen offset:{off} {fl}'.rstrip()

def retry(a, tail, lab_retry, lab_back):
    tail(f"""{lab_retry}:
    s_add_u32 s{S_TO}, s{S_TO}, 1
    s_cmp_gt_u32 s{S_TO}, {TO_LIMIT}
    s_cbranch_scc1 L_exit
    s_branch {lab_back}""")

def build_sel(a, dst, vn, vg, goff, tmp):
    a(f"""v_and_b32 v{tmp}, 1, v{vn}
    v_lshlrev_b32 v{tmp}, 4, v{tmp}
    v_mov_b32 v{tmp+1}, 0x3f80
    v_lshlrev_b32 v{tmp}, v{tmp}, v{tmp+1}
    v_lshrrev_b32 v{tmp+1}, 1, v{vn}
    v_add_u32 v{tmp+1}, {4*goff}, v{tmp+1}
    v_lshlrev_b32 v{tmp+2}, 2, v{vg}
    v_sub_u32 v{tmp+1}, v{tmp+1}, v{tmp+2}""")
    for r in range(4):
        a(f"""v_cmp_eq_u32 vcc, {r}, v{tmp+1}
        s_nop 1
        v_cndmask_b32 v{dst+r}, 0, v{tmp}, vcc""")

def phys(a, v, tmp):
    a(f"""v_lshrrev_b32 v{tmp}, 13, v{v}
    v_lshl_add_u32 v{v}, v{tmp}, 13, v{v}""")

def dma(srdb, va, so, fl=''):
    return f'buffer_load_dwordx4 v{va}, s[{srdb}:{srdb+3}], {so} offen {fl} lds'

def rec_prologue(a, P):
    n, g, ln = 60, 61, 62
    a(f"""v_and_b32 v{ln}, 63, v0
    v_and_b32 v{n}, 15, v{ln}
    v_lshrrev_b32 v{g}, 4, v{ln}
    v_lshlrev_b32 v{vL16}, 4, v{ln}
    s_and_b32 s{sT0}, s{S_J}, 1
    s_lshl_b32 s{sT0}, s{sT0}, 2
    s_add_u32 s{sT0}, s{sT0}, s{S_WAVE}
    s_lshl_b32 s{sH}, s{S_X}, 3
    s_add_u32 s{sH}, s{sH}, s{sT0}
    s_lshr_b32 s{sCg}, s{S_J}, 1
    s_lshr_b32 s{sHs}, s{S_J}, 2
    s_and_b32 s{sCs}, s{S_J}, 3
    s_lshl_b32 s{sT1}, s{S_X}, 3
    s_add_u32 s{sHs}, s{sHs}, s{sT1}
    s_lshl_b32 s{sT1}, s{S_X}, 5
    s_add_u32 s{sT1}, s{sT1}, s{S_J}
    s_mul_i32 s{sGb}, s{sT1}, 768
    s_lshl_b32 s{sSw}, s{sT1}, 10
    s_add_u32 s{sSw}, s{sSw}, {S_OFF}
    s_lshl_b32 s{sSr}, s{sH}, 12
    s_add_u32 s{sSr}, s{sSr}, {S_OFF}
    s_mov_b32 s{sSelT1}, 0x0c0c0400
    s_mov_b32 s{sSelT2}, 0x0c040100
    s_mov_b32 s{sSelT3}, 0x04020100
    s_mov_b32 s{sSelU1}, 0x0c04000c
    s_mov_b32 s{sSelU2}, 0x0402010c
    s_mov_b32 s{sC2}, {P['cexp']}
    s_mov_b32 s{sHalf}, 0xff00ff00
    s_mov_b32 s{sHalf+1}, 0xff00ff00
    s_mov_b32 s{sExK}, 0x33333333
    s_mov_b32 s{sExK+1}, 0x33333333
    s_mov_b32 s{sExLo}, 0x00ff00ff
    s_mov_b32 s{sExLo+1}, 0x00ff00ff
    s_mul_i32 s{sMb}, s{S_X}, 10240
    s_add_u32 s{sMb}, s{sMb}, {M_OFF}""")
    ps = P.get('pstamp', lambda i: '')
    a(ps(0))
    NB = 4; WB = NB*6144; IMG = 4*WB
    frag = [8+4*i for i in range(12)] + [64+4*i for i in range(6)]
    F = lambda tc, kap: frag[tc*6+kap]
    srd(a, SRD_A, P_WO, 32*192*640*2)
    srd(a, SRD_B, P_WV, 640*6144*2)
    a(f"""v_mul_u32_u24 v56, 0x3334, v{ln}
    v_lshrrev_b32 v56, 16, v56              ; lane/5
    v_mul_u32_u24 v57, 5, v56
    v_sub_u32 v57, v{ln}, v57
    v_mul_u32_u24 v56, 1280, v56
    v_lshl_add_u32 v56, v57, 4, v56
    s_mul_i32 s{sT0}, s{sH}, {192*1280}
    s_mul_i32 s{sT1}, s{sCg}, 80
    s_add_u32 s{sT0}, s{sT0}, s{sT1}
    s_mul_i32 s{sMr}, s{S_WAVE}, 15360
    s_add_u32 s{sMr}, s{sMr}, {IMG}
    s_mul_i32 s{sT2}, s{S_WAVE}, {WB}
    s_mov_b32 s{sEx}, -1
    s_mov_b32 s{sEx+1}, 0x0fffffff
    s_mov_b64 exec, s[{sEx}:{sEx+1}]""")
    for i in range(16):
        a(f"""s_add_u32 m0, s{sMr}, {960*i}
        s_add_u32 s{sT1}, s{sT0}, {12*i*1280}
        {dma(SRD_A, 56, f's{sT1}')}""")
    a('s_mov_b64 exec, -1')
    if P['touchv']:
        a(f"""s_lshl_b32 s{sT0}, s{S_J}, 2
        s_add_u32 s{sT0}, s{sT0}, s{S_WAVE}
        s_mul_i32 s{sT0}, s{sT0}, {5*12288}
        s_mul_i32 s{sT1}, s{S_X}, 3072
        s_add_u32 s{sT0}, s{sT0}, s{sT1}""")
        for i in range(2):
            a(f"""v_min_u32 v57, 59, v{ln}
            v_add_u32 v57, {60*i}, v57
            v_mul_u32_u24 v58, 0xaab, v57
            v_lshrrev_b32 v58, 16, v58
            v_mul_u32_u24 v59, 24, v58
            v_sub_u32 v57, v57, v59
            v_mul_u32_u24 v58, 12288, v58
            v_lshl_add_u32 v57, v57, 7, v58
            buffer_load_dword v255, v57, s[{SRD_B}:{SRD_B+3}], s{sT0} offen""")
    a(f"""v_mov_b32 v64, -1
    v_mov_b32 v65, -1
    v_mov_b32 v66, -1
    v_mov_b32 v67, -1
    v_min_u32 v68, 47, v{ln}
    v_lshlrev_b32 v68, 4, v68
    v_add_u32 v68, s{sGb}, v68""")
    phys(a, 68, 69)
    a(f"""s_mul_i32 s{sT0}, s{S_WAVE}, {G_SLOT}
    s_add_u32 s{sT0}, s{sT0}, {G_OFF}
    s_add_u32 s{sT1}, s{sT0}, 8192""")
    a(W('store_dwordx4', 'v[64:67]', 68, f's{sT0}', 0, 'sc1'))
    a(W('store_dwordx4', 'v[64:67]', 68, f's{sT1}', 0, 'sc1'))
    a(f"""v_min_u32 v69, 19, v{ln}
    v_lshlrev_b32 v69, 4, v69
    s_mul_i32 s{sT0}, s{S_WAVE}, {M_SLOT}
    s_add_u32 s{sT0}, s{sT0}, s{sMb}
    s_mul_i32 s{sT1}, s{S_J}, 320
    s_add_u32 s{sT0}, s{sT0}, s{sT1}""")
    a(W('store_dwordx4', 'v[64:67]', 69, f's{sT0}', 0))
    a(W('store_dwordx4', 'v[64:67]', vL16, f's{sSw}', 0))
    if P['live']:
        a(f"""s_lshl_b32 s{sFl}, s{S_X}, 5
        s_add_u32 s{sFl}, s{sFl}, s{S_J}
        s_lshl_b32 s{sFl}, s{sFl}, 7
        s_add_u32 s{sFl}, s{sFl}, {FL_OFF}
        s_lshl_b32 s{sFy}, s{sH}, 9
        s_add_u32 s{sFy}, s{sFy}, {FL_OFF + (128+2)*128}
        s_lshl_b32 s{sFk}, s{sHs}, 9
        s_add_u32 s{sFk}, s{sFk}, {FL_OFF + 128*128}
        v_mov_b32 v70, 0""")
        a(W('store_dword', 'v70', 70, f's{sFl}', 0, 'sc1'))
    a(f"""v_lshrrev_b32 v58, 3, v{ln}
    v_bfe_u32 v57, v58, 1, 1
    v_lshlrev_b32 v56, 3, v57
    v_bfe_u32 v57, v58, 2, 1
    v_lshl_add_u32 v56, v57, 2, v56
    v_and_b32 v57, 1, v58
    v_add_u32 v56, v56, v57
    v_mul_u32_u24 v56, 12288, v56
    v_lshrrev_b32 v58, 1, v58
    v_and_b32 v57, 7, v{ln}
    v_xor_b32 v57, v57, v58
    v_lshl_add_u32 v1, v57, 4, v56          ; rows 0..7
    v_xor_b32 v57, 4, v57
    v_lshl_add_u32 v2, v57, 4, v56
    v_add_u32 v2, {16*12288}, v2            ; rows 8..15
    s_mul_i32 s{sMw}, s{sH}, 384""")
    Q = []
    cfl = ('', 'sc1', 'nt')[P.get('cfl', 0)]
    def cload(tau):
        t, v = tau >> 2, tau & 3
        L = [(None, f's_add_u32 s{sT1}, s{sMw}, {(64*t+32*(v>>1)+2*(v&1))*12288}')]
        for k in range(6):
            L += [(None, f's_add_u32 m0, s{sT2}, {6144*(tau % NB)+1024*k-128*(k%3)}'),
                  (('c', tau), f'buffer_load_dwordx4 v{1 if k < 3 else 2}, s[{SRD_B}:{SRD_B+3}], s{sT1} offen offset:{128*(k%3)} {cfl} lds')]
        return L
    def put(it, pad=False):
        if it[0]:
            Q.append(it[0])
            if pad: a('s_nop 0')
        a(it[1])
    def younger(tag): return min(63, len(Q) - 1 - max(i for i, x in enumerate(Q) if x == tag))
    for tau in range(NB):
        for it in cload(tau): put(it, True)
    a(f"""v_lshrrev_b32 v56, 3, v{n}
    v_mul_u32_u24 v56, 3072, v56
    v_and_b32 v57, 7, v{n}
    v_lshl_add_u32 v56, v57, 7, v56
    v_add_u32 v56, s{sT2}, v56
    v_lshrrev_b32 v57, 1, v{n}
    v_xor_b32 v57, v57, v{g}
    v_lshl_add_u32 v3, v57, 4, v56
    v_xor_b32 v57, 4, v57
    v_lshl_add_u32 v4, v57, 4, v56""")
    for i in range(3):
        a(f"""v_add_u32 v57, {64*i}, v{ln}
        v_mul_u32_u24 v56, 0x2aab, v57
        v_lshrrev_b32 v56, 16, v56
        v_mul_u32_u24 v58, 6, v56
        v_sub_u32 v57, v57, v58
        v_mul_u32_u24 v56, 12288, v56
        v_lshl_add_u32 v{5+i}, v57, 4, v56""")
    a(f"""s_mul_i32 s{sMp}, s{sHs}, 384
    s_mul_i32 s{sT0}, s{sCs}, 96
    s_add_u32 s{sMp}, s{sMp}, s{sT0}
    s_mul_i32 s{sT0}, s{S_WAVE}, {160*12288}
    s_add_u32 s{sMp}, s{sMp}, s{sT0}""")
    def wload(tag, i):
        return [(None, f's_add_u32 m0, s{sMr}, {1024*i}'), (None, f's_add_u32 s{sT0}, s{sMp}, {32*(i//3)*12288}'),
                (tag, dma(SRD_A, 5 + i % 3, f's{sT0}', 'nt' if P['wnt'] else ''))] if not (P.get('nowk') and i > 0) else []
    a(f"""v_lshrrev_b32 v56, 2, v{n}
    v_lshl_add_u32 v56, v{g}, 3, v56
    v_mul_u32_u24 v56, 80, v56
    v_add_u32 v56, s{sMr}, v56
    v_and_b32 v57, 1, v{n}
    v_lshl_add_u32 v58, v57, 3, v56
    v_and_b32 v57, 3, v{n}
    v_lshl_add_u32 v56, v57, 3, v56
    s_waitcnt vmcnt({6*NB})""")
    a(ps(1))
    for kap in range(6):
        for v in range(2):
            for tc in range(3):
                a(f'ds_read_b64_tr_b16 {vr(F(tc,kap)+2*v,2)}, v{56 if tc < 2 else 58} offset:{(32*kap+4*v)*80+32*tc}')
        a('s_waitcnt lgkmcnt(6)')
    srd(a, SRD_A, P_WK, 640*6144*2)
    a(f"""v_lshrrev_b32 v88, 1, v{g}
    v_lshlrev_b32 v88, 4, v88
    v_and_b32 v57, 1, v{g}
    v_lshl_add_u32 v88, v57, 2, v88
    v_bfe_u32 v57, v{n}, 2, 1
    v_add_u32 v88, v88, v57
    v_lshrrev_b32 v57, 3, v{n}
    v_lshl_add_u32 v88, v57, 3, v88
    v_mul_u32_u24 v88, 96, v88
    v_and_b32 v57, 3, v{n}
    v_lshl_add_u32 v88, v57, 3, v88
    s_min_u32 s{sT0}, s{S_WAVE}, 2
    s_lshl_b32 s{sT0}, s{sT0}, 5
    s_add_u32 s{sT0}, s{sT0}, {IMG}
    v_add_u32 v88, s{sT0}, v88
    v_mov_b32 v89, {DBG_INIT}
    v_mov_b32 v90, 1
    s_waitcnt lgkmcnt(0)
    s_barrier
    s_and_b32 s{sG}, s{S_J}, 7
    s_cmp_eq_u32 s{S_WAVE}, 3
    s_cselect_b32 s{sG}, s{sG}, 99
    v_min_u32 v91, 1, v{ln}
    v_lshl_add_u32 v89, v91, 12, v89""")
    a(ps(2))
    def trd(base):
        return [f'ds_read_b64_tr_b16 {vr(base+2*i,2)}, v88 offset:{(64*(i>>2) + 32*((i&3) >> 1) + 2*(i & 1))*96}' for i in range(40)]
    AF = lambda tau, k: 96 + 24*(tau & 1) + 4*k
    AC = lambda tau, tc: 144 + 12*(tau & 1) + 4*tc
    rd = lambda tau, k: f'ds_read_b128 {vr(AF(tau,k))}, v{3 + (k & 1)} offset:{6144*(tau % NB) + 1024*(k >> 1)}'
    def cstore(tau):
        t, v = tau >> 2, tau & 3
        L = []
        for tc in range(3):
            d = (tc*10+t)*8 + 2*v; ac = AC(tau, tc)
            L += [f'v_cvt_pk_bf16_f32 v{168+2*tc}, v{ac}, v{ac+1}', f'v_cvt_pk_bf16_f32 v{169+2*tc}, v{ac+2}, v{ac+3}',
                  f'v_accvgpr_write_b32 a{d}, v{168+2*tc}', f'v_accvgpr_write_b32 a{d+1}, v{169+2*tc}']
        return L
    a(f"s_waitcnt vmcnt({younger(('c', 0))})")
    for k in range(6): a(rd(0, k))
    k0, kb, q0 = P['pk0'], P['pkb'], P['pkb']+3
    ktr = trd(vWk)
    for tau in range(40):
        a('s_waitcnt lgkmcnt(0)')
        if tau == kb:
            a(f"s_waitcnt vmcnt({younger('k')})\ns_barrier")
        if tau == q0:
            a('s_barrier')
            srd(a, SRD_A, P_WQ, 640*6144*2)
        first = cload(tau+NB) if tau+NB < 40 else []
        if tau < 16 and tau % 2 == 0:
            first += [(None, f's_cmp_eq_u32 s{sG}, {tau//2}\ns_cselect_b32 s{sT0}, 0, 0x1000'),
                      ('at', f'buffer_atomic_add v90, v89, s[{SRD_D}:{SRD_D+3}], s{sT0} offen sc1')]
        if k0 <= tau < k0+15: first += wload('k', tau-k0)
        if tau >= q0:
            for i in (2*(tau-q0), 2*(tau-q0)+1):
                if i < 15: first += wload('q', i)
        mm = []
        for k in range(6):
            for tc in range(3):
                d = vr(AC(tau, tc))
                mm.append(f'v_mfma_f32_16x16x32_bf16 {d}, {vr(AF(tau,k))}, {vr(F(tc,k))}, {"0" if k == 0 else d}')
        if P.get('nomm'): mm = ['s_nop 0']*18
        second = cstore(tau-1) if tau > 0 else []
        nk = 0
        for i, m in enumerate(mm):
            a(m)
            if i < 10:
                for _ in range(2):
                    if first:
                        it = first.pop(0); put(it)
                        if 'm0' in it[1] and first and first[0][0]: break
                if kb <= tau < q0 and i < 7:
                    for _ in range(2):
                        if ktr: a(ktr.pop(0)); nk += 1
                if i == 9:
                    while first: put(first.pop(0), True)
                    if tau < 39: a(f"s_waitcnt vmcnt({younger(('c', tau+1))})" + (' lgkmcnt(6)' if nk else ''))
            else:
                if tau < 39 and i-10 < 6: a(rd(tau+1, i-10))
            if i >= 8:
                for _ in range(1 if i < 16 else 2):
                    if second: a(second.pop(0))
        while second: a(second.pop(0))
    assert not ktr
    a(ps(3))
    a.nop(8)
    for s in cstore(39): a(s)
    a('s_waitcnt vmcnt(0)\ns_barrier')
    for i, s in enumerate(trd(vWq)):
        a(s)
        if i % 8 == 7: a('s_waitcnt lgkmcnt(6)')
    a('s_waitcnt lgkmcnt(0)')
    a(ps(4))
    lp = a.lab('wini')
    a(f"""v_mov_b32 v64, {DBG_INIT}
    v_mov_b32 v65, {DBG_PAR}
    {lp}:
    buffer_load_dword v66, v64, s[{SRD_D}:{SRD_D+3}], 0 offen sc1
    buffer_load_dwordx4 v[68:71], v65, s[{SRD_D}:{SRD_D+3}], 0 offen sc1
    s_add_u32 s{S_TO}, s{S_TO}, 1
    s_cmp_gt_u32 s{S_TO}, {TO_LIMIT}
    s_cbranch_scc1 L_exit
    s_waitcnt vmcnt(0)
    v_readfirstlane_b32 s{sT0}, v66
    v_readfirstlane_b32 s{sPar}, v68
    v_readfirstlane_b32 s{sT1}, v69
    v_readfirstlane_b32 s{sT2}, v70
    s_cmp_lt_u32 s{sT0}, {P['ninit']}
    s_cbranch_scc1 {lp}
    s_cmp_lt_u32 s{sPar}, 32
    s_cbranch_scc1 {lp}
    s_cmp_gt_u32 s{sT1}, s{sT2}
    s_cselect_b32 s{sPar}, 8192, 0
    s_barrier""")
    a(f"""v_mov_b32 v64, 0x4444
    v_mov_b32 v65, 0xeeee
    v_cndmask_b32 v{vIdx}, v64, v65, s[{sHalf}:{sHalf+1}]
    s_lshl_b32 s{sT0}, s{S_WAVE}, 4
    v_add_u32 v64, s{sT0}, v{n}
    v_lshlrev_b32 v64, 4, v64
    v_and_b32 v65, 1, v{g}
    v_lshl_add_u32 v64, v65, 3, v64
    v_lshrrev_b32 v65, 1, v{g}
    v_lshl_add_u32 v{vQw}, v65, 2, v64
    v_lshlrev_b32 v{vKw}, 1, v{vQw}
    v_lshrrev_b32 v64, 3, v{n}
    v_lshlrev_b32 v64, 9, v64
    v_lshl_add_u32 v64, v{g}, 7, v64
    v_and_b32 v65, 7, v{n}
    v_lshl_add_u32 v{vY}, v65, 4, v64""")
    for r in range(vUP, vUP+8): a(f'v_mov_b32 v{r}, 0')
    for r in range(aU, aU+12): a(f'v_accvgpr_write_b32 a{r}, 0')
    a(f"""v_and_b32 v64, 0x1ff, v{vY}
    v_lshrrev_b32 v65, 3, v{n}
    v_lshl_add_u32 v{vD2}, v65, 3, v64""")
    a(f"""s_mov_b32 s{S_STEP}, 0
    s_mul_i32 s{sY}, s{sH}, 40960
    s_mul_i32 s{sT0}, s{sCg}, 2560
    s_add_u32 s{sY}, s{sY}, s{sT0}
    s_add_u32 s{sY}, s{sY}, {Y_OFF}
    s_lshr_b32 s{sU}, s{sH}, 2
    s_mul_i32 s{sU}, s{sU}, 40960
    s_add_u32 s{sU}, s{sU}, s{sT0}
    s_add_u32 s{sBp}, s{sU}, {BP_OFF - (P['lag']+1)*8*40960}
    s_add_u32 s{sU}, s{sU}, {U_OFF - 8*40960}
    s_and_b32 s{sPx}, s{sH}, 28
    s_lshl_b32 s{sPx}, s{sPx}, 11
    s_add_u32 s{sPx}, s{sPx}, {PX_OFF - P['lag']*65536}
    s_mov_b32 s{sYw}, {RING0}
    s_mov_b32 s{sYo}, {RING0 + ((-P['lag']-1) % NSLOT)*SLOT}
    s_mov_b32 s{sLo}, 0xffff
    s_mov_b32 s{sLo+1}, 0
    s_mul_i32 s{sK}, s{sHs}, 12288
    s_mul_i32 s{sT0}, s{sCs}, 3072
    s_add_u32 s{sK}, s{sK}, s{sT0}
    s_add_u32 s{sK}, s{sK}, {K_OFF}
    s_mul_i32 s{sKm}, s{sHs}, 3072
    s_mul_i32 s{sT0}, s{sCs}, 768
    s_add_u32 s{sKm}, s{sKm}, s{sT0}
    s_add_u32 s{sKm}, s{sKm}, {KM_OFF - 32*3072}""")
    srd(a, SRD_A, P_MEM0, 8*640*2)
    a(f"""v_and_b32 v63, 7, v{n}
    v_mul_u32_u24 v63, 1280, v63
    v_lshl_add_u32 v63, v{g}, 5, v63
    v_lshrrev_b32 v64, 3, v{n}
    v_lshl_add_u32 v40, v64, 4, v63
    v_mov_b32 v41, v{n}
    v_mov_b32 v42, v{g}
    v_mov_b32 v43, v{ln}
    s_cmp_eq_u32 s{S_WAVE}, 0
    s_cbranch_scc1 L_rec_0
    s_cmp_eq_u32 s{S_WAVE}, 1
    s_cbranch_scc1 L_rec_1
    s_cmp_eq_u32 s{S_WAVE}, 2
    s_cbranch_scc1 L_rec_2
    s_branch L_rec_3""")

def step_scalars(w):
    L = [f's_and_b32 s{sT0}, s{S_STEP}, 3',
         f's_mul_i32 s{sMr}, s{sT0}, {M_SLOT}',
         f's_add_u32 s{sMr}, s{sMr}, s{sMb}',
         f's_add_u32 s{sMr}, s{sMr}, {OWN[w][0]*1024}',
         f's_mul_i32 s{sG}, s{sT0}, {G_SLOT}',
         f's_add_u32 s{sTag}, s{S_STEP}, 1',
         f's_mul_i32 s{sTag3}, s{sTag}, 0x01010101',
         f's_mov_b32 s{sYr}, s{sYw}',
         f's_add_u32 s{sYw}, s{sYw}, {SLOT}',
         f's_cmp_ge_u32 s{sYw}, {RING0+NSLOT*SLOT}',
         f's_cselect_b32 s{sYw}, {RING0}, s{sYw}']
    if w >= 2:
        L += [f's_add_u32 s{sG}, s{sG}, s{sPar}',
              f's_xor_b32 s{sGL}, s{sG}, 8192']
    if w == 3:
        L += [f's_xor_b32 s{sT0}, s{sT0}, 2',
              f's_mul_i32 s{sGp}, s{sT0}, {G_SLOT}',
              f's_add_u32 s{sGp}, s{sGp}, s{sPar}',
              f's_xor_b32 s{sGLp}, s{sGp}, 8192',
              f's_add_u32 s{sT0}, s{S_STEP}, 3',
              f's_and_b32 s{sT0}, s{sT0}, 3',
              f's_mul_i32 s{sMp}, s{sT0}, {M_SLOT}',
              f's_add_u32 s{sMp}, s{sMp}, s{sMb}',
              f'v_mov_b32 v{vFd}, s{S_STEP}',
              f's_add_u32 s{sYo}, s{sYo}, {SLOT}',
              f's_cmp_ge_u32 s{sYo}, {RING0+NSLOT*SLOT}',
              f's_cselect_b32 s{sYo}, {RING0}, s{sYo}']
    return L

def thr_next(P):
    return [f's_add_u32 s{sT0}, s{S_STEP}, 2', f's_min_u32 s{sT0}, s{sT0}, 64',
            f's_sub_u32 s{sT1}, s{S_STEP}, {P["lag"]-1}', f's_max_i32 s{sT1}, s{sT1}, 0',
            f's_cmp_eq_u32 s{S_STEP}, 63', f's_cselect_b32 s{sT1}, 0, s{sT1}',
            f'v_mov_b32 v180, s{sT0}', f'v_mov_b32 v181, s{sT1}', f'v_cndmask_b32 v{vThr}, v181, v180, s[{sLo}:{sLo+1}]',
            f'v_cmp_gt_u32 s[{sBad}:{sBad+1}], v{vThr}, v{vFk}']

def poll_known(o, lab):
    o(f"""{lab}:
    s_add_u32 s{S_TO}, s{S_TO}, 1
    s_cmp_gt_u32 s{S_TO}, {TO_LIMIT}
    s_cbranch_scc1 L_exit
    {W('load_dword', f'v{vFk}', vFp, 0, 0, 'sc1')}
    s_waitcnt vmcnt(0)
    v_cmp_gt_u32 vcc, v{vThr}, v{vFk}
    s_cbranch_vccnz {lab}""")

def kx_load():
    return [W('load_dwordx4', vr(vKS+4*i), vL16, f's{sK}', 1024*i, 'sc1') for i in range(3)] + [f's_add_u32 s{sK}, s{sK}, {32*12288}']
def kx_copy():
    return [f'v_mov_b32 v{vKF+8*xt+2*i+r}, v{vKS+4*i+2*xt+r}' for i in range(3) for xt in range(2) for r in range(2)]

def y_dma(w, tmp):
    d = lambda va, off: f'buffer_load_dwordx4 v{va}, s[{SRD_W}:{SRD_W+3}], s{sY} offen offset:{off} sc1 lds'
    return [f's_add_u32 m0, s{sYw}, {3072*w}', f'v_and_b32 v{tmp}, 0x1ff, v{vL16}', d(vL16, 0), d(vL16, 1024), d(tmp, 2048), f's_add_u32 s{sY}, s{sY}, {32*40960}']
def y_read(w):
    return [f'v_add_u32 v11, s{sYr}, v{vY}'] + [f'ds_read_b128 {vr(vYt+4*t)}, v11 offset:{3072*w+1024*t}' for t in range(3)]
def flag_w(base, w):
    return f'ds_write_b32 v{vL16}, v{vTag} offset:{base+4*w}'
def flag_r(dst, base):
    return f'ds_read_b128 {vr(dst)}, v{vZ} offset:{base}'
def flag_chk(dst, nf):
    L = [f'v_min3_u32 v{dst}, v{dst}, v{dst+1}, v{dst+2}']
    if nf == 4: L.append(f'v_min_u32 v{dst}, v{dst}, v{dst+3}')
    return L + [f'v_cmp_ne_u32 vcc, s{sTag}, v{dst}']

def fold(acc, dst, pk=False):
    return [f'v_permlane32_swap_b32 v{acc}, v{acc+2}', f'v_permlane32_swap_b32 v{acc+1}, v{acc+3}'] + (
            [f'v_pk_add_f32 v[{acc}:{acc+1}], v[{acc}:{acc+1}], v[{acc+2}:{acc+3}]'] if pk else
            [f'v_add_f32 v{acc}, v{acc}, v{acc+2}', f'v_add_f32 v{acc+1}, v{acc+1}, v{acc+3}']) + [
            f'v_cvt_pk_bf16_f32 v{dst}, v{acc}, v{acc+1}']

def smf(acc, t, breg):
    if NOQK[0] and breg.startswith('v'): return 's_nop 3'
    return f'v_smfmac_f32_16x16x64_bf16 {vr(acc)}, {vr(vMF+4*t)}, {breg}, v{vIdx}'

def pub_reads():
    return [f'ds_read_b128 {vr(vPU+4*t)}, v{vL16} offset:{UB+1024*t}' for t in range(3)]
def u_stores():
    L = [W('store_dwordx4', vr(vPU+4*t), vY, f's{sU}', 1024*t, 'sc1') for t in range(2)]
    return L + [f's_mov_b64 exec, s[{sExLo}:{sExLo+1}]', W('store_dwordx4', vr(vPU+8), vY, f's{sU}', 2048, 'sc1'), 's_mov_b64 exec, -1']
def km_stores():
    return [f's_mov_b64 exec, s[{sExK}:{sExK+1}]', W('store_dwordx4', vr(vKf), vKc, f's{sKm}', 0, 'sc1'),
            W('store_dwordx2', vr(vKf+4, 2), vKd, f's{sKm}', 512, 'sc1'), 's_mov_b64 exec, -1']
def bp_stores():
    L = [W('store_dwordx4', vr(vBP+4*t), vL16, f's{sBp}', 1024*t, 'sc1') for t in range(2)]
    return L + ['s_mov_b32 exec_hi, 0', W('store_dwordx4', vr(vBP+8), vL16, f's{sBp}', 2048, 'sc1'), 's_mov_b32 exec_hi, -1']

def token_part(a, P):
    l = a.lab('tk')
    a(f"""v_add_u32 v180, s{sYr}, v{vL16}
    s_waitcnt lgkmcnt(0)""")
    for t in range(3): a(f'ds_write_b128 v180, {vr(vPU+4*t)} offset:{12288+1024*t}')
    a(f"""s_cmp_lt_u32 s{S_STEP}, {P['lag']}
    s_cbranch_scc1 {l}
    v_add_u32 v181, s{sYo}, v{vY}
    v_add_u32 v182, s{sYo}, v{vL16}""")
    A = [56+4*i for i in range(10)] + [16, 20, 24, 28, 32]
    for h in range(4):
        for t in range(3): a(f'ds_read_b128 {vr(A[3*h+t])}, v181 offset:{3072*h+1024*t}')
    for h in range(4):
        for xq in range(2): a(f'v_mov_b32 v{vPM8+4*xq+h}, v{vPF+8*h+2+xq}')
        a(f'v_mov_b32 v{vPF+8*h+2}, 0\nv_mov_b32 v{vPF+8*h+3}, 0')
    a('s_waitcnt lgkmcnt(9)')
    for t in range(3): a(f'ds_read_b128 {vr(A[12+t])}, v182 offset:{12288+1024*t}')
    for h in range(5):
        if h: a(f's_waitcnt lgkmcnt({12-3*h})')
        for t in range(3):
            for xq in range(2):
                d = vr(vTA+8*t+4*xq)
                B = vPF+8*h+4*xq if h < 4 else vPM8+4*xq
                a(f'v_mfma_f32_16x16x32_bf16 {d}, {vr(A[3*h+t])}, {vr(B)}, {"0" if h == 0 else d}')
    a.nop(3)
    for t in range(3):
        for xq in range(2):
            b = vTA+8*t+4*xq
            a(f'v_cvt_pk_bf16_f32 v{vBP+4*t+2*xq}, v{b}, v{b+1}\nv_cvt_pk_bf16_f32 v{vBP+4*t+2*xq+1}, v{b+2}, v{b+3}')
    a(f'{l}:')

def rec_wave(a, tail, w, P):
    n, g, ln = 41, 42, 43
    nm = str(w)
    st0 = P['stamp']; fine = P.get('fine', 0)
    st = lambda i: '' if (fine and 5 <= i <= 9) else st0(i)
    sf = lambda i: st0(i) if fine else ''
    own = OWN[w]; oth = [t for t in range(10) if t not in own]
    a(f'L_rec_{nm}:')
    if w < 2:
        a(f"""v_min_u32 v64, 9, v{n}
        v_add_u32 v65, {10*w}, v64
        v_lshlrev_b32 v65, 4, v65
        s_and_b32 s{sT0}, s{S_J}, 1
        s_mul_i32 s{sT1}, s{sT0}, 384
        s_mul_i32 s{sT2}, s{sCg}, 1536
        s_add_u32 s{sT1}, s{sT1}, s{sT2}
        v_add_u32 v65, s{sT1}, v65
        v_and_b32 v66, 1, v{g}
        v_mul_u32_u24 v66, 768, v66
        v_add_u32 v65, v65, v66""")
        for rho, dst in ((0, vG0), (1, vG1)):
            a(f"""v_lshrrev_b32 v66, 1, v{g}
            v_add_u32 v66, {2*rho}, v66
            v_mul_u32_u24 v67, {32*768}, v66
            v_add_u32 v{dst}, v65, v67""")
            phys(a, dst, 67)
            a(f"""v_add_u32 v{dst}, s{sPar}, v{dst}
            v_xor_b32 v67, 8192, v{dst}
            v_cmp_eq_u32 vcc, s{S_X}, v66
            s_nop 1
            v_cndmask_b32 v{dst}, v{dst}, v67, vcc""")
        a(f"""v_lshrrev_b32 v66, 1, v64
        v_lshlrev_b32 v66, 7, v66
        v_and_b32 v67, 1, v64
        v_lshl_add_u32 v66, v67, 4, v66
        v_lshl_add_u32 v66, v{g}, 3, v66
        s_mul_i32 s{sT1}, s{sCg}, 640
        s_lshl_b32 s{sT0}, s{sT0}, 6
        s_add_u32 s{sT1}, s{sT1}, s{sT0}
        s_add_u32 s{sT1}, s{sT1}, {32*w}
        v_add_u32 v{vMst}, s{sT1}, v66
        s_mov_b32 s{sEx}, 0x03ff03ff
        s_mov_b32 s{sEx+1}, 0
        v_mov_b32 v68, 0""")
        build_sel(a, 72, n, 68, 0, 64)
        for r in range(4): a(f'v_accvgpr_write_b32 a{aSel+r}, v{72+r}')
    else:
        z = w - 2
        a(f"""v_min_u32 v64, 39, v{ln}
        v_lshlrev_b32 v{vGst}, 3, v64
        v_add_u32 v{vGst}, s{sGb}, v{vGst}
        v_add_u32 v{vGst}, {384*z}, v{vGst}""")
        phys(a, vGst, 65)
        a(f"""v_lshrrev_b32 v65, 1, v64
        v_cmp_le_u32 vcc, 10, v65
        s_nop 1
        v_cndmask_b32 v66, 0, 1, vcc          ; om
        v_mul_u32_u24 v67, 10, v66
        v_sub_u32 v65, v65, v67               ; r
        v_and_b32 v67, 1, v65
        v_lshl_add_u32 v67, v66, 1, v67
        v_add_u32 v67, {4*z}, v67             ; q
        v_lshlrev_b32 v67, 4, v67
        v_lshrrev_b32 v65, 1, v65             ; o'
        v_and_b32 v64, 1, v64                 ; hb
        v_and_b32 v66, 1, v65
        v_lshl_add_u32 v66, v66, 1, v64       ; g
        v_lshlrev_b32 v66, 8, v66
        v_bfe_u32 v68, v65, 1, 1
        v_lshl_add_u32 v66, v68, 7, v66       ; g*256 + t*128
        v_lshlrev_b32 v64, 7, v64
        v_add_u32 v64, 1024, v64
        v_cmp_eq_u32 vcc, 4, v65
        s_nop 1
        v_cndmask_b32 v66, v66, v64, vcc
        v_add_u32 v{vDr}, v66, v67
        s_mov_b32 s{sEx}, -1
        s_mov_b32 s{sEx+1}, 0xff""")
    if w == 3:
        a(f"""v_lshrrev_b32 v64, 2, v{n}
        v_lshl_add_u32 v64, v{g}, 2, v64
        v_lshlrev_b32 v64, 4, v64
        v_and_b32 v65, 1, v{n}
        v_lshl_add_u32 v{vQr}, v65, 3, v64
        v_bfe_u32 v65, v{n}, 1, 1
        v_lshlrev_b32 v65, 3, v65
        v_lshl_add_u32 v{vKr}, v{vQr}, 1, v65
        v_lshlrev_b32 v{vL8}, 3, v{ln}
        v_min_u32 v64, 47, v{ln}
        v_lshlrev_b32 v64, 4, v64
        v_add_u32 v{vPG}, s{sGb}, v64""")
        phys(a, vPG, 65)
        a(f"""v_min_u32 v64, 19, v{ln}
        v_lshrrev_b32 v65, 2, v64
        v_lshlrev_b32 v65, 7, v65
        v_and_b32 v64, 3, v64
        v_lshl_add_u32 v65, v64, 4, v65
        s_and_b32 s{sT0}, s{S_J}, 1
        s_lshl_b32 s{sT0}, s{sT0}, 6
        s_mul_i32 s{sT1}, s{sCg}, 640
        s_add_u32 s{sT1}, s{sT1}, s{sT0}
        v_add_u32 v{vPM}, s{sT1}, v65""")
        for r in range(4): a(f'v_mov_b32 v{vNeg+r}, -1')
        for r in (vKF+6, vKF+7, vKF+14, vKF+15, vQf+6, vQf+7, vKf+6, vKf+7): a(f'v_mov_b32 v{r}, 0')
        for s in P['wait_k0'](): a(s)
        if P['live']:
            a(f"""v_mov_b32 v64, 0xf0000000
            v_cmp_eq_u32 vcc, 0, v{ln}
            s_nop 1
            v_cndmask_b32 v{vFa}, v64, 0, vcc""")
            a(f"""v_and_b32 v64, 3, v{ln}
            v_lshlrev_b32 v64, 9, v64
            s_sub_u32 s{sT0}, s{sFy}, {3*512}
            v_add_u32 v64, s{sT0}, v64
            v_mov_b32 v65, s{sFk}
            v_cmp_gt_u32 vcc, 4, v{ln}
            s_nop 1
            v_cndmask_b32 v{vFp}, v65, v64, vcc
            v_bfe_u32 v64, v{ln}, 2, 2
            v_lshlrev_b32 v64, 9, v64
            v_and_b32 v65, 3, v{ln}
            v_lshl_add_u32 v64, v65, 2, v64
            s_add_u32 s{sT0}, s{sT0}, 128
            v_add_u32 v64, s{sT0}, v64
            v_cndmask_b32 v{vFp}, v64, v{vFp}, s[{sLo}:{sLo+1}]
            v_cndmask_b32 v{vThr}, 0, 1, s[{sLo}:{sLo+1}]""")
            poll_known(a, a.lab('k0'))
        a(f"""v_lshrrev_b32 v64, 2, v{ln}
        v_and_b32 v65, 1, v{ln}
        v_lshl_add_u32 v64, v64, 1, v65
        v_lshlrev_b32 v{vKc}, 4, v64
        v_lshlrev_b32 v{vKd}, 3, v64
        v_add_u32 v{vL4k}, 4096, v{vL16}""")
        for s in kx_load(): a(s)
    a('s_barrier')
    a(P.get('after_y0', ''))
    for s in y_dma(w, 44): a(s)
    for s in step_scalars(w): a(s)
    if w == 3 and P['live']:
        for s in thr_next(P): a(s)
    for i, t in enumerate(own):
        a(f'buffer_load_dwordx4 {vr(vMF+4*t)}, v40, s[{SRD_A}:{SRD_A+3}], 0 offen offset:{128*t}')
    uz = [f'v_mov_b32 v{vUa+r}, 0' for r in range(12)]
    az = ([f'v_mov_b32 v{vAq+r}, 0' for r in range(8)] if w < 3 else []) + uz
    for s in az: a(s)
    a('s_waitcnt vmcnt(0)')
    if w == 3:
        for s in kx_copy(): a(s)
    for t in own: a(f'ds_write_b128 v{vL16}, {vr(vMF+4*t)} offset:{MB+1024*t}')
    o = []
    if w < 3:
        for t in own: o += [smf(vAq, t, vr(vWq+8*t, 8)), smf(vAk, t, vr(vWk+8*t, 8))]
    nb = P['own_before'] if w < 3 else 0
    for s in o[:nb]: a(s)
    a(f"""s_waitcnt lgkmcnt(0)
    s_branch L_rec_{nm}_m""")
    a(f'.p2align 6\nL_rec_{nm}_top0:')
    a(st(0))
    mld = [f'buffer_load_dwordx4 v{vL16}, s[{SRD_W}:{SRD_W+3}], s{sMr} offen offset:{1024*i} sc1 lds' for i, t in enumerate(own)]
    md = P['mdepth']
    for r in range(md-1):
        for s in mld: a(s)
        a.nop(P['mgap'])
    a(f'L_rec_{nm}_top:')
    for s in mld: a(s)
    for i, t in enumerate(own):
        a(f's_waitcnt vmcnt({len(own)*(md-1) + len(own)-1-i})')
        a(f'ds_read_b128 {vr(vMF+4*t)}, v{vL16} offset:{MB+1024*t}')
    b0 = vMF+4*own[0]
    lr = a.lab('rm')
    if w < 3:
        oo = list(o[:nb])
        pop = lambda: oo.pop(0) if oo else ''
        a(f"""s_waitcnt lgkmcnt(2)
        {pop()}
        v_max3_u32 v40, v{b0}, v{b0+1}, v{b0+2}
        s_waitcnt lgkmcnt(1)
        v_max3_u32 v41, v{b0+3}, v{b0+4}, v{b0+5}
        {pop()}
        v_max3_u32 v40, v40, v{b0+6}, v{b0+7}
        s_waitcnt lgkmcnt(0)
        v_max3_u32 v41, v41, v{b0+8}, v{b0+9}
        v_max3_u32 v40, v40, v{b0+10}, v{b0+11}
        {pop()}
        v_max_u32 v40, v40, v41
        v_cmp_eq_u32 vcc, -1, v40""")
        while oo: a(oo.pop(0))
        tail(f'{lr}_z:\ns_nop 7')
        for r in range(8): tail(f'v_mov_b32 v{vAq+r}, 0')
        tail(f's_branch L_rec_{nm}_top')
        retry(a, tail, lr, f'{lr}_z')
    else:
        a(f"""s_waitcnt lgkmcnt(0)
        v_max3_u32 v40, v{b0}, v{b0+1}, v{b0+2}
        v_max_u32 v40, v40, v{b0+3}
        v_cmp_eq_u32 vcc, -1, v40""")
        retry(a, tail, lr, f'L_rec_{nm}_top')
    a(f's_cbranch_vccnz {lr}')
    a(f'L_rec_{nm}_m:')
    a(st(1))
    reads = [f'ds_read_b128 {vr(vMF+4*t)}, v{vL16} offset:{MB+1024*t}' for t in oth]
    sld = lambda S: [W('load_dwordx4', vr(r), vL16, f's{sSr}', 1024*i, 'sc1') for i, r in enumerate(S)]
    uch = [smf(vUa+4*tc, t, ar((tc*10+t)*8, 8)) for tc in range(3) for t in range(10)]
    if P.get('nou'): uch = ['s_nop 3']*30
    ufold = lambda tc: fold(vUa+4*tc, 10+(tc & 1), tc == 2) + [f'ds_write_b32 v{vL16}, v{10+(tc & 1)} offset:{UB+1024*tc+4*w}', f'v_accvgpr_write_b32 a{aU+4*tc}, v{10+(tc & 1)}']
    nb_ = P.get('nobg', 0)
    a('s_barrier')
    a(st(2))
    if w < 3:
        for s in reads[:3]: a(s)
        oq = o[nb:]; held = []
        for _ in range(P['khold']):
            i = max(i for i, x in enumerate(oq) if f' {vr(vAk)},' in x or 'nop' in x); held.insert(0, oq.pop(i))
        for s in interleave(oq, reads[3:], 2): a(s)
        for i, t in enumerate(oth):
            a(f's_waitcnt lgkmcnt({len(oth)-1-i})\n' + smf(vAq, t, vr(vWq+8*t, 8)))
        a(sf(5))
        kch = [smf(vAk, t, vr(vWk+8*t, 8)) for t in oth]
        fq = fold(vAq, 40) + [f'ds_write_b32 v{vQw}, v40 offset:{QB}']
        kch = held + kch
        sc = [f'v_mul_f32 v{vAq+i}, s{sC2}, v{vAq+i}' for i in range(2)]
        gapf = [['s_nop 1'], ['s_nop 1'], ['s_nop 0', fq[0]], [fq[1]], [fq[2], fq[3]], sc, [fq[4], fq[5]]]
        for i, s in enumerate(kch):
            a(s)
            if i < len(gapf):
                for x in gapf[i]: a(x)
        pad = 2 if len(kch) == len(gapf) else 0
        if P['b2a']:
            a.nop(6-pad)
            a('s_waitcnt lgkmcnt(0)')
            a(sf(6))
            a('s_barrier')
            a(sf(7))
        else:
            a.nop(8-pad)
        for s in fold(vAk, 41, True): a(s)
        a(f'ds_write_b32 v{vKw}, v41 offset:{KB}')
        np_ = P['u_early']
        for s in uch[:np_]: a(s)
        a('s_waitcnt lgkmcnt(0)')
        a(sf(8)); a(sf(9))
        a('s_barrier')
        a(st(3)); a(st(4))
        upos, spos = np_, P['spos_o']
        pend = y_read(w)
    else:
        lb = a.lab('np')
        def pB():
            a(f's_cmp_le_u32 s{S_STEP}, {P["lag"]}\ns_cbranch_scc1 {lb}_a')
            for s in ([] if nb_ & 64 else bp_stores()): a(s)
            a(f'{lb}_a:\ns_cmp_ge_u32 s{S_STEP}, {max(1, P["ufrom"]+1)}\ns_cbranch_scc1 {lb}_u\n{lb}_b:')
            tail(f'{lb}_u:')
            for s in u_stores(): tail(s)
            tail(f's_branch {lb}_b')
        def pM():
            for s in km_stores(): a(s)
        def pG():
            if not nb_ & 8: a(W('store_dwordx4', vr(vNeg), vPG, f's{sGp}', 0, 'sc1'))
        def pK():
            if P['live']:
                lk = a.lab('wk')
                a(f's_cmp_lg_u64 s[{sBad}:{sBad+1}], 0\ns_cbranch_scc1 {lk}\n{lk}_b:')
                a(W('load_dword', f'v{vFk}', vFp, 0, 0, 'sc1'))
                poll_known(tail, lk)
                tail(f's_branch {lk}_b')
            for s in ([] if nb_ & 2 else kx_load()): a(s)
        def pR():
            for s in reads: a(s)
        def pP():
            a(f's_cmp_lt_u32 s{S_STEP}, {P["lag"]}\ns_cbranch_scc1 {lb}')
            for i in range(0 if nb_ & 32 else 8): a(W('load_dwordx4', vr(vPF+4*i), vL16 if i < 4 else vL4k, f's{sPx}', 1024*(i & 3), 'sc1'))
            a(f'{lb}:')
        for f in [(pK, pP, pB, pM, pG, pR), (pK, pB, pM, pG, pR, pP), (pK, pB, pP, pM, pG, pR), (pK, pG, pM, pB, pR, pP), (pR, pK, pG, pM, pB, pP), (pK, pP, pG, pM, pB, pR)][P['w1ord']]: f()
        a(f"""s_add_u32 s{sU}, s{sU}, {8*40960}
        s_add_u32 s{sKm}, s{sKm}, {32*3072}
        s_add_u32 s{sBp}, s{sBp}, {8*40960}
        s_add_u32 s{sPx}, s{sPx}, 65536""")
        plain = [] if nb_ & 4 else [W('store_dwordx4', vr(vNeg), vPG, f's{sGLp}'), W('store_dwordx4', vr(vNeg), vPM, f's{sMp}')]
        a(sf(5))
        a('s_waitcnt lgkmcnt(0)')
        np_ = P['u_pre']
        for s in interleave(uch[:np_], plain, 1): a(s)
        qrd = [f'ds_read_b64_tr_b16 {vr(vQf+2*i,2)}, v{vQr} offset:{QB+256*i}' for i in range(3)]
        krd = [f'ds_read_b64_tr_b16 {vr(vKf+2*i,2)}, v{vKr} offset:{KB+512*i}' for i in range(3)]
        xm = [f'v_mfma_f32_16x16x32_bf16 {vr(vD0)}, {vr(vKF)}, {vr(vQf)}, 0',
              f'v_mfma_f32_16x16x32_bf16 {vr(vD1)}, {vr(vKF+8)}, {vr(vQf)}, 0',
              f'v_mfma_f32_16x16x32_bf16 {vr(vD0)}, {vr(vKF+4)}, {vr(vQf+4)}, {vr(vD0)}',
              f'v_mfma_f32_16x16x32_bf16 {vr(vD1)}, {vr(vKF+12)}, {vr(vQf+4)}, {vr(vD1)}']
        mm_ = [f'v_mfma_f32_16x16x32_bf16 {vr(vDm)}, {vr(vKf)}, {vr(vQf)}, 0',
               f'v_mfma_f32_16x16x32_bf16 {vr(vDm)}, {vr(vKf+4)}, {vr(vQf+4)}, {vr(vDm)}']
        sel = [f'v_cndmask_b32 v{vPk+i}, v{vD0+i}, v{vD1+i}, s[{sHalf}:{sHalf+1}]' for i in range(4)]
        sel += [f'v_mov_b32_sdwa v{vPk}, s{sTag} dst_sel:BYTE_0 dst_unused:UNUSED_PRESERVE src0_sel:BYTE_0']
        a(sf(6))
        a('s_barrier')
        a(sf(7))
        if P['b2a']:
            for s in qrd: a(s)
            a('s_waitcnt lgkmcnt(0)')
            a(sf(8))
            nx = P['xpre']
            for s in xm[:nx]: a(s)
            a(sf(9))
            a('s_barrier')
            a(st(3))
            for s in krd: a(s)
            for s in xm[nx:]: a(s)
            a.nop(5 if nx < 4 else 1)
            a('s_waitcnt lgkmcnt(0)')
            a(mm_[0]); a(mm_[1])
            for s in sel: a(s)
            a.nop(3)
        else:
            a(st(3))
            for s in qrd + krd: a(s)
            a('s_waitcnt lgkmcnt(3)')
            for s in xm: a(s)
            a('s_waitcnt lgkmcnt(0)')
            a(mm_[0]); a(mm_[1])
            a.nop(5)
            for s in sel: a(s)
        a(f"""v_cndmask_b32 v{vDm}, v{vDm}, v{vDm+1}, s[{sHalf}:{sHalf+1}]
        v_mov_b32_sdwa v{vPk+1}, v{vDm} dst_sel:BYTE_0 dst_unused:UNUSED_PRESERVE src0_sel:BYTE_1
        v_mov_b32_sdwa v{vPk+2}, v{vDm} dst_sel:BYTE_0 dst_unused:UNUSED_PRESERVE src0_sel:BYTE_2
        v_mov_b32_sdwa v{vPk+3}, v{vDm} dst_sel:BYTE_0 dst_unused:UNUSED_PRESERVE src0_sel:BYTE_3
        s_nop 0""")
        a(W('store_dwordx4', vr(vPk), vL16, f's{sSw}'))
        a(st(4))
        upos, spos = np_, P['spos_s']
        pend = y_read(w)
    done0 = done1 = False
    for i in range(upos, 30):
        a(uch[i])
        if i == spos: pend = sld(SETA) + pend
        if not done0 and i >= 17: pend += ufold(0); done0 = True
        if not done1 and i >= 25: pend += ['s_nop 1'] + ufold(1); done1 = True
        for _ in range(2):
            if pend:
                x = pend.pop(0); a(x)
                if 'permlane' in x or (pend and 'permlane' in pend[0]): break
    k = len(pend)
    while pend: a(pend.pop(0))
    if spos >= 30:
        if spos > 30: a.nop(spos-30)
        for s in sld(SETA): a(s)
        k += 4
    a.nop(max(0, 8-k))
    for s in ufold(2): a(s)
    a(f"""s_cmp_eq_u32 s{S_STEP}, 63
    s_cbranch_scc1 L_rec_{nm}_fin""")
    a.nop(P['sgap_s'] if w == 3 else P['sgap_o'])
    X, MV, T = 68, 72, 73
    ls = a.lab('ps')
    def scheck(o, S, fail, nleft, first=''):
        A, B, C, D = S
        o(f"""s_waitcnt vmcnt({nleft+3}) {first}
        v_perm_b32 v{MV}, v{A+2}, v{A+1}, s{sSelU1}
        v_perm_b32 v{MV}, v{A+3}, v{MV}, s{sSelU2}
        s_waitcnt vmcnt({nleft+2})
        v_perm_b32 v{T}, v{B+2}, v{B+1}, s{sSelU1}
        v_pk_add_f32 v[{X}:{X+1}], v[{A}:{A+1}], v[{B}:{B+1}]
        v_perm_b32 v{T}, v{B+3}, v{T}, s{sSelU2}
        v_pk_add_f32 v[{X+2}:{X+3}], v[{A+2}:{A+3}], v[{B+2}:{B+3}]
        v_add_f32 v{MV}, v{MV}, v{T}
        v_perm_b32 v{T+1}, v{A}, v{B}, s{sSelT1}
        s_waitcnt vmcnt({nleft+1})
        v_perm_b32 v{T}, v{C+2}, v{C+1}, s{sSelU1}
        v_pk_add_f32 v[{X}:{X+1}], v[{X}:{X+1}], v[{C}:{C+1}]
        v_perm_b32 v{T}, v{C+3}, v{T}, s{sSelU2}
        v_pk_add_f32 v[{X+2}:{X+3}], v[{X+2}:{X+3}], v[{C+2}:{C+3}]
        v_add_f32 v{MV}, v{MV}, v{T}
        v_perm_b32 v{T+1}, v{C}, v{T+1}, s{sSelT2}
        s_waitcnt vmcnt({nleft})
        v_perm_b32 v{T+1}, v{D}, v{T+1}, s{sSelT3}
        v_perm_b32 v{T}, v{D+2}, v{D+1}, s{sSelU1}
        v_cmp_ne_u32 vcc, s{sTag3}, v{T+1}
        v_perm_b32 v{T}, v{D+3}, v{T}, s{sSelU2}
        v_pk_add_f32 v[{X}:{X+1}], v[{X}:{X+1}], v[{D}:{D+1}]
        v_pk_add_f32 v[{X+2}:{X+3}], v[{X+2}:{X+3}], v[{D+2}:{D+3}]
        v_add_f32 v{MV}, v{MV}, v{T}
        v_max3_f32 v{T}, v{X}, v{X+1}, v{X+2}
        v_max3_f32 v{T}, v{T}, v{X+3}, v{MV}
        s_cbranch_vccnz {fail}""")
    yd = ([] if nb_ & 16 else y_dma(w, 25))
    for s in yd[:2]: a(s)
    a(f'v_and_b32 v26, 0x1ff, v{vY}')
    if w >= 2: a(f'v_and_b32 v24, 0x70, v{vDr}')
    yd = yd[2:]; nw2 = 3
    if P['live'] and w == 3:
        yd.insert(1, W('store_dword', f'v{vFd}', vFa, f's{sFl}', 0, 'sc1')); nw2 += 1
    a(st(5))
    if P['sdepth'] == 2:
        a(f'{ls}_a:')
        for s in sld(SETB): a(s)
        scheck(a, SETA, f'{ls}_b', 4, 'lgkmcnt(0)')
        tail(f'{ls}_b:')
        for s in sld(SETA): tail(s)
        scheck(tail, SETB, f'{ls}_r', 4)
        tail(f's_branch {ls}_j')
        retry(a, tail, f'{ls}_r', f'{ls}_a')
    else:
        a(f'{ls}_a:')
        scheck(a, SETA, f'{ls}_r', 0, 'lgkmcnt(0)')
        tail(f'{ls}_b:')
        for s in sld(SETA): tail(s)
        tail(f's_branch {ls}_a')
        retry(a, tail, f'{ls}_r', f'{ls}_b')
    PB = 76
    def one(): return yd.pop(0) if yd else 's_nop 0'
    ys = P['yspread']
    dpp = 'row_ror:8 row_mask:0xf bank_mask:0xf'
    dpc = 'row_ror:8 row_mask:0xf bank_mask:0xc'
    a(f"""{ls}_j:
    s_barrier
    {st(6)}
    v_max_f32_dpp v{T+1}, v{T}, v{T} {dpp}
    v_max_f32_dpp v{T+2}, v{T}, v{T} {dpp}
    {one()}
    {one() if (not ys or nw2 == 4) else 's_nop 0'}
    v_permlane16_swap_b32 v{T+1}, v{T+2}
    v_max_f32 v{T}, v{T+1}, v{T+2}
    v_max_f32 v{T+1}, v{T+1}, v{T+2}
    {one()}
    {one() if not ys else 's_nop 0'}
    v_permlane32_swap_b32 v{T}, v{T+1}
    v_max_f32 v{T+1}, v{T}, v{T+1}
    v_sub_f32 v{MV}, v{MV}, v{T+1}
    v_pk_add_f32 v[{X}:{X+1}], v[{X}:{X+1}], v[{T+1}:{T+2}] op_sel_hi:[1,0] neg_lo:[0,1] neg_hi:[0,1]
    v_pk_add_f32 v[{X+2}:{X+3}], v[{X+2}:{X+3}], v[{T+1}:{T+2}] op_sel_hi:[1,0] neg_lo:[0,1] neg_hi:[0,1]
    v_exp_f32 v{MV}, v{MV}
    v_exp_f32 v{X}, v{X}
    v_exp_f32 v{X+1}, v{X+1}
    v_mov_b32_dpp v{T+1}, v{MV} {dpp}
    v_cvt_pk_bf16_f32 v{vDq}, v{MV}, v{T+1}
    v_exp_f32 v{X+2}, v{X+2}
    v_cvt_pk_bf16_f32 v{PB}, v{X}, v{X+1}
    v_mfma_f32_16x16x32_bf16 {vr(60)}, {ar(aU+4)}, {vr(vDq)}, 0
    v_exp_f32 v{X+3}, v{X+3}
    v_mfma_f32_16x16x32_bf16 {vr(56)}, {ar(aU)}, {vr(vDq)}, 0
    v_cvt_pk_bf16_f32 v{PB+1}, v{X+2}, v{X+3}
    v_mov_b32_dpp v{PB+2}, v{PB} {dpp}
    v_mfma_f32_16x16x32_bf16 {vr(64)}, {ar(aU+8)}, {vr(vDq)}, 0
    v_mov_b32_dpp v{PB+3}, v{PB+1} {dpp}
    v_add_f32 v{T}, v{X}, v{X+1}
    v_add_f32 v{T+2}, v{X+2}, v{X+3}
    v_mfma_f32_16x16x32_bf16 {vr(60)}, {vr(vYt+4)}, {vr(PB)}, {vr(60)}
    v_add_f32 v{T}, v{T}, v{MV}
    v_add_f32 v{T}, v{T}, v{T+2}
    v_mfma_f32_16x16x32_bf16 {vr(56)}, {vr(vYt)}, {vr(PB)}, {vr(56)}
    {one()}
    v_add_f32_dpp v{T+1}, v{T}, v{T} {dpp}
    v_mfma_f32_16x16x32_bf16 {vr(64)}, {vr(vYt+8)}, {vr(PB)}, {vr(64)}
    v_add_f32_dpp v{T+2}, v{T}, v{T} {dpp}
    s_nop 1
    v_permlane16_swap_b32 v{T+1}, v{T+2}
    v_add_f32 v{T}, v{T+1}, v{T+2}
    v_add_f32 v{T+1}, v{T+1}, v{T+2}
    v_mov_b32_dpp v56, v60 {dpc}
    v_mov_b32_dpp v57, v61 {dpc}
    v_permlane32_swap_b32 v{T}, v{T+1}
    v_mov_b32_dpp v58, v62 {dpc}
    v_mov_b32_dpp v59, v63 {dpc}
    ds_write_b128 v{vL16}, {vr(56)} offset:{DB+1536*w}
    v_add_f32 v{T}, v{T}, v{T+1}
    v_rcp_f32 v{T}, v{T}
    v_mov_b32_dpp v64, v66 {dpc}
    v_mov_b32_dpp v65, v67 {dpc}
    ds_write_b32 v26, v{T} offset:{RB+4*w}
    ds_write_b64 v{vD2}, v[64:65] offset:{DB+1536*w+1024}""")
    while yd: a(yd.pop(0))
    a(f"""{f's_mov_b64 exec, s[{sEx}:{sEx+1}]' if w >= 2 else ''}
    s_waitcnt lgkmcnt(0)
    s_barrier""")
    a(st(7))
    nxt = [f's_add_u32 s{S_STEP}, s{S_STEP}, 1'] + step_scalars(w)
    if w >= 2:
        a(f'ds_read_b128 {vr(72)}, v24 offset:{RB}')
        for i in range(4): a(f'ds_read_b128 {vr(56+4*i)}, v{vDr} offset:{DB+1536*i}')
        a(f"""s_waitcnt lgkmcnt(3)
        v_pk_mul_f32 v[76:77], v[56:57], v[72:73] op_sel_hi:[1,0]
        v_pk_mul_f32 v[78:79], v[58:59], v[72:73] op_sel_hi:[1,0]
        s_waitcnt lgkmcnt(2)
        v_pk_fma_f32 v[76:77], v[60:61], v[72:73], v[76:77] op_sel:[0,1,0] op_sel_hi:[1,1,1]
        v_pk_fma_f32 v[78:79], v[62:63], v[72:73], v[78:79] op_sel:[0,1,0] op_sel_hi:[1,1,1]
        s_waitcnt lgkmcnt(1)
        v_pk_fma_f32 v[76:77], v[64:65], v[74:75], v[76:77] op_sel_hi:[1,0,1]
        v_pk_fma_f32 v[78:79], v[66:67], v[74:75], v[78:79] op_sel_hi:[1,0,1]
        s_waitcnt lgkmcnt(0)
        v_pk_fma_f32 v[76:77], v[68:69], v[74:75], v[76:77] op_sel:[0,1,0] op_sel_hi:[1,1,1]
        v_pk_fma_f32 v[78:79], v[70:71], v[74:75], v[78:79] op_sel:[0,1,0] op_sel_hi:[1,1,1]
        v_cvt_pk_bf16_f32 v76, v76, v77
        v_cvt_pk_bf16_f32 v77, v78, v79
        v_min_u32 v76, -2, v76""")
        a(W('store_dwordx2', 'v[76:77]', vGst, f's{sG}', 0, 'sc1'))
        a(W('store_dwordx2', 'v[76:77]', vGst, f's{sGL}'))
        a(st(8)); a(st(9))
        a(f's_mov_b64 exec, -1\ns_waitcnt vmcnt({nw2+2})')
        if w == 3:
            for s in pub_reads() + kx_copy(): a(s)
            if not nb_ & 128: token_part(a, P)
        for s in nxt + az: a(s)
        if w == 3 and P['live']:
            for s in thr_next(P): a(s)
        a('s_waitcnt lgkmcnt(0)')
    else:
        a(f's_waitcnt vmcnt({nw2}) lgkmcnt(0)')
        for s in az: a(s)
        a(f"""s_and_b32 s{sT0}, s{sTag}, 3
        s_mul_i32 s{sMw}, s{sT0}, {M_SLOT}
        s_add_u32 s{sMw}, s{sMw}, s{sMb}
        s_mov_b32 s{sGp}, s{sG}""")
        for s in nxt: a(s)
        if P['sleep_g']: a(f"s_sleep {P['sleep_g']}")
        a.nop(P['nop_g'])
        dep = P['gdepth']
        gl = lambda r: [W('load_dwordx4', vr(60+8*r), vG0, f's{sGp}', 0, 'sc1'), W('load_dwordx4', vr(64+8*r), vG1, f's{sGp}', 0, 'sc1')]
        lg = a.lab('pg')
        a(st(8))
        for r in range(dep-1):
            for s in gl(r): a(s)
            a.nop(P['ggap'])
        a(f'{lg}:')
        for r in range(dep):
            for s in gl((r+dep-1) % dep): a(s)
            b = 60+8*r
            a(f"""s_waitcnt vmcnt({2*(dep-1)})
            v_mfma_f32_16x16x32_bf16 {vr(56)}, {ar(aSel)}, {vr(b)}, 0
            v_max3_u32 v40, v{b}, v{b+2}, v{b+4}
            v_max_u32 v40, v40, v{b+6}
            v_mfma_f32_16x16x32_bf16 {vr(56)}, {ar(aSel)}, {vr(b+4)}, {vr(56)}
            v_cmp_eq_u32 vcc, -1, v40
            s_nop 4
            s_cbranch_vccz {lg}_ok""")
        a(f"""s_add_u32 s{S_TO}, s{S_TO}, 1
        s_cmp_gt_u32 s{S_TO}, {TO_LIMIT}
        s_cbranch_scc1 L_exit
        s_branch {lg}
        {lg}_ok:
        {st(9)}
        s_mov_b64 exec, s[{sEx}:{sEx+1}]
        v_cvt_pk_bf16_f32 v40, v56, v57
        v_cvt_pk_bf16_f32 v41, v58, v59
        v_min_u32 v40, -2, v40
        v_min_u32 v41, -2, v41""")
        a(W('store_dwordx2', 'v[40:41]', vMst, f's{sMw}'))
        a('s_mov_b64 exec, -1')
    a('s_barrier')
    a(st(10))
    a(P['dump'](a, w))
    a(f's_mov_b32 m0, {MB+1024*own[0]}')
    a.nop(P['dm'])
    a(f's_branch L_rec_{nm}_top0')
    a(f"""L_rec_{nm}_fin:
    s_waitcnt lgkmcnt(0)
    s_barrier""")
    if w == 3:
        for s in pub_reads() + km_stores(): a(s)
        a('s_waitcnt lgkmcnt(0)')
        for s in u_stores(): a(s)
        if P['live']:
            a(f'v_mov_b32 v{vFd}, 64\ns_waitcnt vmcnt(0)')
            a(W('store_dword', f'v{vFd}', vFa, f's{sFl}', 0, 'sc1'))
    a('s_branch L_rec_done')

NOQK = [0]
def rec_role(a, P):
    NOQK[0] = P.get('noqk', 0)
    tail = Asm(); tail.uid = 100000
    a('L_rec:')
    rec_prologue(a, P)
    for w in range(4):
        rec_wave(a, tail, w, P)
    a.lines += tail.lines
    a(f"""L_rec_done:
    s_waitcnt vmcnt(0)
    s_barrier""")
    for s in P['done'](): a(s)
    a('s_branch L_exit')
```

```python
from gen_common import *
import gen_par as gp
import gen_rec as gr

def worker_id(a):
    a(f"""L_tofinal:
    s_and_b32 s{gp.sT0}, s{S_J}, 2
    s_mul_i32 s{gp.sT0}, s{gp.sT0}, 15
    s_add_u32 s{gp.sWk}, s{gp.sH}, s{gp.sT0}
    s_cmp_ge_u32 s{gp.sH}, 30
    s_cbranch_scc1 L_exit""")

def mid_beta(a):
    a(f"""v_and_b32 v12, 3, v{gp.vLn}
    v_lshlrev_b32 v12, 9, v12
    s_lshl_b32 s{gp.sT2}, s{gp.sB}, 11
    s_add_u32 s{gp.sT2}, s{gp.sT2}, {gp.flag_addr(4, 1)}""")
    gp.wait_flags(a, 12, f's{gp.sT2}', 66, sleep=1)

def staged(stage, P, tstamp=True):
    a = Asm(); P = dict(P)
    P.update(frec=0, after_k='s_branch L_exit', after_v='s_branch L_exit', after_y='s_branch L_exit', pre_y=lambda a: None, v_known=100, pre_beta=lambda a: None, mid_beta=mid_beta, r_known=100,
             q_refresh=lambda r: [], q_wait=lambda a, r, pub: None, q_update=lambda r: [], final_wait=lambda a, f: a('s_waitcnt vmcnt(0)'), final_waity=lambda a: a('s_waitcnt vmcnt(0)'), final_refresh=lambda f: [], final_ready=lambda a, f: a(f's_cmp_lt_u32 s{S_STEP}, 64'), y_refresh='', y_update='')
    a('s_memrealtime s[96:97]')
    common_entry(a)
    if stage == 'rec':
        a(f"""s_cmp_lt_u32 s{S_X}, 4
        s_cbranch_scc1 L_rec
        s_cmp_lg_u32 s{S_X}, 4
        s_cbranch_scc1 L_exit
        s_cmp_lg_u32 s{S_WAVE}, 0
        s_cbranch_scc1 L_exit""")
        cal_store(a, S_J); cal_sample(a)
        a('s_branch L_exit')
        rec_role(a, P)
    else:
        a(f's_cmp_lt_u32 s{S_X}, 4\ns_cbranch_scc1 L_exit')
        gp.lanes(a); gp.head_ids(a)
        a(f's_and_b32 s{gp.sT0}, s{S_J}, 3\ns_mov_b32 s{S_STEP}, 0\ns_mov_b32 s{gp.sEnd}, 64\ns_mov_b32 s{gp.sFb}, 2\ns_mov_b32 s{gp.sStr}, 1\ns_mov_b32 s{gp.sDone}, 0')
        tgt = {'s1': ['L_k', 'L_v', 'L_exit', 'L_alpha'], 's2': ['L_exit', 'L_exit', 'L_y', 'L_beta'],
               'q': ['L_exit']*3 + ['L_q'], 'fin': ['L_exit', 'L_tofinal', 'L_tofinal', 'L_exit']}[stage]
        for i in range(3): a(f's_cmp_eq_u32 s{gp.sT0}, {i}\ns_cbranch_scc1 {tgt[i]}')
        a(f's_branch {tgt[3]}')
        if stage == 's1':
            gp.kv_role(a, 'k', P_WK, K_OFF, 'sc1', P); gp.kv_role(a, 'v', P_WV, V_OFF, '', P)
            gp.alpha_role(a, P)
        if stage == 's2':
            gp.y_role(a, P); gp.beta_role(a, P)
        if stage == 'q': gp.q_role(a, P)
        if stage == 'fin':
            worker_id(a); gp.final_role(a, P)
    a(f"""L_exit:
    s_waitcnt vmcnt(0)
    s_memrealtime s[98:99]
    s_memtime s[90:91]
    s_lshl_b32 s94, s{S_X}, 5
    s_add_u32 s94, s94, s{S_J}
    s_lshl_b32 s94, s94, 4
    s_add_u32 s94, s94, {FL_OFF+0x10000}
    s_waitcnt lgkmcnt(0)
    s_sub_u32 s90, s90, s92
    v_mov_b32 v12, s96
    v_mov_b32 v13, s98
    v_mov_b32 v14, s100
    v_mov_b32 v15, s90
    v_mov_b32 v10, 0
    {W('store_dwordx4', 'v[12:15]', 10, 's94')}
    s_waitcnt vmcnt(0)
    s_endpgm""")
    return a

def merged(P, diag=False):
    a = Asm(); P = dict(P)
    P['ufrom'] = 63 - P['lag']; P['qsplit'] = (64 - P['lag']) & ~1
    def pre_beta(a):
        gp.wait_init(a, 256)
        a(f"""v_and_b32 v12, 7, v{gp.vLn}
        v_lshlrev_b32 v12, 9, v12
        v_bfe_u32 v13, v{gp.vLn}, 3, 1
        v_lshl_add_u32 v12, v13, 7, v12
        s_lshl_b32 s{gp.sT2}, s{S_X}, 12
        s_add_u32 s{gp.sT2}, s{gp.sT2}, {FL_OFF}""")
        gp.wait_flags(a, 12, f's{gp.sT2}', 65)
    def pre_q(a):
        if P['help'] & 8:
            l = a.lab('pq')
            a(f's_cmp_lg_u32 s{gp.sFb}, 0\ns_cbranch_scc1 {l}')
            gp.touch_lin(a, P_WQKV, 640*1920*2); gp.touch_lin(a, P_WOA, 640*640*2)
            a(f'{l}:')
        gp.wait_init(a, 256)
    def pre_y(a):
        l = a.lab('cal')
        a(f's_cmp_lg_u32 s{S_WAVE}, 0\ns_cbranch_scc1 {l}')
        cal_sample(a)
        a(f'{l}:\ns_barrier')
        gp.wait_init(a, 256)
    def spin(a, l, sleep):
        a(f"""s_branch {l}_go
        {l}:
        s_sleep {sleep}
        s_add_u32 s{S_TO}, s{S_TO}, 1
        s_cmp_gt_u32 s{S_TO}, {TO_LIMIT}
        s_cbranch_scc1 L_exit
        {l}_go:""")
    def q_wait(a, r, pub):
        l = a.lab('qw')
        a(W('load_dword', f'v{r}', gp.vFa, 0, 0, 'sc1'))
        a('s_waitcnt vmcnt(0)')
        for x in pub: a(x)
        a(f"""v_cmp_ge_u32 vcc, s{S_STEP}, v{r}
        s_cbranch_vccz {l}_ok""")
        spin(a, l, 1)
        a(f"""{W('load_dword', f'v{r}', gp.vFa, 0, 0, 'sc1')}
        s_waitcnt vmcnt(0)
        v_cmp_ge_u32 vcc, s{S_STEP}, v{r}
        s_cbranch_vccnz {l}
        {l}_ok:""")
    def q_update(r):
        L = [f'v_readlane_b32 s{gp.sT0+i}, v{r}, {i}' for i in range(4)] + [f'v_readlane_b32 s{gp.sKl}, v{r}, 4']
        return L + [f's_min_u32 s{gp.sT0}, s{gp.sT0}, s{gp.sT1}', f's_min_u32 s{gp.sT2}, s{gp.sT2}, s{gp.sT3}', f's_min_u32 s{gp.sKn}, s{gp.sT0}, s{gp.sT2}']
    def q_waitk(a, r):
        l = a.lab('qk')
        spin(a, l, 2)
        a(f"""{W('load_dword', f'v{r}', gp.vFa, 0, 0, 'sc1')}
        s_waitcnt vmcnt(0)
        v_readlane_b32 s{gp.sKl}, v{r}, 4
        s_nop 3
        s_cmp_gt_u32 s{gp.sKl}, s{S_STEP}
        s_cbranch_scc0 {l}""")
    def light_wait(a):
        l = a.lab('lw')
        a(f's_add_u32 s{gp.sT1}, s{S_STEP}, {P["lag"]+1}\ns_mov_b32 s{gp.sT2}, {FL_OFF}\ns_mov_b32 s{gp.sT3}, {FL_OFF+8192}\nv_lshlrev_b32 v204, 7, v{gp.vLn}')
        gp.wait_flags(a, gp.vZ, f's{gp.sFv}', f's{gp.sT1}', tmp=205, sleep=6)
        spin(a, l, 4)
        a(f"""{W('load_dword', 'v205', 204, f's{gp.sT2}', 0, 'sc1')}
        {W('load_dword', 'v206', 204, f's{gp.sT3}', 0, 'sc1')}
        s_waitcnt vmcnt(0)
        v_min_u32 v205, v205, v206
        v_cmp_gt_u32 vcc, s{gp.sT1}, v205
        s_cbranch_vccnz {l}""")
    def light_ready(a):
        a(f"""v_readfirstlane_b32 s{gp.sT0}, v207
        s_add_u32 s{gp.sT1}, s{S_STEP}, {P['lag']+2}
        s_cmp_lt_u32 s{S_STEP}, {61-P['lag']}
        s_cselect_b32 s{gp.sT1}, s{gp.sT1}, 999
        s_cmp_ge_u32 s{gp.sT0}, s{gp.sT1}""")
    def wave0(a, f):
        l = a.lab('w0')
        a(f's_cmp_lg_u32 s{S_WAVE}, 0\ns_cbranch_scc1 {l}')
        f()
        a(f'{l}:\ns_waitcnt vmcnt(0)\ns_barrier')
    def final_waity(a):
        a(f's_add_u32 s{gp.sT1}, s{S_STEP}, 1\ns_mov_b32 s{gp.sT2}, 256')
        wave0(a, lambda: gp.wait_flags(a, gp.vFa, f's{gp.sT2}', f's{gp.sT1}', sleep=8))
    def final_wait(a, F):
        def f():
            l = a.lab('fw')
            a(f"""s_and_b32 s{gp.sT0}, s{S_STEP}, 1
            s_cmp_lt_u32 s{S_STEP}, {P['qsplit']}
            s_cselect_b32 s{gp.sT0}, 1, s{gp.sT0}
            s_cmp_lg_u32 s{gp.sT0}, 0
            s_cselect_b32 s{gp.sT1}, 0, 128
            s_cselect_b32 s{gp.sT2}, 384, 0
            s_add_u32 s{gp.sT1}, s{gp.sT1}, s{S_STEP}
            s_mov_b32 exec_hi, 0""")
            spin(a, l, P.get('fsleep', 2))
            a(f"""{W('load_dwordx4', vr(F), gp.vFa, f's{gp.sT2}', 0, 'sc1')}
            s_waitcnt vmcnt(0)
            v_min3_u32 v{F}, v{F}, v{F+1}, v{F+2}
            v_min_u32 v{F}, v{F}, v{F+3}
            v_cmp_ge_u32 vcc, s{gp.sT1}, v{F}
            s_cbranch_vccnz {l}
            s_mov_b32 exec_hi, -1""")
        wave0(a, f)
    def final_pre(a):
        a(f's_sub_u32 s{gp.sFv}, s{gp.sFl}, {128*128}\ns_mov_b32 s{gp.sT2}, 128')
        wave0(a, lambda: gp.wait_flags(a, gp.vFa, f's{gp.sT2}', 67, sleep=8))
    P.update(live=1, ninit=256, after_k='s_branch L_alpha', after_v='s_branch L_alpha', pre_q=pre_q, q_waitk=q_waitk, light_wait=light_wait, light_ready=light_ready, light_refresh=[W('load_dword', 'v207', gp.vZ, f's{gp.sFv}', 0, 'sc1')], after_y='s_branch L_tofinal', pre_y=pre_y, v_known=0, pre_beta=pre_beta, mid_beta=mid_beta, r_known=0,
             q_refresh=lambda r: [W('load_dword', f'v{r}', gp.vFa, 0, 0, 'sc1')], q_wait=q_wait, q_update=q_update, final_wait=final_wait, final_waity=final_waity, final_pre=final_pre, y_refresh=W('load_dword', 'v11', gp.vZ, f's{gp.sFv}', 0, 'sc1'), y_update=f'v_readfirstlane_b32 s{gp.sKn}, v11')
    mark = (lambda i: a(f's_memrealtime s[{96+2*i}:{97+2*i}]')) if diag else (lambda i: None)
    ds = P.get('diagspin')
    if ds:
        a('s_memrealtime s[96:97]')
        P['wait_k0'] = lambda: ['s_memrealtime s[100:101]\ns_waitcnt lgkmcnt(0)\ns_mov_b32 s98, s100']
        P['after_y0'] = 's_memrealtime s[100:101]\ns_waitcnt lgkmcnt(0)\ns_mov_b32 s99, s100'
        src = {1: 's96', 2: 's99', 3: 's100', 4: 's98'}[ds]
        P['done'] = lambda: [f"""s_cmp_lg_u32 s{S_WAVE}, 3
        s_cbranch_scc1 L_exit
        s_memrealtime s[100:101]
        s_waitcnt lgkmcnt(0)
        s_sub_u32 s95, {src}, s96
        s_add_u32 s95, s95, {P.get('dlen', 30000)}
        L_dspin:
        s_sleep 8
        s_memrealtime s[100:101]
        s_waitcnt lgkmcnt(0)
        s_sub_u32 s100, s100, s96
        s_cmp_lt_u32 s100, s95
        s_cbranch_scc1 L_dspin"""]
    mark(0)
    if diag:
        a('s_mov_b32 s98, 0')
        P['wait_k0'] = lambda: ['s_memrealtime s[98:99]']
        P['after_y0'] = 's_memrealtime s[100:101]\ns_waitcnt lgkmcnt(0)\ns_mov_b32 s97, s100'
        P['done'] = lambda: ['s_memrealtime s[92:93]']
    common_entry(a, P['touch'])
    a(f's_cmp_lt_u32 s{S_X}, 4\ns_cbranch_scc1 L_rec')
    gp.lanes(a); gp.head_ids(a)
    l = a.lab('ini')
    a(f"""s_cmp_lg_u32 s{S_WAVE}, 0
    s_cbranch_scc1 {l}
    v_lshlrev_b32 v10, 2, v{gp.vLn}
    s_mov_b64 exec, 15
    {W('store_dword', f'v{gp.vZ}', 10, f's{gp.sFl}', 0, 'sc1')}
    s_mov_b64 exec, -1
    s_and_b32 s{gp.sT0}, s{S_J}, 3
    s_cmp_lg_u32 s{gp.sT0}, 2
    s_cbranch_scc1 {l}""")
    cal_store(a, gp.sH)
    a(f'{l}:')
    if P['help']:
        a(f's_and_b32 s{gp.sT3}, s{S_J}, 3')
        gp.touch_rows(a, P_WV, f's{gp.sT3}', 4)
    a(f"""s_and_b32 s{gp.sT0}, s{S_J}, 3
    s_cmp_eq_u32 s{gp.sT0}, 0
    s_cbranch_scc1 L_k
    s_cmp_eq_u32 s{gp.sT0}, 1
    s_cbranch_scc1 L_v
    s_cmp_eq_u32 s{gp.sT0}, 2
    s_cbranch_scc1 L_y""")
    gp.init_done(a, P)
    if P['help']:
        a('s_waitcnt vmcnt(0)\ns_barrier')
        gp.touch_x(a)
        if P['help'] & 2:
            gp.touch_rows(a, P_WK, 1, 2)
            a('s_waitcnt vmcnt(0)\ns_barrier')
        if P['help'] & 4: gp.touch_rows(a, P_WQ, 0, 2)
    a(f"""s_mov_b32 s{S_STEP}, 0
    s_mov_b32 s{gp.sEnd}, {P['qsplit']}
    s_mov_b32 s{gp.sFb}, 0
    s_mov_b32 s{gp.sStr}, 1
    s_branch L_toq
    L_k2q:
    s_mov_b32 s{S_STEP}, {P['qsplit']}
    s_mov_b32 s{gp.sEnd}, 64
    s_mov_b32 s{gp.sFb}, 128
    s_mov_b32 s{gp.sStr}, 2
    L_toq:
    s_mov_b32 s{gp.sDone}, 0""")
    mark(1)
    a(f"""s_lshl_b32 s{gp.sT0}, s{gp.sH}, 2
    v_add_u32 v{gp.vFa}, s{gp.sT0}, v{gp.vLn}
    s_add_u32 s{gp.sT0}, s{gp.sT0}, 128
    v_mov_b32 v10, s{gp.sT0}
    v_cmp_gt_u32 vcc, 4, v{gp.vLn}
    s_nop 1
    v_cndmask_b32 v{gp.vFa}, v10, v{gp.vFa}, vcc
    v_lshlrev_b32 v{gp.vFa}, 7, v{gp.vFa}
    v_add_u32 v{gp.vFa}, {FL_OFF}, v{gp.vFa}""")
    gp.q_role(a, P)
    a(f"""s_cmp_eq_u32 s{gp.sStr}, 2
    s_cbranch_scc1 L_exit
    s_mov_b32 s{S_STEP}, {P['qsplit']+1}
    s_mov_b32 s{gp.sEnd}, 64
    s_mov_b32 s{gp.sStr}, 2
    s_branch L_q_again""")
    gp.kv_role(a, 'k', P_WK, K_OFF, 'sc1', P); gp.kv_role(a, 'v', P_WV, V_OFF, '', P)
    gp.y_role(a, P)
    gp.alpha_role(a, P)
    a(f's_bitcmp0_b32 s{S_J}, 0\ns_cbranch_scc1 L_k2q')
    gp.beta_role(a, P)
    worker_id(a)
    mark(1)
    gp.final_role(a, P)
    a('L_exit:')
    if diag:
        a(f"""s_waitcnt vmcnt(0)
        s_cmp_lg_u32 s{S_WAVE}, 3
        s_cbranch_scc1 L_exit2
        s_memrealtime s[100:101]
        s_lshl_b32 s94, s{S_X}, 5
        s_add_u32 s94, s94, s{S_J}
        s_lshl_b32 s94, s94, 4
        s_add_u32 s94, s94, {FL_OFF+0x10000}
        s_waitcnt lgkmcnt(0)
        v_mov_b32 v12, s96
        v_mov_b32 v13, s98
        v_mov_b32 v14, s100
        v_mov_b32 v15, s{S_TO}
        v_mov_b32 v10, 0
        {W('store_dwordx4', 'v[12:15]', 10, 's94')}
        v_mov_b32 v16, s97
        v_mov_b32 v17, s92
        s_add_u32 s94, s94, 0x2000
        {W('store_dwordx2', 'v[16:17]', 10, 's94')}
        L_exit2:""")
    a('s_waitcnt vmcnt(0)\ns_endpgm')
    rec_role(a, P)
    return a

KNAME = 'gated_mix__linear_attn_block__memory_aug_recurrent_mem_tr__prompt_kernel'
def final_text(P):
    ref = open('gated_mix__linear_attn_block__memory_aug_recurrent_mem_tr__prompt.s.ref').read()
    top = ''.join(l+'\n' for l in ref.split('\n') if l.startswith(';') and '@launch' not in l)
    return top + head(KNAME, 163840) + merged(P).text() + KD.format(name=KNAME)
if __name__ == '__main__':
    import sys
    out = sys.argv[1] if len(sys.argv) > 1 else 'gated_mix__linear_attn_block__memory_aug_recurrent_mem_tr__prompt.s'
    P = dict(DEFP)
    for spec in sys.argv[2:]:
        for kv in spec.split(','):
            k, v = kv.split('='); P[k] = int(v)
    open(out, 'w').write(final_text(P))
```

```python
from asmb import *
from lay import *
from gen_rec import *

def common_entry(a, touch=False):
    a(f"""s_load_dwordx16 s[8:23], s[0:1], 0
    s_load_dwordx8 s[24:31], s[0:1], 64
    s_load_dwordx4 s[32:35], s[0:1], 96
    s_getreg_b32 s{S_X}, hwreg(HW_REG_XCC_ID, 0, 3)
    v_lshrrev_b32 v1, 6, v0
    s_mov_b32 s{S_TO}, 0
    v_readfirstlane_b32 s{S_WAVE}, v1
    s_waitcnt lgkmcnt(0)
    s_add_u32 s{P_WS}, s{P_WS}, 0x1fffff
    s_addc_u32 s{P_WS+1}, s{P_WS+1}, 0
    s_and_b32 s{P_WS}, s{P_WS}, 0xffe00000""")
    srd(a, SRD_W, P_WS, WS_USED)
    srd(a, SRD_D, P_DBG, 256)
    lab = a.lab('tk')
    a(f"""v_mov_b32 v1, 0
    s_cmp_lg_u32 s{S_WAVE}, 0
    s_cbranch_scc1 {lab}
    s_lshl_b32 s{S_J}, s{S_X}, 5
    v_mov_b32 v2, s{S_J}
    v_mov_b32 v3, 1
    s_mov_b64 exec, 1
    buffer_atomic_add v3, v2, s[{SRD_D}:{SRD_D+3}], 0 offen offset:{DBG_TICK} sc0 sc1
    s_mov_b64 exec, -1""")
    if touch & 4:
        a(f"""s_getpc_b64 s[52:53]
        L_here:
        s_mov_b32 s{SRD_A}, s52
        s_and_b32 s{SRD_A+1}, s53, 0xffff
        s_mov_b32 s{SRD_A+2}, L_code_end-L_here
        s_mov_b32 s{SRD_A+3}, 0x20000
        s_lshr_b32 s52, s2, 3
        s_and_b32 s52, s52, 15
        s_lshl_b32 s52, s52, 13
        v_lshlrev_b32 v4, 7, v0
        buffer_load_dword v255, v4, s[{SRD_A}:{SRD_A+3}], s52 offen""")
    if touch:
        srd(a, SRD_A, P_WO, 32*192*640*2)
        a(f"""s_lshr_b32 s52, s2, 3
        s_and_b32 s52, s52, 31
        s_lshl_b32 s53, s{S_X}, 5
        s_add_u32 s52, s52, s53
        s_mul_i32 s52, s52, 61440
        v_min_u32 v4, 59, v0
        v_lshlrev_b32 v4, 7, v4""")
        for i in range(8):
            a(f'buffer_load_dword v255, v4, s[{SRD_A}:{SRD_A+3}], s52 offen\ns_add_u32 s52, s52, 7680')
    if touch & 2:
        a(f"""v_lshlrev_b32 v4, 21, v0
        s_mov_b32 s52, {64 << 21}
        buffer_load_dword v255, v4, s[{SRD_W}:{SRD_W+3}], 0 offen
        buffer_load_dword v255, v4, s[{SRD_W}:{SRD_W+3}], s52 offen""")
    a(f"""s_waitcnt vmcnt({(8 if touch else 0) + (touch & 2) + (1 if touch & 4 else 0)})
    s_mov_b64 exec, 1
    ds_write_b32 v1, v3
    s_mov_b64 exec, -1
    s_waitcnt lgkmcnt(0)
    {lab}:
    s_barrier
    ds_read_b32 v2, v1
    s_waitcnt lgkmcnt(0)
    v_readfirstlane_b32 s{S_J}, v2
    s_barrier
    s_cmp_ge_u32 s{S_J}, 32
    s_cbranch_scc1 L_exit""")

def ring_init(a, sidx):
    a(f"""v_mbcnt_lo_u32_b32 v11, -1, 0
    v_mbcnt_hi_u32_b32 v11, -1, v11
    v_lshlrev_b32 v11, 4, v11
    v_mov_b32 v12, -1
    v_mov_b32 v13, -1
    v_mov_b32 v14, -1
    v_mov_b32 v15, -1
    s_lshl_b32 s80, s{sidx}, 2
    s_add_u32 s80, s80, s{S_WAVE}
    s_lshl_b32 s81, s80, 10""")
    for off in [G_OFF + 0x20000*i for i in range(6)] + [M_OFF, S_OFF]:
        a(f's_add_u32 s82, s81, {off}')
        a(W('store_dwordx4', 'v[12:15]', 11, 's82', 0, 'sc1'))
    a(f"""s_lshl_b32 s82, s80, 8
    s_add_u32 s82, s82, {M_OFF + 0x20000}
    s_mov_b64 exec, 0xffff""")
    a(W('store_dwordx4', 'v[12:15]', 11, 's82', 0, 'sc1'))
    a(f"""s_mov_b64 exec, 1
    s_lshl_b32 s81, s80, 7
    s_add_u32 s82, s81, {FL_OFF}""")
    a(W('store_dword', 'v11', 11, 's82', 0, 'sc1'))
    a('s_mov_b64 exec, -1')

def cal_store(a, sidx):
    a(f"""v_mbcnt_lo_u32_b32 v11, -1, 0
    v_and_b32 v12, 1, v11
    v_lshlrev_b32 v12, 7, v12
    v_bfe_u32 v13, v11, 1, 1
    v_lshl_add_u32 v12, v13, 13, v12
    s_lshl_b32 s86, s{sidx}, 8
    s_add_u32 s86, s86, {CAL_OFF}
    s_mov_b64 exec, 15""")
    a(W('store_dword', 'v11', 12, 's86', 0, 'sc1'))
    a('s_mov_b64 exec, -1')

def cal_sample(a):
    a("""s_waitcnt vmcnt(0)
    s_mov_b32 s80, 0xffff
    s_mov_b32 s81, 0xffff
    v_mov_b32 v12, 0""")
    for i in range(2):
        for p in range(2):
            a(f"""s_add_u32 s87, s86, {8192*p + 128*i}
            s_memtime s[82:83]
            s_waitcnt lgkmcnt(0)""")
            a(W('load_dword', 'v13', 12, 's87', 0, 'sc1'))
            a(f"""s_waitcnt vmcnt(0)
            s_memtime s[84:85]
            s_waitcnt lgkmcnt(0)
            s_sub_u32 s82, s84, s82
            s_min_u32 s{80+p}, s{80+p}, s82""")
    a(f"""s_sub_u32 s80, 0xffff, s80
    s_sub_u32 s81, 0xffff, s81
    v_mov_b32 v13, s80
    v_mov_b32 v14, s81
    v_mov_b32 v11, 1
    s_mov_b64 exec, 1
    buffer_atomic_umax v13, v12, s[{SRD_D}:{SRD_D+3}], 0 offen offset:{DBG_PAR+4} sc1
    buffer_atomic_umax v14, v12, s[{SRD_D}:{SRD_D+3}], 0 offen offset:{DBG_PAR+8} sc1
    s_waitcnt vmcnt(0)
    buffer_atomic_add v11, v12, s[{SRD_D}:{SRD_D+3}], 0 offen offset:{DBG_PAR} sc1
    s_mov_b64 exec, -1""")

KD = """
.section .rodata,"a"
.p2align 6
.amdhsa_kernel {name}
  .amdhsa_next_free_vgpr 512
  .amdhsa_next_free_sgpr 102
  .amdhsa_accum_offset 256
  .amdhsa_group_segment_fixed_size 0
  .amdhsa_kernarg_size 112
  .amdhsa_user_sgpr_count 2
  .amdhsa_user_sgpr_kernarg_segment_ptr 1
  .amdhsa_system_sgpr_workgroup_id_x 1
.end_amdhsa_kernel
"""
def head(name, lds):
    return f"""; @launch grid=(256,1,1) block=(256,1,1) lds={lds}
.amdgcn_target "amdgcn-amd-amdhsa--gfx950"
.text
.globl {name}
.p2align 8
.type {name},@function
{name}:
"""
import struct, math
def fbits(x): return '0x%08x' % struct.unpack('<I', struct.pack('<f', x))[0]
DEFP = dict(cexp=fbits(192**-0.5 * math.log2(math.e)), ninit=0, live=0, qsplit=56, lag=6, bpw=2, nmap=0, smpf=0, smpos=5, ylate=1, ysl=1, fsm=40, glown=0, pmode=0, yw1=0, ew1=0, ew1gap=8, ew2=0, kmw=0, fshare=42, flight=2, w1ord=2, ufrom=56, asplit=18, pk0=10, pkb=28, touch=1, touchv=0, wnt=0, help=9, own_before=0, khold=3, xpre=4, b2in=0, warm=0, b2a=1, b2c=1, u_early=2, u_pre=6, spos_s=22, spos_o=22,
            sgap_s=0, sgap_o=0, sdepth=1, mdepth=2, mgap=12, yspread=0,
            sleep_g=7, nop_g=4, gdepth=3, ggap=48, dm=32,
            wait_k0=lambda: [], wait_k=lambda: [], wait_y=lambda w: [], wait_y0=lambda w: [], progress=lambda w: [], done=lambda: [], stamp=lambda i: '', dump=lambda a, w: '')
```

```python
from asmb import *
from lay import *
S_WAVE, S_X, S_J, S_STEP, S_TO = 3, 4, 5, 6, 7
P_X, P_WQKV, P_WOA, P_MEM0, P_WQ, P_WK, P_WV, P_WO, P_GATE, P_OUT, P_DBG, P_WS = 8, 10, 12, 16, 18, 20, 22, 24, 28, 30, 32, 34
SRD_W = 36
SRD_A = 40
SRD_B = 44
SRD_D = 48
TO_LIMIT = 400000
sMr, sMw, sMp, sSw, sSr, sG, sGL, sGp, sGLp, sY, sK, sU, sKm = range(52, 65)
sTag, sTag3, sC, sT0, sT1, sT2, sPar = range(65, 72)
sSelT1, sSelT2, sSelU1, sSelU2 = range(72, 76)
sHalf = 76
sEx   = 78
sExLo = 80
sH, sCg, sHs, sCs = 82, 83, 84, 85
sGb, sMb = 86, 87
sKnY, sKnK, sFy, sFk, sFl = 90, 91, 92, 93, 94
vFk, vFd, vFa, vFp, vKc, vKd = 101, 102, 103, 184, 185, 186
vBP = 228
sExK = 34
sSelT3 = 89
sC2 = 88
MB, QB, KB, DB, RB, UB = 0, 10240, 11264, 13312, 19456, 19968
RING0, SLOT, NSLOT = 23040, 15360, 9
sYr, sYw, sYo, sPx, sBp, sBad, sLo = 45, 46, 47, 44, 67, 90, 32
vPF, vPM8, vTA, vThr, vL4k = 188, 220, 228, 187, 183
vL16, vIdx, vQw, vY = 0, 1, 2, 3
vKw, vD2 = 4, 5
vDr, vGst = 6, 7
vG0, vG1 = 6, 7
vUP = 8
vAq, vAk = 16, 20
vUa = 24
SETA, SETB = [16, 20, 36, 40], [80, 84, 88, 92]
vYt = 44
vMF = 56
vWq, vWk = 96, 176
aSel = 240
aU = 244
vMst, vDq = 8, 12
vQr, vKr, vPG, vPM, vL8 = 96, 97, 98, 99, 100
vNeg = 104
vKF = 108
vKS = 124
vQf, vKf = 136, 144
vD0, vD1, vDm, vPk = 152, 156, 160, 164
vPU, vPK = 168, 180
OWN = [[0,1,2],[3,4,5],[6,7,8],[9]]

def srd(a, base, ptr, nbytes):
    a(f"""s_mov_b32 s{base}, s{ptr}
    s_and_b32 s{base+1}, s{ptr+1}, 0xffff
    s_mov_b32 s{base+2}, {nbytes}
    s_mov_b32 s{base+3}, 0x20000""")

def W(op, data, va, so, off=0, fl=''):
    return f'buffer_{op} {data}, v{va}, s[{SRD_W}:{SRD_W+3}], {so} offen offset:{off} {fl}'.rstrip()

def retry(a, tail, lab_retry, lab_back):
    tail(f"""{lab_retry}:
    s_add_u32 s{S_TO}, s{S_TO}, 1
    s_cmp_gt_u32 s{S_TO}, {TO_LIMIT}
    s_cbranch_scc0 {lab_back}
    s_branch L_exit""")

def build_sel(a, dst, vn, vg, goff, tmp):
    a(f"""v_and_b32 v{tmp}, 1, v{vn}
    v_lshlrev_b32 v{tmp}, 4, v{tmp}
    v_mov_b32 v{tmp+1}, 0x3f80
    v_lshlrev_b32 v{tmp}, v{tmp}, v{tmp+1}
    v_lshrrev_b32 v{tmp+1}, 1, v{vn}
    v_add_u32 v{tmp+1}, {4*goff}, v{tmp+1}
    v_lshlrev_b32 v{tmp+2}, 2, v{vg}
    v_sub_u32 v{tmp+1}, v{tmp+1}, v{tmp+2}""")
    for r in range(4):
        a(f"""v_cmp_eq_u32 vcc, {r}, v{tmp+1}
        s_nop 1
        v_cndmask_b32 v{dst+r}, 0, v{tmp}, vcc""")

def phys(a, v, tmp):
    a(f"""v_lshrrev_b32 v{tmp}, 13, v{v}
    v_lshl_add_u32 v{v}, v{tmp}, 13, v{v}""")

def dma(srdb, va, so, fl=''):
    return f'buffer_load_dwordx4 v{va}, s[{srdb}:{srdb+3}], {so} offen {fl} lds'

def rec_prologue(a, P):
    n, g, ln = 60, 61, 62
    a(f"""v_and_b32 v{ln}, 63, v0
    v_and_b32 v{n}, 15, v{ln}
    v_lshrrev_b32 v{g}, 4, v{ln}
    v_lshlrev_b32 v{vL16}, 4, v{ln}
    s_and_b32 s{sT0}, s{S_J}, 1
    s_lshl_b32 s{sT0}, s{sT0}, 2
    s_add_u32 s{sT0}, s{sT0}, s{S_WAVE}
    s_lshl_b32 s{sH}, s{S_X}, 3
    s_add_u32 s{sH}, s{sH}, s{sT0}
    s_lshr_b32 s{sCg}, s{S_J}, 1
    s_lshr_b32 s{sHs}, s{S_J}, 2
    s_and_b32 s{sCs}, s{S_J}, 3
    s_lshl_b32 s{sT1}, s{S_X}, 3
    s_add_u32 s{sHs}, s{sHs}, s{sT1}
    s_lshl_b32 s{sT1}, s{S_X}, 5
    s_add_u32 s{sT1}, s{sT1}, s{S_J}
    s_mul_i32 s{sGb}, s{sT1}, 768
    s_lshl_b32 s{sSw}, s{sT1}, 10
    s_add_u32 s{sSw}, s{sSw}, {S_OFF}
    s_lshl_b32 s{sSr}, s{sH}, 12
    s_add_u32 s{sSr}, s{sSr}, {S_OFF}
    s_mov_b32 s{sSelT1}, 0x0c0c0400
    s_mov_b32 s{sSelT2}, 0x0c040100
    s_mov_b32 s{sSelT3}, 0x04020100
    s_mov_b32 s{sSelU1}, 0x0c04000c
    s_mov_b32 s{sSelU2}, 0x0402010c
    s_mov_b32 s{sC2}, {P['cexp']}
    s_mov_b32 s{sHalf}, 0xff00ff00
    s_mov_b32 s{sHalf+1}, 0xff00ff00
    s_mov_b32 s{sExK}, 0x33333333
    s_mov_b32 s{sExK+1}, 0x33333333
    s_mov_b32 s{sExLo}, 0x00ff00ff
    s_mov_b32 s{sExLo+1}, 0x00ff00ff
    s_mul_i32 s{sMb}, s{S_X}, 10240
    s_add_u32 s{sMb}, s{sMb}, {M_OFF}""")
    ps = P.get('pstamp', lambda i: '')
    a(ps(0))
    NB = 4; WB = NB*6144; IMG = 4*WB
    frag = [8+4*i for i in range(12)] + [64+4*i for i in range(6)]
    F = lambda tc, kap: frag[tc*6+kap]
    srd(a, SRD_A, P_WO, 32*192*640*2)
    srd(a, SRD_B, P_WV, 640*6144*2)
    a(f"""v_mul_u32_u24 v56, 0x3334, v{ln}
    v_lshrrev_b32 v56, 16, v56              ; lane/5
    v_mul_u32_u24 v57, 5, v56
    v_sub_u32 v57, v{ln}, v57
    v_mul_u32_u24 v56, 1280, v56
    v_lshl_add_u32 v56, v57, 4, v56
    s_mul_i32 s{sT0}, s{sH}, {192*1280}
    s_mul_i32 s{sT1}, s{sCg}, 80
    s_add_u32 s{sT0}, s{sT0}, s{sT1}
    s_mul_i32 s{sMr}, s{S_WAVE}, 15360
    s_add_u32 s{sMr}, s{sMr}, {IMG}
    s_mov_b32 s{sEx}, -1
    s_mov_b32 s{sEx+1}, 0x0fffffff
    s_mov_b64 exec, s[{sEx}:{sEx+1}]""")
    for i in range(16):
        a(f"""s_add_u32 m0, s{sMr}, {960*i}
        s_add_u32 s{sT1}, s{sT0}, {12*i*1280}
        {dma(SRD_A, 56, f's{sT1}')}""")
    a('s_mov_b64 exec, -1')
    if P['touchv']:
        a(f"""s_lshl_b32 s{sT0}, s{S_J}, 2
        s_add_u32 s{sT0}, s{sT0}, s{S_WAVE}
        s_mul_i32 s{sT0}, s{sT0}, {5*12288}
        s_mul_i32 s{sT1}, s{S_X}, 3072
        s_add_u32 s{sT0}, s{sT0}, s{sT1}""")
        for i in range(2):
            a(f"""v_min_u32 v57, 59, v{ln}
            v_add_u32 v57, {60*i}, v57
            v_mul_u32_u24 v58, 0xaab, v57
            v_lshrrev_b32 v58, 16, v58
            v_mul_u32_u24 v59, 24, v58
            v_sub_u32 v57, v57, v59
            v_mul_u32_u24 v58, 12288, v58
            v_lshl_add_u32 v57, v57, 7, v58
            buffer_load_dword v255, v57, s[{SRD_B}:{SRD_B+3}], s{sT0} offen""")
    if P['live']:
        a(f"""s_lshl_b32 s{sFl}, s{S_X}, 5
        s_add_u32 s{sFl}, s{sFl}, s{S_J}
        s_lshl_b32 s{sFl}, s{sFl}, 7
        s_add_u32 s{sFl}, s{sFl}, {FL_OFF}
        s_lshl_b32 s{sFy}, s{sH}, 9
        s_add_u32 s{sFy}, s{sFy}, {FL_OFF + (128+2)*128}
        s_lshl_b32 s{sFk}, s{sHs}, 9
        s_add_u32 s{sFk}, s{sFk}, {FL_OFF + 128*128}""")
    a(f"""v_lshrrev_b32 v58, 3, v{ln}
    v_bfe_u32 v57, v58, 1, 1
    v_lshlrev_b32 v56, 3, v57
    v_bfe_u32 v57, v58, 2, 1
    v_lshl_add_u32 v56, v57, 2, v56
    v_and_b32 v57, 1, v58
    v_add_u32 v56, v56, v57
    v_mul_u32_u24 v56, 12288, v56
    v_lshrrev_b32 v58, 1, v58
    v_and_b32 v57, 7, v{ln}
    v_xor_b32 v57, v57, v58
    v_lshl_add_u32 v1, v57, 4, v56          ; rows 0..7
    v_xor_b32 v57, 4, v57
    v_lshl_add_u32 v2, v57, 4, v56
    v_add_u32 v2, {16*12288}, v2            ; rows 8..15
    s_mul_i32 s{sT2}, s{S_WAVE}, {WB}
    s_mul_i32 s{sMw}, s{sH}, 384""")
    Q = []
    cfl = ('', 'sc1', 'nt')[P.get('cfl', 0)]
    def cload(tau):
        if tau >= 40: return []
        t, v = tau >> 2, tau & 3
        L = [(None, f's_add_u32 s{sT1}, s{sMw}, {(64*t+32*(v>>1)+2*(v&1))*12288}')]
        for k in range(6):
            L += [(None, f's_add_u32 m0, s{sT2}, {6144*(tau % NB)+1024*k-128*(k%3)}'),
                  (('c', tau), f'buffer_load_dwordx4 v{1 if k < 3 else 2}, s[{SRD_B}:{SRD_B+3}], s{sT1} offen offset:{128*(k%3)} {cfl} lds')]
        return L
    def put(it, pad=False):
        if it[0]:
            Q.append(it[0])
            if pad: a('s_nop 0')
        a(it[1])
    def younger(tag): return min(63, len(Q) - 1 - max(i for i, x in enumerate(Q) if x == tag))
    for tau in range(NB):
        for it in cload(tau): put(it, True)
    a(f"""v_lshrrev_b32 v56, 3, v{n}
    v_mul_u32_u24 v56, 3072, v56
    v_and_b32 v57, 7, v{n}
    v_lshl_add_u32 v56, v57, 7, v56
    v_add_u32 v56, s{sT2}, v56
    v_lshrrev_b32 v57, 1, v{n}
    v_xor_b32 v57, v57, v{g}
    v_lshl_add_u32 v3, v57, 4, v56
    v_xor_b32 v57, 4, v57
    v_lshl_add_u32 v4, v57, 4, v56""")
    for i in range(3):
        a(f"""v_add_u32 v57, {64*i}, v{ln}
        v_mul_u32_u24 v56, 0x2aab, v57
        v_lshrrev_b32 v56, 16, v56
        v_mul_u32_u24 v58, 6, v56
        v_sub_u32 v57, v57, v58
        v_mul_u32_u24 v56, 12288, v56
        v_lshl_add_u32 v{5+i}, v57, 4, v56""")
    a(f"""s_mul_i32 s{sMp}, s{sHs}, 384
    s_mul_i32 s{sT0}, s{sCs}, 96
    s_add_u32 s{sMp}, s{sMp}, s{sT0}
    s_mul_i32 s{sT0}, s{S_WAVE}, {160*12288}
    s_add_u32 s{sMp}, s{sMp}, s{sT0}""")
    def wload(tag, i):
        return [(None, f's_add_u32 m0, s{sMr}, {1024*i}'), (None, f's_add_u32 s{sT0}, s{sMp}, {32*(i//3)*12288}'),
                (tag, dma(SRD_A, 5 + i % 3, f's{sT0}', 'nt' if P['wnt'] else ''))] if not (P.get('nowk') and i > 0) else []
    a(f"""v_lshrrev_b32 v56, 2, v{n}
    v_lshl_add_u32 v56, v{g}, 3, v56
    v_mul_u32_u24 v56, 80, v56
    v_add_u32 v56, s{sMr}, v56
    v_and_b32 v57, 1, v{n}
    v_lshl_add_u32 v58, v57, 3, v56
    v_and_b32 v57, 3, v{n}
    v_lshl_add_u32 v56, v57, 3, v56
    s_waitcnt vmcnt({len(Q)})""")
    a(ps(1))
    for kap in range(6):
        for v in range(2):
            for tc in range(3):
                a(f'ds_read_b64_tr_b16 {vr(F(tc,kap)+2*v,2)}, v{56 if tc < 2 else 58} offset:{(32*kap+4*v)*80+32*tc}')
        a('s_waitcnt lgkmcnt(6)')
    srd(a, SRD_A, P_WK, 640*6144*2)
    a(f"""v_lshrrev_b32 v88, 1, v{g}
    v_lshlrev_b32 v88, 4, v88
    v_and_b32 v57, 1, v{g}
    v_lshl_add_u32 v88, v57, 2, v88
    v_bfe_u32 v57, v{n}, 2, 1
    v_add_u32 v88, v88, v57
    v_lshrrev_b32 v57, 3, v{n}
    v_lshl_add_u32 v88, v57, 3, v88
    v_mul_u32_u24 v88, 96, v88
    v_and_b32 v57, 3, v{n}
    v_lshl_add_u32 v88, v57, 3, v88
    s_min_u32 s{sT0}, s{S_WAVE}, 2
    s_lshl_b32 s{sT0}, s{sT0}, 5
    s_add_u32 s{sT0}, s{sT0}, {IMG}
    v_add_u32 v88, s{sT0}, v88
    """)
    a(ps(2))
    def trd(base):
        return [f'ds_read_b64_tr_b16 {vr(base+2*i,2)}, v88 offset:{(64*(i>>2) + 32*((i&3) >> 1) + 2*(i & 1))*96}' for i in range(40)]
    AF = lambda tau, k: 96 + 24*(tau & 1) + 4*k
    AC = lambda tau, tc: 144 + 12*(tau & 1) + 4*tc
    rd = lambda tau, k: f'ds_read_b128 {vr(AF(tau,k))}, v{3 + (k & 1)} offset:{6144*(tau % NB) + 1024*(k >> 1)}'
    def cstore(tau):
        t, v = tau >> 2, tau & 3
        L = []
        for tc in range(3):
            d = (tc*10+t)*8 + 2*v; ac = AC(tau, tc)
            L += [f'v_cvt_pk_bf16_f32 v{168+2*tc}, v{ac}, v{ac+1}', f'v_cvt_pk_bf16_f32 v{169+2*tc}, v{ac+2}, v{ac+3}',
                  f'v_accvgpr_write_b32 a{d}, v{168+2*tc}', f'v_accvgpr_write_b32 a{d+1}, v{169+2*tc}']
        return L
    a(f"s_waitcnt vmcnt({younger(('c', 0))}) lgkmcnt(0)\ns_barrier")
    for k in range(6): a(rd(0, k))
    k0, kb, q0 = P['pk0'], P['pkb'], P['pkb']+3
    ktr = trd(vWk)
    for tau in range(40):
        a('s_waitcnt lgkmcnt(0)')
        if tau == 10: a(ps(5))
        if tau == kb: a(ps(6))
        if tau == kb:
            a(f"s_waitcnt vmcnt({younger('k')})\ns_barrier")
        if tau == q0:
            a('s_barrier')
            srd(a, SRD_A, P_WQ, 640*6144*2)
        first = cload(tau+NB)
        if k0 <= tau < k0+15: first += wload('k', tau-k0)
        if tau >= q0:
            for i in (2*(tau-q0), 2*(tau-q0)+1):
                if i < 15: first += wload('q', i)
        mm = []
        for k in range(6):
            for tc in range(3):
                d = vr(AC(tau, tc))
                mm.append(f'v_mfma_f32_16x16x32_bf16 {d}, {vr(AF(tau,k))}, {vr(F(tc,k))}, {"0" if k == 0 else d}')
        if P.get('nomm'): mm = ['s_nop 0']*18
        second = cstore(tau-1) if tau > 0 else []
        nk = 0
        for i, m in enumerate(mm):
            a(m)
            if i < 10:
                for _ in range(2):
                    if first:
                        it = first.pop(0); put(it)
                        if 'm0' in it[1] and first and first[0][0]: break
                if kb <= tau < q0 and i < 7:
                    for _ in range(2):
                        if ktr: a(ktr.pop(0)); nk += 1
                if i == 9:
                    while first: put(first.pop(0), True)
                    if tau < 39: a(f"s_waitcnt vmcnt({younger(('c', tau+1))})" + (' lgkmcnt(6)' if nk else ''))
            else:
                if tau < 39 and i-10 < 6: a(rd(tau+1, i-10))
            if i >= 8:
                for _ in range(1 if i < 16 else 2):
                    if second: a(second.pop(0))
        while second: a(second.pop(0))
    assert not ktr
    a(ps(3))
    a.nop(8)
    for s in cstore(39): a(s)
    lp = a.lab('wini')
    a(f"""v_mov_b32 v64, {DBG_INIT}
    v_mov_b32 v65, {DBG_PAR}
    {lp}:
    buffer_load_dword v66, v64, s[{SRD_D}:{SRD_D+3}], 0 offen sc1
    buffer_load_dwordx4 v[68:71], v65, s[{SRD_D}:{SRD_D+3}], 0 offen sc1
    s_add_u32 s{S_TO}, s{S_TO}, 1
    s_cmp_gt_u32 s{S_TO}, {TO_LIMIT}
    s_cbranch_scc1 L_exit
    s_waitcnt vmcnt(0)
    v_readfirstlane_b32 s{sT0}, v66
    v_readfirstlane_b32 s{sPar}, v68
    v_readfirstlane_b32 s{sT1}, v69
    v_readfirstlane_b32 s{sT2}, v70
    s_cmp_lt_u32 s{sT0}, {P['ninit']}
    s_cbranch_scc1 {lp}
    s_cmp_lt_u32 s{sPar}, 32
    s_cbranch_scc1 {lp}
    s_cmp_gt_u32 s{sT1}, s{sT2}
    s_cselect_b32 s{sPar}, 8192, 0
    s_barrier""")
    for i, s in enumerate(trd(vWq)):
        a(s)
        if i % 8 == 7: a('s_waitcnt lgkmcnt(6)')
    a('s_waitcnt lgkmcnt(0)\ns_barrier')
    a(ps(4))
    if P['warm']:
        a(f"""v_min_u32 v64, 5, v{ln}
        v_lshlrev_b32 v64, 7, v64
        v_add_u32 v64, s{sGb}, v64""")
        phys(a, 64, 65)
        a(f"""s_mul_i32 s{sT0}, s{S_WAVE}, {G_SLOT}
        s_xor_b32 s{sT1}, s{sPar}, 8192
        s_add_u32 s{sT0}, s{sT0}, s{sT1}
        {W('load_dword', 'v95', 64, f's{sT0}', 0, 'sc1')}
        v_min_u32 v64, 2, v{ln}
        v_lshlrev_b32 v64, 7, v64
        s_mul_i32 s{sT0}, s{S_WAVE}, {M_SLOT}
        s_add_u32 s{sT0}, s{sT0}, s{sMb}
        s_mul_i32 s{sT1}, s{S_J}, 320
        s_add_u32 s{sT0}, s{sT0}, s{sT1}
        {W('load_dword', 'v95', 64, f's{sT0}', 0, 'sc1')}
        s_lshl_b32 s{sT0}, s{S_WAVE}, 8
        s_add_u32 s{sT0}, s{sT0}, s{sSw}
        {W('load_dword', 'v95', 64, f's{sT0}', 0, 'sc1')}""")
    a(f"""v_mov_b32 v64, 0x4444
    v_mov_b32 v65, 0xeeee
    v_cndmask_b32 v{vIdx}, v64, v65, s[{sHalf}:{sHalf+1}]
    s_lshl_b32 s{sT0}, s{S_WAVE}, 4
    v_add_u32 v64, s{sT0}, v{n}
    v_lshlrev_b32 v64, 4, v64
    v_and_b32 v65, 1, v{g}
    v_lshl_add_u32 v64, v65, 3, v64
    v_lshrrev_b32 v65, 1, v{g}
    v_lshl_add_u32 v{vQw}, v65, 2, v64
    v_lshlrev_b32 v{vKw}, 1, v{vQw}
    v_lshrrev_b32 v64, 3, v{n}
    v_lshlrev_b32 v64, 9, v64
    v_lshl_add_u32 v64, v{g}, 7, v64
    v_and_b32 v65, 7, v{n}
    v_lshl_add_u32 v{vY}, v65, 4, v64""")
    for r in range(vUP, vUP+8): a(f'v_mov_b32 v{r}, 0')
    for r in range(aU, aU+12): a(f'v_accvgpr_write_b32 a{r}, 0')
    a(f"""v_and_b32 v64, 0x1ff, v{vY}
    v_lshrrev_b32 v65, 3, v{n}
    v_lshl_add_u32 v{vD2}, v65, 3, v64""")
    a(f"""s_mov_b32 s{S_STEP}, 0
    s_mul_i32 s{sY}, s{sH}, 40960
    s_mul_i32 s{sT0}, s{sCg}, 2560
    s_add_u32 s{sY}, s{sY}, s{sT0}
    s_add_u32 s{sY}, s{sY}, {Y_OFF}
    s_lshr_b32 s{sU}, s{sH}, 2
    s_mul_i32 s{sU}, s{sU}, 40960
    s_add_u32 s{sU}, s{sU}, s{sT0}
    s_add_u32 s{sBp}, s{sU}, {BP_OFF - (P['lag']+1)*8*40960}
    s_add_u32 s{sU}, s{sU}, {U_OFF - 8*40960}
    s_and_b32 s{sPx}, s{sH}, 28
    s_lshl_b32 s{sPx}, s{sPx}, 11
    s_add_u32 s{sPx}, s{sPx}, {PX_OFF - (P['lag']+1)*65536}
    s_mov_b32 s{sYw}, {RING0}
    s_mov_b32 s{sYo}, {RING0 + ((-P['lag']-1) % NSLOT)*SLOT}
    s_mov_b32 s{sLo}, 0xffff
    s_mov_b32 s{sLo+1}, 0
    s_mul_i32 s{sK}, s{sHs}, 12288
    s_mul_i32 s{sT0}, s{sCs}, 3072
    s_add_u32 s{sK}, s{sK}, s{sT0}
    s_add_u32 s{sK}, s{sK}, {K_OFF}
    s_mul_i32 s{sKm}, s{sHs}, 3072
    s_mul_i32 s{sT0}, s{sCs}, 768
    s_add_u32 s{sKm}, s{sKm}, s{sT0}
    s_add_u32 s{sKm}, s{sKm}, {KM_OFF - 32*3072}""")
    srd(a, SRD_A, P_MEM0, 8*640*2)
    a(f"""v_and_b32 v63, 7, v{n}
    v_mul_u32_u24 v63, 1280, v63
    v_lshl_add_u32 v63, v{g}, 5, v63
    v_lshrrev_b32 v64, 3, v{n}
    v_lshl_add_u32 v40, v64, 4, v63
    v_mov_b32 v41, v{n}
    v_mov_b32 v42, v{g}
    v_mov_b32 v43, v{ln}
    s_cmp_eq_u32 s{S_WAVE}, 0
    s_cbranch_scc1 L_rec_0
    s_cmp_eq_u32 s{S_WAVE}, 1
    s_cbranch_scc1 L_rec_1
    s_cmp_eq_u32 s{S_WAVE}, 2
    s_cbranch_scc1 L_rec_2
    s_branch L_rec_3""")

def step_scalars(w):
    L = [f's_and_b32 s{sT0}, s{S_STEP}, 3',
         f's_mul_i32 s{sMr}, s{sT0}, {M_SLOT}',
         f's_add_u32 s{sMr}, s{sMr}, s{sMb}',
         f's_add_u32 s{sMr}, s{sMr}, {OWN[w][0]*1024}',
         f's_mul_i32 s{sG}, s{sT0}, {G_SLOT}',
         f's_add_u32 s{sTag}, s{S_STEP}, 1',
         f's_mul_i32 s{sTag3}, s{sTag}, 0x01010101',
         f's_mov_b32 s{sYr}, s{sYw}',
         f's_add_u32 s{sYw}, s{sYw}, {SLOT}',
         f's_cmp_ge_u32 s{sYw}, {RING0+NSLOT*SLOT}',
         f's_cselect_b32 s{sYw}, {RING0}, s{sYw}']
    if w >= 2:
        L += [f's_add_u32 s{sG}, s{sG}, s{sPar}',
              f's_xor_b32 s{sGL}, s{sG}, 8192']
    if w == 3:
        L += [f's_xor_b32 s{sT0}, s{sT0}, 2',
              f's_mul_i32 s{sGp}, s{sT0}, {G_SLOT}',
              f's_add_u32 s{sGp}, s{sGp}, s{sPar}',
              f's_xor_b32 s{sGLp}, s{sGp}, 8192',
              f's_add_u32 s{sT0}, s{S_STEP}, 3',
              f's_and_b32 s{sT0}, s{sT0}, 3',
              f's_mul_i32 s{sMp}, s{sT0}, {M_SLOT}',
              f's_add_u32 s{sMp}, s{sMp}, s{sMb}',
              f'v_mov_b32 v{vFd}, s{S_STEP}',
              f's_add_u32 s{sYo}, s{sYo}, {SLOT}',
              f's_cmp_ge_u32 s{sYo}, {RING0+NSLOT*SLOT}',
              f's_cselect_b32 s{sYo}, {RING0}, s{sYo}',
              f's_add_u32 s{sPx}, s{sPx}, 65536',
              f's_cmp_lt_u32 s{S_STEP}, {LAG[0]}',
              f's_cselect_b32 s{sPc}, 0xf0000000, s{sPx}']
    return L

def thr_next(P):
    return [f's_add_u32 s{sT0}, s{S_STEP}, 2', f's_min_u32 s{sT0}, s{sT0}, 64',
            f's_sub_u32 s{sT1}, s{S_STEP}, {P["lag"]-1}', f's_max_i32 s{sT1}, s{sT1}, 0',
            f's_cmp_eq_u32 s{S_STEP}, 63', f's_cselect_b32 s{sT1}, 0, s{sT1}',
            f'v_mov_b32 v252, s{sT0}', f'v_mov_b32 v253, s{sT1}', f'v_cndmask_b32 v{vThr}, v253, v252, s[{sLo}:{sLo+1}]',
            f'v_cmp_gt_u32 s[{sBad}:{sBad+1}], v{vThr}, v{vFk}']

def poll_known(o, lab):
    o(f"""{lab}:
    s_add_u32 s{S_TO}, s{S_TO}, 1
    s_cmp_gt_u32 s{S_TO}, {TO_LIMIT}
    s_cbranch_scc1 L_exit
    {W('load_dword', f'v{vFk}', vFp, 0, 0, 'sc1')}
    s_waitcnt vmcnt(0)
    v_cmp_gt_u32 vcc, v{vThr}, v{vFk}
    s_cbranch_vccnz {lab}""")

def kx_load():
    return [W('load_dwordx4', vr(vKS+4*i), vL16, f's{sK}', 1024*i, 'sc1') for i in range(3)] + [f's_add_u32 s{sK}, s{sK}, {32*12288}']
def kx_copy():
    return [f'v_mov_b32 v{vKF+8*xt+2*i+r}, v{vKS+4*i+2*xt+r}' for i in range(3) for xt in range(2) for r in range(2)]

def y_dma(w, tmp):
    d = lambda va, off: f'buffer_load_dwordx4 v{va}, s[{SRD_W}:{SRD_W+3}], s{sY} offen offset:{off} sc1 lds'
    return [f's_add_u32 m0, s{sYw}, {3072*w}', f'v_and_b32 v{tmp}, 0x1ff, v{vL16}', d(vL16, 0), d(vL16, 1024), d(tmp, 2048), f's_add_u32 s{sY}, s{sY}, {32*40960}']
def y_read(w):
    return [f'v_add_u32 v11, s{sYr}, v{vY}'] + [f'ds_read_b128 {vr(vYt+4*t)}, v11 offset:{3072*w+1024*t}' for t in range(3)]
def flag_w(base, w):
    return f'ds_write_b32 v{vL16}, v{vTag} offset:{base+4*w}'
def flag_r(dst, base):
    return f'ds_read_b128 {vr(dst)}, v{vZ} offset:{base}'
def flag_chk(dst, nf):
    L = [f'v_min3_u32 v{dst}, v{dst}, v{dst+1}, v{dst+2}']
    if nf == 4: L.append(f'v_min_u32 v{dst}, v{dst}, v{dst+3}')
    return L + [f'v_cmp_ne_u32 vcc, s{sTag}, v{dst}']

def fold(acc, dst, pk=False):
    return [f'v_permlane32_swap_b32 v{acc}, v{acc+2}', f'v_permlane32_swap_b32 v{acc+1}, v{acc+3}'] + (
            [f'v_pk_add_f32 v[{acc}:{acc+1}], v[{acc}:{acc+1}], v[{acc+2}:{acc+3}]'] if pk else
            [f'v_add_f32 v{acc}, v{acc}, v{acc+2}', f'v_add_f32 v{acc+1}, v{acc+1}, v{acc+3}']) + [
            f'v_cvt_pk_bf16_f32 v{dst}, v{acc}, v{acc+1}']

def smf(acc, t, breg):
    if NOQK[0] and breg.startswith('v'): return 's_nop 3'
    return f'v_smfmac_f32_16x16x64_bf16 {vr(acc)}, {vr(vMF+4*t)}, {breg}, v{vIdx}'

def pub_reads():
    return [f'ds_read_b128 {vr(vPU+4*t)}, v{vL16} offset:{UB+1024*t}' for t in range(3)]
def u_stores():
    L = [W('store_dwordx4', vr(vPU+4*t), vY, f's{sU}', 1024*t, 'sc1') for t in range(2)]
    return L + [f's_mov_b64 exec, s[{sExLo}:{sExLo+1}]', W('store_dwordx4', vr(vPU+8), vY, f's{sU}', 2048, 'sc1'), 's_mov_b64 exec, -1']
def km_stores():
    return [f's_mov_b64 exec, s[{sExK}:{sExK+1}]', W('store_dwordx4', vr(vKf), vKc, f's{sKm}', 0, 'sc1'),
            W('store_dwordx2', vr(vKf+4, 2), vKd, f's{sKm}', 512, 'sc1'), 's_mov_b64 exec, -1']
def bp_stores(so):
    L = [W('store_dwordx4', vr(vBP+4*t), vL16, f's{so}', 1024*t, 'sc1') for t in range(2)]
    return L + ['s_mov_b32 exec_hi, 0', W('store_dwordx4', vr(vBP+8), vL16, f's{so}', 2048, 'sc1'), 's_mov_b32 exec_hi, -1']

def token_part(a, P, extra):
    l = a.lab('tk')
    a(f"""v_add_u32 v180, s{sYr}, v{vL16}
    v_add_u32 v181, s{sYo}, v{vY}
    v_add_u32 v182, s{sYo}, v{vL16}""")
    A = [56+4*i for i in range(10)] + [16, 20, 44, 48, 52]
    for h in range(4):
        for t in range(3): a(f'ds_read_b128 {vr(A[3*h+t])}, v181 offset:{3072*h+1024*t}')
    def prep(h):
        return [f'v_mov_b32 v{vPM8+4*xq+h}, v{vPF+8*h+2+xq}' for xq in range(2)] + [f'v_mov_b32 v{vPF+8*h+2}, 0', f'v_mov_b32 v{vPF+8*h+3}, 0']
    for s in prep(0) + prep(1): a(s)
    a('s_waitcnt lgkmcnt(9)')
    if P['kmw']:
        a(f's_cmp_lt_u32 s{S_STEP}, {P["ufrom"]}\ns_cbranch_scc1 {l}_u')
        for s in u_stores(): a(s)
        a(f'{l}_u:')
    for t in range(3): a(f'ds_read_b128 {vr(A[12+t])}, v182 offset:{12288+1024*t}')
    fill = prep(2) + prep(3) + extra
    for h in range(5):
        if h: a(f's_waitcnt lgkmcnt({12-3*h})')
        for t in range(3):
            for xq in range(2):
                d = vr(vTA+8*t+4*xq)
                B = vPF+8*h+4*xq if h < 4 else vPM8+4*xq
                a(f'v_mfma_f32_16x16x32_bf16 {d}, {vr(A[3*h+t])}, {vr(B)}, {"0" if h == 0 else d}')
                n = 3 if (fill and fill[0].startswith('s_')) else 2
                for _ in range(n):
                    if fill: a(fill.pop(0))
    while fill: a(fill.pop(0))
    for t in range(3): a(f'ds_write_b128 v180, {vr(vPU+4*t)} offset:{12288+1024*t}')
    for t in range(3):
        for xq in range(2):
            b = vTA+8*t+4*xq
            a(f'v_cvt_pk_bf16_f32 v{vBP+4*t+2*xq}, v{b}, v{b+1}\nv_cvt_pk_bf16_f32 v{vBP+4*t+2*xq+1}, v{b+2}, v{b+3}')

def rec_wave(a, tail, w, P):
    n, g, ln = 41, 42, 43
    nm = str(w)
    st0 = P['stamp']; fine = P.get('fine', 0)
    st = lambda i: '' if (fine and 5 <= i <= 9) else st0(i)
    sf = lambda i: st0(i) if fine else ''
    own = OWN[w]; oth = [t for t in range(10) if t not in own]
    a(f'L_rec_{nm}:')
    if w < 2:
        a(f"""v_min_u32 v64, 9, v{n}
        v_add_u32 v65, {10*w}, v64
        v_lshlrev_b32 v65, 4, v65
        s_and_b32 s{sT0}, s{S_J}, 1
        s_mul_i32 s{sT1}, s{sT0}, 384
        s_mul_i32 s{sT2}, s{sCg}, 1536
        s_add_u32 s{sT1}, s{sT1}, s{sT2}
        v_add_u32 v65, s{sT1}, v65
        v_and_b32 v66, 1, v{g}
        v_mul_u32_u24 v66, 768, v66
        v_add_u32 v65, v65, v66""")
        for rho, dst in ((0, vG0), (1, vG1)):
            a(f"""v_lshrrev_b32 v66, 1, v{g}
            v_add_u32 v66, {2*rho}, v66
            v_mul_u32_u24 v67, {32*768}, v66
            v_add_u32 v{dst}, v65, v67""")
            phys(a, dst, 67)
            a(f"""v_add_u32 v{dst}, s{sPar}, v{dst}
            v_xor_b32 v67, 8192, v{dst}
            v_cmp_eq_u32 vcc, s{S_X}, v66
            s_nop 1
            v_cndmask_b32 v{dst}, v{dst}, v67, vcc""")
        a(f"""v_lshrrev_b32 v66, 1, v64
        v_lshlrev_b32 v66, 7, v66
        v_and_b32 v67, 1, v64
        v_lshl_add_u32 v66, v67, 4, v66
        v_lshl_add_u32 v66, v{g}, 3, v66
        s_mul_i32 s{sT1}, s{sCg}, 640
        s_lshl_b32 s{sT0}, s{sT0}, 6
        s_add_u32 s{sT1}, s{sT1}, s{sT0}
        s_add_u32 s{sT1}, s{sT1}, {32*w}
        v_add_u32 v{vMst}, s{sT1}, v66
        s_mov_b32 s{sEx}, 0x03ff03ff
        s_mov_b32 s{sEx+1}, 0
        v_mov_b32 v68, 0""")
        build_sel(a, 72, n, 68, 0, 64)
        for r in range(4): a(f'v_accvgpr_write_b32 a{aSel+r}, v{72+r}')
    else:
        z = w - 2
        a(f"""v_min_u32 v64, 39, v{ln}
        v_lshlrev_b32 v{vGst}, 3, v64
        v_add_u32 v{vGst}, s{sGb}, v{vGst}
        v_add_u32 v{vGst}, {384*z}, v{vGst}""")
        phys(a, vGst, 65)
        a(f"""v_lshrrev_b32 v65, 1, v64
        v_cmp_le_u32 vcc, 10, v65
        s_nop 1
        v_cndmask_b32 v66, 0, 1, vcc          ; om
        v_mul_u32_u24 v67, 10, v66
        v_sub_u32 v65, v65, v67               ; r
        v_and_b32 v67, 1, v65
        v_lshl_add_u32 v67, v66, 1, v67
        v_add_u32 v67, {4*z}, v67             ; q
        v_lshlrev_b32 v67, 4, v67
        v_lshrrev_b32 v65, 1, v65             ; o'
        v_and_b32 v64, 1, v64                 ; hb
        v_and_b32 v66, 1, v65
        v_lshl_add_u32 v66, v66, 1, v64       ; g
        v_lshlrev_b32 v66, 8, v66
        v_bfe_u32 v68, v65, 1, 1
        v_lshl_add_u32 v66, v68, 7, v66       ; g*256 + t*128
        v_lshlrev_b32 v64, 7, v64
        v_add_u32 v64, 1024, v64
        v_cmp_eq_u32 vcc, 4, v65
        s_nop 1
        v_cndmask_b32 v66, v66, v64, vcc
        v_add_u32 v{vDr}, v66, v67
        s_mov_b32 s{sEx}, -1
        s_mov_b32 s{sEx+1}, 0xff""")
    if w == 3:
        a(f"""v_lshrrev_b32 v64, 2, v{n}
        v_lshl_add_u32 v64, v{g}, 2, v64
        v_lshlrev_b32 v64, 4, v64
        v_and_b32 v65, 1, v{n}
        v_lshl_add_u32 v{vQr}, v65, 3, v64
        v_bfe_u32 v65, v{n}, 1, 1
        v_lshlrev_b32 v65, 3, v65
        v_lshl_add_u32 v{vKr}, v{vQr}, 1, v65
        v_lshlrev_b32 v{vL8}, 3, v{ln}
        v_min_u32 v64, 47, v{ln}
        v_lshlrev_b32 v64, 4, v64
        v_add_u32 v{vPG}, s{sGb}, v64""")
        phys(a, vPG, 65)
        a(f"""v_min_u32 v64, 19, v{ln}
        v_lshrrev_b32 v65, 2, v64
        v_lshlrev_b32 v65, 7, v65
        v_and_b32 v64, 3, v64
        v_lshl_add_u32 v65, v64, 4, v65
        s_and_b32 s{sT0}, s{S_J}, 1
        s_lshl_b32 s{sT0}, s{sT0}, 6
        s_mul_i32 s{sT1}, s{sCg}, 640
        s_add_u32 s{sT1}, s{sT1}, s{sT0}
        v_add_u32 v{vPM}, s{sT1}, v65""")
        for r in range(4): a(f'v_mov_b32 v{vNeg+r}, -1')
        for r in (vKF+6, vKF+7, vKF+14, vKF+15, vQf+6, vQf+7, vKf+6, vKf+7): a(f'v_mov_b32 v{r}, 0')
        for s in P['wait_k0'](): a(s)
        if P['live']:
            a(f"""v_mov_b32 v64, 0xf0000000
            v_cmp_eq_u32 vcc, 0, v{ln}
            s_nop 1
            v_cndmask_b32 v{vFa}, v64, 0, vcc""")
            a(f"""v_and_b32 v64, 3, v{ln}
            v_lshlrev_b32 v64, 9, v64
            s_sub_u32 s{sT0}, s{sFy}, {3*512}
            v_add_u32 v64, s{sT0}, v64
            v_mov_b32 v65, s{sFk}
            v_cmp_gt_u32 vcc, 4, v{ln}
            s_nop 1
            v_cndmask_b32 v{vFp}, v65, v64, vcc
            v_bfe_u32 v64, v{ln}, 2, 2
            v_lshlrev_b32 v64, 9, v64
            v_and_b32 v65, 3, v{ln}
            v_lshl_add_u32 v64, v65, 2, v64
            s_add_u32 s{sT0}, s{sT0}, 128
            v_add_u32 v64, s{sT0}, v64
            v_cndmask_b32 v{vFp}, v64, v{vFp}, s[{sLo}:{sLo+1}]
            v_cndmask_b32 v{vThr}, 0, 1, s[{sLo}:{sLo+1}]""")
            poll_known(a, a.lab('k0'))
        a(f"""v_lshrrev_b32 v64, 2, v{ln}
        v_and_b32 v65, 1, v{ln}
        v_lshl_add_u32 v64, v64, 1, v65
        v_lshlrev_b32 v{vKc}, 4, v64
        v_lshlrev_b32 v{vKd}, 3, v64
        v_add_u32 v{vL4k}, 4096, v{vL16}""")
        for s in kx_load(): a(s)
    a('s_barrier')
    a(P.get('after_y0', ''))
    for s in y_dma(w, 44): a(s)
    for s in step_scalars(w): a(s)
    if w == 3 and P['live']:
        for s in thr_next(P): a(s)
    for i, t in enumerate(own):
        a(f'buffer_load_dwordx4 {vr(vMF+4*t)}, v40, s[{SRD_A}:{SRD_A+3}], 0 offen offset:{128*t}')
    uz = [f'v_mov_b32 v{vUa+r}, 0' for r in range(12)]
    az = ([f'v_mov_b32 v{vAq+r}, 0' for r in range(8)] if w < 3 else []) + uz
    for s in az: a(s)
    a('s_waitcnt vmcnt(0)')
    if w == 3:
        for s in kx_copy(): a(s)
    for t in own: a(f'ds_write_b128 v{vL16}, {vr(vMF+4*t)} offset:{MB+1024*t}')
    o = []
    if w < 3:
        for t in own: o += [smf(vAq, t, vr(vWq+8*t, 8)), smf(vAk, t, vr(vWk+8*t, 8))]
    nb = P['own_before'] if w < 3 else 0
    for s in o[:nb]: a(s)
    a(f"""s_waitcnt lgkmcnt(0)
    s_branch L_rec_{nm}_m""")
    a(f'.p2align 6\nL_rec_{nm}_top0:')
    a(st(0))
    mld = [f'buffer_load_dwordx4 v{vL16}, s[{SRD_W}:{SRD_W+3}], s{sMr} offen offset:{1024*i} sc1 lds' for i, t in enumerate(own)]
    md = P['mdepth']
    for r in range(md-1):
        for s in mld: a(s)
        a.nop(P['mgap'])
    a(f'L_rec_{nm}_top:')
    for s in mld: a(s)
    for i, t in enumerate(own):
        a(f's_waitcnt vmcnt({len(own)*(md-1) + len(own)-1-i})')
        a(f'ds_read_b128 {vr(vMF+4*t)}, v{vL16} offset:{MB+1024*t}')
    b0 = vMF+4*own[0]
    lr = a.lab('rm')
    if w < 3:
        oo = list(o[:nb])
        pop = lambda: oo.pop(0) if oo else ''
        a(f"""s_waitcnt lgkmcnt(2)
        {pop()}
        v_max3_u32 v40, v{b0}, v{b0+1}, v{b0+2}
        s_waitcnt lgkmcnt(1)
        v_max3_u32 v41, v{b0+3}, v{b0+4}, v{b0+5}
        {pop()}
        v_max3_u32 v40, v40, v{b0+6}, v{b0+7}
        s_waitcnt lgkmcnt(0)
        v_max3_u32 v41, v41, v{b0+8}, v{b0+9}
        v_max3_u32 v40, v40, v{b0+10}, v{b0+11}
        {pop()}
        v_max_u32 v40, v40, v41
        v_cmp_eq_u32 vcc, -1, v40""")
        while oo: a(oo.pop(0))
        if nb:
            tail(f'{lr}_z:\ns_nop 7')
            for r in range(8): tail(f'v_mov_b32 v{vAq+r}, 0')
            tail(f's_branch L_rec_{nm}_top')
        retry(a, tail, lr, f'{lr}_z' if nb else f'L_rec_{nm}_top')
    else:
        a(f"""s_waitcnt lgkmcnt(0)
        v_max3_u32 v40, v{b0}, v{b0+1}, v{b0+2}
        v_max_u32 v40, v40, v{b0+3}
        v_cmp_eq_u32 vcc, -1, v40""")
        retry(a, tail, lr, f'L_rec_{nm}_top')
    a(f's_cbranch_vccnz {lr}')
    a(f'L_rec_{nm}_m:')
    a(st(1))
    reads = [f'ds_read_b128 {vr(vMF+4*t)}, v{vL16} offset:{MB+1024*t}' for t in oth]
    sld = lambda S: [W('load_dwordx4', vr(r), vL16, f's{sSr}', 1024*i, 'sc1') for i, r in enumerate(S)]
    uch = [smf(vUa+4*tc, t, ar((tc*10+t)*8, 8)) for tc in range(3) for t in range(10)]
    if P.get('nou'): uch = ['s_nop 3']*30
    ufold = lambda tc: fold(vUa+4*tc, 10+(tc & 1), tc == 2) + [f'ds_write_b32 v{vL16}, v{10+(tc & 1)} offset:{UB+1024*tc+4*w}', f'v_accvgpr_write_b32 a{aU+4*tc}, v{10+(tc & 1)}']
    nb_ = P.get('nobg', 0)
    a('s_barrier')
    a(st(2))
    if w < 3:
        oq = o[nb:]; held = []
        for _ in range(P['khold']):
            i = max(i for i, x in enumerate(oq) if f' {vr(vAk)},' in x or 'nop' in x); held.insert(0, oq.pop(i))
        a(reads[0])
        for s in interleave(oq, reads[1:], 3): a(s)
        for i, t in enumerate(oth):
            a(f's_waitcnt lgkmcnt({len(oth)-1-i})\n' + smf(vAq, t, vr(vWq+8*t, 8)))
        a(sf(5))
        kch = [smf(vAk, t, vr(vWk+8*t, 8)) for t in oth]
        fq = fold(vAq, 40) + [f'ds_write_b32 v{vQw}, v40 offset:{QB}']
        kch = held + kch
        gapf = [['s_nop 2'], ['s_nop 2'], [fq[0]], [fq[1]], [fq[2], fq[3]], [fq[4], fq[5]]]
        bpos = len(kch) - 1 - P['b2in']
        for i, s in enumerate(kch):
            a(s)
            if i < len(gapf):
                for x in gapf[i]: a(x)
            if i == bpos and P['b2a']:
                a('s_waitcnt lgkmcnt(0)')
                a(sf(6))
                a('s_barrier')
                a(sf(7))
        a.nop(6 if (P['b2a'] and not P['b2in']) else 8)
        for s in fold(vAk, 41, True): a(s)
        a(f'ds_write_b32 v{vKw}, v41 offset:{KB}')
        np_ = P['u_early']
        for s in uch[:np_]: a(s)
        a('s_waitcnt lgkmcnt(0)')
        a(sf(8)); a(sf(9))
        a('s_barrier')
        a(st(3)); a(st(4))
        upos, spos = np_, P['spos_o']
        pend = y_read(w)
    else:
        lb = a.lab('np')
        def pB():
            if not P['bpw']:
                a(f's_cmp_le_u32 s{S_STEP}, {P["lag"]}\ns_cbranch_scc1 {lb}_a')
                for s in ([] if nb_ & 64 else bp_stores(sBp)): a(s)
            if P['kmw']: return
            a(f'{lb}_a:\ns_cmp_ge_u32 s{S_STEP}, {max(1, P["ufrom"]+1)}\ns_cbranch_scc1 {lb}_u\n{lb}_b:')
            tail(f'{lb}_u:')
            for s in u_stores(): tail(s)
            tail(f's_branch {lb}_b')
        def pM():
            if not P['kmw']:
                for s in km_stores(): a(s)
            elif P['live']:
                a(W('store_dword', f'v{vFd}', vFa, f's{sFl}', 0, 'sc1'))
        def pG():
            if not nb_ & 8: a(W('store_dwordx4', vr(vNeg), vPG, f's{sGp}', 0, 'sc1'))
        def pK():
            if P['live']:
                lk = a.lab('wk')
                a(f's_cmp_lg_u64 s[{sBad}:{sBad+1}], 0\ns_cbranch_scc1 {lk}\n{lk}_b:')
                a(W('load_dword', f'v{vFk}', vFp, 0, 0, 'sc1'))
                poll_known(tail, lk)
                tail(f's_branch {lk}_b')
            for s in ([] if nb_ & 2 else kx_load()[:3]):
                a(s)
                if rq: a(rq.pop(0))
        def pR():
            while rq: a(rq.pop(0))
        def pP():
            for i in range(0 if nb_ & 32 else 8):
                a(W('load_dwordx4', vr(vPF+4*i), vL16 if i < 4 else vL4k, f's{sPc}', 1024*(i & 3), 'sc1'))
                if rq: a(rq.pop(0))
        rq = list(reads)
        for f in [(pK, pP, pB, pM, pG, pR), (pK, pB, pM, pG, pP, pR), (pK, pM, pP, pB, pG, pR)][P['w1ord']]: f()
        plain = [] if nb_ & 4 else [W('store_dwordx4', vr(vNeg), vPG, f's{sGLp}'), W('store_dwordx4', vr(vNeg), vPM, f's{sMp}')]
        plain += [f's_add_u32 s{sU}, s{sU}, {8*40960}', f's_add_u32 s{sKm}, s{sKm}, {32*3072}', kx_load()[3],
                  f's_cmp_le_u32 s{S_STEP}, {P["lag"]}\ns_cselect_b32 s{sMw}, 0xf0000000, s{sBp}', f's_add_u32 s{sBp}, s{sBp}, {8*40960}']
        a(sf(5))
        np_ = P['u_pre']
        if np_: a('s_waitcnt lgkmcnt(0)')
        for s in uch[:np_]: a(s)
        qrd = [f'ds_read_b64_tr_b16 {vr(vQf+2*i,2)}, v{vQr} offset:{QB+256*i}' for i in range(3)]
        krd = [f'ds_read_b64_tr_b16 {vr(vKf+2*i,2)}, v{vKr} offset:{KB+512*i}' for i in range(3)]
        xm = [f'v_mfma_f32_16x16x32_bf16 {vr(vD0)}, {vr(vKF)}, {vr(vQf)}, 0',
              f'v_mfma_f32_16x16x32_bf16 {vr(vD1)}, {vr(vKF+8)}, {vr(vQf)}, 0',
              f'v_mfma_f32_16x16x32_bf16 {vr(vD0)}, {vr(vKF+4)}, {vr(vQf+4)}, {vr(vD0)}',
              f'v_mfma_f32_16x16x32_bf16 {vr(vD1)}, {vr(vKF+12)}, {vr(vQf+4)}, {vr(vD1)}']
        mm_ = [f'v_mfma_f32_16x16x32_bf16 {vr(vDm)}, {vr(vKf)}, {vr(vQf)}, 0',
               f'v_mfma_f32_16x16x32_bf16 {vr(vDm)}, {vr(vKf+4)}, {vr(vQf+4)}, {vr(vDm)}']
        sel = [f'v_cndmask_b32 v{vPk+i}, v{vD0+i}, v{vD1+i}, s[{sHalf}:{sHalf+1}]' for i in range(4)]
        sel += [f'v_mul_f32 v{vPk+i}, s{sC2}, v{vPk+i}' for i in range(4)]
        sel += [f'v_mov_b32_sdwa v{vPk}, s{sTag} dst_sel:BYTE_0 dst_unused:UNUSED_PRESERVE src0_sel:BYTE_0']
        a(sf(6))
        a('s_barrier')
        a(sf(7))
        if P['b2a']:
            for s in qrd: a(s)
            a('s_waitcnt lgkmcnt(0)')
            a(sf(8))
            nx = P['xpre']
            for s in xm[:nx]: a(s)
            a(sf(9))
            a('s_barrier')
            a(st(3))
            for s in krd: a(s)
            for s in xm[nx:]: a(s)
            if nx == 4:
                a.nop(4)
                for s in sel[:4]: a(s)
                a('s_waitcnt lgkmcnt(0)')
                a(mm_[0]); a(mm_[1])
                for s in sel[4:]: a(s)
                a.nop(3)
            else:
                a.nop(5)
                a('s_waitcnt lgkmcnt(0)')
                a(mm_[0]); a(mm_[1])
                for s in sel: a(s)
        else:
            a(st(3))
            for s in qrd + krd: a(s)
            a('s_waitcnt lgkmcnt(3)')
            for s in xm: a(s)
            a('s_waitcnt lgkmcnt(0)')
            a(mm_[0]); a(mm_[1])
            a.nop(5)
            for s in sel: a(s)
        a(f"""v_cndmask_b32 v{vDm}, v{vDm}, v{vDm+1}, s[{sHalf}:{sHalf+1}]
        v_mul_f32 v{vDm}, s{sC2}, v{vDm}
        v_mov_b32_sdwa v{vPk+1}, v{vDm} dst_sel:BYTE_0 dst_unused:UNUSED_PRESERVE src0_sel:BYTE_1
        v_mov_b32_sdwa v{vPk+2}, v{vDm} dst_sel:BYTE_0 dst_unused:UNUSED_PRESERVE src0_sel:BYTE_2
        v_mov_b32_sdwa v{vPk+3}, v{vDm} dst_sel:BYTE_0 dst_unused:UNUSED_PRESERVE src0_sel:BYTE_3
        s_nop 0""")
        a(W('store_dwordx4', vr(vPk), vL16, f's{sSw}'))
        a(st(4))
        upos, spos = np_, P['spos_s']
        pend = y_read(w) + plain
    done0 = done1 = False
    for i in range(upos, 30):
        a(uch[i])
        if i == spos: pend = sld(SETA) + pend
        if not done0 and i >= 17: pend += ufold(0); done0 = True
        if not done1 and i >= 25: pend += ['s_nop 1'] + ufold(1); done1 = True
        for _ in range(2):
            if pend:
                x = pend.pop(0); a(x)
                if 'permlane' in x or (pend and 'permlane' in pend[0]): break
    k = len(pend)
    while pend: a(pend.pop(0))
    if spos >= 30:
        if spos > 30: a.nop(spos-30)
        for s in sld(SETA): a(s)
        k += 4
    a.nop(max(0, 8-k))
    for s in ufold(2): a(s)
    a(f"""s_cmp_eq_u32 s{S_STEP}, 63
    s_cbranch_scc1 L_rec_{nm}_fin""")
    a.nop(P['sgap_s'] if w == 3 else P['sgap_o'])
    X, MV, T = 68, 72, 73
    ls = a.lab('ps')
    def scheck(o, S, fail, nleft, first=''):
        A, B, C, D = S
        o(f"""s_waitcnt vmcnt({nleft+3}) {first}
        v_perm_b32 v{MV}, v{A+2}, v{A+1}, s{sSelU1}
        v_perm_b32 v{MV}, v{A+3}, v{MV}, s{sSelU2}
        s_waitcnt vmcnt({nleft+2})
        v_perm_b32 v{T}, v{B+2}, v{B+1}, s{sSelU1}
        v_pk_add_f32 v[{X}:{X+1}], v[{A}:{A+1}], v[{B}:{B+1}]
        v_perm_b32 v{T}, v{B+3}, v{T}, s{sSelU2}
        v_pk_add_f32 v[{X+2}:{X+3}], v[{A+2}:{A+3}], v[{B+2}:{B+3}]
        v_add_f32 v{MV}, v{MV}, v{T}
        v_perm_b32 v{T+1}, v{A}, v{B}, s{sSelT1}
        s_waitcnt vmcnt({nleft+1})
        v_perm_b32 v{T}, v{C+2}, v{C+1}, s{sSelU1}
        v_pk_add_f32 v[{X}:{X+1}], v[{X}:{X+1}], v[{C}:{C+1}]
        v_perm_b32 v{T}, v{C+3}, v{T}, s{sSelU2}
        v_pk_add_f32 v[{X+2}:{X+3}], v[{X+2}:{X+3}], v[{C+2}:{C+3}]
        v_add_f32 v{MV}, v{MV}, v{T}
        v_perm_b32 v{T+1}, v{C}, v{T+1}, s{sSelT2}
        s_waitcnt vmcnt({nleft})
        v_perm_b32 v{T+1}, v{D}, v{T+1}, s{sSelT3}
        v_perm_b32 v{T}, v{D+2}, v{D+1}, s{sSelU1}
        v_cmp_ne_u32 vcc, s{sTag3}, v{T+1}
        v_perm_b32 v{T}, v{D+3}, v{T}, s{sSelU2}
        v_pk_add_f32 v[{X}:{X+1}], v[{X}:{X+1}], v[{D}:{D+1}]
        v_pk_add_f32 v[{X+2}:{X+3}], v[{X+2}:{X+3}], v[{D+2}:{D+3}]
        v_add_f32 v{MV}, v{MV}, v{T}
        v_max3_f32 v{T}, v{X}, v{X+1}, v{X+2}
        v_max3_f32 v{T}, v{T}, v{X+3}, v{MV}
        s_cbranch_vccnz {fail}""")
    yd = ([] if nb_ & 16 else y_dma(w, 25))
    for s in yd[:2]: a(s)
    a(f'v_and_b32 v26, 0x1ff, v{vY}')
    if w >= 2: a(f'v_and_b32 v24, 0x70, v{vDr}')
    yd = yd[2:]; nw2 = 3
    if P['live'] and w == 3 and not P['kmw']:
        yd.insert(1, W('store_dword', f'v{vFd}', vFa, f's{sFl}', 0, 'sc1')); nw2 += 1
    a(st(5))
    if P['sdepth'] == 2:
        a(f'{ls}_a:')
        for s in sld(SETB): a(s)
        scheck(a, SETA, f'{ls}_b', 4, 'lgkmcnt(0)')
        tail(f'{ls}_b:')
        for s in sld(SETA): tail(s)
        scheck(tail, SETB, f'{ls}_r', 4)
        tail(f's_branch {ls}_j')
        retry(a, tail, f'{ls}_r', f'{ls}_a')
    else:
        a(f'{ls}_a:')
        scheck(a, SETA, f'{ls}_r', 0, 'lgkmcnt(0)')
        tail(f'{ls}_b:')
        for s in sld(SETA): tail(s)
        tail(f's_branch {ls}_a')
        retry(a, tail, f'{ls}_r', f'{ls}_b')
    PB = 76
    def one(): return yd.pop(0) if yd else 's_nop 0'
    ys = P['yspread']
    dpp = 'row_ror:8 row_mask:0xf bank_mask:0xf'
    dpc = 'row_ror:8 row_mask:0xf bank_mask:0xc'
    a(f"""{ls}_j:
    s_barrier
    {st(6)}
    v_max_f32_dpp v{T+1}, v{T}, v{T} {dpp}
    v_max_f32_dpp v{T+2}, v{T}, v{T} {dpp}
    {one()}
    {one() if (not ys or nw2 == 4) else 's_nop 0'}
    v_permlane16_swap_b32 v{T+1}, v{T+2}
    v_max_f32 v{T}, v{T+1}, v{T+2}
    v_max_f32 v{T+1}, v{T+1}, v{T+2}
    {one()}
    {one() if not ys else 's_nop 0'}
    v_permlane32_swap_b32 v{T}, v{T+1}
    v_max_f32 v{T+1}, v{T}, v{T+1}
    v_sub_f32 v{MV}, v{MV}, v{T+1}
    v_pk_add_f32 v[{X}:{X+1}], v[{X}:{X+1}], v[{T+1}:{T+2}] op_sel_hi:[1,0] neg_lo:[0,1] neg_hi:[0,1]
    v_pk_add_f32 v[{X+2}:{X+3}], v[{X+2}:{X+3}], v[{T+1}:{T+2}] op_sel_hi:[1,0] neg_lo:[0,1] neg_hi:[0,1]
    v_exp_f32 v{MV}, v{MV}
    v_exp_f32 v{X}, v{X}
    v_exp_f32 v{X+1}, v{X+1}
    v_mov_b32_dpp v{T+1}, v{MV} {dpp}
    v_cvt_pk_bf16_f32 v{vDq}, v{MV}, v{T+1}
    v_exp_f32 v{X+2}, v{X+2}
    v_cvt_pk_bf16_f32 v{PB}, v{X}, v{X+1}
    v_mfma_f32_16x16x32_bf16 {vr(60)}, {ar(aU+4)}, {vr(vDq)}, 0
    v_exp_f32 v{X+3}, v{X+3}
    v_mfma_f32_16x16x32_bf16 {vr(56)}, {ar(aU)}, {vr(vDq)}, 0
    v_cvt_pk_bf16_f32 v{PB+1}, v{X+2}, v{X+3}
    v_mov_b32_dpp v{PB+2}, v{PB} {dpp}
    v_mfma_f32_16x16x32_bf16 {vr(64)}, {ar(aU+8)}, {vr(vDq)}, 0
    v_mov_b32_dpp v{PB+3}, v{PB+1} {dpp}
    v_add_f32 v{T}, v{X}, v{X+1}
    v_add_f32 v{T+2}, v{X+2}, v{X+3}
    v_mfma_f32_16x16x32_bf16 {vr(60)}, {vr(vYt+4)}, {vr(PB)}, {vr(60)}
    v_add_f32 v{T}, v{T}, v{MV}
    v_add_f32 v{T}, v{T}, v{T+2}
    v_mfma_f32_16x16x32_bf16 {vr(56)}, {vr(vYt)}, {vr(PB)}, {vr(56)}
    {one()}
    v_add_f32_dpp v{T+1}, v{T}, v{T} {dpp}
    v_mfma_f32_16x16x32_bf16 {vr(64)}, {vr(vYt+8)}, {vr(PB)}, {vr(64)}
    v_add_f32_dpp v{T+2}, v{T}, v{T} {dpp}
    s_nop 1
    v_permlane16_swap_b32 v{T+1}, v{T+2}
    v_add_f32 v{T}, v{T+1}, v{T+2}
    v_add_f32 v{T+1}, v{T+1}, v{T+2}
    v_mov_b32_dpp v56, v60 {dpc}
    v_mov_b32_dpp v57, v61 {dpc}
    v_permlane32_swap_b32 v{T}, v{T+1}
    v_mov_b32_dpp v58, v62 {dpc}
    v_mov_b32_dpp v59, v63 {dpc}
    ds_write_b128 v{vL16}, {vr(56)} offset:{DB+1536*w}
    v_add_f32 v{T}, v{T}, v{T+1}
    v_rcp_f32 v{T}, v{T}
    v_mov_b32_dpp v64, v66 {dpc}
    v_mov_b32_dpp v65, v67 {dpc}
    ds_write_b32 v26, v{T} offset:{RB+4*w}
    ds_write_b64 v{vD2}, v[64:65] offset:{DB+1536*w+1024}""")
    while yd: a(yd.pop(0))
    if w == 3 and P['kmw'] == 1:
        for s in km_stores(): a(s)
        nw2 += 2
    if w == 3 and P['bpw'] == 1:
        for s in bp_stores(sMw): a(s)
        nw2 += 3
    a(f"""{f's_mov_b64 exec, s[{sEx}:{sEx+1}]' if w >= 2 else ''}
    s_waitcnt lgkmcnt(0)
    s_barrier""")
    a(st(7))
    nxt = [f's_add_u32 s{S_STEP}, s{S_STEP}, 1'] + step_scalars(w)
    if w >= 2:
        a(f'ds_read_b128 {vr(72)}, v24 offset:{RB}')
        for i in range(4): a(f'ds_read_b128 {vr(56+4*i)}, v{vDr} offset:{DB+1536*i}')
        a(f"""s_waitcnt lgkmcnt(3)
        v_pk_mul_f32 v[76:77], v[56:57], v[72:73] op_sel_hi:[1,0]
        v_pk_mul_f32 v[78:79], v[58:59], v[72:73] op_sel_hi:[1,0]
        s_waitcnt lgkmcnt(2)
        v_pk_fma_f32 v[76:77], v[60:61], v[72:73], v[76:77] op_sel:[0,1,0] op_sel_hi:[1,1,1]
        v_pk_fma_f32 v[78:79], v[62:63], v[72:73], v[78:79] op_sel:[0,1,0] op_sel_hi:[1,1,1]
        s_waitcnt lgkmcnt(1)
        v_pk_fma_f32 v[76:77], v[64:65], v[74:75], v[76:77] op_sel_hi:[1,0,1]
        v_pk_fma_f32 v[78:79], v[66:67], v[74:75], v[78:79] op_sel_hi:[1,0,1]
        s_waitcnt lgkmcnt(0)
        v_pk_fma_f32 v[76:77], v[68:69], v[74:75], v[76:77] op_sel:[0,1,0] op_sel_hi:[1,1,1]
        v_pk_fma_f32 v[78:79], v[70:71], v[74:75], v[78:79] op_sel:[0,1,0] op_sel_hi:[1,1,1]
        v_cvt_pk_bf16_f32 v76, v76, v77
        v_cvt_pk_bf16_f32 v77, v78, v79
        v_min_u32 v76, -2, v76""")
        a(W('store_dwordx2', 'v[76:77]', vGst, f's{sG}', 0, 'sc1'))
        a(W('store_dwordx2', 'v[76:77]', vGst, f's{sGL}'))
        a(st(8)); a(st(9))
        a('s_mov_b64 exec, -1')
        if w == 3 and P['kmw'] == 2:
            for s in km_stores(): a(s)
            nw2 += 2
        if w == 3 and P['bpw'] == 2:
            for s in bp_stores(sMw): a(s)
            nw2 += 3
        a(f's_waitcnt vmcnt({nw2+2})')
        if w == 3:
            for s in pub_reads(): a(s)
            token_part(a, P, kx_copy() + az + nxt + (thr_next(P) if P['live'] else []))
        if w == 2 and P.get('steptrace'):
            a(f"""s_memrealtime s[8:9]
            s_waitcnt lgkmcnt(0)
            s_mov_b32 m0, s{S_STEP}
            v_accvgpr_read_b32 v40, a240
            s_nop 1
            v_writelane_b32 v40, s8, m0
            s_nop 1
            v_accvgpr_write_b32 a240, v40""")
        if w == 2:
            for s in nxt + az: a(s)
        a('s_waitcnt lgkmcnt(0)')
    else:
        a(f's_waitcnt vmcnt({nw2}) lgkmcnt(0)')
        for s in az: a(s)
        a(f"""s_and_b32 s{sT0}, s{sTag}, 3
        s_mul_i32 s{sMw}, s{sT0}, {M_SLOT}
        s_add_u32 s{sMw}, s{sMw}, s{sMb}
        s_mov_b32 s{sGp}, s{sG}""")
        for s in nxt: a(s)
        if P['sleep_g']: a(f"s_sleep {P['sleep_g']}")
        a.nop(P['nop_g'])
        dep = P['gdepth']
        gl = lambda r: [W('load_dwordx4', vr(60+8*r), vG0, f's{sGp}', 0, 'sc1'), W('load_dwordx4', vr(64+8*r), vG1, f's{sGp}', 0, 'sc1')]
        lg = a.lab('pg')
        a(st(8))
        for r in range(dep-1):
            for s in gl(r): a(s)
            a.nop(P['ggap'])
        a(f'{lg}:')
        for r in range(dep):
            for s in gl((r+dep-1) % dep): a(s)
            b = 60+8*r
            a(f"""s_waitcnt vmcnt({2*(dep-1)})
            v_mfma_f32_16x16x32_bf16 {vr(56)}, {ar(aSel)}, {vr(b)}, 0
            v_max3_u32 v40, v{b}, v{b+2}, v{b+4}
            v_max_u32 v40, v40, v{b+6}
            v_mfma_f32_16x16x32_bf16 {vr(56)}, {ar(aSel)}, {vr(b+4)}, {vr(56)}
            v_cmp_eq_u32 vcc, -1, v40
            s_nop 4
            s_cbranch_vccz {lg}_ok""")
        a(f"""s_add_u32 s{S_TO}, s{S_TO}, 1
        s_cmp_gt_u32 s{S_TO}, {TO_LIMIT}
        s_cbranch_scc1 L_exit
        s_branch {lg}
        {lg}_ok:
        {st(9)}
        s_mov_b64 exec, s[{sEx}:{sEx+1}]
        v_cvt_pk_bf16_f32 v40, v56, v57
        v_cvt_pk_bf16_f32 v41, v58, v59
        v_min_u32 v40, -2, v40
        v_min_u32 v41, -2, v41""")
        a(W('store_dwordx2', 'v[40:41]', vMst, f's{sMw}'))
        a('s_mov_b64 exec, -1')
    a('s_barrier')
    a(st(10))
    a(P['dump'](a, w))
    a(f's_mov_b32 m0, {MB+1024*own[0]}')
    a.nop(P['dm'])
    a(f's_branch L_rec_{nm}_top0')
    a(f"""L_rec_{nm}_fin:
    s_waitcnt lgkmcnt(0)
    s_barrier""")
    if w == 3:
        for s in pub_reads() + km_stores() + (bp_stores(sMw) if P['bpw'] else []): a(s)
        a('s_waitcnt lgkmcnt(0)')
        for s in u_stores(): a(s)
        if P['live']:
            a(f'v_mov_b32 v{vFd}, 64\ns_waitcnt vmcnt(0)')
            a(W('store_dword', f'v{vFd}', vFa, f's{sFl}', 0, 'sc1'))
    if w == 2 and P.get('steptrace'):
        a(f"""v_accvgpr_read_b32 v40, a240
        v_lshrrev_b32 v41, 2, v{vL16}
        s_lshl_b32 s{sT0}, s{S_X}, 5
        s_add_u32 s{sT0}, s{sT0}, s{S_J}
        s_lshl_b32 s{sT0}, s{sT0}, 8
        s_add_u32 s{sT0}, s{sT0}, {FL_OFF+0x40000}""")
        a(W('store_dword', 'v40', 41, f's{sT0}'))
    a('s_branch L_rec_done')

NOQK = [0]
LAG = [0]
sPc = 95
def rec_role(a, P):
    NOQK[0] = P.get('noqk', 0); LAG[0] = P['lag']
    tail = Asm(); tail.uid = 100000
    a('L_rec:')
    rec_prologue(a, P)
    for w in range(4):
        rec_wave(a, tail, w, P)
    a.lines += tail.lines
    a(f"""L_rec_done:
    s_waitcnt vmcnt(0)
    s_barrier""")
    for s in P['done'](): a(s)
    a('s_branch L_exit')
```

```python
from gen_common import *
import gen_par as gp
import gen_rec as gr

def worker_id(a):
    a(f"""L_tofinal:
    s_and_b32 s{gp.sT0}, s{S_J}, 2
    s_mul_i32 s{gp.sT0}, s{gp.sT0}, 15
    s_add_u32 s{gp.sWk}, s{gp.sH}, s{gp.sT0}
    s_cmp_ge_u32 s{gp.sH}, 30
    s_cbranch_scc1 L_exit""")

def mid_beta(a):
    a(f"""v_and_b32 v12, 3, v{gp.vLn}
    v_lshlrev_b32 v12, 9, v12
    s_lshl_b32 s{gp.sT2}, s{gp.sB}, 11
    s_add_u32 s{gp.sT2}, s{gp.sT2}, {gp.flag_addr(4, 1)}""")
    gp.wait_flags(a, 12, f's{gp.sT2}', 66, sleep=1)

def staged(stage, P, tstamp=True):
    a = Asm(); P = dict(P)
    P.update(frec=0, after_k='s_branch L_exit', after_v='s_branch L_exit', after_y='s_branch L_exit', pre_y=lambda a: None, v_known=100, pre_beta=lambda a: None, mid_beta=mid_beta, r_known=100,
             q_refresh=lambda r: [], q_wait=lambda a, r, pub: None, q_update=lambda r: [], final_wait=lambda a, f: a('s_waitcnt vmcnt(0)'), final_waity=lambda a: a('s_waitcnt vmcnt(0)'), final_refresh=lambda f: [], final_ready=lambda a, f: a(f's_cmp_lt_u32 s{S_STEP}, 64'), y_refresh='', y_update='')
    a('s_memrealtime s[96:97]')
    common_entry(a)
    if stage == 'rec':
        a(f"""s_cmp_lt_u32 s{S_X}, 4
        s_cbranch_scc1 L_rec
        s_cmp_lg_u32 s{S_X}, 4
        s_cbranch_scc1 L_exit
        s_cmp_lg_u32 s{S_WAVE}, 0
        s_cbranch_scc1 L_exit""")
        cal_store(a, S_J); cal_sample(a)
        a('s_branch L_exit')
        rec_role(a, P)
    else:
        a(f's_cmp_lt_u32 s{S_X}, 4\ns_cbranch_scc1 L_exit')
        gp.lanes(a); gp.head_ids(a)
        a(f's_and_b32 s{gp.sT0}, s{S_J}, 3\ns_mov_b32 s{S_STEP}, 0\ns_mov_b32 s{gp.sEnd}, 64\ns_mov_b32 s{gp.sFb}, 2\ns_mov_b32 s{gp.sStr}, 1\ns_mov_b32 s{gp.sDone}, 0')
        tgt = {'s1': ['L_k', 'L_v', 'L_exit', 'L_alpha'], 's2': ['L_exit', 'L_exit', 'L_y', 'L_beta'],
               'q': ['L_exit']*3 + ['L_q'], 'fin': ['L_exit', 'L_tofinal', 'L_tofinal', 'L_exit']}[stage]
        for i in range(3): a(f's_cmp_eq_u32 s{gp.sT0}, {i}\ns_cbranch_scc1 {tgt[i]}')
        a(f's_branch {tgt[3]}')
        if stage == 's1':
            gp.kv_role(a, 'k', P_WK, K_OFF, 'sc1', P); gp.kv_role(a, 'v', P_WV, V_OFF, '', P)
            gp.alpha_role(a, P)
        if stage == 's2':
            gp.y_role(a, P); gp.beta_role(a, P)
        if stage == 'q': gp.q_role(a, P)
        if stage == 'fin':
            worker_id(a); gp.final_role(a, P)
    a(f"""L_exit:
    s_waitcnt vmcnt(0)
    s_memrealtime s[98:99]
    s_memtime s[90:91]
    s_lshl_b32 s94, s{S_X}, 5
    s_add_u32 s94, s94, s{S_J}
    s_lshl_b32 s94, s94, 4
    s_add_u32 s94, s94, {FL_OFF+0x10000}
    s_waitcnt lgkmcnt(0)
    s_sub_u32 s90, s90, s92
    v_mov_b32 v12, s96
    v_mov_b32 v13, s98
    v_mov_b32 v14, s100
    v_mov_b32 v15, s90
    v_mov_b32 v10, 0
    {W('store_dwordx4', 'v[12:15]', 10, 's94')}
    s_waitcnt vmcnt(0)
    s_endpgm""")
    return a

def merged(P, diag=False):
    a = Asm(); P = dict(P)
    P['ufrom'] = 63 - P['lag']; P['qsplit'] = (64 - P['lag']) & ~1
    def pre_beta(a):
        gp.wait_init(a, 128)
        a(f"""v_and_b32 v12, 7, v{gp.vLn}
        v_lshlrev_b32 v12, 9, v12
        v_bfe_u32 v13, v{gp.vLn}, 3, 1
        v_lshl_add_u32 v12, v13, 7, v12
        s_lshl_b32 s{gp.sT2}, s{S_X}, 12
        s_add_u32 s{gp.sT2}, s{gp.sT2}, {FL_OFF}""")
        gp.wait_flags(a, 12, f's{gp.sT2}', 65)
    def pre_q(a):
        if P['help'] & 8:
            l = a.lab('pq')
            a(f's_cmp_lg_u32 s{gp.sFb}, 0\ns_cbranch_scc1 {l}')
            gp.touch_lin(a, P_WQKV, 640*1920*2); gp.touch_lin(a, P_WOA, 640*640*2)
            a(f'{l}:')
        gp.wait_init(a, 128)
    def y_init(a):
        ring_init(a, gp.sH)
        a('s_waitcnt vmcnt(0)\ns_barrier')
    def pre_y(a):
        l = a.lab('cal')
        a(f's_cmp_lg_u32 s{S_WAVE}, 0\ns_cbranch_scc1 {l}')
        cal_sample(a)
        a(f'{l}:\ns_barrier')
        gp.wait_init(a, 128)
    def spin(a, l, sleep):
        a(f"""s_branch {l}_go
        {l}:
        s_sleep {sleep}
        s_add_u32 s{S_TO}, s{S_TO}, 1
        s_cmp_gt_u32 s{S_TO}, {TO_LIMIT}
        s_cbranch_scc1 L_exit
        {l}_go:""")
    def q_wait(a, r, pub):
        l = a.lab('qw')
        a(W('load_dword', f'v{r}', gp.vFa, 0, 0, 'sc1'))
        a('s_waitcnt vmcnt(0)')
        for x in pub: a(x)
        a(f"""v_cmp_ge_u32 vcc, s{S_STEP}, v{r}
        s_cbranch_vccz {l}_ok""")
        spin(a, l, 1)
        a(f"""{W('load_dword', f'v{r}', gp.vFa, 0, 0, 'sc1')}
        s_waitcnt vmcnt(0)
        v_cmp_ge_u32 vcc, s{S_STEP}, v{r}
        s_cbranch_vccnz {l}
        {l}_ok:""")
    def q_update(r):
        L = [f'v_readlane_b32 s{gp.sT0+i}, v{r}, {i}' for i in range(4)] + [f'v_readlane_b32 s{gp.sKl}, v{r}, 4']
        return L + [f's_min_u32 s{gp.sT0}, s{gp.sT0}, s{gp.sT1}', f's_min_u32 s{gp.sT2}, s{gp.sT2}, s{gp.sT3}', f's_min_u32 s{gp.sKn}, s{gp.sT0}, s{gp.sT2}']
    def q_waitk(a, r):
        l = a.lab('qk')
        spin(a, l, 2)
        a(f"""{W('load_dword', f'v{r}', gp.vFa, 0, 0, 'sc1')}
        s_waitcnt vmcnt(0)
        v_readlane_b32 s{gp.sKl}, v{r}, 4
        s_nop 3
        s_cmp_gt_u32 s{gp.sKl}, s{S_STEP}
        s_cbranch_scc0 {l}""")
    def light_wait(a):
        l = a.lab('lw')
        a(f's_add_u32 s{gp.sT1}, s{S_STEP}, {P["lag"]+1+(1 if P["bpw"] else 0)}\ns_mov_b32 s{gp.sT2}, {FL_OFF}\ns_mov_b32 s{gp.sT3}, {FL_OFF+8192}\nv_lshlrev_b32 v204, 7, v{gp.vLn}')
        gp.wait_flags(a, gp.vZ, f's{gp.sFv}', f's{gp.sT1}', tmp=205, sleep=6)
        spin(a, l, 4)
        a(f"""{W('load_dword', 'v205', 204, f's{gp.sT2}', 0, 'sc1')}
        {W('load_dword', 'v206', 204, f's{gp.sT3}', 0, 'sc1')}
        s_waitcnt vmcnt(0)
        v_min_u32 v205, v205, v206
        v_cmp_gt_u32 vcc, s{gp.sT1}, v205
        s_cbranch_vccnz {l}""")
    def light_ready(a):
        a(f"""v_readfirstlane_b32 s{gp.sT0}, v207
        s_add_u32 s{gp.sT1}, s{S_STEP}, {P['lag']+2+(1 if P['bpw'] else 0)}
        s_cmp_lt_u32 s{S_STEP}, {61-P['lag']-(1 if P['bpw'] else 0)}
        s_cselect_b32 s{gp.sT1}, s{gp.sT1}, 999
        s_cmp_ge_u32 s{gp.sT0}, s{gp.sT1}""")
    def wave0(a, f):
        l = a.lab('w0')
        a(f's_cmp_lg_u32 s{S_WAVE}, 0\ns_cbranch_scc1 {l}')
        f()
        a(f'{l}:\ns_waitcnt vmcnt(0)\ns_barrier')
    def final_waity(a):
        a(f's_add_u32 s{gp.sT1}, s{S_STEP}, 1\ns_mov_b32 s{gp.sT2}, 256')
        wave0(a, lambda: gp.wait_flags(a, gp.vFa, f's{gp.sT2}', f's{gp.sT1}', sleep=8))
    def final_wait(a, F):
        def f():
            l = a.lab('fw')
            a(f"""s_and_b32 s{gp.sT0}, s{S_STEP}, 1
            s_cmp_lt_u32 s{S_STEP}, {P['qsplit']}
            s_cselect_b32 s{gp.sT0}, 1, s{gp.sT0}
            s_cmp_lg_u32 s{gp.sT0}, 0
            s_cselect_b32 s{gp.sT1}, 0, 128
            s_cselect_b32 s{gp.sT2}, 384, 0
            s_add_u32 s{gp.sT1}, s{gp.sT1}, s{S_STEP}
            s_mov_b32 exec_hi, 0""")
            spin(a, l, P.get('fsleep', 2))
            a(f"""{W('load_dwordx4', vr(F), gp.vFa, f's{gp.sT2}', 0, 'sc1')}
            s_waitcnt vmcnt(0)
            v_min3_u32 v{F}, v{F}, v{F+1}, v{F+2}
            v_min_u32 v{F}, v{F}, v{F+3}
            v_cmp_ge_u32 vcc, s{gp.sT1}, v{F}
            s_cbranch_vccnz {l}
            s_mov_b32 exec_hi, -1""")
        wave0(a, f)
    def final_pre(a):
        a(f's_sub_u32 s{gp.sFv}, s{gp.sFl}, {128*128}\ns_mov_b32 s{gp.sT2}, 128')
        wave0(a, lambda: gp.wait_flags(a, gp.vFa, f's{gp.sT2}', 67, sleep=8))
    P.update(live=1, ninit=128, after_k='s_branch L_alpha', after_v='s_branch L_alpha', pre_q=pre_q, q_waitk=q_waitk, light_wait=light_wait, light_ready=light_ready, light_refresh=[W('load_dword', 'v207', gp.vZ, f's{gp.sFv}', 0, 'sc1')], after_y='s_branch L_tofinal', pre_y=pre_y, y_init=y_init, v_known=0, pre_beta=pre_beta, mid_beta=mid_beta, r_known=0,
             q_refresh=lambda r: [W('load_dword', f'v{r}', gp.vFa, 0, 0, 'sc1')], q_wait=q_wait, q_update=q_update, final_wait=final_wait, final_waity=final_waity, final_pre=final_pre, y_refresh=W('load_dword', 'v11', gp.vZ, f's{gp.sFv}', 0, 'sc1'), y_update=f'v_readfirstlane_b32 s{gp.sKn}, v11')
    mark = (lambda i: a(f's_memrealtime s[{96+2*i}:{97+2*i}]')) if diag else (lambda i: None)
    ds = P.get('diagspin')
    if ds:
        a('s_memrealtime s[96:97]')
        P['wait_k0'] = lambda: ['s_memrealtime s[100:101]\ns_waitcnt lgkmcnt(0)\ns_mov_b32 s98, s100']
        P['after_y0'] = 's_memrealtime s[100:101]\ns_waitcnt lgkmcnt(0)\ns_mov_b32 s99, s100'
        src = {1: 's96', 2: 's99', 3: 's100', 4: 's98'}.get(ds, 's8')
        P['pstamp'] = lambda i: 's_memrealtime s[8:9]' if i == ds-10 else ''
        P['done'] = lambda: [f"""s_cmp_lg_u32 s{S_WAVE}, 3
        s_cbranch_scc1 L_exit
        s_memrealtime s[100:101]
        s_waitcnt lgkmcnt(0)
        s_sub_u32 s95, {src}, s96
        s_add_u32 s95, s95, {P.get('dlen', 30000)}
        L_dspin:
        s_sleep 8
        s_memrealtime s[100:101]
        s_waitcnt lgkmcnt(0)
        s_sub_u32 s100, s100, s96
        s_cmp_lt_u32 s100, s95
        s_cbranch_scc1 L_dspin"""]
    mark(0)
    if diag:
        a('s_mov_b32 s98, 0')
        P['wait_k0'] = lambda: ['s_memrealtime s[98:99]']
        P['after_y0'] = 's_memrealtime s[100:101]\ns_waitcnt lgkmcnt(0)\ns_mov_b32 s97, s100'
        P['done'] = lambda: ['s_memrealtime s[92:93]']
        if P.get('pprof'):
            PR = [8, 10, 12, 14, 26, 28, 30]
            P['pstamp'] = lambda i: f's_memrealtime s[{PR[i]}:{PR[i]+1}]'
            P['done'] = lambda: ['s_memrealtime s[92:93]'] + [f'v_mov_b32 v{24+i}, s{PR[i]}' for i in range(7)] + [f"""s_lshl_b32 s40, s{S_X}, 5
            s_add_u32 s40, s40, s{S_J}
            s_lshl_b32 s40, s40, 5
            s_add_u32 s40, s40, {FL_OFF+0x14000}
            v_mov_b32 v21, 0""", W('store_dwordx4', 'v[24:27]', 21, 's40'), W('store_dwordx4', 'v[28:31]', 21, 's40', 16)]
    common_entry(a, P['touch'])
    a(f's_cmp_lt_u32 s{S_X}, 4\ns_cbranch_scc1 L_rec')
    gp.lanes(a); gp.head_ids(a)
    l = a.lab('ini')
    a(f"""s_cmp_lg_u32 s{S_WAVE}, 0
    s_cbranch_scc1 {l}
    v_lshlrev_b32 v10, 2, v{gp.vLn}
    s_mov_b64 exec, 15
    {W('store_dword', f'v{gp.vZ}', 10, f's{gp.sFl}', 0, 'sc1')}
    s_mov_b64 exec, -1
    s_and_b32 s{gp.sT0}, s{S_J}, 3
    s_cmp_lg_u32 s{gp.sT0}, 2
    s_cbranch_scc1 {l}""")
    cal_store(a, gp.sH)
    a(f'{l}:')
    if P['help']:
        a(f's_and_b32 s{gp.sT3}, s{S_J}, 3')
        gp.touch_rows(a, P_WV, f's{gp.sT3}', 4)
    a(f"""s_and_b32 s{gp.sT0}, s{S_J}, 3
    s_cmp_eq_u32 s{gp.sT0}, 0
    s_cbranch_scc1 L_k
    s_cmp_eq_u32 s{gp.sT0}, 1
    s_cbranch_scc1 L_v
    s_cmp_eq_u32 s{gp.sT0}, 2
    s_cbranch_scc1 L_y""")
    gp.init_done(a, P)
    if P['help']:
        a('s_waitcnt vmcnt(0)\ns_barrier')
        gp.touch_x(a)
        if P['help'] & 2:
            gp.touch_rows(a, P_WK, 1, 2)
            a('s_waitcnt vmcnt(0)\ns_barrier')
        if P['help'] & 4: gp.touch_rows(a, P_WQ, 0, 2)
    a(f"""s_mov_b32 s{S_STEP}, 0
    s_mov_b32 s{gp.sEnd}, {P['qsplit']}
    s_mov_b32 s{gp.sFb}, 0
    s_mov_b32 s{gp.sStr}, 1
    s_branch L_toq
    L_k2q:
    s_mov_b32 s{S_STEP}, {P['qsplit']}
    s_mov_b32 s{gp.sEnd}, 64
    s_mov_b32 s{gp.sFb}, 128
    s_mov_b32 s{gp.sStr}, 2
    L_toq:
    s_mov_b32 s{gp.sDone}, 0""")
    mark(1)
    a(f"""s_lshl_b32 s{gp.sT0}, s{gp.sH}, 2
    v_add_u32 v{gp.vFa}, s{gp.sT0}, v{gp.vLn}
    s_add_u32 s{gp.sT0}, s{gp.sT0}, 128
    v_mov_b32 v10, s{gp.sT0}
    v_cmp_gt_u32 vcc, 4, v{gp.vLn}
    s_nop 1
    v_cndmask_b32 v{gp.vFa}, v10, v{gp.vFa}, vcc
    v_lshlrev_b32 v{gp.vFa}, 7, v{gp.vFa}
    v_add_u32 v{gp.vFa}, {FL_OFF}, v{gp.vFa}""")
    gp.q_role(a, P)
    a(f"""s_cmp_eq_u32 s{gp.sStr}, 2
    s_cbranch_scc1 L_exit
    s_mov_b32 s{S_STEP}, {P['qsplit']+1}
    s_mov_b32 s{gp.sEnd}, 64
    s_mov_b32 s{gp.sStr}, 2
    s_branch L_q_again""")
    gp.kv_role(a, 'k', P_WK, K_OFF, 'sc1', P); gp.kv_role(a, 'v', P_WV, V_OFF, '', P)
    gp.y_role(a, P)
    gp.alpha_role(a, P)
    a(f's_bitcmp0_b32 s{S_J}, 0\ns_cbranch_scc1 L_k2q')
    gp.beta_role(a, P)
    worker_id(a)
    mark(1)
    gp.final_role(a, P)
    a('L_exit:')
    if diag:
        a(f"""s_waitcnt vmcnt(0)
        s_cmp_lg_u32 s{S_WAVE}, 3
        s_cbranch_scc1 L_exit2
        s_memrealtime s[100:101]
        s_lshl_b32 s94, s{S_X}, 5
        s_add_u32 s94, s94, s{S_J}
        s_lshl_b32 s94, s94, 4
        s_add_u32 s94, s94, {FL_OFF+0x10000}
        s_waitcnt lgkmcnt(0)
        v_mov_b32 v12, s96
        v_mov_b32 v13, s98
        v_mov_b32 v14, s100
        v_mov_b32 v15, s{S_TO}
        v_mov_b32 v10, 0
        {W('store_dwordx4', 'v[12:15]', 10, 's94')}
        v_mov_b32 v16, s97
        v_mov_b32 v17, s92
        s_add_u32 s94, s94, 0x2000
        {W('store_dwordx2', 'v[16:17]', 10, 's94')}
        L_exit2:""")
    a('s_waitcnt vmcnt(0)\ns_endpgm')
    rec_role(a, P)
    a('L_code_end:')
    return a

KNAME = 'gated_mix__linear_attn_block__memory_aug_recurrent_mem_tr__prompt_kernel'
def final_text(P):
    ref = open('gated_mix__linear_attn_block__memory_aug_recurrent_mem_tr__prompt.s.ref').read()
    top = ''.join(l+'\n' for l in ref.split('\n') if l.startswith(';') and '@launch' not in l)
    return top + head(KNAME, 163840) + merged(P).text() + KD.format(name=KNAME)
if __name__ == '__main__':
    import sys
    out = sys.argv[1] if len(sys.argv) > 1 else 'gated_mix__linear_attn_block__memory_aug_recurrent_mem_tr__prompt.s'
    P = dict(DEFP)
    for spec in sys.argv[2:]:
        for kv in spec.split(','):
            k, v = kv.split('='); P[k] = int(v)
    open(out, 'w').write(final_text(P))
```

```python
from asmb import *
from lay import *
S_WAVE, S_X, S_J, S_STEP, S_TO = 3, 4, 5, 6, 7
P_X, P_WQKV, P_WOA, P_MEM0, P_WQ, P_WK, P_WV, P_WO, P_GATE, P_OUT, P_DBG, P_WS = 8, 10, 12, 16, 18, 20, 22, 24, 28, 30, 32, 34
SRD_W = 36
SRD_A = 40
SRD_B = 44
SRD_D = 48
TO_LIMIT = 400000
sMr, sMw, sMp, sSw, sSr, sG, sGL, sGp, sGLp, sY, sK, sU, sKm = range(52, 65)
sTag, sTag3, sC, sT0, sT1, sT2, sPar = range(65, 72)
sSelT1, sSelT2, sSelU1, sSelU2 = range(72, 76)
sHalf = 76
sEx   = 78
sExLo = 80
sH, sCg, sHs, sCs = 82, 83, 84, 85
sGb, sMb = 86, 87
sKnY, sKnK, sFy, sFk, sFl = 90, 91, 92, 93, 94
vFk, vFd, vFa, vFp, vKc, vKd = 101, 102, 103, 184, 185, 186
vBP = 228
sExK = 34
sSelT3 = 89
sC2 = 88
MB, QB, KB, DB, RB, UB = 0, 10240, 11264, 13312, 19456, 19968
RING0, SLOT, NSLOT = 23040, 15360, 9
sYr, sYw, sYo, sPx, sBp, sBad, sLo = 45, 46, 47, 44, 67, 90, 32
vPF, vPM8, vTA, vThr, vL4k = 188, 220, 228, 187, 183
vL16, vIdx, vQw, vY = 0, 1, 2, 3
vKw, vD2 = 4, 5
vDr, vGst = 6, 7
vG0, vG1 = 6, 7
vUP = 8
vAq, vAk = 16, 20
vUa = 24
SETA, SETB = [16, 20, 36, 40], [80, 84, 88, 92]
vYt = 44
vMF = 56
vWq, vWk = 96, 176
aSel = 240
aU = 244
vMst, vDq = 8, 12
vQr, vKr, vPG, vPM, vL8 = 96, 97, 98, 99, 100
vNeg = 104
vKF = 108
vKS = 124
vQf, vKf = 136, 144
vD0, vD1, vDm, vPk = 152, 156, 160, 164
vPU, vPK = 168, 180
OWN = [[0,1,2],[3,4,5],[6,7,8],[9]]

def srd(a, base, ptr, nbytes):
    a(f"""s_mov_b32 s{base}, s{ptr}
    s_and_b32 s{base+1}, s{ptr+1}, 0xffff
    s_mov_b32 s{base+2}, {nbytes}
    s_mov_b32 s{base+3}, 0x20000""")

def W(op, data, va, so, off=0, fl=''):
    return f'buffer_{op} {data}, v{va}, s[{SRD_W}:{SRD_W+3}], {so} offen offset:{off} {fl}'.rstrip()

def retry(a, tail, lab_retry, lab_back):
    tail(f"""{lab_retry}:
    s_add_u32 s{S_TO}, s{S_TO}, 1
    s_cmp_gt_u32 s{S_TO}, {TO_LIMIT}
    s_cbranch_scc0 {lab_back}
    s_branch L_exit""")

def build_sel(a, dst, vn, vg, goff, tmp):
    a(f"""v_and_b32 v{tmp}, 1, v{vn}
    v_lshlrev_b32 v{tmp}, 4, v{tmp}
    v_mov_b32 v{tmp+1}, 0x3f80
    v_lshlrev_b32 v{tmp}, v{tmp}, v{tmp+1}
    v_lshrrev_b32 v{tmp+1}, 1, v{vn}
    v_add_u32 v{tmp+1}, {4*goff}, v{tmp+1}
    v_lshlrev_b32 v{tmp+2}, 2, v{vg}
    v_sub_u32 v{tmp+1}, v{tmp+1}, v{tmp+2}""")
    for r in range(4):
        a(f"""v_cmp_eq_u32 vcc, {r}, v{tmp+1}
        s_nop 1
        v_cndmask_b32 v{dst+r}, 0, v{tmp}, vcc""")

def phys(a, v, tmp):
    a(f"""v_lshrrev_b32 v{tmp}, 13, v{v}
    v_lshl_add_u32 v{v}, v{tmp}, 13, v{v}""")

def dma(srdb, va, so, fl=''):
    return f'buffer_load_dwordx4 v{va}, s[{srdb}:{srdb+3}], {so} offen {fl} lds'

def rec_prologue(a, P):
    n, g, ln = 60, 61, 62
    a(f"""v_and_b32 v{ln}, 63, v0
    v_and_b32 v{n}, 15, v{ln}
    v_lshrrev_b32 v{g}, 4, v{ln}
    v_lshlrev_b32 v{vL16}, 4, v{ln}
    s_and_b32 s{sT0}, s{S_J}, 1
    s_lshl_b32 s{sT0}, s{sT0}, 2
    s_add_u32 s{sT0}, s{sT0}, s{S_WAVE}
    s_lshl_b32 s{sH}, s{S_X}, 3
    s_add_u32 s{sH}, s{sH}, s{sT0}
    s_lshr_b32 s{sCg}, s{S_J}, 1
    s_lshr_b32 s{sHs}, s{S_J}, 2
    s_and_b32 s{sCs}, s{S_J}, 3
    s_lshl_b32 s{sT1}, s{S_X}, 3
    s_add_u32 s{sHs}, s{sHs}, s{sT1}
    s_lshl_b32 s{sT1}, s{S_X}, 5
    s_add_u32 s{sT1}, s{sT1}, s{S_J}
    s_mul_i32 s{sGb}, s{sT1}, 768
    s_lshl_b32 s{sSw}, s{sT1}, 10
    s_add_u32 s{sSw}, s{sSw}, {S_OFF}
    s_lshl_b32 s{sSr}, s{sH}, 12
    s_add_u32 s{sSr}, s{sSr}, {S_OFF}
    s_mov_b32 s{sSelT1}, 0x0c0c0400
    s_mov_b32 s{sSelT2}, 0x0c040100
    s_mov_b32 s{sSelT3}, 0x04020100
    s_mov_b32 s{sSelU1}, 0x0c04000c
    s_mov_b32 s{sSelU2}, 0x0402010c
    s_mov_b32 s{sC2}, {P['cexp']}
    s_mov_b32 s{sHalf}, 0xff00ff00
    s_mov_b32 s{sHalf+1}, 0xff00ff00
    s_mov_b32 s{sExK}, 0x33333333
    s_mov_b32 s{sExK+1}, 0x33333333
    s_mov_b32 s{sExLo}, 0x00ff00ff
    s_mov_b32 s{sExLo+1}, 0x00ff00ff
    s_mul_i32 s{sMb}, s{S_X}, 10240
    s_add_u32 s{sMb}, s{sMb}, {M_OFF}""")
    ps = P.get('pstamp', lambda i: '')
    a(ps(0))
    NB = 4; WB = NB*6144; IMG = 4*WB
    frag = [8+4*i for i in range(12)] + [64+4*i for i in range(6)]
    F = lambda tc, kap: frag[tc*6+kap]
    srd(a, SRD_A, P_WO, 32*192*640*2)
    srd(a, SRD_B, P_WV, 640*6144*2)
    a(f"""v_mul_u32_u24 v56, 0x3334, v{ln}
    v_lshrrev_b32 v56, 16, v56              ; lane/5
    v_mul_u32_u24 v57, 5, v56
    v_sub_u32 v57, v{ln}, v57
    v_mul_u32_u24 v56, 1280, v56
    v_lshl_add_u32 v56, v57, 4, v56
    s_mul_i32 s{sT0}, s{sH}, {192*1280}
    s_mul_i32 s{sT1}, s{sCg}, 80
    s_add_u32 s{sT0}, s{sT0}, s{sT1}
    s_mul_i32 s{sMr}, s{S_WAVE}, 15360
    s_add_u32 s{sMr}, s{sMr}, {IMG}
    s_mov_b32 s{sEx}, -1
    s_mov_b32 s{sEx+1}, 0x0fffffff
    s_mov_b64 exec, s[{sEx}:{sEx+1}]""")
    for i in range(16):
        a(f"""s_add_u32 m0, s{sMr}, {960*i}
        s_add_u32 s{sT1}, s{sT0}, {12*i*1280}
        {dma(SRD_A, 56, f's{sT1}')}""")
    a('s_mov_b64 exec, -1')
    if P['touchv']:
        a(f"""s_lshl_b32 s{sT0}, s{S_J}, 2
        s_add_u32 s{sT0}, s{sT0}, s{S_WAVE}
        s_mul_i32 s{sT0}, s{sT0}, {5*12288}
        s_mul_i32 s{sT1}, s{S_X}, 3072
        s_add_u32 s{sT0}, s{sT0}, s{sT1}""")
        for i in range(2):
            a(f"""v_min_u32 v57, 59, v{ln}
            v_add_u32 v57, {60*i}, v57
            v_mul_u32_u24 v58, 0xaab, v57
            v_lshrrev_b32 v58, 16, v58
            v_mul_u32_u24 v59, 24, v58
            v_sub_u32 v57, v57, v59
            v_mul_u32_u24 v58, 12288, v58
            v_lshl_add_u32 v57, v57, 7, v58
            buffer_load_dword v255, v57, s[{SRD_B}:{SRD_B+3}], s{sT0} offen""")
    if P['live']:
        a(f"""s_lshl_b32 s{sFl}, s{S_X}, 5
        s_add_u32 s{sFl}, s{sFl}, s{S_J}
        s_lshl_b32 s{sFl}, s{sFl}, 7
        s_add_u32 s{sFl}, s{sFl}, {FL_OFF}
        s_lshl_b32 s{sFy}, s{sH}, 9
        s_add_u32 s{sFy}, s{sFy}, {FL_OFF + (128+2)*128}
        s_lshl_b32 s{sFk}, s{sHs}, 9
        s_add_u32 s{sFk}, s{sFk}, {FL_OFF + 128*128}""")
    a(f"""v_lshrrev_b32 v58, 3, v{ln}
    v_bfe_u32 v57, v58, 1, 1
    v_lshlrev_b32 v56, 3, v57
    v_bfe_u32 v57, v58, 2, 1
    v_lshl_add_u32 v56, v57, 2, v56
    v_and_b32 v57, 1, v58
    v_add_u32 v56, v56, v57
    v_mul_u32_u24 v56, 12288, v56
    v_lshrrev_b32 v58, 1, v58
    v_and_b32 v57, 7, v{ln}
    v_xor_b32 v57, v57, v58
    v_lshl_add_u32 v1, v57, 4, v56          ; rows 0..7
    v_xor_b32 v57, 4, v57
    v_lshl_add_u32 v2, v57, 4, v56
    v_add_u32 v2, {16*12288}, v2            ; rows 8..15
    s_mul_i32 s{sT2}, s{S_WAVE}, {WB}
    s_mul_i32 s{sMw}, s{sH}, 384""")
    Q = []
    cfl = ('', 'sc1', 'nt')[P.get('cfl', 0)]
    def cload(tau):
        if tau >= 40: return []
        t, v = tau >> 2, tau & 3
        L = [(None, f's_add_u32 s{sT1}, s{sMw}, {(64*t+32*(v>>1)+2*(v&1))*12288}')]
        for k in range(6):
            L += [(None, f's_add_u32 m0, s{sT2}, {6144*(tau % NB)+1024*k-128*(k%3)}'),
                  (('c', tau), f'buffer_load_dwordx4 v{1 if k < 3 else 2}, s[{SRD_B}:{SRD_B+3}], s{sT1} offen offset:{128*(k%3)} {cfl} lds')]
        return L
    def put(it, pad=False):
        if it[0]:
            Q.append(it[0])
            if pad: a('s_nop 0')
        a(it[1])
    def younger(tag): return min(63, len(Q) - 1 - max(i for i, x in enumerate(Q) if x == tag))
    for tau in range(NB):
        for it in cload(tau): put(it, True)
    a(f"""v_lshrrev_b32 v56, 3, v{n}
    v_mul_u32_u24 v56, 3072, v56
    v_and_b32 v57, 7, v{n}
    v_lshl_add_u32 v56, v57, 7, v56
    v_add_u32 v56, s{sT2}, v56
    v_lshrrev_b32 v57, 1, v{n}
    v_xor_b32 v57, v57, v{g}
    v_lshl_add_u32 v3, v57, 4, v56
    v_xor_b32 v57, 4, v57
    v_lshl_add_u32 v4, v57, 4, v56""")
    for i in range(3):
        a(f"""v_add_u32 v57, {64*i}, v{ln}
        v_mul_u32_u24 v56, 0x2aab, v57
        v_lshrrev_b32 v56, 16, v56
        v_mul_u32_u24 v58, 6, v56
        v_sub_u32 v57, v57, v58
        v_mul_u32_u24 v56, 12288, v56
        v_lshl_add_u32 v{5+i}, v57, 4, v56""")
    a(f"""s_mul_i32 s{sMp}, s{sHs}, 384
    s_mul_i32 s{sT0}, s{sCs}, 96
    s_add_u32 s{sMp}, s{sMp}, s{sT0}
    s_mul_i32 s{sT0}, s{S_WAVE}, {160*12288}
    s_add_u32 s{sMp}, s{sMp}, s{sT0}""")
    def wload(tag, i):
        return [(None, f's_add_u32 m0, s{sMr}, {1024*i}'), (None, f's_add_u32 s{sT0}, s{sMp}, {32*(i//3)*12288}'),
                (tag, dma(SRD_A, 5 + i % 3, f's{sT0}', 'nt' if P['wnt'] else ''))] if not (P.get('nowk') and i > 0) else []
    a(f"""v_lshrrev_b32 v56, 2, v{n}
    v_lshl_add_u32 v56, v{g}, 3, v56
    v_mul_u32_u24 v56, 80, v56
    v_add_u32 v56, s{sMr}, v56
    v_and_b32 v57, 1, v{n}
    v_lshl_add_u32 v58, v57, 3, v56
    v_and_b32 v57, 3, v{n}
    v_lshl_add_u32 v56, v57, 3, v56
    s_waitcnt vmcnt({len(Q)})""")
    a(ps(1))
    for kap in range(6):
        for v in range(2):
            for tc in range(3):
                a(f'ds_read_b64_tr_b16 {vr(F(tc,kap)+2*v,2)}, v{56 if tc < 2 else 58} offset:{(32*kap+4*v)*80+32*tc}')
        a('s_waitcnt lgkmcnt(6)')
    srd(a, SRD_A, P_WK, 640*6144*2)
    a(f"""v_lshrrev_b32 v88, 1, v{g}
    v_lshlrev_b32 v88, 4, v88
    v_and_b32 v57, 1, v{g}
    v_lshl_add_u32 v88, v57, 2, v88
    v_bfe_u32 v57, v{n}, 2, 1
    v_add_u32 v88, v88, v57
    v_lshrrev_b32 v57, 3, v{n}
    v_lshl_add_u32 v88, v57, 3, v88
    v_mul_u32_u24 v88, 96, v88
    v_and_b32 v57, 3, v{n}
    v_lshl_add_u32 v88, v57, 3, v88
    s_min_u32 s{sT0}, s{S_WAVE}, 2
    s_lshl_b32 s{sT0}, s{sT0}, 5
    s_add_u32 s{sT0}, s{sT0}, {IMG}
    v_add_u32 v88, s{sT0}, v88
    """)
    a(ps(2))
    def trd(base):
        return [f'ds_read_b64_tr_b16 {vr(base+2*i,2)}, v88 offset:{(64*(i>>2) + 32*((i&3) >> 1) + 2*(i & 1))*96}' for i in range(40)]
    AF = lambda tau, k: 96 + 24*(tau & 1) + 4*k
    AC = lambda tau, tc: 144 + 12*(tau & 1) + 4*tc
    rd = lambda tau, k: f'ds_read_b128 {vr(AF(tau,k))}, v{3 + (k & 1)} offset:{6144*(tau % NB) + 1024*(k >> 1)}'
    def cstore(tau):
        t, v = tau >> 2, tau & 3
        L = []
        for tc in range(3):
            d = (tc*10+t)*8 + 2*v; ac = AC(tau, tc)
            L += [f'v_cvt_pk_bf16_f32 v{168+2*tc}, v{ac}, v{ac+1}', f'v_cvt_pk_bf16_f32 v{169+2*tc}, v{ac+2}, v{ac+3}',
                  f'v_accvgpr_write_b32 a{d}, v{168+2*tc}', f'v_accvgpr_write_b32 a{d+1}, v{169+2*tc}']
        return L
    a(f"s_waitcnt vmcnt({younger(('c', 0))}) lgkmcnt(0)\ns_barrier")
    for k in range(6): a(rd(0, k))
    k0, kb, q0 = P['pk0'], P['pkb'], P['pkb']+3
    ktr = trd(vWk)
    for tau in range(40):
        a('s_waitcnt lgkmcnt(0)')
        if tau == 10: a(ps(5))
        if tau == kb: a(ps(6))
        if tau == kb:
            a(f"s_waitcnt vmcnt({younger('k')})\ns_barrier")
        if tau == q0:
            a('s_barrier')
            srd(a, SRD_A, P_WQ, 640*6144*2)
        first = cload(tau+NB)
        if k0 <= tau < k0+15: first += wload('k', tau-k0)
        if tau >= q0:
            for i in (2*(tau-q0), 2*(tau-q0)+1):
                if i < 15: first += wload('q', i)
        mm = []
        for k in range(6):
            for tc in range(3):
                d = vr(AC(tau, tc))
                mm.append(f'v_mfma_f32_16x16x32_bf16 {d}, {vr(AF(tau,k))}, {vr(F(tc,k))}, {"0" if k == 0 else d}')
        if P.get('nomm'): mm = ['s_nop 0']*18
        second = cstore(tau-1) if tau > 0 else []
        nk = 0
        for i, m in enumerate(mm):
            a(m)
            if i < 10:
                for _ in range(2):
                    if first:
                        it = first.pop(0); put(it)
                        if 'm0' in it[1] and first and first[0][0]: break
                if kb <= tau < q0 and i < 7:
                    for _ in range(2):
                        if ktr: a(ktr.pop(0)); nk += 1
                if i == 9:
                    while first: put(first.pop(0), True)
                    if tau < 39: a(f"s_waitcnt vmcnt({younger(('c', tau+1))})" + (' lgkmcnt(6)' if nk else ''))
            else:
                if tau < 39 and i-10 < 6: a(rd(tau+1, i-10))
            if i >= 8:
                for _ in range(1 if i < 16 else 2):
                    if second: a(second.pop(0))
        while second: a(second.pop(0))
    assert not ktr
    a(ps(3))
    a.nop(8)
    for s in cstore(39): a(s)
    lp = a.lab('wini')
    a(f"""v_mov_b32 v64, {DBG_INIT}
    v_mov_b32 v65, {DBG_PAR}
    {lp}:
    buffer_load_dword v66, v64, s[{SRD_D}:{SRD_D+3}], 0 offen sc1
    buffer_load_dwordx4 v[68:71], v65, s[{SRD_D}:{SRD_D+3}], 0 offen sc1
    s_add_u32 s{S_TO}, s{S_TO}, 1
    s_cmp_gt_u32 s{S_TO}, {TO_LIMIT}
    s_cbranch_scc1 L_exit
    s_waitcnt vmcnt(0)
    v_readfirstlane_b32 s{sT0}, v66
    v_readfirstlane_b32 s{sPar}, v68
    v_readfirstlane_b32 s{sT1}, v69
    v_readfirstlane_b32 s{sT2}, v70
    s_cmp_lt_u32 s{sT0}, {P['ninit']}
    s_cbranch_scc1 {lp}
    s_cmp_lt_u32 s{sPar}, 32
    s_cbranch_scc1 {lp}
    s_cmp_gt_u32 s{sT1}, s{sT2}
    s_cselect_b32 s{sPar}, 8192, 0
    s_barrier""")
    for i, s in enumerate(trd(vWq)):
        a(s)
        if i % 8 == 7: a('s_waitcnt lgkmcnt(6)')
    a('s_waitcnt lgkmcnt(0)\ns_barrier')
    a(ps(4))
    a(f"""v_mov_b32 v64, 0x4444
    v_mov_b32 v65, 0xeeee
    v_cndmask_b32 v{vIdx}, v64, v65, s[{sHalf}:{sHalf+1}]
    s_lshl_b32 s{sT0}, s{S_WAVE}, 4
    v_add_u32 v64, s{sT0}, v{n}
    v_lshlrev_b32 v64, 4, v64
    v_and_b32 v65, 1, v{g}
    v_lshl_add_u32 v64, v65, 3, v64
    v_lshrrev_b32 v65, 1, v{g}
    v_lshl_add_u32 v{vQw}, v65, 2, v64
    v_lshlrev_b32 v{vKw}, 1, v{vQw}
    v_lshrrev_b32 v64, 3, v{n}
    v_lshlrev_b32 v64, 9, v64
    v_lshl_add_u32 v64, v{g}, 7, v64
    v_and_b32 v65, 7, v{n}
    v_lshl_add_u32 v{vY}, v65, 4, v64""")
    for r in range(vUP, vUP+8): a(f'v_mov_b32 v{r}, 0')
    for r in range(aU, aU+12): a(f'v_accvgpr_write_b32 a{r}, 0')
    a(f"""v_and_b32 v64, 0x1ff, v{vY}
    v_lshrrev_b32 v65, 3, v{n}
    v_lshl_add_u32 v{vD2}, v65, 3, v64""")
    a(f"""s_mov_b32 s{S_STEP}, 0
    s_mul_i32 s{sY}, s{sH}, 40960
    s_mul_i32 s{sT0}, s{sCg}, 2560
    s_add_u32 s{sY}, s{sY}, s{sT0}
    s_add_u32 s{sY}, s{sY}, {YH_OFF if P['nmap'] & 1 else Y_OFF}
    s_lshr_b32 s{sU}, s{sH}, 2
    s_mul_i32 s{sU}, s{sU}, 40960
    s_add_u32 s{sU}, s{sU}, s{sT0}
    s_add_u32 s{sBp}, s{sU}, {BP_OFF - (P['lag']+1)*8*40960}
    s_add_u32 s{sU}, s{sU}, {U_OFF - 8*40960}
    s_and_b32 s{sPx}, s{sH}, 28
    s_lshl_b32 s{sPx}, s{sPx}, 11
    s_add_u32 s{sPx}, s{sPx}, {PX_OFF - (LAG[0]+1)*65536}
    s_mov_b32 s{sYw}, {RING0}
    s_mov_b32 s{sYo}, {RING0 + ((-P['lag']-1) % NSLOT)*SLOT}
    s_mov_b32 s{sLo}, 0xffff
    s_mov_b32 s{sLo+1}, 0
    s_mul_i32 s{sK}, s{sHs}, 12288
    s_mul_i32 s{sT0}, s{sCs}, 3072
    s_add_u32 s{sK}, s{sK}, s{sT0}
    s_add_u32 s{sK}, s{sK}, {KH_OFF if P['nmap'] & 2 else K_OFF}
    s_xor_b32 s{sPn}, s{sPar}, {8192 if P.get('nfar') else 0}
    s_mul_i32 s{sKm}, s{sHs}, 3072
    s_mul_i32 s{sT0}, s{sCs}, 768
    s_add_u32 s{sKm}, s{sKm}, s{sT0}
    s_add_u32 s{sKm}, s{sKm}, {KM_OFF - 32*3072}""")
    srd(a, SRD_A, P_MEM0, 8*640*2)
    a(f"""v_and_b32 v63, 7, v{n}
    v_mul_u32_u24 v63, 1280, v63
    v_lshl_add_u32 v63, v{g}, 5, v63
    v_lshrrev_b32 v64, 3, v{n}
    v_lshl_add_u32 v40, v64, 4, v63
    v_mov_b32 v41, v{n}
    v_mov_b32 v42, v{g}
    v_mov_b32 v43, v{ln}
    s_cmp_eq_u32 s{S_WAVE}, 0
    s_cbranch_scc1 L_rec_0
    s_cmp_eq_u32 s{S_WAVE}, 1
    s_cbranch_scc1 L_rec_1
    s_cmp_eq_u32 s{S_WAVE}, 2
    s_cbranch_scc1 L_rec_2
    s_branch L_rec_3""")

def step_scalars(w):
    L = [f's_and_b32 s{sT0}, s{S_STEP}, 3',
         f's_mul_i32 s{sMr}, s{sT0}, {M_SLOT}',
         f's_add_u32 s{sMr}, s{sMr}, s{sMb}',
         f's_add_u32 s{sMr}, s{sMr}, {OWN[w][0]*1024}',
         f's_mul_i32 s{sG}, s{sT0}, {G_SLOT}',
         f's_add_u32 s{sTag}, s{S_STEP}, 1',
         f's_mul_i32 s{sTag3}, s{sTag}, 0x01010101',
         f's_mov_b32 s{sYr}, s{sYw}',
         f's_add_u32 s{sYw}, s{sYw}, {SLOT}',
         f's_cmp_ge_u32 s{sYw}, {RING0+NSLOT*SLOT}',
         f's_cselect_b32 s{sYw}, {RING0}, s{sYw}']
    if w >= 2:
        L += [f's_add_u32 s{sG}, s{sG}, s{sPar}',
              f's_xor_b32 s{sGL}, s{sG}, 8192']
    if w == 3:
        L += [f's_xor_b32 s{sT0}, s{sT0}, 2',
              f's_mul_i32 s{sGp}, s{sT0}, {G_SLOT}',
              f's_add_u32 s{sGp}, s{sGp}, s{sPar}',
              f's_xor_b32 s{sGLp}, s{sGp}, 8192',
              f's_add_u32 s{sT0}, s{S_STEP}, 3',
              f's_and_b32 s{sT0}, s{sT0}, 3',
              f's_mul_i32 s{sMp}, s{sT0}, {M_SLOT}',
              f's_add_u32 s{sMp}, s{sMp}, s{sMb}',
              f'v_mov_b32 v{vFd}, s{S_STEP}',
              f's_add_u32 s{sYo}, s{sYo}, {SLOT}',
              f's_cmp_ge_u32 s{sYo}, {RING0+NSLOT*SLOT}',
              f's_cselect_b32 s{sYo}, {RING0}, s{sYo}',
              f's_add_u32 s{sPx}, s{sPx}, 65536',
              f's_cmp_lt_u32 s{S_STEP}, {LAG[0]}',
              f's_cselect_b32 s{sPc}, 0xf0000000, s{sPx}']
    return L

def thr_next(P):
    return [f's_add_u32 s{sT0}, s{S_STEP}, 2', f's_min_u32 s{sT0}, s{sT0}, 64',
            f's_sub_u32 s{sT1}, s{S_STEP}, {LAG[0]-1}', f's_max_i32 s{sT1}, s{sT1}, 0',
            f's_cmp_ge_u32 s{S_STEP}, {62 if P["pmode"] else 63}', f's_cselect_b32 s{sT1}, 0, s{sT1}',
            f'v_mov_b32 v252, s{sT0}', f'v_mov_b32 v253, s{sT1}', f'v_cndmask_b32 v{vThr}, v253, v252, s[{sLo}:{sLo+1}]',
            f'v_cmp_gt_u32 s[{sBad}:{sBad+1}], v{vThr}, v{vFk}']

def poll_known(o, lab):
    o(f"""{lab}:
    s_add_u32 s{S_TO}, s{S_TO}, 1
    s_cmp_gt_u32 s{S_TO}, {TO_LIMIT}
    s_cbranch_scc1 L_exit
    {W('load_dword', f'v{vFk}', vFp, 0, 0, 'sc1')}
    s_waitcnt vmcnt(0)
    v_cmp_gt_u32 vcc, v{vThr}, v{vFk}
    s_cbranch_vccnz {lab}""")

def smap(d, src, add, par, t):
    return [f's_add_u32 s{d}, s{src}, {add}', f's_and_b32 s{t}, s{d}, 0xffffe000', f's_add_u32 s{d}, s{d}, s{t}',
            f's_lshr_b32 s{t}, s{d}, 8', f's_and_b32 s{t}, s{t}, 0x2000', f's_xor_b32 s{t}, s{t}, s{par}', f's_xor_b32 s{d}, s{d}, s{t}']
def vmap(v, par, t):
    return [f'v_and_b32 v{t}, 0xffffe000, v{v}', f'v_add_u32 v{v}, v{v}, v{t}', f'v_lshrrev_b32 v{t}, 8, v{v}',
            f'v_and_b32 v{t}, 0x2000, v{t}', f'v_xor_b32 v{t}, s{par}, v{t}', f'v_xor_b32 v{v}, v{v}, v{t}']
def kx_addr():
    if not NMAP[0] & 2: return []
    return sum((smap(sKa+i, sK, 1024*i, sPn, sT2) for i in range(3)), [])
def kx_load():
    if NMAP[0] & 2: L = [W('load_dwordx4', vr(vKS+4*i), vL16, f's{sKa+i}', 0, 'sc1') for i in range(3)]
    else: L = [W('load_dwordx4', vr(vKS+4*i), vL16, f's{sK}', 1024*i, 'sc1') for i in range(3)]
    return L + [f's_add_u32 s{sK}, s{sK}, {32*12288}']
def kx_copy():
    return [f'v_mov_b32 v{vKF+8*xt+2*i+r}, v{vKS+4*i+2*xt+r}' for i in range(3) for xt in range(2) for r in range(2)]

def y_dma(w, tmp):
    if NMAP[0] & 1:
        d = lambda va, off: f'buffer_load_dwordx4 v{va}, s[{SRD_W}:{SRD_W+3}], 0 offen offset:{off} sc1 lds'
        pre = [f'v_add_u32 v10, s{sY}, v{vL16}', 'v_add_u32 v11, 1024, v10', f'v_and_b32 v{tmp}, 0x1ff, v{vL16}', f'v_add_u32 v{tmp}, s{sY}, v{tmp}', f'v_add_u32 v{tmp}, 2048, v{tmp}']
        pre += vmap(10, sPn, 33) + vmap(11, sPn, 33) + vmap(tmp, sPn, 33) + ['v_subrev_u32 v11, 1024, v11', f'v_subrev_u32 v{tmp}, 2048, v{tmp}']
        return [f's_add_u32 m0, s{sYw}, {3072*w}', '\n'.join(pre), d(10, 0), d(11, 1024), d(tmp, 2048), f's_add_u32 s{sY}, s{sY}, {32*40960}']
    d = lambda va, off: f'buffer_load_dwordx4 v{va}, s[{SRD_W}:{SRD_W+3}], s{sY} offen offset:{off} sc1 lds'
    return [f's_add_u32 m0, s{sYw}, {3072*w}', f'v_and_b32 v{tmp}, 0x1ff, v{vL16}', d(vL16, 0), d(vL16, 1024), d(tmp, 2048), f's_add_u32 s{sY}, s{sY}, {32*40960}']
def y_read(w):
    return [f'v_add_u32 v11, s{sYr}, v{vY}'] + [f'ds_read_b128 {vr(vYt+4*t)}, v11 offset:{3072*w+1024*t}' for t in range(3)]
def flag_w(base, w):
    return f'ds_write_b32 v{vL16}, v{vTag} offset:{base+4*w}'
def flag_r(dst, base):
    return f'ds_read_b128 {vr(dst)}, v{vZ} offset:{base}'
def flag_chk(dst, nf):
    L = [f'v_min3_u32 v{dst}, v{dst}, v{dst+1}, v{dst+2}']
    if nf == 4: L.append(f'v_min_u32 v{dst}, v{dst}, v{dst+3}')
    return L + [f'v_cmp_ne_u32 vcc, s{sTag}, v{dst}']

def fold(acc, dst, pk=False):
    return [f'v_permlane32_swap_b32 v{acc}, v{acc+2}', f'v_permlane32_swap_b32 v{acc+1}, v{acc+3}'] + (
            [f'v_pk_add_f32 v[{acc}:{acc+1}], v[{acc}:{acc+1}], v[{acc+2}:{acc+3}]'] if pk else
            [f'v_add_f32 v{acc}, v{acc}, v{acc+2}', f'v_add_f32 v{acc+1}, v{acc+1}, v{acc+3}']) + [
            f'v_cvt_pk_bf16_f32 v{dst}, v{acc}, v{acc+1}']

def smf(acc, t, breg):
    if NOQK[0] and breg.startswith('v'): return 's_nop 3'
    return f'v_smfmac_f32_16x16x64_bf16 {vr(acc)}, {vr(vMF+4*t)}, {breg}, v{vIdx}'

def pub_reads():
    return [f'ds_read_b128 {vr(vPU+4*t)}, v{vL16} offset:{UB+1024*t}' for t in range(3)]
def u_stores():
    L = [W('store_dwordx4', vr(vPU+4*t), vY, f's{sU}', 1024*t, 'sc1') for t in range(2)]
    return L + [f's_mov_b64 exec, s[{sExLo}:{sExLo+1}]', W('store_dwordx4', vr(vPU+8), vY, f's{sU}', 2048, 'sc1'), 's_mov_b64 exec, -1']
def km_stores():
    return [f's_mov_b64 exec, s[{sExK}:{sExK+1}]', W('store_dwordx4', vr(vKf), vKc, f's{sKm}', 0, 'sc1'),
            W('store_dwordx2', vr(vKf+4, 2), vKd, f's{sKm}', 512, 'sc1'), 's_mov_b64 exec, -1']
def bp_stores(so):
    L = [W('store_dwordx4', vr(vBP+4*t), vL16, f's{so}', 1024*t, 'sc1') for t in range(2)]
    return L + ['s_mov_b32 exec_hi, 0', W('store_dwordx4', vr(vBP+8), vL16, f's{so}', 2048, 'sc1'), 's_mov_b32 exec_hi, -1']

def token_part(a, P, extra):
    l = a.lab('tk')
    a(f"""v_add_u32 v180, s{sYr}, v{vL16}
    v_add_u32 v181, s{sYo}, v{vY}
    v_add_u32 v182, s{sYo}, v{vL16}""")
    A = [56+4*i for i in range(10)] + [16, 20, 44, 48, 52]
    for h in range(4):
        for t in range(3): a(f'ds_read_b128 {vr(A[3*h+t])}, v181 offset:{3072*h+1024*t}')
    def prep(h):
        return [f'v_mov_b32 v{vPM8+4*xq+h}, v{vPF+8*h+2+xq}' for xq in range(2)] + [f'v_mov_b32 v{vPF+8*h+2}, 0', f'v_mov_b32 v{vPF+8*h+3}, 0']
    a(f's_mov_b32 s41, s{sPc}')
    for s in prep(0) + prep(1): a(s)
    a('s_waitcnt lgkmcnt(9)')
    if P['kmw']:
        a(f's_cmp_lt_u32 s{S_STEP}, {P["ufrom"]}\ns_cbranch_scc1 {l}_u')
        for s in u_stores(): a(s)
        a(f'{l}_u:')
    for t in range(3): a(f'ds_read_b128 {vr(A[12+t])}, v182 offset:{12288+1024*t}')
    fill = prep(2) + prep(3) + extra
    for h in range(5):
        if h: a(f's_waitcnt lgkmcnt({12-3*h})')
        for t in range(3):
            for xq in range(2):
                d = vr(vTA+8*t+4*xq)
                B = vPF+8*h+4*xq if h < 4 else vPM8+4*xq
                a(f'v_mfma_f32_16x16x32_bf16 {d}, {vr(A[3*h+t])}, {vr(B)}, {"0" if h == 0 else d}')
                n = 3 if (fill and fill[0].startswith('s_')) else 2
                for _ in range(n):
                    if fill: a(fill.pop(0))
    while fill: a(fill.pop(0))
    if P['pmode']:
        for i in range(8): a(W('load_dwordx4', vr(vPF+4*i), vL16 if i < 4 else vL4k, 's41', 1024*(i & 3), 'sc1'))
    for t in range(3): a(f'ds_write_b128 v180, {vr(vPU+4*t)} offset:{12288+1024*t}')
    for t in range(3):
        for xq in range(2):
            b = vTA+8*t+4*xq
            a(f'v_cvt_pk_bf16_f32 v{vBP+4*t+2*xq}, v{b}, v{b+1}\nv_cvt_pk_bf16_f32 v{vBP+4*t+2*xq+1}, v{b+2}, v{b+3}')

def rec_wave(a, tail, w, P):
    n, g, ln = 41, 42, 43
    nm = str(w)
    st0 = P['stamp']; fine = P.get('fine', 0)
    st = lambda i: '' if (fine == 1 and 5 <= i <= 9) or (fine == 2 and ((w == 3 and i == 5) or (w >= 2 and i == 9))) else st0(i)
    sf = lambda i: st0(i) if fine == 1 else ''
    own = OWN[w]; oth = [t for t in range(10) if t not in own]
    a(f'L_rec_{nm}:')
    if w < 2:
        a(f"""v_min_u32 v64, 9, v{n}
        v_add_u32 v65, {10*w}, v64
        v_lshlrev_b32 v65, 4, v65
        s_and_b32 s{sT0}, s{S_J}, 1
        s_mul_i32 s{sT1}, s{sT0}, 384
        s_mul_i32 s{sT2}, s{sCg}, 1536
        s_add_u32 s{sT1}, s{sT1}, s{sT2}
        v_add_u32 v65, s{sT1}, v65
        v_and_b32 v66, 1, v{g}
        v_mul_u32_u24 v66, 768, v66
        v_add_u32 v65, v65, v66""")
        for rho, dst in ((0, vG0), (1, vG1)):
            a(f"""v_lshrrev_b32 v66, 1, v{g}
            v_add_u32 v66, {2*rho}, v66
            v_mul_u32_u24 v67, {32*768}, v66
            v_add_u32 v{dst}, v65, v67""")
            phys(a, dst, 67)
            a(f"""v_add_u32 v{dst}, s{sPar}, v{dst}
            v_xor_b32 v67, 8192, v{dst}
            {f'v_add_u32 v66, {4*rho}, v{g}' if P['glown'] else ''}
            s_lshl_b32 s{sT2}, s{S_X}, {1 if P['glown'] else 0}
            {f's_add_u32 s{sT2}, s{sT2}, s{sT0}' if P['glown'] == 1 else ''}
            {f's_mov_b32 s{sT2}, 99' if P['glown'] == 2 else ''}
            v_cmp_eq_u32 vcc, s{sT2}, v66
            s_nop 1
            v_cndmask_b32 v{dst}, v{dst}, v67, vcc""")
        a(f"""v_lshrrev_b32 v66, 1, v64
        v_lshlrev_b32 v66, 7, v66
        v_and_b32 v67, 1, v64
        v_lshl_add_u32 v66, v67, 4, v66
        v_lshl_add_u32 v66, v{g}, 3, v66
        s_mul_i32 s{sT1}, s{sCg}, 640
        s_lshl_b32 s{sT0}, s{sT0}, 6
        s_add_u32 s{sT1}, s{sT1}, s{sT0}
        s_add_u32 s{sT1}, s{sT1}, {32*w}
        v_add_u32 v{vMst}, s{sT1}, v66
        s_mov_b32 s{sEx}, 0x03ff03ff
        s_mov_b32 s{sEx+1}, 0
        v_mov_b32 v68, 0""")
        build_sel(a, 72, n, 68, 0, 64)
        for r in range(4): a(f'v_accvgpr_write_b32 a{aSel+r}, v{72+r}')
    else:
        z = w - 2
        a(f"""v_min_u32 v64, 39, v{ln}
        v_lshlrev_b32 v{vGst}, 3, v64
        v_add_u32 v{vGst}, s{sGb}, v{vGst}
        v_add_u32 v{vGst}, {384*z}, v{vGst}""")
        phys(a, vGst, 65)
        a(f"""v_lshrrev_b32 v65, 1, v64
        v_cmp_le_u32 vcc, 10, v65
        s_nop 1
        v_cndmask_b32 v66, 0, 1, vcc          ; om
        v_mul_u32_u24 v67, 10, v66
        v_sub_u32 v65, v65, v67               ; r
        v_and_b32 v67, 1, v65
        v_lshl_add_u32 v67, v66, 1, v67
        v_add_u32 v67, {4*z}, v67             ; q
        v_lshlrev_b32 v67, 4, v67
        v_lshrrev_b32 v65, 1, v65             ; o'
        v_and_b32 v64, 1, v64                 ; hb
        v_and_b32 v66, 1, v65
        v_lshl_add_u32 v66, v66, 1, v64       ; g
        v_lshlrev_b32 v66, 8, v66
        v_bfe_u32 v68, v65, 1, 1
        v_lshl_add_u32 v66, v68, 7, v66       ; g*256 + t*128
        v_lshlrev_b32 v64, 7, v64
        v_add_u32 v64, 1024, v64
        v_cmp_eq_u32 vcc, 4, v65
        s_nop 1
        v_cndmask_b32 v66, v66, v64, vcc
        v_add_u32 v{vDr}, v66, v67
        s_mov_b32 s{sEx}, -1
        s_mov_b32 s{sEx+1}, 0xff""")
    if w == 3:
        a(f"""v_lshrrev_b32 v64, 2, v{n}
        v_lshl_add_u32 v64, v{g}, 2, v64
        v_lshlrev_b32 v64, 4, v64
        v_and_b32 v65, 1, v{n}
        v_lshl_add_u32 v{vQr}, v65, 3, v64
        v_bfe_u32 v65, v{n}, 1, 1
        v_lshlrev_b32 v65, 3, v65
        v_lshl_add_u32 v{vKr}, v{vQr}, 1, v65
        v_min_u32 v64, 47, v{ln}
        v_lshlrev_b32 v64, 4, v64
        v_add_u32 v{vPG}, s{sGb}, v64""")
        phys(a, vPG, 65)
        a(f"""v_min_u32 v64, 19, v{ln}
        v_lshrrev_b32 v65, 2, v64
        v_lshlrev_b32 v65, 7, v65
        v_and_b32 v64, 3, v64
        v_lshl_add_u32 v65, v64, 4, v65
        s_and_b32 s{sT0}, s{S_J}, 1
        s_lshl_b32 s{sT0}, s{sT0}, 6
        s_mul_i32 s{sT1}, s{sCg}, 640
        s_add_u32 s{sT1}, s{sT1}, s{sT0}
        v_add_u32 v{vPM}, s{sT1}, v65""")
        for r in range(4): a(f'v_mov_b32 v{vNeg+r}, -1')
        for r in (vKF+6, vKF+7, vKF+14, vKF+15, vQf+6, vQf+7, vKf+6, vKf+7): a(f'v_mov_b32 v{r}, 0')
        if P['warm']:
            a(W('store_dwordx4', vr(vNeg), vL16, f's{sSw}'))
            for i in range(4):
                a(f's_xor_b32 s{sT0}, s{sPar}, {8192 + G_SLOT*i}\ns_add_u32 s{sT1}, s{sMb}, {M_SLOT*i}')
                a(W('store_dwordx4', vr(vNeg), vPG, f's{sT0}'))
                a(W('store_dwordx4', vr(vNeg), vPM, f's{sT1}'))
        for s in P['wait_k0'](): a(s)
        if P['live']:
            a(f"""v_mov_b32 v64, 0xf0000000
            v_cmp_eq_u32 vcc, 0, v{ln}
            s_nop 1
            v_cndmask_b32 v{vFa}, v64, 0, vcc""")
            a(f"""v_and_b32 v64, 3, v{ln}
            v_lshlrev_b32 v64, 9, v64
            s_sub_u32 s{sT0}, s{sFy}, {3*512}
            v_add_u32 v64, s{sT0}, v64
            v_mov_b32 v65, s{sFk}
            v_cmp_gt_u32 vcc, 4, v{ln}
            s_nop 1
            v_cndmask_b32 v{vFp}, v65, v64, vcc
            v_bfe_u32 v64, v{ln}, 2, 2
            v_lshlrev_b32 v64, 9, v64
            v_and_b32 v65, 3, v{ln}
            v_lshl_add_u32 v64, v65, 2, v64
            s_add_u32 s{sT0}, s{sT0}, 128
            v_add_u32 v64, s{sT0}, v64
            v_cndmask_b32 v{vFp}, v64, v{vFp}, s[{sLo}:{sLo+1}]
            v_cndmask_b32 v{vThr}, 0, 1, s[{sLo}:{sLo+1}]""")
            poll_known(a, a.lab('k0'))
        a(f"""v_lshrrev_b32 v64, 2, v{ln}
        v_and_b32 v65, 1, v{ln}
        v_lshl_add_u32 v64, v64, 1, v65
        v_lshlrev_b32 v{vKc}, 4, v64
        v_lshlrev_b32 v{vKd}, 3, v64
        v_add_u32 v{vL4k}, 4096, v{vL16}
        v_and_b32 v{vLh}, 0x1ff, v{vL16}
        v_and_b32 v64, 3, v{ln}
        s_lshl_b32 s{sT0}, s{sCg}, 2
        v_add_u32 v64, s{sT0}, v64
        v_lshlrev_b32 v{vPt}, 7, v64""")
        for s in kx_addr() + kx_load() + kx_addr(): a(s)
    a('s_barrier')
    a(P.get('after_y0', ''))
    for s in y_dma(w, 44): a(s)
    for s in step_scalars(w): a(s)
    if w == 3 and P['live']:
        for s in thr_next(P): a(s)
    for i, t in enumerate(own):
        a(f'buffer_load_dwordx4 {vr(vMF+4*t)}, v40, s[{SRD_A}:{SRD_A+3}], 0 offen offset:{128*t}')
    nb_ = P.get('nobg', 0)
    ew1 = P['ew1'] and w == 3
    def do_w1(rq):
        n0 = len(a.lines)
        lb = a.lab('np')
        def pB():
            if not P['bpw']:
                a(f's_cmp_le_u32 s{S_STEP}, {P["lag"]}\ns_cbranch_scc1 {lb}_a')
                for s in ([] if nb_ & 64 else bp_stores(sBp)): a(s)
            if P['kmw'] or ew1: return
            a(f'{lb}_a:\ns_cmp_ge_u32 s{S_STEP}, {max(1, P["ufrom"]+1)}\ns_cbranch_scc1 {lb}_u\n{lb}_b:')
            tail(f'{lb}_u:')
            for s in u_stores(): tail(s)
            tail(f's_branch {lb}_b')
        def pM():
            if not P['kmw']:
                for s in km_stores(): a(s)
            elif P['live']:
                a(W('store_dword', f'v{vFd}', vFa, f's{sFl}', 0, 'sc1'))
        def pG():
            if not nb_ & 8: a(W('store_dwordx4', vr(vNeg), vPG, f's{sGp}', 0, 'sc1'))
        def pK():
            if P['live']:
                lk = a.lab('wk')
                a(f's_cmp_lg_u64 s[{sBad}:{sBad+1}], 0\ns_cbranch_scc1 {lk}\n{lk}_b:')
                a(W('load_dword', f'v{vFk}', vFp, 0, 0, 'sc1'))
                poll_known(tail, lk)
                tail(f's_branch {lk}_b')
            for s in ([] if nb_ & 2 else kx_load()[:3]):
                a(s)
                if rq: a(rq.pop(0))
        def pR():
            while rq: a(rq.pop(0))
        def pP():
            for h in range(4 if P['yw1'] else 0):
                for pc in {1: (0,), 2: (2,), 3: (0, 2)}[P['yw1']]:
                    a(f's_add_u32 m0, s{sYw}, {3072*h}\ns_sub_u32 s{sT0}, s{sY}, {40960*(3-h)}')
                    a(f'buffer_load_dwordx4 v{vL16 if pc == 0 else vLh}, s[{SRD_W}:{SRD_W+3}], s{sT0} offen offset:{1024*pc} sc1 lds')
                    if rq: a(rq.pop(0))
            if P['pmode']:
                a(W('load_dword', 'v254', vPt, f's{sPc}', 0, 'sc1'))
                return
            a(f's_cmp_lt_u32 s{S_STEP}, {P["lag"]}\ns_cbranch_scc1 {lb}_p')
            tail(f'{lb}_p:')
            for x in rq: tail(x)
            tail(f's_branch {lb}_q')
            for i in range(0 if nb_ & 32 else 8):
                a(W('load_dwordx4', vr(vPF+4*i), vL16 if i < 4 else vL4k, f's{sPc}', 1024*(i & 3), 'sc1'))
                if rq: a(rq.pop(0))
            while rq: a(rq.pop(0))
            a(f'{lb}_q:')
        for f in [(pK, pP, pB, pM, pG, pR), (pK, pB, pM, pG, pP, pR), (pK, pM, pP, pB, pG, pR)][P['w1ord']]: f()
        return sum('buffer_' in x for x in a.lines[n0:])
    uz = [f'v_mov_b32 v{vUa+r}, 0' for r in range(12)]
    az = ([f'v_mov_b32 v{vAq+r}, 0' for r in range(8)] if w < 3 else []) + uz
    for s in az: a(s)
    a('s_waitcnt vmcnt(0)')
    if w == 3:
        for s in kx_copy(): a(s)
    for t in own: a(f'ds_write_b128 v{vL16}, {vr(vMF+4*t)} offset:{MB+1024*t}')
    o = []
    if w < 3:
        o = [smf(vAq, t, vr(vWq+8*t, 8)) for t in own] + [smf(vAk, t, vr(vWk+8*t, 8)) for t in own]
    nb = P['own_before'] if w < 3 else 0
    for s in o[:nb]: a(s)
    if ew1: do_w1([])
    a(f"""s_waitcnt lgkmcnt(0)
    s_branch L_rec_{nm}_m""")
    a(f'.p2align 6\nL_rec_{nm}_top0:')
    a(st(0))
    mld = [f'buffer_load_dwordx4 v{vL16}, s[{SRD_W}:{SRD_W+3}], s{sMr} offen offset:{1024*i} sc1 lds' for i, t in enumerate(own)]
    md = P['mdepth']
    for r in range(md-1):
        for s in mld: a(s)
        a.nop(P['mgap'])
    a(f'L_rec_{nm}_top:')
    for s in mld: a(s)
    nx1 = 0
    if ew1:
        a.nop(P['ew1gap'])
        nx1 = do_w1([])
    for i, t in enumerate(own):
        a(f's_waitcnt vmcnt({len(own)*(md-1) + len(own)-1-i + nx1})')
        if ew1: a(f'L_rec_{nm}_chk:')
        a(f'ds_read_b128 {vr(vMF+4*t)}, v{vL16} offset:{MB+1024*t}')
    b0 = vMF+4*own[0]
    lr = a.lab('rm')
    if w < 3:
        oo = list(o[:nb])
        pop = lambda: ''
        a(f"""s_waitcnt lgkmcnt(2)
        {pop()}
        v_max3_u32 v40, v{b0}, v{b0+1}, v{b0+2}
        s_waitcnt lgkmcnt(1)
        v_max3_u32 v41, v{b0+3}, v{b0+4}, v{b0+5}
        {pop()}
        v_max3_u32 v40, v40, v{b0+6}, v{b0+7}
        s_waitcnt lgkmcnt(0)
        v_max3_u32 v41, v41, v{b0+8}, v{b0+9}
        v_max3_u32 v40, v40, v{b0+10}, v{b0+11}
        {pop()}
        v_max_u32 v40, v40, v41
        v_cmp_eq_u32 vcc, -1, v40""")
        while oo: a(oo.pop(0))
        if nb:
            tail(f'{lr}_z:\ns_nop 7')
            for r in range(8): tail(f'v_mov_b32 v{vAq+r}, 0')
            tail(f's_branch L_rec_{nm}_top')
        retry(a, tail, lr, f'{lr}_z' if nb else f'L_rec_{nm}_top')
    else:
        a(f"""s_waitcnt lgkmcnt(0)
        v_max3_u32 v40, v{b0}, v{b0+1}, v{b0+2}
        v_max_u32 v40, v40, v{b0+3}
        v_cmp_eq_u32 vcc, -1, v40""")
        if ew1:
            tail(f'{lr}_e:')
            for s in mld: tail(s)
            tail(f's_nop 15\ns_branch L_rec_{nm}_chk')
        retry(a, tail, lr, f'{lr}_e' if ew1 else f'L_rec_{nm}_top')
    a(f's_cbranch_vccnz {lr}')
    a(f'L_rec_{nm}_m:')
    a(st(1))
    reads = [f'ds_read_b128 {vr(vMF+4*t)}, v{vL16} offset:{MB+1024*t}' for t in oth]
    sld = lambda S: [W('load_dwordx4', vr(r), vL16, f's{sSr}', 1024*i, 'sc1') for i, r in enumerate(S)]
    uch = [smf(vUa+4*tc, t, ar((tc*10+t)*8, 8)) for tc in range(3) for t in range(10)]
    if P.get('nou'): uch = ['s_nop 3']*30
    ufold = lambda tc: fold(vUa+4*tc, 10+(tc & 1), tc == 2) + [f'ds_write_b32 v{vL16}, v{10+(tc & 1)} offset:{UB+1024*tc+4*w}', f'v_accvgpr_write_b32 a{aU+4*tc}, v{10+(tc & 1)}']
    nb_ = P.get('nobg', 0)
    a('s_barrier')
    a(st(2))
    if w < 3:
        oq = o[nb:]; held = []
        for _ in range(P['khold']):
            i = max(i for i, x in enumerate(oq) if f' {vr(vAk)},' in x or 'nop' in x); held.insert(0, oq.pop(i))
        a(reads[0])
        for s in interleave(oq, reads[1:], 3): a(s)
        for i, t in enumerate(oth):
            a(f's_waitcnt lgkmcnt({len(oth)-1-i})\n' + smf(vAq, t, vr(vWq+8*t, 8)))
        a(sf(5))
        kch = [smf(vAk, t, vr(vWk+8*t, 8)) for t in oth]
        fq = fold(vAq, 40) + [f'ds_write_b32 v{vQw}, v40 offset:{QB}']
        kch = held + kch
        gapf = [['s_nop 2'], ['s_nop 2'], [fq[0]], [fq[1]], [fq[2], fq[3]], [fq[4], fq[5]]]
        bpos = len(kch) - 1 - P['b2in']
        for i, s in enumerate(kch):
            a(s)
            if i < len(gapf):
                for x in gapf[i]: a(x)
            if i == bpos and P['b2a']:
                a('s_waitcnt lgkmcnt(0)')
                a(sf(6))
                a('s_barrier')
                a(sf(7))
        a.nop(6 if (P['b2a'] and not P['b2in']) else 8)
        for s in fold(vAk, 41, True): a(s)
        a(f'ds_write_b32 v{vKw}, v41 offset:{KB}')
        np_ = P['u_early']
        for s in uch[:np_]: a(s)
        a('s_waitcnt lgkmcnt(0)')
        a(sf(8)); a(sf(9))
        a('s_barrier')
        a(st(3)); a(st(4))
        upos, spos = np_, P['spos_o']
        pend = y_read(w)
    else:
        if not ew1: do_w1(list(reads))
        else:
            assert P['bpw'] and not P['kmw']
            lu = a.lab('us')
            a(f's_cmp_ge_u32 s{S_STEP}, {max(1, P["ufrom"]+1)}\ns_cbranch_scc1 {lu}_u\n{lu}:')
            tail(f'{lu}_u:')
            for x in u_stores(): tail(x)
            tail(f's_branch {lu}')
            for x in reads: a(x)
        plain = [] if nb_ & 4 else [W('store_dwordx4', vr(vNeg), vPG, f's{sGLp}'), W('store_dwordx4', vr(vNeg), vPM, f's{sMp}')]
        plain += [f's_add_u32 s{sU}, s{sU}, {8*40960}', f's_add_u32 s{sKm}, s{sKm}, {32*3072}', kx_load()[3],
                  f's_cmp_le_u32 s{S_STEP}, {P["lag"]}\ns_cselect_b32 s{sMw}, 0xf0000000, s{sBp}', f's_add_u32 s{sBp}, s{sBp}, {8*40960}']
        a(sf(5))
        np_ = P['u_pre']
        if np_: a('s_waitcnt lgkmcnt(0)')
        for s in uch[:np_]: a(s)
        qrd = [f'ds_read_b64_tr_b16 {vr(vQf+2*i,2)}, v{vQr} offset:{QB+256*i}' for i in range(3)]
        krd = [f'ds_read_b64_tr_b16 {vr(vKf+2*i,2)}, v{vKr} offset:{KB+512*i}' for i in range(3)]
        xm = [f'v_mfma_f32_16x16x32_bf16 {vr(vD0)}, {vr(vKF)}, {vr(vQf)}, 0',
              f'v_mfma_f32_16x16x32_bf16 {vr(vD1)}, {vr(vKF+8)}, {vr(vQf)}, 0',
              f'v_mfma_f32_16x16x32_bf16 {vr(vD0)}, {vr(vKF+4)}, {vr(vQf+4)}, {vr(vD0)}',
              f'v_mfma_f32_16x16x32_bf16 {vr(vD1)}, {vr(vKF+12)}, {vr(vQf+4)}, {vr(vD1)}']
        mm_ = [f'v_mfma_f32_16x16x32_bf16 {vr(vDm)}, {vr(vKf)}, {vr(vQf)}, 0',
               f'v_mfma_f32_16x16x32_bf16 {vr(vDm)}, {vr(vKf+4)}, {vr(vQf+4)}, {vr(vDm)}']
        sel = [f'v_cndmask_b32 v{vPk+i}, v{vD0+i}, v{vD1+i}, s[{sHalf}:{sHalf+1}]' for i in range(4)]
        sel += [f'v_mul_f32 v{vPk+i}, s{sC2}, v{vPk+i}' for i in range(4)]
        sel += [f'v_mov_b32_sdwa v{vPk}, s{sTag} dst_sel:BYTE_0 dst_unused:UNUSED_PRESERVE src0_sel:BYTE_0']
        a(sf(6))
        a('s_barrier')
        a(sf(7))
        if P['b2a']:
            for s in qrd: a(s)
            a('s_waitcnt lgkmcnt(0)')
            a(sf(8))
            nx = P['xpre']
            for s in xm[:nx]: a(s)
            a(sf(9))
            a('s_barrier')
            a(st(3))
            for s in krd: a(s)
            for s in xm[nx:]: a(s)
            if nx == 4:
                a.nop(4)
                for s in sel[:4]: a(s)
                a('s_waitcnt lgkmcnt(0)')
                a(mm_[0]); a(mm_[1])
                for s in sel[4:]: a(s)
                a.nop(3)
            else:
                a.nop(5)
                a('s_waitcnt lgkmcnt(0)')
                a(mm_[0]); a(mm_[1])
                for s in sel: a(s)
        else:
            a(st(3))
            for s in qrd + krd: a(s)
            a('s_waitcnt lgkmcnt(3)')
            for s in xm: a(s)
            a('s_waitcnt lgkmcnt(0)')
            a(mm_[0]); a(mm_[1])
            a.nop(5)
            for s in sel: a(s)
        a(f"""v_cndmask_b32 v{vDm}, v{vDm}, v{vDm+1}, s[{sHalf}:{sHalf+1}]
        v_mul_f32 v{vDm}, s{sC2}, v{vDm}
        v_mov_b32_sdwa v{vPk+1}, v{vDm} dst_sel:BYTE_0 dst_unused:UNUSED_PRESERVE src0_sel:BYTE_1
        v_mov_b32_sdwa v{vPk+2}, v{vDm} dst_sel:BYTE_0 dst_unused:UNUSED_PRESERVE src0_sel:BYTE_2
        v_mov_b32_sdwa v{vPk+3}, v{vDm} dst_sel:BYTE_0 dst_unused:UNUSED_PRESERVE src0_sel:BYTE_3
        s_nop 0""")
        a(W('store_dwordx4', vr(vPk), vL16, f's{sSw}'))
        a(st(4))
        if fine == 2: a('s_waitcnt vmcnt(1)\n' + st0(5))
        upos, spos = np_, P['spos_s']
        pend = y_read(w) + plain
    done0 = done1 = False
    lg0 = 'lgkmcnt(0)'
    for i in range(upos, 30):
        a(uch[i])
        if P['smpf'] and i == upos + P['smpos']:
            a('s_waitcnt lgkmcnt(0)'); lg0 = ''
            pend = pend + [f's_buffer_load_dword s42, s[{SRD_W}:{SRD_W+3}], s{sY} offset:{128*(19-k)}' for k in range(P['smpf'])]
        if i == spos: pend = sld(SETA) + pend
        if not done0 and i >= 17: pend += ufold(0); done0 = True
        if not done1 and i >= 25: pend += ['s_nop 1'] + ufold(1); done1 = True
        for _ in range(2):
            if pend:
                x = pend.pop(0); a(x)
                if 'permlane' in x or (pend and 'permlane' in pend[0]): break
    k = len(pend)
    while pend: a(pend.pop(0))
    if spos >= 30:
        if spos > 30: a.nop(spos-30)
        for s in sld(SETA): a(s)
        k += 4
    a.nop(max(0, 8-k))
    for s in ufold(2): a(s)
    a(f"""s_cmp_eq_u32 s{S_STEP}, 63
    s_cbranch_scc1 L_rec_{nm}_fin""")
    a.nop(P['sgap_s'] if w == 3 else P['sgap_o'])
    X, MV, T = 68, 72, 73
    ls = a.lab('ps')
    fsm = P['fsm']
    def scheck(o, S, fail, nleft, first=''):
        A, B, C, D = S
        o(f"""s_waitcnt vmcnt({nleft+3}) {first}
        v_perm_b32 v{MV}, v{A+2}, v{A+1}, s{sSelU1}
        v_perm_b32 v{MV}, v{A+3}, v{MV}, s{sSelU2}
        s_waitcnt vmcnt({nleft+2})
        v_perm_b32 v{T}, v{B+2}, v{B+1}, s{sSelU1}
        v_pk_add_f32 v[{X}:{X+1}], v[{A}:{A+1}], v[{B}:{B+1}]
        v_perm_b32 v{T}, v{B+3}, v{T}, s{sSelU2}
        v_pk_add_f32 v[{X+2}:{X+3}], v[{A+2}:{A+3}], v[{B+2}:{B+3}]
        v_add_f32 v{MV}, v{MV}, v{T}
        v_perm_b32 v{T+1}, v{A}, v{B}, s{sSelT1}
        s_waitcnt vmcnt({nleft+1})
        v_perm_b32 v{T}, v{C+2}, v{C+1}, s{sSelU1}
        v_pk_add_f32 v[{X}:{X+1}], v[{X}:{X+1}], v[{C}:{C+1}]
        v_perm_b32 v{T}, v{C+3}, v{T}, s{sSelU2}
        v_pk_add_f32 v[{X+2}:{X+3}], v[{X+2}:{X+3}], v[{C+2}:{C+3}]
        v_add_f32 v{MV}, v{MV}, v{T}
        v_perm_b32 v{T+1}, v{C}, v{T+1}, s{sSelT2}
        s_waitcnt vmcnt({nleft})
        v_perm_b32 v{T+1}, v{D}, v{T+1}, s{sSelT3}
        v_perm_b32 v{T}, v{D+2}, v{D+1}, s{sSelU1}
        v_cmp_ne_u32 vcc, s{sTag3}, v{T+1}
        v_perm_b32 v{T}, v{D+3}, v{T}, s{sSelU2}
        v_pk_add_f32 v[{X}:{X+1}], v[{X}:{X+1}], v[{D}:{D+1}]
        v_pk_add_f32 v[{X+2}:{X+3}], v[{X+2}:{X+3}], v[{D+2}:{D+3}]
        v_add_f32 v{MV}, v{MV}, v{T}
        {f'v_max3_f32 v{T}, |v{X}|, |v{X+1}|, |v{X+2}|' if fsm else f'v_max3_f32 v{T}, v{X}, v{X+1}, v{X+2}'}
        {f'v_max3_f32 v{T}, v{T}, |v{X+3}|, |v{MV}|' if fsm else f'v_max3_f32 v{T}, v{T}, v{X+3}, v{MV}'}
        s_cbranch_vccnz {fail}""")
    yd = ([] if nb_ & 16 else y_dma(w, 25))
    for s in yd[:2]: a(s)
    a(f'v_and_b32 v26, 0x1ff, v{vY}')
    if fsm: a(f'v_mov_b32 v27, {float(fsm)}')
    if w >= 2: a(f'v_and_b32 v24, 0x70, v{vDr}')
    yd = yd[2:]
    if P['yw1'] & 2: yd.pop(2)
    if P['yw1'] & 1: yd.pop(0)
    ylt = []
    if P['ylate'] and yd:
        idx = {1: [2], 2: [1], 3: [1, 2]}[P['ylate']]
        ylt = [yd[i] for i in idx] + [yd[3]]
        yd = [x for i, x in enumerate(yd) if i not in idx + [3]]
    nw2 = sum(' lds' in x for x in yd)
    if P['live'] and w == 3 and not P['kmw']:
        yd.insert(1, W('store_dword', f'v{vFd}', vFa, f's{sFl}', 0, 'sc1')); nw2 += 1
    a(st(5))
    if P['ew2']:
        if P['sdepth'] == 2:
            for s in sld(SETB): a(s)
        a('s_waitcnt lgkmcnt(0)\ns_barrier')
        ydm = [x for x in yd if ' lds' in x][:P['ew2']]
        for x in ydm: a(x); yd.remove(x)
        ne = len(ydm)
        if P['sdepth'] == 2:
            scheck(a, SETA, f'{ls}_b', 4+ne)
            tail(f'{ls}_b:')
            scheck(tail, SETB, f'{ls}_r', ne)
            tail(f's_branch {ls}_j')
        else:
            scheck(a, SETA, f'{ls}_r', ne)
        tail(f'{ls}_c:')
        for s in sld(SETA): tail(s)
        scheck(tail, SETA, f'{ls}_r', 0)
        tail(f's_branch {ls}_j')
        retry(a, tail, f'{ls}_r', f'{ls}_c')
    elif P['sdepth'] == 2:
        a(f'{ls}_a:')
        for s in sld(SETB): a(s)
        scheck(a, SETA, f'{ls}_b', 4, lg0)
        tail(f'{ls}_b:')
        for s in sld(SETA): tail(s)
        scheck(tail, SETB, f'{ls}_r', 4)
        tail(f's_branch {ls}_j')
        retry(a, tail, f'{ls}_r', f'{ls}_a')
    else:
        a(f'{ls}_a:')
        scheck(a, SETA, f'{ls}_r', 0, lg0)
        tail(f'{ls}_b:')
        for s in sld(SETA): tail(s)
        tail(f's_branch {ls}_a')
        retry(a, tail, f'{ls}_r', f'{ls}_b')
    PB = 76
    def one(): return yd.pop(0) if yd else 's_nop 0'
    ys = P['yspread']
    dpp = 'row_ror:8 row_mask:0xf bank_mask:0xf'
    dpc = 'row_ror:8 row_mask:0xf bank_mask:0xc'
    def truemax(o, fill):
        o(f"""v_max_f32_dpp v{T+1}, v{T}, v{T} {dpp}
        v_max_f32_dpp v{T+2}, v{T}, v{T} {dpp}
        {fill()}
        {fill() if (not ys or w == 3) else 's_nop 0'}
        v_permlane16_swap_b32 v{T+1}, v{T+2}
        v_max_f32 v{T}, v{T+1}, v{T+2}
        v_max_f32 v{T+1}, v{T+1}, v{T+2}
        {fill()}
        {fill() if not ys else 's_nop 0'}
        v_permlane32_swap_b32 v{T}, v{T+1}
        v_max_f32 v{T+1}, v{T}, v{T+1}
        v_sub_f32 v{MV}, v{MV}, v{T+1}
        v_pk_add_f32 v[{X}:{X+1}], v[{X}:{X+1}], v[{T+1}:{T+2}] op_sel_hi:[1,0] neg_lo:[0,1] neg_hi:[0,1]
        v_pk_add_f32 v[{X+2}:{X+3}], v[{X+2}:{X+3}], v[{T+1}:{T+2}] op_sel_hi:[1,0] neg_lo:[0,1] neg_hi:[0,1]""")
    E = 28 if fsm else X
    EM = 32 if fsm else MV
    if fsm:
        a(f"""{ls}_j:
        v_cmp_nle_f32 vcc, v{T}, v27
        s_barrier
        {st(6)}
        {ls}_x:
        v_exp_f32 v{EM}, v{MV}
        v_exp_f32 v{E}, v{X}
        v_exp_f32 v{E+1}, v{X+1}
        s_cbranch_vccnz {ls}_m""")
        tail(f"""{ls}_m:
        v_max3_f32 v{T}, v{X}, v{X+1}, v{X+2}
        v_max3_f32 v{T}, v{T}, v{X+3}, v{MV}
        s_nop 1""")
        truemax(tail, lambda: 's_nop 0')
        tail(f's_mov_b64 vcc, 0\ns_branch {ls}_x')
    else:
        a(f'{ls}_j:\ns_barrier\n{st(6)}')
        truemax(a, one)
        a(f'v_exp_f32 v{MV}, v{MV}\nv_exp_f32 v{X}, v{X}\nv_exp_f32 v{X+1}, v{X+1}')
    fo = (lambda: one() if yd else '') if fsm else (lambda: '')
    a(f"""v_mov_b32_dpp v{T+1}, v{EM} {dpp}
    v_cvt_pk_bf16_f32 v{vDq}, v{EM}, v{T+1}
    v_exp_f32 v{E+2}, v{X+2}
    v_cvt_pk_bf16_f32 v{PB}, v{E}, v{E+1}
    v_mfma_f32_16x16x32_bf16 {vr(60)}, {ar(aU+4)}, {vr(vDq)}, 0
    {fo()}
    v_exp_f32 v{E+3}, v{X+3}
    v_mfma_f32_16x16x32_bf16 {vr(56)}, {ar(aU)}, {vr(vDq)}, 0
    {fo()}
    v_cvt_pk_bf16_f32 v{PB+1}, v{E+2}, v{E+3}
    v_mov_b32_dpp v{PB+2}, v{PB} {dpp}
    v_mfma_f32_16x16x32_bf16 {vr(64)}, {ar(aU+8)}, {vr(vDq)}, 0
    {fo()}
    v_mov_b32_dpp v{PB+3}, v{PB+1} {dpp}
    v_add_f32 v{T}, v{E}, v{E+1}
    v_add_f32 v{T+2}, v{E+2}, v{E+3}
    v_mfma_f32_16x16x32_bf16 {vr(60)}, {vr(vYt+4)}, {vr(PB)}, {vr(60)}
    {fo()}
    v_add_f32 v{T}, v{T}, v{EM}
    v_add_f32 v{T}, v{T}, v{T+2}
    v_mfma_f32_16x16x32_bf16 {vr(56)}, {vr(vYt)}, {vr(PB)}, {vr(56)}
    {one()}
    v_add_f32_dpp v{T+1}, v{T}, v{T} {dpp}
    v_mfma_f32_16x16x32_bf16 {vr(64)}, {vr(vYt+8)}, {vr(PB)}, {vr(64)}
    v_add_f32_dpp v{T+2}, v{T}, v{T} {dpp}
    s_nop 1
    v_permlane16_swap_b32 v{T+1}, v{T+2}
    v_add_f32 v{T}, v{T+1}, v{T+2}
    v_add_f32 v{T+1}, v{T+1}, v{T+2}
    v_mov_b32_dpp v56, v60 {dpc}
    v_mov_b32_dpp v57, v61 {dpc}
    v_permlane32_swap_b32 v{T}, v{T+1}
    v_mov_b32_dpp v58, v62 {dpc}
    v_mov_b32_dpp v59, v63 {dpc}
    ds_write_b128 v{vL16}, {vr(56)} offset:{DB+1536*w}
    v_add_f32 v{T}, v{T}, v{T+1}
    v_rcp_f32 v{T}, v{T}
    v_mov_b32_dpp v64, v66 {dpc}
    v_mov_b32_dpp v65, v67 {dpc}
    ds_write_b32 v26, v{T} offset:{RB+4*w}
    ds_write_b64 v{vD2}, v[64:65] offset:{DB+1536*w+1024}""")
    while yd: a(yd.pop(0))
    if w == 3 and P['kmw'] == 1:
        for s in km_stores(): a(s)
        nw2 += 2
    if w == 3 and P['bpw'] == 1 and not nb_ & 64:
        lq = a.lab('bq')
        a(f's_cmp_le_u32 s{S_STEP}, {P["lag"]}\ns_cbranch_scc1 {lq}_s')
        tail(f'{lq}_s:\ns_waitcnt vmcnt({nw2})\ns_branch {lq}')
        for s in bp_stores(sMw): a(s)
        a(f'{lq}:')
        nw2 += 3
    a(f"""{f's_mov_b64 exec, s[{sEx}:{sEx+1}]' if w >= 2 else ''}
    s_waitcnt lgkmcnt(0)
    s_barrier""")
    a(st(7))
    nxt = [f's_add_u32 s{S_STEP}, s{S_STEP}, 1'] + step_scalars(w)
    if P.get('ywrap'):
        nxt += [f's_cmp_eq_u32 s{S_STEP}, 31', f's_cselect_b32 s{sT0}, {32*32*40960}, 0', f's_cselect_b32 s{sT1}, {32*32*12288}, 0', f's_sub_u32 s{sY}, s{sY}, s{sT0}', f's_sub_u32 s{sK}, s{sK}, s{sT1}']
    if w >= 2:
        a(f'ds_read_b128 {vr(72)}, v24 offset:{RB}')
        for i in range(4): a(f'ds_read_b128 {vr(56+4*i)}, v{vDr} offset:{DB+1536*i}')
        a(f"""s_waitcnt lgkmcnt(3)
        v_pk_mul_f32 v[76:77], v[56:57], v[72:73] op_sel_hi:[1,0]
        v_pk_mul_f32 v[78:79], v[58:59], v[72:73] op_sel_hi:[1,0]
        s_waitcnt lgkmcnt(2)
        v_pk_fma_f32 v[76:77], v[60:61], v[72:73], v[76:77] op_sel:[0,1,0] op_sel_hi:[1,1,1]
        v_pk_fma_f32 v[78:79], v[62:63], v[72:73], v[78:79] op_sel:[0,1,0] op_sel_hi:[1,1,1]
        s_waitcnt lgkmcnt(1)
        v_pk_fma_f32 v[76:77], v[64:65], v[74:75], v[76:77] op_sel_hi:[1,0,1]
        v_pk_fma_f32 v[78:79], v[66:67], v[74:75], v[78:79] op_sel_hi:[1,0,1]
        s_waitcnt lgkmcnt(0)
        v_pk_fma_f32 v[76:77], v[68:69], v[74:75], v[76:77] op_sel:[0,1,0] op_sel_hi:[1,1,1]
        v_pk_fma_f32 v[78:79], v[70:71], v[74:75], v[78:79] op_sel:[0,1,0] op_sel_hi:[1,1,1]
        v_cvt_pk_bf16_f32 v76, v76, v77
        v_cvt_pk_bf16_f32 v77, v78, v79
        v_min_u32 v76, -2, v76""")
        a(W('store_dwordx2', 'v[76:77]', vGst, f's{sG}', 0, 'sc1'))
        a(W('store_dwordx2', 'v[76:77]', vGst, f's{sGL}'))
        a(st(8)); a(st(9))
        a('s_mov_b64 exec, -1')
        for s in ylt: a(s)
        nw2 += max(0, len(ylt)-1)
        if w == 3 and P['kmw'] == 2:
            for s in km_stores(): a(s)
            nw2 += 2
        if w == 3 and P['bpw'] == 2:
            for s in bp_stores(sMw): a(s)
            nw2 += 3
        a(f's_waitcnt vmcnt({nw2+2})')
        if w == 3:
            for s in pub_reads(): a(s)
            token_part(a, P, kx_copy() + az + nxt + kx_addr() + (thr_next(P) if P['live'] else []))
        if w == 2 and P.get('steptrace'):
            a(f"""s_memrealtime s[8:9]
            s_waitcnt lgkmcnt(0)
            s_mov_b32 m0, s{S_STEP}
            v_accvgpr_read_b32 v40, a240
            s_nop 1
            v_writelane_b32 v40, s8, m0
            s_nop 1
            v_accvgpr_write_b32 a240, v40""")
        if w == 2:
            if fine == 2: a('s_waitcnt vmcnt(2)\n' + st0(9))
            for s in nxt + az: a(s)
        if w == 3 and fine == 2: a('s_waitcnt vmcnt(0)\n' + st0(9))
        a('s_waitcnt lgkmcnt(0)')
    else:
        a(f's_waitcnt vmcnt({nw2}) lgkmcnt(0)')
        if ylt: a('v_mov_b32 v43, v25')
        for s in az: a(s)
        a(f"""s_and_b32 s{sT0}, s{sTag}, 3
        s_mul_i32 s{sMw}, s{sT0}, {M_SLOT}
        s_add_u32 s{sMw}, s{sMw}, s{sMb}
        s_mov_b32 s{sGp}, s{sG}""")
        for s in nxt: a(s)
        if ylt:
            a(f"s_sleep {P['ysl']}")
            for s in ylt: a(s.replace(' v25,', ' v43,'))
            a(f"s_sleep {P['sleep_g']-P['ysl']}")
        elif P['sleep_g']: a(f"s_sleep {P['sleep_g']}")
        a.nop(P['nop_g'])
        dep = P['gdepth']
        gl = lambda r: [W('load_dwordx4', vr(60+8*r), vG0, f's{sGp}', 0, 'sc1'), W('load_dwordx4', vr(64+8*r), vG1, f's{sGp}', 0, 'sc1')]
        lg = a.lab('pg')
        a(st(8))
        for r in range(dep-1):
            for s in gl(r): a(s)
            a.nop(P['ggap'])
        a(f'{lg}:')
        for r in range(dep):
            for s in gl((r+dep-1) % dep): a(s)
            b = 60+8*r
            a(f"""s_waitcnt vmcnt({2*(dep-1)})
            v_mfma_f32_16x16x32_bf16 {vr(56)}, {ar(aSel)}, {vr(b)}, 0
            v_max3_u32 v40, v{b}, v{b+2}, v{b+4}
            v_max_u32 v40, v40, v{b+6}
            v_mfma_f32_16x16x32_bf16 {vr(56)}, {ar(aSel)}, {vr(b+4)}, {vr(56)}
            v_cmp_eq_u32 vcc, -1, v40
            s_nop 4
            s_cbranch_vccz {lg}_ok""")
        a(f"""s_add_u32 s{S_TO}, s{S_TO}, 1
        s_cmp_gt_u32 s{S_TO}, {TO_LIMIT}
        s_cbranch_scc1 L_exit
        s_branch {lg}
        {lg}_ok:
        {st(9)}
        s_mov_b64 exec, s[{sEx}:{sEx+1}]
        v_cvt_pk_bf16_f32 v40, v56, v57
        v_cvt_pk_bf16_f32 v41, v58, v59
        v_min_u32 v40, -2, v40
        v_min_u32 v41, -2, v41""")
        a(W('store_dwordx2', 'v[40:41]', vMst, f's{sMw}'))
        a('s_mov_b64 exec, -1')
    a('s_barrier')
    a(st(10))
    a(P['dump'](a, w))
    a(f's_mov_b32 m0, {MB+1024*own[0]}')
    a.nop(P['dm'])
    a(f's_branch L_rec_{nm}_top0')
    a(f"""L_rec_{nm}_fin:
    s_waitcnt lgkmcnt(0)
    s_barrier""")
    if w == 3:
        for s in pub_reads() + km_stores() + (bp_stores(sMw) if P['bpw'] else []): a(s)
        a('s_waitcnt lgkmcnt(0)')
        for s in u_stores(): a(s)
        if P['live']:
            a(f'v_mov_b32 v{vFd}, 64\ns_waitcnt vmcnt(0)')
            a(W('store_dword', f'v{vFd}', vFa, f's{sFl}', 0, 'sc1'))
    if w == 2 and P.get('steptrace'):
        a(f"""v_accvgpr_read_b32 v40, a240
        v_lshrrev_b32 v41, 2, v{vL16}
        s_lshl_b32 s{sT0}, s{S_X}, 5
        s_add_u32 s{sT0}, s{sT0}, s{S_J}
        s_lshl_b32 s{sT0}, s{sT0}, 8
        s_add_u32 s{sT0}, s{sT0}, {FL_OFF+0x40000}""")
        a(W('store_dword', 'v40', 41, f's{sT0}'))
    a('s_branch L_rec_done')

NOQK = [0]
LAG = [0]
NMAP = [0]
sPn, sKa = 82, 84
sPc = 95
vPt, vLh = 100, 255
def rec_role(a, P):
    NMAP[0] = P['nmap']; NOQK[0] = P.get('noqk', 0); LAG[0] = P['lag'] - (1 if P['pmode'] else 0)
    tail = Asm(); tail.uid = 100000
    a('L_rec:')
    rec_prologue(a, P)
    for w in range(4):
        rec_wave(a, tail, w, P)
    a.lines += tail.lines
    a(f"""L_rec_done:
    s_waitcnt vmcnt(0)
    s_barrier""")
    for s in P['done'](): a(s)
    a('s_branch L_exit')
```

```python
G_OFF   = 0x0;       G_SLOT = 0x30000
CAL_OFF = 0xC0000
M_OFF   = 0x100000;  M_SLOT = 0xA000
S_OFF   = 0x130000
XF_OFF  = 0x150000
FL_OFF  = 0x160000
KM_OFF  = 0x220000
PX_OFF  = KM_OFF + 0x600000
PQ_OFF  = PX_OFF + 0x400000
PK_OFF  = PQ_OFF + 0x280000
VV_OFF  = PK_OFF + 0x280000
O_OFF   = VV_OFF + 0x280000
GT_OFF  = O_OFF + 0x280000
KV_OFF  = GT_OFF + 0x10000
BP_OFF  = KV_OFF + 0xF0000
U_OFF   = BP_OFF + 0x1400000 - 56*8*40960
K_OFF   = 46 << 20
V_OFF   = K_OFF + 0x1800000
Y_OFF   = 94 << 20
KH_OFF  = K_OFF // 2
YH_OFF  = Y_OFF // 2
assert U_OFF + 64*8*40960 <= K_OFF
WS_USED = 254 << 20
DBG_TICK = 0
DBG_INIT = 4
DBG_PAR  = 144
```

```python
from gen_common import *
import gen_par as gp
import gen_rec as gr

def worker_id(a):
    a(f"""L_tofinal:
    s_and_b32 s{gp.sT0}, s{S_J}, 2
    s_mul_i32 s{gp.sT0}, s{gp.sT0}, 15
    s_add_u32 s{gp.sWk}, s{gp.sH}, s{gp.sT0}
    s_cmp_ge_u32 s{gp.sH}, 30
    s_cbranch_scc1 L_exit""")

def mid_beta(a):
    a(f"""v_and_b32 v12, 3, v{gp.vLn}
    v_lshlrev_b32 v12, 9, v12
    s_lshl_b32 s{gp.sT2}, s{gp.sB}, 11
    s_add_u32 s{gp.sT2}, s{gp.sT2}, {gp.flag_addr(4, 1)}""")
    gp.wait_flags(a, 12, f's{gp.sT2}', 66, sleep=1)

def staged(stage, P, tstamp=True):
    a = Asm(); P = dict(P)
    P.update(frec=0, after_k='s_branch L_exit', after_v='s_branch L_exit', after_y='s_branch L_exit', pre_y=lambda a: None, v_known=100, pre_beta=lambda a: None, mid_beta=mid_beta, r_known=100,
             q_refresh=lambda r: [], q_wait=lambda a, r, pub: None, q_update=lambda r: [], final_wait=lambda a, f: a('s_waitcnt vmcnt(0)'), final_waity=lambda a: a('s_waitcnt vmcnt(0)'), final_refresh=lambda f: [], final_ready=lambda a, f: a(f's_cmp_lt_u32 s{S_STEP}, 64'), y_refresh='', y_update='')
    a('s_memrealtime s[96:97]')
    common_entry(a)
    if stage == 'rec':
        a(f"""s_cmp_lt_u32 s{S_X}, 4
        s_cbranch_scc1 L_rec
        s_cmp_lg_u32 s{S_X}, 4
        s_cbranch_scc1 L_exit
        s_cmp_lg_u32 s{S_WAVE}, 0
        s_cbranch_scc1 L_exit""")
        cal_store(a, S_J); cal_sample(a)
        a('s_branch L_exit')
        rec_role(a, P)
    else:
        a(f's_cmp_lt_u32 s{S_X}, 4\ns_cbranch_scc1 L_exit')
        gp.lanes(a); gp.head_ids(a)
        a(f's_and_b32 s{gp.sT0}, s{S_J}, 3\ns_mov_b32 s{S_STEP}, 0\ns_mov_b32 s{gp.sEnd}, 64\ns_mov_b32 s{gp.sFb}, 2\ns_mov_b32 s{gp.sStr}, 1\ns_mov_b32 s{gp.sDone}, 0')
        tgt = {'s1': ['L_k', 'L_v', 'L_exit', 'L_alpha'], 's2': ['L_exit', 'L_exit', 'L_y', 'L_beta'],
               'q': ['L_exit']*3 + ['L_q'], 'fin': ['L_exit', 'L_tofinal', 'L_tofinal', 'L_exit']}[stage]
        for i in range(3): a(f's_cmp_eq_u32 s{gp.sT0}, {i}\ns_cbranch_scc1 {tgt[i]}')
        a(f's_branch {tgt[3]}')
        if stage == 's1':
            gp.kv_role(a, 'k', P_WK, K_OFF, 'sc1', P); gp.kv_role(a, 'v', P_WV, V_OFF, '', P)
            gp.alpha_role(a, P)
        if stage == 's2':
            gp.y_role(a, P); gp.beta_role(a, P)
        if stage == 'q': gp.q_role(a, P)
        if stage == 'fin':
            worker_id(a); gp.final_role(a, P)
    a(f"""L_exit:
    s_waitcnt vmcnt(0)
    s_memrealtime s[98:99]
    s_memtime s[90:91]
    s_lshl_b32 s94, s{S_X}, 5
    s_add_u32 s94, s94, s{S_J}
    s_lshl_b32 s94, s94, 4
    s_add_u32 s94, s94, {FL_OFF+0x10000}
    s_waitcnt lgkmcnt(0)
    s_sub_u32 s90, s90, s92
    v_mov_b32 v12, s96
    v_mov_b32 v13, s98
    v_mov_b32 v14, s100
    v_mov_b32 v15, s90
    v_mov_b32 v10, 0
    {W('store_dwordx4', 'v[12:15]', 10, 's94')}
    s_waitcnt vmcnt(0)
    s_endpgm""")
    return a

def merged(P, diag=False):
    a = Asm(); P = dict(P)
    P['ufrom'] = 63 - P['lag']; P['qsplit'] = (64 - P['lag']) & ~1
    def pre_beta(a):
        gp.wait_init(a, 128)
        a(f"""v_and_b32 v12, 7, v{gp.vLn}
        v_lshlrev_b32 v12, 9, v12
        v_bfe_u32 v13, v{gp.vLn}, 3, 1
        v_lshl_add_u32 v12, v13, 7, v12
        s_lshl_b32 s{gp.sT2}, s{S_X}, 12
        s_add_u32 s{gp.sT2}, s{gp.sT2}, {FL_OFF}""")
        gp.wait_flags(a, 12, f's{gp.sT2}', 65)
    def pre_q(a):
        if P['help'] & 8:
            l = a.lab('pq')
            a(f's_cmp_lg_u32 s{gp.sFb}, 0\ns_cbranch_scc1 {l}')
            gp.touch_lin(a, P_WQKV, 640*1920*2); gp.touch_lin(a, P_WOA, 640*640*2)
            a(f'{l}:')
        gp.wait_init(a, 128)
    def y_init(a):
        ring_init(a, gp.sH)
        a('s_waitcnt vmcnt(0)\ns_barrier')
    def pre_y(a):
        l = a.lab('cal')
        a(f's_cmp_lg_u32 s{S_WAVE}, 0\ns_cbranch_scc1 {l}')
        cal_sample(a)
        a(f'{l}:\ns_barrier')
        gp.wait_init(a, 128)
    def spin(a, l, sleep):
        a(f"""s_branch {l}_go
        {l}:
        s_sleep {sleep}
        s_add_u32 s{S_TO}, s{S_TO}, 1
        s_cmp_gt_u32 s{S_TO}, {TO_LIMIT}
        s_cbranch_scc1 L_exit
        {l}_go:""")
    def q_wait(a, r, pub):
        l = a.lab('qw')
        a(W('load_dword', f'v{r}', gp.vFa, 0, 0, 'sc1'))
        a('s_waitcnt vmcnt(0)')
        for x in pub: a(x)
        a(f"""v_cmp_ge_u32 vcc, s{S_STEP}, v{r}
        s_cbranch_vccz {l}_ok""")
        spin(a, l, 1)
        a(f"""{W('load_dword', f'v{r}', gp.vFa, 0, 0, 'sc1')}
        s_waitcnt vmcnt(0)
        v_cmp_ge_u32 vcc, s{S_STEP}, v{r}
        s_cbranch_vccnz {l}
        {l}_ok:""")
    def q_update(r):
        L = [f'v_readlane_b32 s{gp.sT0+i}, v{r}, {i}' for i in range(4)] + [f'v_readlane_b32 s{gp.sKl}, v{r}, 4']
        return L + [f's_min_u32 s{gp.sT0}, s{gp.sT0}, s{gp.sT1}', f's_min_u32 s{gp.sT2}, s{gp.sT2}, s{gp.sT3}', f's_min_u32 s{gp.sKn}, s{gp.sT0}, s{gp.sT2}']
    def q_waitk(a, r):
        l = a.lab('qk')
        spin(a, l, 2)
        a(f"""{W('load_dword', f'v{r}', gp.vFa, 0, 0, 'sc1')}
        s_waitcnt vmcnt(0)
        v_readlane_b32 s{gp.sKl}, v{r}, 4
        s_nop 3
        s_cmp_gt_u32 s{gp.sKl}, s{S_STEP}
        s_cbranch_scc0 {l}""")
    def light_wait(a):
        l = a.lab('lw')
        a(f's_add_u32 s{gp.sT1}, s{S_STEP}, {P["lag"]+1+(1 if P["bpw"] else 0)}\ns_mov_b32 s{gp.sT2}, {FL_OFF}\ns_mov_b32 s{gp.sT3}, {FL_OFF+8192}\nv_lshlrev_b32 v204, 7, v{gp.vLn}')
        gp.wait_flags(a, gp.vZ, f's{gp.sFv}', f's{gp.sT1}', tmp=205, sleep=6)
        spin(a, l, 4)
        a(f"""{W('load_dword', 'v205', 204, f's{gp.sT2}', 0, 'sc1')}
        {W('load_dword', 'v206', 204, f's{gp.sT3}', 0, 'sc1')}
        s_waitcnt vmcnt(0)
        v_min_u32 v205, v205, v206
        v_cmp_gt_u32 vcc, s{gp.sT1}, v205
        s_cbranch_vccnz {l}""")
    def light_ready(a):
        a(f"""v_readfirstlane_b32 s{gp.sT0}, v207
        s_add_u32 s{gp.sT1}, s{S_STEP}, {P['lag']+2+(1 if P['bpw'] else 0)}
        s_cmp_lt_u32 s{S_STEP}, {61-P['lag']-(1 if P['bpw'] else 0)}
        s_cselect_b32 s{gp.sT1}, s{gp.sT1}, 999
        s_cmp_ge_u32 s{gp.sT0}, s{gp.sT1}""")
    def wave0(a, f):
        l = a.lab('w0')
        a(f's_cmp_lg_u32 s{S_WAVE}, 0\ns_cbranch_scc1 {l}')
        f()
        a(f'{l}:\ns_waitcnt vmcnt(0)\ns_barrier')
    def final_waity(a):
        a(f's_add_u32 s{gp.sT1}, s{S_STEP}, 1\ns_mov_b32 s{gp.sT2}, 256')
        wave0(a, lambda: gp.wait_flags(a, gp.vFa, f's{gp.sT2}', f's{gp.sT1}', sleep=8))
    def final_wait(a, F):
        def f():
            l = a.lab('fw')
            a(f"""s_and_b32 s{gp.sT0}, s{S_STEP}, 1
            s_cmp_lt_u32 s{S_STEP}, {P['qsplit']}
            s_cselect_b32 s{gp.sT0}, 1, s{gp.sT0}
            s_cmp_lg_u32 s{gp.sT0}, 0
            s_cselect_b32 s{gp.sT1}, 0, 128
            s_cselect_b32 s{gp.sT2}, 384, 0
            s_add_u32 s{gp.sT1}, s{gp.sT1}, s{S_STEP}
            s_mov_b32 exec_hi, 0""")
            spin(a, l, P.get('fsleep', 2))
            a(f"""{W('load_dwordx4', vr(F), gp.vFa, f's{gp.sT2}', 0, 'sc1')}
            s_waitcnt vmcnt(0)
            v_min3_u32 v{F}, v{F}, v{F+1}, v{F+2}
            v_min_u32 v{F}, v{F}, v{F+3}
            v_cmp_ge_u32 vcc, s{gp.sT1}, v{F}
            s_cbranch_vccnz {l}
            s_mov_b32 exec_hi, -1""")
        wave0(a, f)
    def final_pre(a):
        a(f's_sub_u32 s{gp.sFv}, s{gp.sFl}, {128*128}\ns_mov_b32 s{gp.sT2}, 128')
        wave0(a, lambda: gp.wait_flags(a, gp.vFa, f's{gp.sT2}', 67, sleep=8))
    P.update(live=1, ninit=128, after_k='s_branch L_alpha', after_v='s_branch L_alpha', pre_q=pre_q, q_waitk=q_waitk, light_wait=light_wait, light_ready=light_ready, light_refresh=[W('load_dword', 'v207', gp.vZ, f's{gp.sFv}', 0, 'sc1')], after_y='s_branch L_tofinal', pre_y=pre_y, y_init=y_init, v_known=0, pre_beta=pre_beta, mid_beta=mid_beta, r_known=0,
             q_refresh=lambda r: [W('load_dword', f'v{r}', gp.vFa, 0, 0, 'sc1')], q_wait=q_wait, q_update=q_update, final_wait=final_wait, final_waity=final_waity, final_pre=final_pre, y_refresh=W('load_dword', 'v11', gp.vZ, f's{gp.sFv}', 0, 'sc1'), y_update=f'v_readfirstlane_b32 s{gp.sKn}, v11')
    mark = (lambda i: a(f's_memrealtime s[{96+2*i}:{97+2*i}]')) if diag else (lambda i: None)
    ds = P.get('diagspin')
    STAMP = 's_memrealtime s[100:101]\ns_waitcnt lgkmcnt(0)\ns_mov_b32 s98, s100'
    if ds:
        a('s_memrealtime s[96:97]\ns_waitcnt lgkmcnt(0)\ns_mov_b32 s98, s96')
        if ds == 2: P['after_y0'] = STAMP
        if ds == 3: P['done'] = lambda: [STAMP]
        P['pstamp'] = lambda i: STAMP if i == ds-10 else ''
        gp.EXP['dsmark'] = (ds-20, STAMP)
    mark(0)
    if diag:
        a('s_mov_b32 s98, 0')
        P['wait_k0'] = lambda: ['s_memrealtime s[98:99]']
        P['after_y0'] = 's_memrealtime s[100:101]\ns_waitcnt lgkmcnt(0)\ns_mov_b32 s97, s100'
        P['done'] = lambda: ['s_memrealtime s[92:93]']
        if P.get('pprof'):
            PR = [8, 10, 12, 14, 26, 28, 30]
            P['pstamp'] = lambda i: f's_memrealtime s[{PR[i]}:{PR[i]+1}]'
            P['done'] = lambda: ['s_memrealtime s[92:93]'] + [f'v_mov_b32 v{24+i}, s{PR[i]}' for i in range(7)] + [f"""s_lshl_b32 s40, s{S_X}, 5
            s_add_u32 s40, s40, s{S_J}
            s_lshl_b32 s40, s40, 5
            s_add_u32 s40, s40, {FL_OFF+0x14000}
            v_mov_b32 v21, 0""", W('store_dwordx4', 'v[24:27]', 21, 's40'), W('store_dwordx4', 'v[28:31]', 21, 's40', 16)]
    common_entry(a, P['touch'])
    a(f's_cmp_lt_u32 s{S_X}, 4\ns_cbranch_scc1 L_rec')
    gp.lanes(a); gp.head_ids(a)
    l = a.lab('ini')
    a(f"""s_cmp_lg_u32 s{S_WAVE}, 0
    s_cbranch_scc1 {l}
    v_lshlrev_b32 v10, 2, v{gp.vLn}
    s_mov_b64 exec, 15
    {W('store_dword', f'v{gp.vZ}', 10, f's{gp.sFl}', 0, 'sc1')}
    s_mov_b64 exec, -1
    s_and_b32 s{gp.sT0}, s{S_J}, 3
    s_cmp_lg_u32 s{gp.sT0}, 2
    s_cbranch_scc1 {l}""")
    cal_store(a, gp.sH)
    a(f'{l}:')
    if P['help']:
        a(f's_and_b32 s{gp.sT3}, s{S_J}, 3')
        gp.touch_rows(a, P_WV, f's{gp.sT3}', 4)
    a(f"""s_and_b32 s{gp.sT0}, s{S_J}, 3
    s_cmp_eq_u32 s{gp.sT0}, 0
    s_cbranch_scc1 L_k
    s_cmp_eq_u32 s{gp.sT0}, 1
    s_cbranch_scc1 L_v
    s_cmp_eq_u32 s{gp.sT0}, 2
    s_cbranch_scc1 L_y""")
    gp.init_done(a, P)
    if P['help']:
        a('s_waitcnt vmcnt(0)\ns_barrier')
        gp.touch_x(a)
        if P['help'] & 2:
            gp.touch_rows(a, P_WK, 1, 2)
            a('s_waitcnt vmcnt(0)\ns_barrier')
        if P['help'] & 4: gp.touch_rows(a, P_WQ, 0, 2)
    a(f"""s_mov_b32 s{S_STEP}, 0
    s_mov_b32 s{gp.sEnd}, {P['qsplit']}
    s_mov_b32 s{gp.sFb}, 0
    s_mov_b32 s{gp.sStr}, 1
    s_branch L_toq
    L_k2q:
    s_mov_b32 s{S_STEP}, {P['qsplit']}
    s_mov_b32 s{gp.sEnd}, 64
    s_mov_b32 s{gp.sFb}, 128
    s_mov_b32 s{gp.sStr}, 2
    L_toq:
    s_mov_b32 s{gp.sDone}, 0""")
    mark(1)
    a(f"""s_lshl_b32 s{gp.sT0}, s{gp.sH}, 2
    v_add_u32 v{gp.vFa}, s{gp.sT0}, v{gp.vLn}
    s_add_u32 s{gp.sT0}, s{gp.sT0}, 128
    v_mov_b32 v10, s{gp.sT0}
    v_cmp_gt_u32 vcc, 4, v{gp.vLn}
    s_nop 1
    v_cndmask_b32 v{gp.vFa}, v10, v{gp.vFa}, vcc
    v_lshlrev_b32 v{gp.vFa}, 7, v{gp.vFa}
    v_add_u32 v{gp.vFa}, {FL_OFF}, v{gp.vFa}""")
    gp.q_role(a, P)
    a(f"""s_cmp_eq_u32 s{gp.sStr}, 2
    s_cbranch_scc1 L_exit
    s_mov_b32 s{S_STEP}, {P['qsplit']+1}
    s_mov_b32 s{gp.sEnd}, 64
    s_mov_b32 s{gp.sStr}, 2
    s_branch L_q_again""")
    gp.kv_role(a, 'k', P_WK, K_OFF, 'sc1', P); gp.kv_role(a, 'v', P_WV, V_OFF, '', P)
    gp.y_role(a, P)
    gp.alpha_role(a, P)
    a(f's_bitcmp0_b32 s{S_J}, 0\ns_cbranch_scc1 L_k2q')
    gp.beta_role(a, P)
    worker_id(a)
    mark(1)
    gp.final_role(a, P)
    a('L_exit:')
    if ds:
        a(f"""s_cmp_lg_u32 s{S_WAVE}, 3
        s_cbranch_scc1 L_nosp
        s_cmp_ge_u32 s{S_J}, 32
        s_cbranch_scc1 L_nosp
        s_sub_u32 s95, s98, s96
        s_add_u32 s95, s95, {P.get('dlen', 30000)}
        L_dspin:
        s_sleep 8
        s_memrealtime s[100:101]
        s_waitcnt lgkmcnt(0)
        s_sub_u32 s100, s100, s96
        s_cmp_lt_u32 s100, s95
        s_cbranch_scc1 L_dspin
        L_nosp:""")
    if P.get('wbx'):
        a(f's_cmp_lg_u32 s{S_WAVE}, 0\ns_cbranch_scc1 L_nowb\ns_waitcnt vmcnt(0)\nbuffer_wbl2 sc1\nL_nowb:')
    if diag:
        a(f"""s_waitcnt vmcnt(0)
        s_cmp_lg_u32 s{S_WAVE}, 3
        s_cbranch_scc1 L_exit2
        s_memrealtime s[100:101]
        s_lshl_b32 s94, s{S_X}, 5
        s_add_u32 s94, s94, s{S_J}
        s_lshl_b32 s94, s94, 4
        s_add_u32 s94, s94, {FL_OFF+0x10000}
        s_waitcnt lgkmcnt(0)
        v_mov_b32 v12, s96
        v_mov_b32 v13, s98
        v_mov_b32 v14, s100
        v_mov_b32 v15, s{S_TO}
        v_mov_b32 v10, 0
        {W('store_dwordx4', 'v[12:15]', 10, 's94')}
        v_mov_b32 v16, s97
        v_mov_b32 v17, s92
        s_add_u32 s94, s94, 0x2000
        {W('store_dwordx2', 'v[16:17]', 10, 's94')}
        L_exit2:""")
    a('s_waitcnt vmcnt(0)\ns_endpgm')
    rec_role(a, P)
    a('L_code_end:')
    return a

KNAME = 'gated_mix__linear_attn_block__memory_aug_recurrent_mem_tr__prompt_kernel'
def final_text(P):
    ref = open('gated_mix__linear_attn_block__memory_aug_recurrent_mem_tr__prompt.s.ref').read()
    top = ''.join(l+'\n' for l in ref.split('\n') if l.startswith(';') and '@launch' not in l)
    return top + head(KNAME, 163840) + merged(P).text() + KD.format(name=KNAME)
if __name__ == '__main__':
    import sys
    out = sys.argv[1] if len(sys.argv) > 1 else 'gated_mix__linear_attn_block__memory_aug_recurrent_mem_tr__prompt.s'
    P = dict(DEFP)
    for spec in sys.argv[2:]:
        for kv in spec.split(','):
            k, v = kv.split('='); P[k] = int(v)
    open(out, 'w').write(final_text(P))
```

```python
from asmb import *
from lay import *
S_WAVE, S_X, S_J, S_STEP, S_TO = 3, 4, 5, 6, 7
P_X, P_WQKV, P_WOA, P_MEM0, P_WQ, P_WK, P_WV, P_WO, P_GATE, P_OUT, P_DBG, P_WS = 8, 10, 12, 16, 18, 20, 22, 24, 28, 30, 32, 34
SRD_W = 36
SRD_A = 40
SRD_B = 44
SRD_D = 48
TO_LIMIT = 400000
sMr, sMw, sMp, sSw, sSr, sG, sGL, sGp, sGLp, sY, sK, sU, sKm = range(52, 65)
sTag, sTag3, sC, sT0, sT1, sT2, sPar = range(65, 72)
sSelT1, sSelT2, sSelU1, sSelU2 = range(72, 76)
sHalf = 76
sEx   = 78
sExLo = 80
sH, sCg, sHs, sCs = 82, 83, 84, 85
sGb, sMb = 86, 87
sKnY, sKnK, sFy, sFk, sFl = 90, 91, 92, 93, 94
vFk, vFd, vFa, vFp, vKc, vKd = 101, 102, 103, 184, 185, 186
vBP = 228
sExK = 34
sSelT3 = 89
sC2 = 88
MB, QB, KB, DB, RB, UB = 0, 10240, 11264, 13312, 19456, 19968
RING0, SLOT, NSLOT = 23040, 15360, 9
sYr, sYw, sYo, sPx, sBp, sBad, sLo = 45, 46, 47, 44, 67, 90, 32
vPF, vPM8, vTA, vThr, vL4k = 188, 220, 228, 187, 183
vL16, vIdx, vQw, vY = 0, 1, 2, 3
vKw, vD2 = 4, 5
vDr, vGst = 6, 7
vG0, vG1 = 6, 7
vUP = 8
vAq, vAk = 16, 20
vUa = 24
SETA, SETB = [16, 20, 36, 40], [80, 84, 88, 92]
vYt = 44
vMF = 56
vWq, vWk = 96, 176
aSel = 240
aU = 244
vMst, vDq = 8, 12
vQr, vKr, vPG, vPM, vL8 = 96, 97, 98, 99, 100
vNeg = 104
vKF = 108
vKS = 124
vQf, vKf = 136, 144
vD0, vD1, vDm, vPk = 152, 156, 160, 164
vPU, vPK = 168, 180
OWN = [[0,1,2],[3,4,5],[6,7,8],[9]]

def srd(a, base, ptr, nbytes):
    a(f"""s_mov_b32 s{base}, s{ptr}
    s_and_b32 s{base+1}, s{ptr+1}, 0xffff
    s_mov_b32 s{base+2}, {nbytes}
    s_mov_b32 s{base+3}, 0x20000""")

def W(op, data, va, so, off=0, fl=''):
    return f'buffer_{op} {data}, v{va}, s[{SRD_W}:{SRD_W+3}], {so} offen offset:{off} {fl}'.rstrip()

def retry(a, tail, lab_retry, lab_back):
    tail(f"""{lab_retry}:
    s_add_u32 s{S_TO}, s{S_TO}, 1
    s_cmp_gt_u32 s{S_TO}, {TO_LIMIT}
    s_cbranch_scc0 {lab_back}
    s_branch L_exit""")

def build_sel(a, dst, vn, vg, goff, tmp):
    a(f"""v_and_b32 v{tmp}, 1, v{vn}
    v_lshlrev_b32 v{tmp}, 4, v{tmp}
    v_mov_b32 v{tmp+1}, 0x3f80
    v_lshlrev_b32 v{tmp}, v{tmp}, v{tmp+1}
    v_lshrrev_b32 v{tmp+1}, 1, v{vn}
    v_add_u32 v{tmp+1}, {4*goff}, v{tmp+1}
    v_lshlrev_b32 v{tmp+2}, 2, v{vg}
    v_sub_u32 v{tmp+1}, v{tmp+1}, v{tmp+2}""")
    for r in range(4):
        a(f"""v_cmp_eq_u32 vcc, {r}, v{tmp+1}
        s_nop 1
        v_cndmask_b32 v{dst+r}, 0, v{tmp}, vcc""")

def phys(a, v, tmp):
    a(f"""v_lshrrev_b32 v{tmp}, 13, v{v}
    v_lshl_add_u32 v{v}, v{tmp}, 13, v{v}""")

def dma(srdb, va, so, fl=''):
    return f'buffer_load_dwordx4 v{va}, s[{srdb}:{srdb+3}], {so} offen {fl} lds'

def rec_prologue(a, P):
    n, g, ln = 60, 61, 62
    a(f"""v_and_b32 v{ln}, 63, v0
    v_and_b32 v{n}, 15, v{ln}
    v_lshrrev_b32 v{g}, 4, v{ln}
    v_lshlrev_b32 v{vL16}, 4, v{ln}
    s_and_b32 s{sT0}, s{S_J}, 1
    s_lshl_b32 s{sT0}, s{sT0}, 2
    s_add_u32 s{sT0}, s{sT0}, s{S_WAVE}
    s_lshl_b32 s{sH}, s{S_X}, 3
    s_add_u32 s{sH}, s{sH}, s{sT0}
    s_lshr_b32 s{sCg}, s{S_J}, 1
    s_lshr_b32 s{sHs}, s{S_J}, 2
    s_and_b32 s{sCs}, s{S_J}, 3
    s_lshl_b32 s{sT1}, s{S_X}, 3
    s_add_u32 s{sHs}, s{sHs}, s{sT1}
    s_lshl_b32 s{sT1}, s{S_X}, 5
    s_add_u32 s{sT1}, s{sT1}, s{S_J}
    s_mul_i32 s{sGb}, s{sT1}, 768
    s_lshl_b32 s{sSw}, s{sT1}, 10
    s_add_u32 s{sSw}, s{sSw}, {S_OFF}
    s_lshl_b32 s{sSr}, s{sH}, 12
    s_add_u32 s{sSr}, s{sSr}, {S_OFF}
    s_mov_b32 s{sSelT1}, 0x0c0c0400
    s_mov_b32 s{sSelT2}, 0x0c040100
    s_mov_b32 s{sSelT3}, 0x04020100
    s_mov_b32 s{sSelU1}, 0x0c04000c
    s_mov_b32 s{sSelU2}, 0x0402010c
    s_mov_b32 s{sC2}, {P['cexp']}
    s_mov_b32 s{sHalf}, 0xff00ff00
    s_mov_b32 s{sHalf+1}, 0xff00ff00
    s_mov_b32 s{sExK}, 0x33333333
    s_mov_b32 s{sExK+1}, 0x33333333
    s_mov_b32 s{sExLo}, 0x00ff00ff
    s_mov_b32 s{sExLo+1}, 0x00ff00ff
    s_mul_i32 s{sMb}, s{S_X}, 10240
    s_add_u32 s{sMb}, s{sMb}, {M_OFF}""")
    ps = P.get('pstamp', lambda i: '')
    a(ps(0))
    NB = 4; WB = NB*6144; IMG = 4*WB
    frag = [8+4*i for i in range(12)] + [64+4*i for i in range(6)]
    F = lambda tc, kap: frag[tc*6+kap]
    srd(a, SRD_A, P_WO, 32*192*640*2)
    srd(a, SRD_B, P_WV, 640*6144*2)
    a(f"""v_mul_u32_u24 v56, 0x3334, v{ln}
    v_lshrrev_b32 v56, 16, v56              ; lane/5
    v_mul_u32_u24 v57, 5, v56
    v_sub_u32 v57, v{ln}, v57
    v_mul_u32_u24 v56, 1280, v56
    v_lshl_add_u32 v56, v57, 4, v56
    s_mul_i32 s{sT0}, s{sH}, {192*1280}
    s_mul_i32 s{sT1}, s{sCg}, 80
    s_add_u32 s{sT0}, s{sT0}, s{sT1}
    s_mul_i32 s{sMr}, s{S_WAVE}, 15360
    s_add_u32 s{sMr}, s{sMr}, {IMG}
    s_mov_b32 s{sEx}, -1
    s_mov_b32 s{sEx+1}, 0x0fffffff
    s_mov_b64 exec, s[{sEx}:{sEx+1}]""")
    for i in range(16):
        a(f"""s_add_u32 m0, s{sMr}, {960*i}
        s_add_u32 s{sT1}, s{sT0}, {12*i*1280}
        {dma(SRD_A, 56, f's{sT1}')}""")
    a('s_mov_b64 exec, -1')
    if P['touchv']:
        a(f"""s_lshl_b32 s{sT0}, s{S_J}, 2
        s_add_u32 s{sT0}, s{sT0}, s{S_WAVE}
        s_mul_i32 s{sT0}, s{sT0}, {5*12288}
        s_mul_i32 s{sT1}, s{S_X}, 3072
        s_add_u32 s{sT0}, s{sT0}, s{sT1}""")
        for i in range(2):
            a(f"""v_min_u32 v57, 59, v{ln}
            v_add_u32 v57, {60*i}, v57
            v_mul_u32_u24 v58, 0xaab, v57
            v_lshrrev_b32 v58, 16, v58
            v_mul_u32_u24 v59, 24, v58
            v_sub_u32 v57, v57, v59
            v_mul_u32_u24 v58, 12288, v58
            v_lshl_add_u32 v57, v57, 7, v58
            buffer_load_dword v255, v57, s[{SRD_B}:{SRD_B+3}], s{sT0} offen""")
    if P['live']:
        a(f"""s_lshl_b32 s{sFl}, s{S_X}, 5
        s_add_u32 s{sFl}, s{sFl}, s{S_J}
        s_lshl_b32 s{sFl}, s{sFl}, 7
        s_add_u32 s{sFl}, s{sFl}, {FL_OFF}
        s_lshl_b32 s{sFy}, s{sH}, 9
        s_add_u32 s{sFy}, s{sFy}, {FL_OFF + (128+2)*128}
        s_lshl_b32 s{sFk}, s{sHs}, 9
        s_add_u32 s{sFk}, s{sFk}, {FL_OFF + 128*128}""")
    a(f"""v_lshrrev_b32 v58, 3, v{ln}
    v_bfe_u32 v57, v58, 1, 1
    v_lshlrev_b32 v56, 3, v57
    v_bfe_u32 v57, v58, 2, 1
    v_lshl_add_u32 v56, v57, 2, v56
    v_and_b32 v57, 1, v58
    v_add_u32 v56, v56, v57
    v_mul_u32_u24 v56, 12288, v56
    v_lshrrev_b32 v58, 1, v58
    v_and_b32 v57, 7, v{ln}
    v_xor_b32 v57, v57, v58
    v_lshl_add_u32 v1, v57, 4, v56          ; rows 0..7
    v_xor_b32 v57, 4, v57
    v_lshl_add_u32 v2, v57, 4, v56
    v_add_u32 v2, {16*12288}, v2            ; rows 8..15
    s_mul_i32 s{sT2}, s{S_WAVE}, {WB}
    s_mul_i32 s{sMw}, s{sH}, 384""")
    Q = []
    cfl = ('', 'sc1', 'nt')[P.get('cfl', 0)]
    def cload(tau):
        if tau >= 40: return []
        t, v = tau >> 2, tau & 3
        L = [(None, f's_add_u32 s{sT1}, s{sMw}, {(64*t+32*(v>>1)+2*(v&1))*12288}')]
        for k in range(6):
            L += [(None, f's_add_u32 m0, s{sT2}, {6144*(tau % NB)+1024*k-128*(k%3)}'),
                  (('c', tau), f'buffer_load_dwordx4 v{1 if k < 3 else 2}, s[{SRD_B}:{SRD_B+3}], s{sT1} offen offset:{128*(k%3)} {cfl} lds')]
        return L
    def put(it, pad=False):
        if it[0]:
            Q.append(it[0])
            if pad: a('s_nop 0')
        a(it[1])
    def younger(tag): return min(63, len(Q) - 1 - max(i for i, x in enumerate(Q) if x == tag))
    for tau in range(NB):
        for it in cload(tau): put(it, True)
    a(f"""v_lshrrev_b32 v56, 3, v{n}
    v_mul_u32_u24 v56, 3072, v56
    v_and_b32 v57, 7, v{n}
    v_lshl_add_u32 v56, v57, 7, v56
    v_add_u32 v56, s{sT2}, v56
    v_lshrrev_b32 v57, 1, v{n}
    v_xor_b32 v57, v57, v{g}
    v_lshl_add_u32 v3, v57, 4, v56
    v_xor_b32 v57, 4, v57
    v_lshl_add_u32 v4, v57, 4, v56""")
    for i in range(3):
        a(f"""v_add_u32 v57, {64*i}, v{ln}
        v_mul_u32_u24 v56, 0x2aab, v57
        v_lshrrev_b32 v56, 16, v56
        v_mul_u32_u24 v58, 6, v56
        v_sub_u32 v57, v57, v58
        v_mul_u32_u24 v56, 12288, v56
        v_lshl_add_u32 v{5+i}, v57, 4, v56""")
    a(f"""s_mul_i32 s{sMp}, s{sHs}, 384
    s_mul_i32 s{sT0}, s{sCs}, 96
    s_add_u32 s{sMp}, s{sMp}, s{sT0}
    s_mul_i32 s{sT0}, s{S_WAVE}, {160*12288}
    s_add_u32 s{sMp}, s{sMp}, s{sT0}""")
    def wload(tag, i):
        return [(None, f's_add_u32 m0, s{sMr}, {1024*i}'), (None, f's_add_u32 s{sT0}, s{sMp}, {32*(i//3)*12288}'),
                (tag, dma(SRD_A, 5 + i % 3, f's{sT0}', 'nt' if P['wnt'] else ''))] if not (P.get('nowk') and i > 0) else []
    a(f"""v_lshrrev_b32 v56, 2, v{n}
    v_lshl_add_u32 v56, v{g}, 3, v56
    v_mul_u32_u24 v56, 80, v56
    v_add_u32 v56, s{sMr}, v56
    v_and_b32 v57, 1, v{n}
    v_lshl_add_u32 v58, v57, 3, v56
    v_and_b32 v57, 3, v{n}
    v_lshl_add_u32 v56, v57, 3, v56
    s_waitcnt vmcnt({len(Q)})""")
    a(ps(1))
    for kap in range(6):
        for v in range(2):
            for tc in range(3):
                a(f'ds_read_b64_tr_b16 {vr(F(tc,kap)+2*v,2)}, v{56 if tc < 2 else 58} offset:{(32*kap+4*v)*80+32*tc}')
        a('s_waitcnt lgkmcnt(6)')
    srd(a, SRD_A, P_WK, 640*6144*2)
    a(f"""v_lshrrev_b32 v88, 1, v{g}
    v_lshlrev_b32 v88, 4, v88
    v_and_b32 v57, 1, v{g}
    v_lshl_add_u32 v88, v57, 2, v88
    v_bfe_u32 v57, v{n}, 2, 1
    v_add_u32 v88, v88, v57
    v_lshrrev_b32 v57, 3, v{n}
    v_lshl_add_u32 v88, v57, 3, v88
    v_mul_u32_u24 v88, 96, v88
    v_and_b32 v57, 3, v{n}
    v_lshl_add_u32 v88, v57, 3, v88
    s_min_u32 s{sT0}, s{S_WAVE}, 2
    s_lshl_b32 s{sT0}, s{sT0}, 5
    s_add_u32 s{sT0}, s{sT0}, {IMG}
    v_add_u32 v88, s{sT0}, v88
    """)
    a(ps(2))
    def trd(base):
        return [f'ds_read_b64_tr_b16 {vr(base+2*i,2)}, v88 offset:{(64*(i>>2) + 32*((i&3) >> 1) + 2*(i & 1))*96}' for i in range(40)]
    AF = lambda tau, k: 96 + 24*(tau & 1) + 4*k
    AC = lambda tau, tc: 144 + 12*(tau & 1) + 4*tc
    rd = lambda tau, k: f'ds_read_b128 {vr(AF(tau,k))}, v{3 + (k & 1)} offset:{6144*(tau % NB) + 1024*(k >> 1)}'
    def cstore(tau):
        t, v = tau >> 2, tau & 3
        L = []
        for tc in range(3):
            d = (tc*10+t)*8 + 2*v; ac = AC(tau, tc)
            L += [f'v_cvt_pk_bf16_f32 v{168+2*tc}, v{ac}, v{ac+1}', f'v_cvt_pk_bf16_f32 v{169+2*tc}, v{ac+2}, v{ac+3}',
                  f'v_accvgpr_write_b32 a{d}, v{168+2*tc}', f'v_accvgpr_write_b32 a{d+1}, v{169+2*tc}']
        return L
    a(f"s_waitcnt vmcnt({younger(('c', 0))}) lgkmcnt(0)\ns_barrier")
    for k in range(6): a(rd(0, k))
    k0, kb, q0 = P['pk0'], P['pkb'], P['pkb']+3
    ktr = trd(vWk)
    for tau in range(40):
        a('s_waitcnt lgkmcnt(0)')
        if tau == 10: a(ps(5))
        if tau == kb: a(ps(6))
        if tau == kb:
            a(f"s_waitcnt vmcnt({younger('k')})\ns_barrier")
        if tau == q0:
            a('s_barrier')
            srd(a, SRD_A, P_WQ, 640*6144*2)
        first = cload(tau+NB)
        if k0 <= tau < k0+15: first += wload('k', tau-k0)
        if tau >= q0:
            for i in (2*(tau-q0), 2*(tau-q0)+1):
                if i < 15: first += wload('q', i)
        mm = []
        for k in range(6):
            for tc in range(3):
                d = vr(AC(tau, tc))
                mm.append(f'v_mfma_f32_16x16x32_bf16 {d}, {vr(AF(tau,k))}, {vr(F(tc,k))}, {"0" if k == 0 else d}')
        if P.get('nomm'): mm = ['s_nop 0']*18
        second = cstore(tau-1) if tau > 0 else []
        nk = 0
        for i, m in enumerate(mm):
            a(m)
            if i < 10:
                for _ in range(2):
                    if first:
                        it = first.pop(0); put(it)
                        if 'm0' in it[1] and first and first[0][0]: break
                if kb <= tau < q0 and i < 7:
                    for _ in range(2):
                        if ktr: a(ktr.pop(0)); nk += 1
                if i == 9:
                    while first: put(first.pop(0), True)
                    if tau < 39: a(f"s_waitcnt vmcnt({younger(('c', tau+1))})" + (' lgkmcnt(6)' if nk else ''))
            else:
                if tau < 39 and i-10 < 6: a(rd(tau+1, i-10))
            if i >= 8:
                for _ in range(1 if i < 16 else 2):
                    if second: a(second.pop(0))
        while second: a(second.pop(0))
    assert not ktr
    a(ps(3))
    a.nop(8)
    for s in cstore(39): a(s)
    lp = a.lab('wini')
    a(f"""v_mov_b32 v64, {DBG_INIT}
    v_mov_b32 v65, {DBG_PAR}
    {lp}:
    buffer_load_dword v66, v64, s[{SRD_D}:{SRD_D+3}], 0 offen sc1
    buffer_load_dwordx4 v[68:71], v65, s[{SRD_D}:{SRD_D+3}], 0 offen sc1
    s_add_u32 s{S_TO}, s{S_TO}, 1
    s_cmp_gt_u32 s{S_TO}, {TO_LIMIT}
    s_cbranch_scc1 L_exit
    s_waitcnt vmcnt(0)
    v_readfirstlane_b32 s{sT0}, v66
    v_readfirstlane_b32 s{sPar}, v68
    v_readfirstlane_b32 s{sT1}, v69
    v_readfirstlane_b32 s{sT2}, v70
    s_cmp_lt_u32 s{sT0}, {P['ninit']}
    s_cbranch_scc1 {lp}
    s_cmp_lt_u32 s{sPar}, 32
    s_cbranch_scc1 {lp}
    s_cmp_gt_u32 s{sT1}, s{sT2}
    s_cselect_b32 s{sPar}, 8192, 0
    s_barrier""")
    for i, s in enumerate(trd(vWq)):
        a(s)
        if i % 8 == 7: a('s_waitcnt lgkmcnt(6)')
    a('s_waitcnt lgkmcnt(0)\ns_barrier')
    a(ps(4))
    a(f"""v_mov_b32 v64, 0x4444
    v_mov_b32 v65, 0xeeee
    v_cndmask_b32 v{vIdx}, v64, v65, s[{sHalf}:{sHalf+1}]
    s_lshl_b32 s{sT0}, s{S_WAVE}, 4
    v_add_u32 v64, s{sT0}, v{n}
    v_lshlrev_b32 v64, 4, v64
    v_and_b32 v65, 1, v{g}
    v_lshl_add_u32 v64, v65, 3, v64
    v_lshrrev_b32 v65, 1, v{g}
    v_lshl_add_u32 v{vQw}, v65, 2, v64
    v_lshlrev_b32 v{vKw}, 1, v{vQw}
    v_lshrrev_b32 v64, 3, v{n}
    v_lshlrev_b32 v64, 9, v64
    v_lshl_add_u32 v64, v{g}, 7, v64
    v_and_b32 v65, 7, v{n}
    v_lshl_add_u32 v{vY}, v65, 4, v64""")
    for r in range(vUP, vUP+8): a(f'v_mov_b32 v{r}, 0')
    for r in range(aU, aU+12): a(f'v_accvgpr_write_b32 a{r}, 0')
    a(f"""v_and_b32 v64, 0x1ff, v{vY}
    v_lshrrev_b32 v65, 3, v{n}
    v_lshl_add_u32 v{vD2}, v65, 3, v64""")
    a(f"""s_mov_b32 s{S_STEP}, 0
    s_mul_i32 s{sY}, s{sH}, 40960
    s_mul_i32 s{sT0}, s{sCg}, 2560
    s_add_u32 s{sY}, s{sY}, s{sT0}
    s_add_u32 s{sY}, s{sY}, {YH_OFF if P['nmap'] & 1 else Y_OFF}
    s_lshr_b32 s{sU}, s{sH}, 2
    s_mul_i32 s{sU}, s{sU}, 40960
    s_add_u32 s{sU}, s{sU}, s{sT0}
    s_add_u32 s{sBp}, s{sU}, {BP_OFF - (P['lag']+1)*8*40960}
    s_add_u32 s{sU}, s{sU}, {U_OFF - 8*40960}
    s_and_b32 s{sPx}, s{sH}, 28
    s_lshl_b32 s{sPx}, s{sPx}, 11
    s_add_u32 s{sPx}, s{sPx}, {PX_OFF - (LAG[0]+1)*65536}
    s_mov_b32 s{sYw}, {RING0}
    s_mov_b32 s{sYo}, {RING0 + ((-P['lag']-1) % NSLOT)*SLOT}
    s_mov_b32 s{sLo}, 0xffff
    s_mov_b32 s{sLo+1}, 0
    s_mul_i32 s{sK}, s{sHs}, 12288
    s_mul_i32 s{sT0}, s{sCs}, 3072
    s_add_u32 s{sK}, s{sK}, s{sT0}
    s_add_u32 s{sK}, s{sK}, {KH_OFF if P['nmap'] & 2 else K_OFF}
    s_xor_b32 s{sPn}, s{sPar}, {8192 if P.get('nfar') else 0}
    s_mul_i32 s{sKm}, s{sHs}, 3072
    s_mul_i32 s{sT0}, s{sCs}, 768
    s_add_u32 s{sKm}, s{sKm}, s{sT0}
    s_add_u32 s{sKm}, s{sKm}, {KM_OFF - 32*3072}""")
    srd(a, SRD_A, P_MEM0, 8*640*2)
    a(f"""v_and_b32 v63, 7, v{n}
    v_mul_u32_u24 v63, 1280, v63
    v_lshl_add_u32 v63, v{g}, 5, v63
    v_lshrrev_b32 v64, 3, v{n}
    v_lshl_add_u32 v40, v64, 4, v63
    v_mov_b32 v41, v{n}
    v_mov_b32 v42, v{g}
    v_mov_b32 v43, v{ln}
    s_cmp_eq_u32 s{S_WAVE}, 0
    s_cbranch_scc1 L_rec_0
    s_cmp_eq_u32 s{S_WAVE}, 1
    s_cbranch_scc1 L_rec_1
    s_cmp_eq_u32 s{S_WAVE}, 2
    s_cbranch_scc1 L_rec_2
    s_branch L_rec_3""")

def step_scalars(w):
    L = [f's_and_b32 s{sT0}, s{S_STEP}, 3',
         f's_mul_i32 s{sMr}, s{sT0}, {M_SLOT}',
         f's_add_u32 s{sMr}, s{sMr}, s{sMb}',
         f's_add_u32 s{sMr}, s{sMr}, {OWN[w][0]*1024}',
         f's_mul_i32 s{sG}, s{sT0}, {G_SLOT}',
         f's_add_u32 s{sTag}, s{S_STEP}, 1',
         f's_mul_i32 s{sTag3}, s{sTag}, 0x01010101',
         f's_mov_b32 s{sYr}, s{sYw}',
         f's_add_u32 s{sYw}, s{sYw}, {SLOT}',
         f's_cmp_ge_u32 s{sYw}, {RING0+NSLOT*SLOT}',
         f's_cselect_b32 s{sYw}, {RING0}, s{sYw}']
    if w >= 2:
        L += [f's_add_u32 s{sG}, s{sG}, s{sPar}',
              f's_xor_b32 s{sGL}, s{sG}, 8192']
    if w == 3:
        L += [f's_xor_b32 s{sT0}, s{sT0}, 2',
              f's_mul_i32 s{sGp}, s{sT0}, {G_SLOT}',
              f's_add_u32 s{sGp}, s{sGp}, s{sPar}',
              f's_xor_b32 s{sGLp}, s{sGp}, 8192',
              f's_add_u32 s{sT0}, s{S_STEP}, 3',
              f's_and_b32 s{sT0}, s{sT0}, 3',
              f's_mul_i32 s{sMp}, s{sT0}, {M_SLOT}',
              f's_add_u32 s{sMp}, s{sMp}, s{sMb}',
              f'v_mov_b32 v{vFd}, s{S_STEP}',
              f's_add_u32 s{sYo}, s{sYo}, {SLOT}',
              f's_cmp_ge_u32 s{sYo}, {RING0+NSLOT*SLOT}',
              f's_cselect_b32 s{sYo}, {RING0}, s{sYo}',
              f's_add_u32 s{sPx}, s{sPx}, 65536',
              f's_cmp_lt_u32 s{S_STEP}, {LAG[0]}',
              f's_cselect_b32 s{sPc}, 0xf0000000, s{sPx}']
    return L

def thr_next(P):
    return [f's_add_u32 s{sT0}, s{S_STEP}, 2', f's_min_u32 s{sT0}, s{sT0}, 64',
            f's_sub_u32 s{sT1}, s{S_STEP}, {LAG[0]-1}', f's_max_i32 s{sT1}, s{sT1}, 0',
            f's_cmp_ge_u32 s{S_STEP}, {62 if P["pmode"] else 63}', f's_cselect_b32 s{sT1}, 0, s{sT1}',
            f'v_mov_b32 v252, s{sT0}', f'v_mov_b32 v253, s{sT1}', f'v_cndmask_b32 v{vThr}, v253, v252, s[{sLo}:{sLo+1}]',
            f'v_cmp_gt_u32 s[{sBad}:{sBad+1}], v{vThr}, v{vFk}']

def poll_known(o, lab):
    o(f"""{lab}:
    s_add_u32 s{S_TO}, s{S_TO}, 1
    s_cmp_gt_u32 s{S_TO}, {TO_LIMIT}
    s_cbranch_scc1 L_exit
    {W('load_dword', f'v{vFk}', vFp, 0, 0, 'sc1')}
    s_waitcnt vmcnt(0)
    v_cmp_gt_u32 vcc, v{vThr}, v{vFk}
    s_cbranch_vccnz {lab}""")

def smap(d, src, add, par, t):
    return [f's_add_u32 s{d}, s{src}, {add}', f's_and_b32 s{t}, s{d}, 0xffffe000', f's_add_u32 s{d}, s{d}, s{t}',
            f's_lshr_b32 s{t}, s{d}, 8', f's_and_b32 s{t}, s{t}, 0x2000', f's_xor_b32 s{t}, s{t}, s{par}', f's_xor_b32 s{d}, s{d}, s{t}']
def vmap(v, par, t):
    return [f'v_and_b32 v{t}, 0xffffe000, v{v}', f'v_add_u32 v{v}, v{v}, v{t}', f'v_lshrrev_b32 v{t}, 8, v{v}',
            f'v_and_b32 v{t}, 0x2000, v{t}', f'v_xor_b32 v{t}, s{par}, v{t}', f'v_xor_b32 v{v}, v{v}, v{t}']
def kx_addr():
    if not NMAP[0] & 2: return []
    return sum((smap(sKa+i, sK, 1024*i, sPn, sT2) for i in range(3)), [])
def kx_load():
    if NMAP[0] & 2: L = [W('load_dwordx4', vr(vKS+4*i), vL16, f's{sKa+i}', 0, 'sc1') for i in range(3)]
    else: L = [W('load_dwordx4', vr(vKS+4*i), vL16, f's{sK}', 1024*i, 'sc1') for i in range(3)]
    return L + [f's_add_u32 s{sK}, s{sK}, {32*12288}']
def kx_copy():
    return [f'v_mov_b32 v{vKF+8*xt+2*i+r}, v{vKS+4*i+2*xt+r}' for i in range(3) for xt in range(2) for r in range(2)]

def y_dma(w, tmp):
    if NMAP[0] & 1:
        d = lambda va, off: f'buffer_load_dwordx4 v{va}, s[{SRD_W}:{SRD_W+3}], 0 offen offset:{off} sc1 lds'
        pre = [f'v_add_u32 v10, s{sY}, v{vL16}', 'v_add_u32 v11, 1024, v10', f'v_and_b32 v{tmp}, 0x1ff, v{vL16}', f'v_add_u32 v{tmp}, s{sY}, v{tmp}', f'v_add_u32 v{tmp}, 2048, v{tmp}']
        pre += vmap(10, sPn, 33) + vmap(11, sPn, 33) + vmap(tmp, sPn, 33) + ['v_subrev_u32 v11, 1024, v11', f'v_subrev_u32 v{tmp}, 2048, v{tmp}']
        return [f's_add_u32 m0, s{sYw}, {3072*w}', '\n'.join(pre), d(10, 0), d(11, 1024), d(tmp, 2048), f's_add_u32 s{sY}, s{sY}, {32*40960}']
    d = lambda va, off: f'buffer_load_dwordx4 v{va}, s[{SRD_W}:{SRD_W+3}], s{sY} offen offset:{off} sc1 lds'
    return [f's_add_u32 m0, s{sYw}, {3072*w}', f'v_and_b32 v{tmp}, 0x1ff, v{vL16}', d(vL16, 0), d(vL16, 1024), d(tmp, 2048), f's_add_u32 s{sY}, s{sY}, {32*40960}']
def y_read(w):
    return [f'v_add_u32 v11, s{sYr}, v{vY}'] + [f'ds_read_b128 {vr(vYt+4*t)}, v11 offset:{3072*w+1024*t}' for t in range(3)]
def flag_w(base, w):
    return f'ds_write_b32 v{vL16}, v{vTag} offset:{base+4*w}'
def flag_r(dst, base):
    return f'ds_read_b128 {vr(dst)}, v{vZ} offset:{base}'
def flag_chk(dst, nf):
    L = [f'v_min3_u32 v{dst}, v{dst}, v{dst+1}, v{dst+2}']
    if nf == 4: L.append(f'v_min_u32 v{dst}, v{dst}, v{dst+3}')
    return L + [f'v_cmp_ne_u32 vcc, s{sTag}, v{dst}']

def fold(acc, dst, pk=False):
    return [f'v_permlane32_swap_b32 v{acc}, v{acc+2}', f'v_permlane32_swap_b32 v{acc+1}, v{acc+3}'] + (
            [f'v_pk_add_f32 v[{acc}:{acc+1}], v[{acc}:{acc+1}], v[{acc+2}:{acc+3}]'] if pk else
            [f'v_add_f32 v{acc}, v{acc}, v{acc+2}', f'v_add_f32 v{acc+1}, v{acc+1}, v{acc+3}']) + [
            f'v_cvt_pk_bf16_f32 v{dst}, v{acc}, v{acc+1}']

def smf(acc, t, breg):
    if NOQK[0] and breg.startswith('v'): return 's_nop 3'
    return f'v_smfmac_f32_16x16x64_bf16 {vr(acc)}, {vr(vMF+4*t)}, {breg}, v{vIdx}'

def pub_reads():
    return [f'ds_read_b128 {vr(vPU+4*t)}, v{vL16} offset:{UB+1024*t}' for t in range(3)]
def u_stores():
    L = [W('store_dwordx4', vr(vPU+4*t), vY, f's{sU}', 1024*t, 'sc1') for t in range(2)]
    return L + [f's_mov_b64 exec, s[{sExLo}:{sExLo+1}]', W('store_dwordx4', vr(vPU+8), vY, f's{sU}', 2048, 'sc1'), 's_mov_b64 exec, -1']
def km_stores():
    return [f's_mov_b64 exec, s[{sExK}:{sExK+1}]', W('store_dwordx4', vr(vKf), vKc, f's{sKm}', 0, 'sc1'),
            W('store_dwordx2', vr(vKf+4, 2), vKd, f's{sKm}', 512, 'sc1'), 's_mov_b64 exec, -1']
def bp_stores(so):
    L = [W('store_dwordx4', vr(vBP+4*t), vL16, f's{so}', 1024*t, 'sc1') for t in range(2)]
    return L + ['s_mov_b32 exec_hi, 0', W('store_dwordx4', vr(vBP+8), vL16, f's{so}', 2048, 'sc1'), 's_mov_b32 exec_hi, -1']

def token_part(a, P, extra):
    l = a.lab('tk')
    a(f"""v_add_u32 v180, s{sYr}, v{vL16}
    v_add_u32 v181, s{sYo}, v{vY}
    v_add_u32 v182, s{sYo}, v{vL16}""")
    A = [56+4*i for i in range(10)] + [16, 20, 44, 48, 52]
    for h in range(4):
        for t in range(3): a(f'ds_read_b128 {vr(A[3*h+t])}, v181 offset:{3072*h+1024*t}')
    def prep(h):
        return [f'v_mov_b32 v{vPM8+4*xq+h}, v{vPF+8*h+2+xq}' for xq in range(2)] + [f'v_mov_b32 v{vPF+8*h+2}, 0', f'v_mov_b32 v{vPF+8*h+3}, 0']
    a(f's_mov_b32 s41, s{sPc}')
    for s in prep(0) + prep(1): a(s)
    a('s_waitcnt lgkmcnt(9)')
    if P['kmw']:
        a(f's_cmp_lt_u32 s{S_STEP}, {P["ufrom"]}\ns_cbranch_scc1 {l}_u')
        for s in u_stores(): a(s)
        a(f'{l}_u:')
    for t in range(3): a(f'ds_read_b128 {vr(A[12+t])}, v182 offset:{12288+1024*t}')
    fill = prep(2) + prep(3) + extra
    for h in range(5):
        if h: a(f's_waitcnt lgkmcnt({12-3*h})')
        for t in range(3):
            for xq in range(2):
                d = vr(vTA+8*t+4*xq)
                B = vPF+8*h+4*xq if h < 4 else vPM8+4*xq
                a(f'v_mfma_f32_16x16x32_bf16 {d}, {vr(A[3*h+t])}, {vr(B)}, {"0" if h == 0 else d}')
                n = 3 if (fill and fill[0].startswith('s_')) else 2
                for _ in range(n):
                    if fill: a(fill.pop(0))
    while fill: a(fill.pop(0))
    if P['pmode']:
        for i in range(8): a(W('load_dwordx4', vr(vPF+4*i), vL16 if i < 4 else vL4k, 's41', 1024*(i & 3), 'sc1'))
    for t in range(3): a(f'ds_write_b128 v180, {vr(vPU+4*t)} offset:{12288+1024*t}')
    for t in range(3):
        for xq in range(2):
            b = vTA+8*t+4*xq
            a(f'v_cvt_pk_bf16_f32 v{vBP+4*t+2*xq}, v{b}, v{b+1}\nv_cvt_pk_bf16_f32 v{vBP+4*t+2*xq+1}, v{b+2}, v{b+3}')

def rec_wave(a, tail, w, P):
    n, g, ln = 41, 42, 43
    nm = str(w)
    st0 = P['stamp']; fine = P.get('fine', 0)
    st = lambda i: '' if (fine == 1 and 5 <= i <= 9) or (fine == 2 and ((w == 3 and i == 5) or (w >= 2 and i == 9))) else st0(i)
    sf = lambda i: st0(i) if fine == 1 else ''
    own = OWN[w]; oth = [t for t in range(10) if t not in own]
    a(f'L_rec_{nm}:')
    if w < 2:
        a(f"""v_min_u32 v64, 9, v{n}
        v_add_u32 v65, {10*w}, v64
        v_lshlrev_b32 v65, 4, v65
        s_and_b32 s{sT0}, s{S_J}, 1
        s_mul_i32 s{sT1}, s{sT0}, 384
        s_mul_i32 s{sT2}, s{sCg}, 1536
        s_add_u32 s{sT1}, s{sT1}, s{sT2}
        v_add_u32 v65, s{sT1}, v65
        v_and_b32 v66, 1, v{g}
        v_mul_u32_u24 v66, 768, v66
        v_add_u32 v65, v65, v66""")
        for rho, dst in ((0, vG0), (1, vG1)):
            a(f"""v_lshrrev_b32 v66, 1, v{g}
            v_add_u32 v66, {2*rho}, v66
            v_mul_u32_u24 v67, {32*768}, v66
            v_add_u32 v{dst}, v65, v67""")
            phys(a, dst, 67)
            a(f"""v_add_u32 v{dst}, s{sPar}, v{dst}
            v_xor_b32 v67, 8192, v{dst}
            {f'v_add_u32 v66, {4*rho}, v{g}' if P['glown'] else ''}
            s_lshl_b32 s{sT2}, s{S_X}, {1 if P['glown'] else 0}
            {f's_add_u32 s{sT2}, s{sT2}, s{sT0}' if P['glown'] == 1 else ''}
            {f's_mov_b32 s{sT2}, 99' if P['glown'] == 2 else ''}
            v_cmp_eq_u32 vcc, s{sT2}, v66
            s_nop 1
            v_cndmask_b32 v{dst}, v{dst}, v67, vcc""")
        a(f"""v_lshrrev_b32 v66, 1, v64
        v_lshlrev_b32 v66, 7, v66
        v_and_b32 v67, 1, v64
        v_lshl_add_u32 v66, v67, 4, v66
        v_lshl_add_u32 v66, v{g}, 3, v66
        s_mul_i32 s{sT1}, s{sCg}, 640
        s_lshl_b32 s{sT0}, s{sT0}, 6
        s_add_u32 s{sT1}, s{sT1}, s{sT0}
        s_add_u32 s{sT1}, s{sT1}, {32*w}
        v_add_u32 v{vMst}, s{sT1}, v66
        s_mov_b32 s{sEx}, 0x03ff03ff
        s_mov_b32 s{sEx+1}, 0
        v_mov_b32 v68, 0""")
        build_sel(a, 72, n, 68, 0, 64)
        for r in range(4): a(f'v_accvgpr_write_b32 a{aSel+r}, v{72+r}')
    else:
        z = w - 2
        a(f"""v_min_u32 v64, 39, v{ln}
        v_lshlrev_b32 v{vGst}, 3, v64
        v_add_u32 v{vGst}, s{sGb}, v{vGst}
        v_add_u32 v{vGst}, {384*z}, v{vGst}""")
        phys(a, vGst, 65)
        a(f"""v_lshrrev_b32 v65, 1, v64
        v_cmp_le_u32 vcc, 10, v65
        s_nop 1
        v_cndmask_b32 v66, 0, 1, vcc          ; om
        v_mul_u32_u24 v67, 10, v66
        v_sub_u32 v65, v65, v67               ; r
        v_and_b32 v67, 1, v65
        v_lshl_add_u32 v67, v66, 1, v67
        v_add_u32 v67, {4*z}, v67             ; q
        v_lshlrev_b32 v67, 4, v67
        v_lshrrev_b32 v65, 1, v65             ; o'
        v_and_b32 v64, 1, v64                 ; hb
        v_and_b32 v66, 1, v65
        v_lshl_add_u32 v66, v66, 1, v64       ; g
        v_lshlrev_b32 v66, 8, v66
        v_bfe_u32 v68, v65, 1, 1
        v_lshl_add_u32 v66, v68, 7, v66       ; g*256 + t*128
        v_lshlrev_b32 v64, 7, v64
        v_add_u32 v64, 1024, v64
        v_cmp_eq_u32 vcc, 4, v65
        s_nop 1
        v_cndmask_b32 v66, v66, v64, vcc
        v_add_u32 v{vDr}, v66, v67
        s_mov_b32 s{sEx}, -1
        s_mov_b32 s{sEx+1}, 0xff""")
    if w == 3:
        a(f"""v_lshrrev_b32 v64, 2, v{n}
        v_lshl_add_u32 v64, v{g}, 2, v64
        v_lshlrev_b32 v64, 4, v64
        v_and_b32 v65, 1, v{n}
        v_lshl_add_u32 v{vQr}, v65, 3, v64
        v_bfe_u32 v65, v{n}, 1, 1
        v_lshlrev_b32 v65, 3, v65
        v_lshl_add_u32 v{vKr}, v{vQr}, 1, v65
        v_min_u32 v64, 47, v{ln}
        v_lshlrev_b32 v64, 4, v64
        v_add_u32 v{vPG}, s{sGb}, v64""")
        phys(a, vPG, 65)
        a(f"""v_min_u32 v64, 19, v{ln}
        v_lshrrev_b32 v65, 2, v64
        v_lshlrev_b32 v65, 7, v65
        v_and_b32 v64, 3, v64
        v_lshl_add_u32 v65, v64, 4, v65
        s_and_b32 s{sT0}, s{S_J}, 1
        s_lshl_b32 s{sT0}, s{sT0}, 6
        s_mul_i32 s{sT1}, s{sCg}, 640
        s_add_u32 s{sT1}, s{sT1}, s{sT0}
        v_add_u32 v{vPM}, s{sT1}, v65""")
        for r in range(4): a(f'v_mov_b32 v{vNeg+r}, -1')
        for r in (vKF+6, vKF+7, vKF+14, vKF+15, vQf+6, vQf+7, vKf+6, vKf+7): a(f'v_mov_b32 v{r}, 0')
        if P['warm']:
            a(W('store_dwordx4', vr(vNeg), vL16, f's{sSw}'))
            for i in range(4):
                a(f's_xor_b32 s{sT0}, s{sPar}, {8192 + G_SLOT*i}\ns_add_u32 s{sT1}, s{sMb}, {M_SLOT*i}')
                a(W('store_dwordx4', vr(vNeg), vPG, f's{sT0}'))
                a(W('store_dwordx4', vr(vNeg), vPM, f's{sT1}'))
        for s in P['wait_k0'](): a(s)
        if P['live']:
            a(f"""v_mov_b32 v64, 0xf0000000
            v_cmp_eq_u32 vcc, 0, v{ln}
            s_nop 1
            v_cndmask_b32 v{vFa}, v64, 0, vcc""")
            a(f"""v_and_b32 v64, 3, v{ln}
            v_lshlrev_b32 v64, 9, v64
            s_sub_u32 s{sT0}, s{sFy}, {3*512}
            v_add_u32 v64, s{sT0}, v64
            v_mov_b32 v65, s{sFk}
            v_cmp_gt_u32 vcc, 4, v{ln}
            s_nop 1
            v_cndmask_b32 v{vFp}, v65, v64, vcc
            v_bfe_u32 v64, v{ln}, 2, 2
            v_lshlrev_b32 v64, 9, v64
            v_and_b32 v65, 3, v{ln}
            v_lshl_add_u32 v64, v65, 2, v64
            s_add_u32 s{sT0}, s{sT0}, 128
            v_add_u32 v64, s{sT0}, v64
            v_cndmask_b32 v{vFp}, v64, v{vFp}, s[{sLo}:{sLo+1}]
            v_cndmask_b32 v{vThr}, 0, 1, s[{sLo}:{sLo+1}]""")
            poll_known(a, a.lab('k0'))
        a(f"""v_lshrrev_b32 v64, 2, v{ln}
        v_and_b32 v65, 1, v{ln}
        v_lshl_add_u32 v64, v64, 1, v65
        v_lshlrev_b32 v{vKc}, 4, v64
        v_lshlrev_b32 v{vKd}, 3, v64
        v_add_u32 v{vL4k}, 4096, v{vL16}
        v_and_b32 v{vLh}, 0x1ff, v{vL16}
        v_and_b32 v64, 3, v{ln}
        s_lshl_b32 s{sT0}, s{sCg}, 2
        v_add_u32 v64, s{sT0}, v64
        v_lshlrev_b32 v{vPt}, 7, v64""")
        for s in kx_addr() + kx_load() + kx_addr(): a(s)
    a('s_barrier')
    a(P.get('after_y0', ''))
    for s in y_dma(w, 44): a(s)
    for s in step_scalars(w): a(s)
    if w == 3 and P['live']:
        for s in thr_next(P): a(s)
    for i, t in enumerate(own):
        a(f'buffer_load_dwordx4 {vr(vMF+4*t)}, v40, s[{SRD_A}:{SRD_A+3}], 0 offen offset:{128*t}')
    nb_ = P.get('nobg', 0)
    ew1 = P['ew1'] and w == 3
    def do_w1(rq):
        n0 = len(a.lines)
        lb = a.lab('np')
        def pB():
            if not P['bpw']:
                a(f's_cmp_le_u32 s{S_STEP}, {P["lag"]}\ns_cbranch_scc1 {lb}_a')
                for s in ([] if nb_ & 64 else bp_stores(sBp)): a(s)
            if P['kmw'] or ew1: return
            a(f'{lb}_a:\ns_cmp_ge_u32 s{S_STEP}, {max(1, P["ufrom"]+1)}\ns_cbranch_scc1 {lb}_u\n{lb}_b:')
            tail(f'{lb}_u:')
            for s in u_stores(): tail(s)
            tail(f's_branch {lb}_b')
        def pM():
            if not P['kmw']:
                for s in km_stores(): a(s)
            elif P['live']:
                a(W('store_dword', f'v{vFd}', vFa, f's{sFl}', 0, 'sc1'))
        def pG():
            if not nb_ & 8: a(W('store_dwordx4', vr(vNeg), vPG, f's{sGp}', 0, 'sc1'))
        def pK():
            if P['live']:
                lk = a.lab('wk')
                a(f's_cmp_lg_u64 s[{sBad}:{sBad+1}], 0\ns_cbranch_scc1 {lk}\n{lk}_b:')
                a(W('load_dword', f'v{vFk}', vFp, 0, 0, 'sc1'))
                poll_known(tail, lk)
                tail(f's_branch {lk}_b')
            for s in ([] if nb_ & 2 else kx_load()[:3]):
                a(s)
                if rq: a(rq.pop(0))
        def pR():
            while rq: a(rq.pop(0))
        def pP():
            for h in range(4 if P['yw1'] else 0):
                for pc in {1: (0,), 2: (2,), 3: (0, 2)}[P['yw1']]:
                    a(f's_add_u32 m0, s{sYw}, {3072*h}\ns_sub_u32 s{sT0}, s{sY}, {40960*(3-h)}')
                    a(f'buffer_load_dwordx4 v{vL16 if pc == 0 else vLh}, s[{SRD_W}:{SRD_W+3}], s{sT0} offen offset:{1024*pc} sc1 lds')
                    if rq: a(rq.pop(0))
            if P['pmode']:
                a(W('load_dword', 'v254', vPt, f's{sPc}', 0, 'sc1'))
                return
            a(f's_cmp_lt_u32 s{S_STEP}, {P["lag"]}\ns_cbranch_scc1 {lb}_p')
            tail(f'{lb}_p:')
            for x in rq: tail(x)
            tail(f's_branch {lb}_q')
            for i in range(0 if nb_ & 32 else 8):
                a(W('load_dwordx4', vr(vPF+4*i), vL16 if i < 4 else vL4k, f's{sPc}', 1024*(i & 3), 'sc1'))
                if rq: a(rq.pop(0))
            while rq: a(rq.pop(0))
            a(f'{lb}_q:')
        for f in [(pK, pP, pB, pM, pG, pR), (pK, pB, pM, pG, pP, pR), (pK, pM, pP, pB, pG, pR)][P['w1ord']]: f()
        return sum('buffer_' in x for x in a.lines[n0:])
    uz = [f'v_mov_b32 v{vUa+r}, 0' for r in range(12)]
    az = ([f'v_mov_b32 v{vAq+r}, 0' for r in range(8)] if w < 3 else []) + uz
    for s in az: a(s)
    a('s_waitcnt vmcnt(0)')
    if w == 3:
        for s in kx_copy(): a(s)
    for t in own: a(f'ds_write_b128 v{vL16}, {vr(vMF+4*t)} offset:{MB+1024*t}')
    o = []
    if w < 3:
        o = [smf(vAq, t, vr(vWq+8*t, 8)) for t in own] + [smf(vAk, t, vr(vWk+8*t, 8)) for t in own]
    nb = P['own_before'] if w < 3 else 0
    for s in o[:nb]: a(s)
    if ew1: do_w1([])
    a(f"""s_waitcnt lgkmcnt(0)
    s_branch L_rec_{nm}_m""")
    a(f'.p2align 6\nL_rec_{nm}_top0:')
    a(st(0))
    mld = [f'buffer_load_dwordx4 v{vL16}, s[{SRD_W}:{SRD_W+3}], s{sMr} offen offset:{1024*i} sc1 lds' for i, t in enumerate(own)]
    md = P['mdepth']
    for r in range(md-1):
        for s in mld: a(s)
        a.nop(P['mgap'])
    a(f'L_rec_{nm}_top:')
    for s in mld: a(s)
    nx1 = 0
    if ew1:
        a.nop(P['ew1gap'])
        nx1 = do_w1([])
    for i, t in enumerate(own):
        a(f's_waitcnt vmcnt({len(own)*(md-1) + len(own)-1-i + nx1})')
        if ew1: a(f'L_rec_{nm}_chk:')
        a(f'ds_read_b128 {vr(vMF+4*t)}, v{vL16} offset:{MB+1024*t}')
    b0 = vMF+4*own[0]
    lr = a.lab('rm')
    if w < 3:
        oo = list(o[:nb])
        pop = lambda: ''
        a(f"""s_waitcnt lgkmcnt(2)
        {pop()}
        v_max3_u32 v40, v{b0}, v{b0+1}, v{b0+2}
        s_waitcnt lgkmcnt(1)
        v_max3_u32 v41, v{b0+3}, v{b0+4}, v{b0+5}
        {pop()}
        v_max3_u32 v40, v40, v{b0+6}, v{b0+7}
        s_waitcnt lgkmcnt(0)
        v_max3_u32 v41, v41, v{b0+8}, v{b0+9}
        v_max3_u32 v40, v40, v{b0+10}, v{b0+11}
        {pop()}
        v_max_u32 v40, v40, v41
        v_cmp_eq_u32 vcc, -1, v40""")
        while oo: a(oo.pop(0))
        if nb:
            tail(f'{lr}_z:\ns_nop 7')
            for r in range(8): tail(f'v_mov_b32 v{vAq+r}, 0')
            tail(f's_branch L_rec_{nm}_top')
        retry(a, tail, lr, f'{lr}_z' if nb else f'L_rec_{nm}_top')
    else:
        a(f"""s_waitcnt lgkmcnt(0)
        v_max3_u32 v40, v{b0}, v{b0+1}, v{b0+2}
        v_max_u32 v40, v40, v{b0+3}
        v_cmp_eq_u32 vcc, -1, v40""")
        if ew1:
            tail(f'{lr}_e:')
            for s in mld: tail(s)
            tail(f's_nop 15\ns_branch L_rec_{nm}_chk')
        retry(a, tail, lr, f'{lr}_e' if ew1 else f'L_rec_{nm}_top')
    a(f's_cbranch_vccnz {lr}')
    a(f'L_rec_{nm}_m:')
    a(st(1))
    reads = [f'ds_read_b128 {vr(vMF+4*t)}, v{vL16} offset:{MB+1024*t}' for t in oth]
    sld = lambda S: [W('load_dwordx4', vr(r), vL16, f's{sSr}', 1024*i, 'sc1') for i, r in enumerate(S)]
    uch = [smf(vUa+4*tc, t, ar((tc*10+t)*8, 8)) for tc in range(3) for t in range(10)]
    if P.get('nou'): uch = ['s_nop 3']*30
    ufold = lambda tc: fold(vUa+4*tc, 10+(tc & 1), tc == 2) + [f'ds_write_b32 v{vL16}, v{10+(tc & 1)} offset:{UB+1024*tc+4*w}', f'v_accvgpr_write_b32 a{aU+4*tc}, v{10+(tc & 1)}']
    nb_ = P.get('nobg', 0)
    a('s_barrier')
    a(st(2))
    if w < 3:
        oq = o[nb:]; held = []
        for _ in range(P['khold']):
            i = max(i for i, x in enumerate(oq) if f' {vr(vAk)},' in x or 'nop' in x); held.insert(0, oq.pop(i))
        a(reads[0])
        for s in interleave(oq, reads[1:], 3): a(s)
        for i, t in enumerate(oth):
            a(f's_waitcnt lgkmcnt({len(oth)-1-i})\n' + smf(vAq, t, vr(vWq+8*t, 8)))
        a(sf(5))
        kch = [smf(vAk, t, vr(vWk+8*t, 8)) for t in oth]
        fq = fold(vAq, 40) + [f'ds_write_b32 v{vQw}, v40 offset:{QB}']
        kch = held + kch
        gapf = [['s_nop 2'], ['s_nop 2'], [fq[0]], [fq[1]], [fq[2], fq[3]], [fq[4], fq[5]]]
        bpos = len(kch) - 1 - P['b2in']
        for i, s in enumerate(kch):
            a(s)
            if i < len(gapf):
                for x in gapf[i]: a(x)
            if i == bpos and P['b2a']:
                a('s_waitcnt lgkmcnt(0)')
                a(sf(6))
                a('s_barrier')
                a(sf(7))
        a.nop(6 if (P['b2a'] and not P['b2in']) else 8)
        for s in fold(vAk, 41, True): a(s)
        a(f'ds_write_b32 v{vKw}, v41 offset:{KB}')
        np_ = P['u_early']
        for s in uch[:np_]: a(s)
        a('s_waitcnt lgkmcnt(0)')
        a(sf(8)); a(sf(9))
        a('s_barrier')
        a(st(3)); a(st(4))
        upos, spos = np_, P['spos_o']
        pend = y_read(w)
    else:
        if not ew1: do_w1(list(reads))
        else:
            assert P['bpw'] and not P['kmw']
            lu = a.lab('us')
            a(f's_cmp_ge_u32 s{S_STEP}, {max(1, P["ufrom"]+1)}\ns_cbranch_scc1 {lu}_u\n{lu}:')
            tail(f'{lu}_u:')
            for x in u_stores(): tail(x)
            tail(f's_branch {lu}')
            for x in reads: a(x)
        plain = [] if nb_ & 4 else [W('store_dwordx4', vr(vNeg), vPG, f's{sGLp}'), W('store_dwordx4', vr(vNeg), vPM, f's{sMp}')]
        plain += [f's_add_u32 s{sU}, s{sU}, {8*40960}', f's_add_u32 s{sKm}, s{sKm}, {32*3072}', kx_load()[3],
                  f's_cmp_le_u32 s{S_STEP}, {P["lag"]}\ns_cselect_b32 s{sMw}, 0xf0000000, s{sBp}', f's_add_u32 s{sBp}, s{sBp}, {8*40960}']
        a(sf(5))
        np_ = P['u_pre']
        if np_: a('s_waitcnt lgkmcnt(0)')
        for s in uch[:np_]: a(s)
        qrd = [f'ds_read_b64_tr_b16 {vr(vQf+2*i,2)}, v{vQr} offset:{QB+256*i}' for i in range(3)]
        krd = [f'ds_read_b64_tr_b16 {vr(vKf+2*i,2)}, v{vKr} offset:{KB+512*i}' for i in range(3)]
        xm = [f'v_mfma_f32_16x16x32_bf16 {vr(vD0)}, {vr(vKF)}, {vr(vQf)}, 0',
              f'v_mfma_f32_16x16x32_bf16 {vr(vD1)}, {vr(vKF+8)}, {vr(vQf)}, 0',
              f'v_mfma_f32_16x16x32_bf16 {vr(vD0)}, {vr(vKF+4)}, {vr(vQf+4)}, {vr(vD0)}',
              f'v_mfma_f32_16x16x32_bf16 {vr(vD1)}, {vr(vKF+12)}, {vr(vQf+4)}, {vr(vD1)}']
        mm_ = [f'v_mfma_f32_16x16x32_bf16 {vr(vDm)}, {vr(vKf)}, {vr(vQf)}, 0',
               f'v_mfma_f32_16x16x32_bf16 {vr(vDm)}, {vr(vKf+4)}, {vr(vQf+4)}, {vr(vDm)}']
        sel = [f'v_cndmask_b32 v{vPk+i}, v{vD0+i}, v{vD1+i}, s[{sHalf}:{sHalf+1}]' for i in range(4)]
        sel += [f'v_mul_f32 v{vPk+i}, s{sC2}, v{vPk+i}' for i in range(4)]
        sel += [f'v_mov_b32_sdwa v{vPk}, s{sTag} dst_sel:BYTE_0 dst_unused:UNUSED_PRESERVE src0_sel:BYTE_0']
        a(sf(6))
        a('s_barrier')
        a(sf(7))
        if P['b2a']:
            for s in qrd: a(s)
            a('s_waitcnt lgkmcnt(0)')
            a(sf(8))
            nx = P['xpre']
            for s in xm[:nx]: a(s)
            a(sf(9))
            a('s_barrier')
            a(st(3))
            for s in krd: a(s)
            for s in xm[nx:]: a(s)
            if nx == 4:
                a.nop(4)
                for s in sel[:4]: a(s)
                a('s_waitcnt lgkmcnt(0)')
                a(mm_[0]); a(mm_[1])
                for s in sel[4:]: a(s)
                a.nop(3)
            else:
                a.nop(5)
                a('s_waitcnt lgkmcnt(0)')
                a(mm_[0]); a(mm_[1])
                for s in sel: a(s)
        else:
            a(st(3))
            for s in qrd + krd: a(s)
            a('s_waitcnt lgkmcnt(3)')
            for s in xm: a(s)
            a('s_waitcnt lgkmcnt(0)')
            a(mm_[0]); a(mm_[1])
            a.nop(5)
            for s in sel: a(s)
        a(f"""v_cndmask_b32 v{vDm}, v{vDm}, v{vDm+1}, s[{sHalf}:{sHalf+1}]
        v_mul_f32 v{vDm}, s{sC2}, v{vDm}
        v_mov_b32_sdwa v{vPk+1}, v{vDm} dst_sel:BYTE_0 dst_unused:UNUSED_PRESERVE src0_sel:BYTE_1
        v_mov_b32_sdwa v{vPk+2}, v{vDm} dst_sel:BYTE_0 dst_unused:UNUSED_PRESERVE src0_sel:BYTE_2
        v_mov_b32_sdwa v{vPk+3}, v{vDm} dst_sel:BYTE_0 dst_unused:UNUSED_PRESERVE src0_sel:BYTE_3
        s_nop 0""")
        a(W('store_dwordx4', vr(vPk), vL16, f's{sSw}'))
        a(st(4))
        if fine == 2: a('s_waitcnt vmcnt(1)\n' + st0(5))
        upos, spos = np_, P['spos_s']
        pend = y_read(w) + plain
    done0 = done1 = False
    lg0 = 'lgkmcnt(0)'
    for i in range(upos, 30):
        a(uch[i])
        if P['smpf'] and i == upos + P['smpos']:
            a('s_waitcnt lgkmcnt(0)'); lg0 = ''
            pend = pend + [f's_buffer_load_dword s42, s[{SRD_W}:{SRD_W+3}], s{sY} offset:{128*(19-k)}' for k in range(P['smpf'])]
        if i == spos: pend = sld(SETA) + pend
        if not done0 and i >= 17: pend += ufold(0); done0 = True
        if not done1 and i >= 25: pend += ['s_nop 1'] + ufold(1); done1 = True
        for _ in range(2):
            if pend:
                x = pend.pop(0); a(x)
                if 'permlane' in x or (pend and 'permlane' in pend[0]): break
    k = len(pend)
    while pend: a(pend.pop(0))
    if spos >= 30:
        if spos > 30: a.nop(spos-30)
        for s in sld(SETA): a(s)
        k += 4
    a.nop(max(0, 8-k))
    for s in ufold(2): a(s)
    a(f"""s_cmp_eq_u32 s{S_STEP}, 63
    s_cbranch_scc1 L_rec_{nm}_fin""")
    a.nop(P['sgap_s'] if w == 3 else P['sgap_o'])
    X, MV, T = 68, 72, 73
    ls = a.lab('ps')
    fsm = P['fsm']
    def scheck(o, S, fail, nleft, first=''):
        A, B, C, D = S
        o(f"""s_waitcnt vmcnt({nleft+3}) {first}
        v_perm_b32 v{MV}, v{A+2}, v{A+1}, s{sSelU1}
        v_perm_b32 v{MV}, v{A+3}, v{MV}, s{sSelU2}
        s_waitcnt vmcnt({nleft+2})
        v_perm_b32 v{T}, v{B+2}, v{B+1}, s{sSelU1}
        v_pk_add_f32 v[{X}:{X+1}], v[{A}:{A+1}], v[{B}:{B+1}]
        v_perm_b32 v{T}, v{B+3}, v{T}, s{sSelU2}
        v_pk_add_f32 v[{X+2}:{X+3}], v[{A+2}:{A+3}], v[{B+2}:{B+3}]
        v_add_f32 v{MV}, v{MV}, v{T}
        v_perm_b32 v{T+1}, v{A}, v{B}, s{sSelT1}
        s_waitcnt vmcnt({nleft+1})
        v_perm_b32 v{T}, v{C+2}, v{C+1}, s{sSelU1}
        v_pk_add_f32 v[{X}:{X+1}], v[{X}:{X+1}], v[{C}:{C+1}]
        v_perm_b32 v{T}, v{C+3}, v{T}, s{sSelU2}
        v_pk_add_f32 v[{X+2}:{X+3}], v[{X+2}:{X+3}], v[{C+2}:{C+3}]
        v_add_f32 v{MV}, v{MV}, v{T}
        v_perm_b32 v{T+1}, v{C}, v{T+1}, s{sSelT2}
        s_waitcnt vmcnt({nleft})
        v_perm_b32 v{T+1}, v{D}, v{T+1}, s{sSelT3}
        v_perm_b32 v{T}, v{D+2}, v{D+1}, s{sSelU1}
        v_cmp_ne_u32 vcc, s{sTag3}, v{T+1}
        v_perm_b32 v{T}, v{D+3}, v{T}, s{sSelU2}
        v_pk_add_f32 v[{X}:{X+1}], v[{X}:{X+1}], v[{D}:{D+1}]
        v_pk_add_f32 v[{X+2}:{X+3}], v[{X+2}:{X+3}], v[{D+2}:{D+3}]
        v_add_f32 v{MV}, v{MV}, v{T}
        {f'v_max3_f32 v{T}, |v{X}|, |v{X+1}|, |v{X+2}|' if fsm else f'v_max3_f32 v{T}, v{X}, v{X+1}, v{X+2}'}
        {f'v_max3_f32 v{T}, v{T}, |v{X+3}|, |v{MV}|' if fsm else f'v_max3_f32 v{T}, v{T}, v{X+3}, v{MV}'}
        s_cbranch_vccnz {fail}""")
    yd = ([] if nb_ & 16 else y_dma(w, 25))
    for s in yd[:2]: a(s)
    a(f'v_and_b32 v26, 0x1ff, v{vY}')
    if fsm: a(f'v_mov_b32 v27, {float(fsm)}')
    if w >= 2: a(f'v_and_b32 v24, 0x70, v{vDr}')
    yd = yd[2:]
    if P['yw1'] & 2: yd.pop(2)
    if P['yw1'] & 1: yd.pop(0)
    ylt = []
    if P['ylate'] and yd:
        idx = {1: [2], 2: [1], 3: [1, 2]}[P['ylate']]
        ylt = [yd[i] for i in idx] + [yd[3]]
        yd = [x for i, x in enumerate(yd) if i not in idx + [3]]
    nw2 = sum(' lds' in x for x in yd)
    if P['live'] and w == 3 and not P['kmw']:
        yd.insert(1, W('store_dword', f'v{vFd}', vFa, f's{sFl}', 0, 'sc1')); nw2 += 1
    a(st(5))
    if P['ew2']:
        if P['sdepth'] == 2:
            for s in sld(SETB): a(s)
        a('s_waitcnt lgkmcnt(0)\ns_barrier')
        ydm = [x for x in yd if ' lds' in x][:P['ew2']]
        for x in ydm: a(x); yd.remove(x)
        ne = len(ydm)
        if P['sdepth'] == 2:
            scheck(a, SETA, f'{ls}_b', 4+ne)
            tail(f'{ls}_b:')
            scheck(tail, SETB, f'{ls}_r', ne)
            tail(f's_branch {ls}_j')
        else:
            scheck(a, SETA, f'{ls}_r', ne)
        tail(f'{ls}_c:')
        for s in sld(SETA): tail(s)
        scheck(tail, SETA, f'{ls}_r', 0)
        tail(f's_branch {ls}_j')
        retry(a, tail, f'{ls}_r', f'{ls}_c')
    elif P['sdepth'] == 2:
        a(f'{ls}_a:')
        for s in sld(SETB): a(s)
        scheck(a, SETA, f'{ls}_b', 4, lg0)
        tail(f'{ls}_b:')
        for s in sld(SETA): tail(s)
        scheck(tail, SETB, f'{ls}_r', 4)
        tail(f's_branch {ls}_j')
        retry(a, tail, f'{ls}_r', f'{ls}_a')
    else:
        a(f'{ls}_a:')
        scheck(a, SETA, f'{ls}_r', 0, lg0)
        tail(f'{ls}_b:')
        for s in sld(SETA): tail(s)
        tail(f's_branch {ls}_a')
        retry(a, tail, f'{ls}_r', f'{ls}_b')
    PB = 76
    def one(): return yd.pop(0) if yd else 's_nop 0'
    ys = P['yspread']
    dpp = 'row_ror:8 row_mask:0xf bank_mask:0xf'
    dpc = 'row_ror:8 row_mask:0xf bank_mask:0xc'
    def truemax(o, fill):
        o(f"""v_max_f32_dpp v{T+1}, v{T}, v{T} {dpp}
        v_max_f32_dpp v{T+2}, v{T}, v{T} {dpp}
        {fill()}
        {fill() if (not ys or w == 3) else 's_nop 0'}
        v_permlane16_swap_b32 v{T+1}, v{T+2}
        v_max_f32 v{T}, v{T+1}, v{T+2}
        v_max_f32 v{T+1}, v{T+1}, v{T+2}
        {fill()}
        {fill() if not ys else 's_nop 0'}
        v_permlane32_swap_b32 v{T}, v{T+1}
        v_max_f32 v{T+1}, v{T}, v{T+1}
        v_sub_f32 v{MV}, v{MV}, v{T+1}
        v_pk_add_f32 v[{X}:{X+1}], v[{X}:{X+1}], v[{T+1}:{T+2}] op_sel_hi:[1,0] neg_lo:[0,1] neg_hi:[0,1]
        v_pk_add_f32 v[{X+2}:{X+3}], v[{X+2}:{X+3}], v[{T+1}:{T+2}] op_sel_hi:[1,0] neg_lo:[0,1] neg_hi:[0,1]""")
    E = 28 if fsm else X
    EM = 32 if fsm else MV
    if fsm:
        a(f"""{ls}_j:
        v_cmp_nle_f32 vcc, v{T}, v27
        s_barrier
        {st(6)}
        {ls}_x:
        v_exp_f32 v{EM}, v{MV}
        v_exp_f32 v{E}, v{X}
        v_exp_f32 v{E+1}, v{X+1}
        s_cbranch_vccnz {ls}_m""")
        tail(f"""{ls}_m:
        v_max3_f32 v{T}, v{X}, v{X+1}, v{X+2}
        v_max3_f32 v{T}, v{T}, v{X+3}, v{MV}
        s_nop 1""")
        truemax(tail, lambda: 's_nop 0')
        tail(f's_mov_b64 vcc, 0\ns_branch {ls}_x')
    else:
        a(f'{ls}_j:\ns_barrier\n{st(6)}')
        truemax(a, one)
        a(f'v_exp_f32 v{MV}, v{MV}\nv_exp_f32 v{X}, v{X}\nv_exp_f32 v{X+1}, v{X+1}')
    fo = (lambda: one() if yd else '') if fsm else (lambda: '')
    a(f"""v_mov_b32_dpp v{T+1}, v{EM} {dpp}
    v_cvt_pk_bf16_f32 v{vDq}, v{EM}, v{T+1}
    v_exp_f32 v{E+2}, v{X+2}
    v_cvt_pk_bf16_f32 v{PB}, v{E}, v{E+1}
    v_mfma_f32_16x16x32_bf16 {vr(60)}, {ar(aU+4)}, {vr(vDq)}, 0
    {fo()}
    v_exp_f32 v{E+3}, v{X+3}
    v_mfma_f32_16x16x32_bf16 {vr(56)}, {ar(aU)}, {vr(vDq)}, 0
    {fo()}
    v_cvt_pk_bf16_f32 v{PB+1}, v{E+2}, v{E+3}
    v_mov_b32_dpp v{PB+2}, v{PB} {dpp}
    v_mfma_f32_16x16x32_bf16 {vr(64)}, {ar(aU+8)}, {vr(vDq)}, 0
    {fo()}
    v_mov_b32_dpp v{PB+3}, v{PB+1} {dpp}
    v_add_f32 v{T}, v{E}, v{E+1}
    v_add_f32 v{T+2}, v{E+2}, v{E+3}
    v_mfma_f32_16x16x32_bf16 {vr(60)}, {vr(vYt+4)}, {vr(PB)}, {vr(60)}
    {fo()}
    v_add_f32 v{T}, v{T}, v{EM}
    v_add_f32 v{T}, v{T}, v{T+2}
    v_mfma_f32_16x16x32_bf16 {vr(56)}, {vr(vYt)}, {vr(PB)}, {vr(56)}
    {one()}
    v_add_f32_dpp v{T+1}, v{T}, v{T} {dpp}
    v_mfma_f32_16x16x32_bf16 {vr(64)}, {vr(vYt+8)}, {vr(PB)}, {vr(64)}
    v_add_f32_dpp v{T+2}, v{T}, v{T} {dpp}
    s_nop 1
    v_permlane16_swap_b32 v{T+1}, v{T+2}
    v_add_f32 v{T}, v{T+1}, v{T+2}
    v_add_f32 v{T+1}, v{T+1}, v{T+2}
    v_mov_b32_dpp v56, v60 {dpc}
    v_mov_b32_dpp v57, v61 {dpc}
    v_permlane32_swap_b32 v{T}, v{T+1}
    v_mov_b32_dpp v58, v62 {dpc}
    v_mov_b32_dpp v59, v63 {dpc}
    ds_write_b128 v{vL16}, {vr(56)} offset:{DB+1536*w}
    v_add_f32 v{T}, v{T}, v{T+1}
    v_rcp_f32 v{T}, v{T}
    v_mov_b32_dpp v64, v66 {dpc}
    v_mov_b32_dpp v65, v67 {dpc}
    ds_write_b32 v26, v{T} offset:{RB+4*w}
    ds_write_b64 v{vD2}, v[64:65] offset:{DB+1536*w+1024}""")
    while yd: a(yd.pop(0))
    if w == 3 and P['kmw'] == 1:
        for s in km_stores(): a(s)
        nw2 += 2
    if w == 3 and P['bpw'] == 1 and not nb_ & 64:
        lq = a.lab('bq')
        a(f's_cmp_le_u32 s{S_STEP}, {P["lag"]}\ns_cbranch_scc1 {lq}_s')
        tail(f'{lq}_s:\ns_waitcnt vmcnt({nw2})\ns_branch {lq}')
        for s in bp_stores(sMw): a(s)
        a(f'{lq}:')
        nw2 += 3
    a(f"""{f's_mov_b64 exec, s[{sEx}:{sEx+1}]' if w >= 2 else ''}
    s_waitcnt lgkmcnt(0)
    s_barrier""")
    a(st(7))
    nxt = [f's_add_u32 s{S_STEP}, s{S_STEP}, 1'] + step_scalars(w)
    if P.get('ywrap'):
        nxt += [f's_cmp_eq_u32 s{S_STEP}, 31', f's_cselect_b32 s{sT0}, {32*32*40960}, 0', f's_cselect_b32 s{sT1}, {32*32*12288}, 0', f's_sub_u32 s{sY}, s{sY}, s{sT0}', f's_sub_u32 s{sK}, s{sK}, s{sT1}']
    if w >= 2:
        a(f'ds_read_b128 {vr(72)}, v24 offset:{RB}')
        for i in range(4): a(f'ds_read_b128 {vr(56+4*i)}, v{vDr} offset:{DB+1536*i}')
        a(f"""s_waitcnt lgkmcnt(3)
        v_pk_mul_f32 v[76:77], v[56:57], v[72:73] op_sel_hi:[1,0]
        v_pk_mul_f32 v[78:79], v[58:59], v[72:73] op_sel_hi:[1,0]
        s_waitcnt lgkmcnt(2)
        v_pk_fma_f32 v[76:77], v[60:61], v[72:73], v[76:77] op_sel:[0,1,0] op_sel_hi:[1,1,1]
        v_pk_fma_f32 v[78:79], v[62:63], v[72:73], v[78:79] op_sel:[0,1,0] op_sel_hi:[1,1,1]
        s_waitcnt lgkmcnt(1)
        v_pk_fma_f32 v[76:77], v[64:65], v[74:75], v[76:77] op_sel_hi:[1,0,1]
        v_pk_fma_f32 v[78:79], v[66:67], v[74:75], v[78:79] op_sel_hi:[1,0,1]
        s_waitcnt lgkmcnt(0)
        v_pk_fma_f32 v[76:77], v[68:69], v[74:75], v[76:77] op_sel:[0,1,0] op_sel_hi:[1,1,1]
        v_pk_fma_f32 v[78:79], v[70:71], v[74:75], v[78:79] op_sel:[0,1,0] op_sel_hi:[1,1,1]
        v_cvt_pk_bf16_f32 v76, v76, v77
        v_cvt_pk_bf16_f32 v77, v78, v79
        v_min_u32 v76, -2, v76""")
        a(W('store_dwordx2', 'v[76:77]', vGst, f's{sG}', 0, 'sc1'))
        a(W('store_dwordx2', 'v[76:77]', vGst, f's{sGL}'))
        a(st(8)); a(st(9))
        a('s_mov_b64 exec, -1')
        for s in ylt: a(s)
        nw2 += max(0, len(ylt)-1)
        if w == 3 and P['kmw'] == 2:
            for s in km_stores(): a(s)
            nw2 += 2
        if w == 3 and P['bpw'] == 2:
            lq = a.lab('bq')
            a(f's_cmp_le_u32 s{S_STEP}, {P["lag"]}\ns_cbranch_scc1 {lq}_s')
            tail(f'{lq}_s:\ns_waitcnt vmcnt({nw2+2})\ns_branch {lq}')
            for s in bp_stores(sMw): a(s)
            a(f'{lq}:')
            nw2 += 3
        a(f's_waitcnt vmcnt({nw2+2})')
        if w == 3:
            for s in pub_reads(): a(s)
            token_part(a, P, kx_copy() + az + nxt + kx_addr() + (thr_next(P) if P['live'] else []))
        if w == 2 and P.get('steptrace'):
            a(f"""s_memrealtime s[8:9]
            s_waitcnt lgkmcnt(0)
            s_mov_b32 m0, s{S_STEP}
            v_accvgpr_read_b32 v40, a240
            s_nop 1
            v_writelane_b32 v40, s8, m0
            s_nop 1
            v_accvgpr_write_b32 a240, v40""")
        if w == 2:
            if fine == 2: a('s_waitcnt vmcnt(2)\n' + st0(9))
            for s in nxt + az: a(s)
        if w == 3 and fine == 2: a('s_waitcnt vmcnt(0)\n' + st0(9))
        a('s_waitcnt lgkmcnt(0)')
    else:
        a(f's_waitcnt vmcnt({nw2}) lgkmcnt(0)')
        if ylt: a('v_mov_b32 v43, v25')
        for s in az: a(s)
        a(f"""s_and_b32 s{sT0}, s{sTag}, 3
        s_mul_i32 s{sMw}, s{sT0}, {M_SLOT}
        s_add_u32 s{sMw}, s{sMw}, s{sMb}
        s_mov_b32 s{sGp}, s{sG}""")
        for s in nxt: a(s)
        if ylt:
            a(f"s_sleep {P['ysl']}")
            for s in ylt: a(s.replace(' v25,', ' v43,'))
            a(f"s_sleep {P['sleep_g']-P['ysl']}")
        elif P['sleep_g']: a(f"s_sleep {P['sleep_g']}")
        a.nop(P['nop_g'])
        dep = P['gdepth']
        gl = lambda r: [W('load_dwordx4', vr(60+8*r), vG0, f's{sGp}', 0, 'sc1'), W('load_dwordx4', vr(64+8*r), vG1, f's{sGp}', 0, 'sc1')]
        lg = a.lab('pg')
        a(st(8))
        for r in range(dep-1):
            for s in gl(r): a(s)
            a.nop(P['ggap'])
        a(f'{lg}:')
        for r in range(dep):
            for s in gl((r+dep-1) % dep): a(s)
            b = 60+8*r
            a(f"""s_waitcnt vmcnt({2*(dep-1)})
            v_mfma_f32_16x16x32_bf16 {vr(56)}, {ar(aSel)}, {vr(b)}, 0
            v_max3_u32 v40, v{b}, v{b+2}, v{b+4}
            v_max_u32 v40, v40, v{b+6}
            v_mfma_f32_16x16x32_bf16 {vr(56)}, {ar(aSel)}, {vr(b+4)}, {vr(56)}
            v_cmp_eq_u32 vcc, -1, v40
            s_nop 4
            s_cbranch_vccz {lg}_ok""")
        a(f"""s_add_u32 s{S_TO}, s{S_TO}, 1
        s_cmp_gt_u32 s{S_TO}, {TO_LIMIT}
        s_cbranch_scc1 L_exit
        s_branch {lg}
        {lg}_ok:
        {st(9)}
        s_mov_b64 exec, s[{sEx}:{sEx+1}]
        v_cvt_pk_bf16_f32 v40, v56, v57
        v_cvt_pk_bf16_f32 v41, v58, v59
        v_min_u32 v40, -2, v40
        v_min_u32 v41, -2, v41""")
        a(W('store_dwordx2', 'v[40:41]', vMst, f's{sMw}'))
        a('s_mov_b64 exec, -1')
    a('s_barrier')
    a(st(10))
    a(P['dump'](a, w))
    a(f's_mov_b32 m0, {MB+1024*own[0]}')
    a.nop(P['dm'])
    a(f's_branch L_rec_{nm}_top0')
    a(f"""L_rec_{nm}_fin:
    s_waitcnt lgkmcnt(0)
    s_barrier""")
    if w == 3:
        for s in pub_reads() + km_stores() + (bp_stores(sMw) if P['bpw'] else []): a(s)
        a('s_waitcnt lgkmcnt(0)')
        for s in u_stores(): a(s)
        if P['live']:
            a(f'v_mov_b32 v{vFd}, 64\ns_waitcnt vmcnt(0)')
            a(W('store_dword', f'v{vFd}', vFa, f's{sFl}', 0, 'sc1'))
    if w == 2 and P.get('steptrace'):
        a(f"""v_accvgpr_read_b32 v40, a240
        v_lshrrev_b32 v41, 2, v{vL16}
        s_lshl_b32 s{sT0}, s{S_X}, 5
        s_add_u32 s{sT0}, s{sT0}, s{S_J}
        s_lshl_b32 s{sT0}, s{sT0}, 8
        s_add_u32 s{sT0}, s{sT0}, {FL_OFF+0x40000}""")
        a(W('store_dword', 'v40', 41, f's{sT0}'))
    a('s_branch L_rec_done')

NOQK = [0]
LAG = [0]
NMAP = [0]
sPn, sKa = 82, 84
sPc = 95
vPt, vLh = 100, 255
def rec_role(a, P):
    NMAP[0] = P['nmap']; NOQK[0] = P.get('noqk', 0); LAG[0] = P['lag'] - (1 if P['pmode'] else 0)
    tail = Asm(); tail.uid = 100000
    a('L_rec:')
    rec_prologue(a, P)
    for w in range(4):
        rec_wave(a, tail, w, P)
    a.lines += tail.lines
    a(f"""L_rec_done:
    s_waitcnt vmcnt(0)
    s_barrier""")
    for s in P['done'](): a(s)
    a('s_branch L_exit')
```

```python
from gen_common import *
import gen_par as gp
import gen_rec as gr

def worker_id(a):
    a(f"""L_tofinal:
    s_and_b32 s{gp.sT0}, s{S_J}, 2
    s_mul_i32 s{gp.sT0}, s{gp.sT0}, 15
    s_add_u32 s{gp.sWk}, s{gp.sH}, s{gp.sT0}
    s_cmp_ge_u32 s{gp.sH}, 30
    s_cbranch_scc1 L_exit""")

def mid_beta(a):
    a(f"""v_and_b32 v12, 3, v{gp.vLn}
    v_lshlrev_b32 v12, 9, v12
    s_lshl_b32 s{gp.sT2}, s{gp.sB}, 11
    s_add_u32 s{gp.sT2}, s{gp.sT2}, {gp.flag_addr(4, 1)}""")
    gp.wait_flags(a, 12, f's{gp.sT2}', 66, sleep=1)

def staged(stage, P, tstamp=True):
    a = Asm(); P = dict(P)
    P.update(frec=0, after_k='s_branch L_exit', after_v='s_branch L_exit', after_y='s_branch L_exit', pre_y=lambda a: None, v_known=100, pre_beta=lambda a: None, mid_beta=mid_beta, r_known=100,
             q_refresh=lambda r: [], q_wait=lambda a, r, pub: None, q_update=lambda r: [], final_wait=lambda a, f: a('s_waitcnt vmcnt(0)'), final_waity=lambda a: a('s_waitcnt vmcnt(0)'), final_refresh=lambda f: [], final_ready=lambda a, f: a(f's_cmp_lt_u32 s{S_STEP}, 64'), y_refresh='', y_update='')
    a('s_memrealtime s[96:97]')
    common_entry(a)
    if stage == 'rec':
        a(f"""s_cmp_lt_u32 s{S_X}, 4
        s_cbranch_scc1 L_rec
        s_cmp_lg_u32 s{S_X}, 4
        s_cbranch_scc1 L_exit
        s_cmp_lg_u32 s{S_WAVE}, 0
        s_cbranch_scc1 L_exit""")
        cal_store(a, S_J); cal_sample(a)
        a('s_branch L_exit')
        rec_role(a, P)
    else:
        a(f's_cmp_lt_u32 s{S_X}, 4\ns_cbranch_scc1 L_exit')
        gp.lanes(a); gp.head_ids(a)
        a(f's_and_b32 s{gp.sT0}, s{S_J}, 3\ns_mov_b32 s{S_STEP}, 0\ns_mov_b32 s{gp.sEnd}, 64\ns_mov_b32 s{gp.sFb}, 2\ns_mov_b32 s{gp.sStr}, 1\ns_mov_b32 s{gp.sDone}, 0')
        tgt = {'s1': ['L_k', 'L_v', 'L_exit', 'L_alpha'], 's2': ['L_exit', 'L_exit', 'L_y', 'L_beta'],
               'q': ['L_exit']*3 + ['L_q'], 'fin': ['L_exit', 'L_tofinal', 'L_tofinal', 'L_exit']}[stage]
        for i in range(3): a(f's_cmp_eq_u32 s{gp.sT0}, {i}\ns_cbranch_scc1 {tgt[i]}')
        a(f's_branch {tgt[3]}')
        if stage == 's1':
            gp.kv_role(a, 'k', P_WK, K_OFF, 'sc1', P); gp.kv_role(a, 'v', P_WV, V_OFF, '', P)
            gp.alpha_role(a, P)
        if stage == 's2':
            gp.y_role(a, P); gp.beta_role(a, P)
        if stage == 'q': gp.q_role(a, P)
        if stage == 'fin':
            worker_id(a); gp.final_role(a, P)
    a(f"""L_exit:
    s_waitcnt vmcnt(0)
    s_memrealtime s[98:99]
    s_memtime s[90:91]
    s_lshl_b32 s94, s{S_X}, 5
    s_add_u32 s94, s94, s{S_J}
    s_lshl_b32 s94, s94, 4
    s_add_u32 s94, s94, {FL_OFF+0x10000}
    s_waitcnt lgkmcnt(0)
    s_sub_u32 s90, s90, s92
    v_mov_b32 v12, s96
    v_mov_b32 v13, s98
    v_mov_b32 v14, s100
    v_mov_b32 v15, s90
    v_mov_b32 v10, 0
    {W('store_dwordx4', 'v[12:15]', 10, 's94')}
    s_waitcnt vmcnt(0)
    s_endpgm""")
    return a

def merged(P, diag=False):
    a = Asm(); P = dict(P)
    P['ufrom'] = 63 - P['lag']; P['qsplit'] = (64 - P['lag']) & ~1
    def pre_beta(a):
        gp.wait_init(a, 128)
        a(f"""v_and_b32 v12, 7, v{gp.vLn}
        v_lshlrev_b32 v12, 9, v12
        v_bfe_u32 v13, v{gp.vLn}, 3, 1
        v_lshl_add_u32 v12, v13, 7, v12
        s_lshl_b32 s{gp.sT2}, s{S_X}, 12
        s_add_u32 s{gp.sT2}, s{gp.sT2}, {FL_OFF}""")
        gp.wait_flags(a, 12, f's{gp.sT2}', 65)
    def pre_q(a):
        if P['help'] & 8:
            l = a.lab('pq')
            a(f's_cmp_lg_u32 s{gp.sFb}, 0\ns_cbranch_scc1 {l}')
            gp.touch_lin(a, P_WQKV, 640*1920*2); gp.touch_lin(a, P_WOA, 640*640*2)
            a(f'{l}:')
        gp.wait_init(a, 128)
    def y_init(a):
        ring_init(a, gp.sH)
        a('s_waitcnt vmcnt(0)\ns_barrier')
    def pre_y(a):
        l = a.lab('cal')
        a(f's_cmp_lg_u32 s{S_WAVE}, 0\ns_cbranch_scc1 {l}')
        cal_sample(a)
        a(f'{l}:\ns_barrier')
        gp.wait_init(a, 128)
    def spin(a, l, sleep):
        a(f"""s_branch {l}_go
        {l}:
        s_sleep {sleep}
        s_add_u32 s{S_TO}, s{S_TO}, 1
        s_cmp_gt_u32 s{S_TO}, {TO_LIMIT}
        s_cbranch_scc1 L_exit
        {l}_go:""")
    def q_wait(a, r, pub):
        l = a.lab('qw')
        a(W('load_dword', f'v{r}', gp.vFa, 0, 0, 'sc1'))
        a('s_waitcnt vmcnt(0)')
        for x in pub: a(x)
        a(f"""v_cmp_ge_u32 vcc, s{S_STEP}, v{r}
        s_cbranch_vccz {l}_ok""")
        spin(a, l, 1)
        a(f"""{W('load_dword', f'v{r}', gp.vFa, 0, 0, 'sc1')}
        s_waitcnt vmcnt(0)
        v_cmp_ge_u32 vcc, s{S_STEP}, v{r}
        s_cbranch_vccnz {l}
        {l}_ok:""")
    def q_update(r):
        L = [f'v_readlane_b32 s{gp.sT0+i}, v{r}, {i}' for i in range(4)] + [f'v_readlane_b32 s{gp.sKl}, v{r}, 4']
        return L + [f's_min_u32 s{gp.sT0}, s{gp.sT0}, s{gp.sT1}', f's_min_u32 s{gp.sT2}, s{gp.sT2}, s{gp.sT3}', f's_min_u32 s{gp.sKn}, s{gp.sT0}, s{gp.sT2}']
    def q_waitk(a, r):
        l = a.lab('qk')
        spin(a, l, 2)
        a(f"""{W('load_dword', f'v{r}', gp.vFa, 0, 0, 'sc1')}
        s_waitcnt vmcnt(0)
        v_readlane_b32 s{gp.sKl}, v{r}, 4
        s_nop 3
        s_cmp_gt_u32 s{gp.sKl}, s{S_STEP}
        s_cbranch_scc0 {l}""")
    def light_wait(a):
        l = a.lab('lw')
        a(f's_add_u32 s{gp.sT1}, s{S_STEP}, {P["lag"]+1+(1 if P["bpw"] else 0)}\ns_mov_b32 s{gp.sT2}, {FL_OFF}\ns_mov_b32 s{gp.sT3}, {FL_OFF+8192}\nv_lshlrev_b32 v204, 7, v{gp.vLn}')
        gp.wait_flags(a, gp.vZ, f's{gp.sFv}', f's{gp.sT1}', tmp=205, sleep=6)
        spin(a, l, 4)
        a(f"""{W('load_dword', 'v205', 204, f's{gp.sT2}', 0, 'sc1')}
        {W('load_dword', 'v206', 204, f's{gp.sT3}', 0, 'sc1')}
        s_waitcnt vmcnt(0)
        v_min_u32 v205, v205, v206
        v_cmp_gt_u32 vcc, s{gp.sT1}, v205
        s_cbranch_vccnz {l}""")
    def light_ready(a):
        a(f"""v_readfirstlane_b32 s{gp.sT0}, v207
        s_add_u32 s{gp.sT1}, s{S_STEP}, {P['lag']+2+(1 if P['bpw'] else 0)}
        s_cmp_lt_u32 s{S_STEP}, {61-P['lag']-(1 if P['bpw'] else 0)}
        s_cselect_b32 s{gp.sT1}, s{gp.sT1}, 999
        s_cmp_ge_u32 s{gp.sT0}, s{gp.sT1}""")
    def wave0(a, f):
        l = a.lab('w0')
        a(f's_cmp_lg_u32 s{S_WAVE}, 0\ns_cbranch_scc1 {l}')
        f()
        a(f'{l}:\ns_waitcnt vmcnt(0)\ns_barrier')
    def final_waity(a):
        a(f's_add_u32 s{gp.sT1}, s{S_STEP}, 1\ns_mov_b32 s{gp.sT2}, 256')
        wave0(a, lambda: gp.wait_flags(a, gp.vFa, f's{gp.sT2}', f's{gp.sT1}', sleep=8))
    def final_wait(a, F):
        def f():
            l = a.lab('fw')
            a(f"""s_and_b32 s{gp.sT0}, s{S_STEP}, 1
            s_cmp_lt_u32 s{S_STEP}, {P['qsplit']}
            s_cselect_b32 s{gp.sT0}, 1, s{gp.sT0}
            s_cmp_lg_u32 s{gp.sT0}, 0
            s_cselect_b32 s{gp.sT1}, 0, 128
            s_cselect_b32 s{gp.sT2}, 384, 0
            s_add_u32 s{gp.sT1}, s{gp.sT1}, s{S_STEP}
            s_mov_b32 exec_hi, 0""")
            spin(a, l, P.get('fsleep', 2))
            a(f"""{W('load_dwordx4', vr(F), gp.vFa, f's{gp.sT2}', 0, 'sc1')}
            s_waitcnt vmcnt(0)
            v_min3_u32 v{F}, v{F}, v{F+1}, v{F+2}
            v_min_u32 v{F}, v{F}, v{F+3}
            v_cmp_ge_u32 vcc, s{gp.sT1}, v{F}
            s_cbranch_vccnz {l}
            s_mov_b32 exec_hi, -1""")
        wave0(a, f)
    def final_pre(a):
        a(f's_sub_u32 s{gp.sFv}, s{gp.sFl}, {128*128}\ns_mov_b32 s{gp.sT2}, 128')
        wave0(a, lambda: gp.wait_flags(a, gp.vFa, f's{gp.sT2}', 67, sleep=8))
    P.update(live=1, ninit=128, after_k='s_branch L_alpha', after_v='s_branch L_alpha', pre_q=pre_q, q_waitk=q_waitk, light_wait=light_wait, light_ready=light_ready, light_refresh=[W('load_dword', 'v207', gp.vZ, f's{gp.sFv}', 0, 'sc1')], after_y='s_branch L_tofinal', pre_y=pre_y, y_init=y_init, v_known=0, pre_beta=pre_beta, mid_beta=mid_beta, r_known=0,
             q_refresh=lambda r: [W('load_dword', f'v{r}', gp.vFa, 0, 0, 'sc1')], q_wait=q_wait, q_update=q_update, final_wait=final_wait, final_waity=final_waity, final_pre=final_pre, y_refresh=W('load_dword', 'v11', gp.vZ, f's{gp.sFv}', 0, 'sc1'), y_update=f'v_readfirstlane_b32 s{gp.sKn}, v11')
    mark = (lambda i: a(f's_memrealtime s[{96+2*i}:{97+2*i}]')) if diag else (lambda i: None)
    ds = P.get('diagspin')
    STAMP = 's_memrealtime s[100:101]\ns_waitcnt lgkmcnt(0)\ns_mov_b32 s98, s100'
    if ds:
        a('s_memrealtime s[96:97]\ns_waitcnt lgkmcnt(0)\ns_mov_b32 s98, s96')
        if ds == 2: P['after_y0'] = STAMP
        if ds == 3: P['done'] = lambda: [STAMP]
        if ds in (5, 6):
            op = 's_memtime' if ds == 5 else 's_memrealtime'
            P['after_y0'] = f'{op} s[100:101]\ns_waitcnt lgkmcnt(0)\ns_mov_b32 s99, s100'
            P['done'] = lambda: [f'{op} s[100:101]\ns_waitcnt lgkmcnt(0)\ns_sub_u32 s100, s100, s99\n' + ('s_mul_hi_u32 s100, s100, 0xaaaaaab\n' if ds == 5 else '') + 's_add_u32 s98, s96, s100']
        if ds == 7: P['done'] = lambda: [f's_mul_i32 s100, s{S_TO}, 100\ns_add_u32 s98, s96, s100']
        P['pstamp'] = lambda i: STAMP if i == ds-10 else ''
        gp.EXP['dsmark'] = (ds-20, STAMP)
    mark(0)
    if diag:
        a('s_mov_b32 s98, 0')
        P['wait_k0'] = lambda: ['s_memrealtime s[98:99]']
        P['after_y0'] = 's_memrealtime s[100:101]\ns_waitcnt lgkmcnt(0)\ns_mov_b32 s97, s100'
        P['done'] = lambda: ['s_memrealtime s[92:93]']
        if P.get('pprof'):
            PR = [8, 10, 12, 14, 26, 28, 30]
            P['pstamp'] = lambda i: f's_memrealtime s[{PR[i]}:{PR[i]+1}]'
            P['done'] = lambda: ['s_memrealtime s[92:93]'] + [f'v_mov_b32 v{24+i}, s{PR[i]}' for i in range(7)] + [f"""s_lshl_b32 s40, s{S_X}, 5
            s_add_u32 s40, s40, s{S_J}
            s_lshl_b32 s40, s40, 5
            s_add_u32 s40, s40, {FL_OFF+0x14000}
            v_mov_b32 v21, 0""", W('store_dwordx4', 'v[24:27]', 21, 's40'), W('store_dwordx4', 'v[28:31]', 21, 's40', 16)]
    common_entry(a, P['touch'])
    a(f's_cmp_lt_u32 s{S_X}, 4\ns_cbranch_scc1 L_rec')
    gp.lanes(a); gp.head_ids(a)
    l = a.lab('ini')
    a(f"""s_cmp_lg_u32 s{S_WAVE}, 0
    s_cbranch_scc1 {l}
    v_lshlrev_b32 v10, 2, v{gp.vLn}
    s_mov_b64 exec, 15
    {W('store_dword', f'v{gp.vZ}', 10, f's{gp.sFl}', 0, 'sc1')}
    s_mov_b64 exec, -1
    s_and_b32 s{gp.sT0}, s{S_J}, 3
    s_cmp_lg_u32 s{gp.sT0}, 2
    s_cbranch_scc1 {l}""")
    cal_store(a, gp.sH)
    a(f'{l}:')
    if P['help']:
        a(f's_and_b32 s{gp.sT3}, s{S_J}, 3')
        gp.touch_rows(a, P_WV, f's{gp.sT3}', 4)
    a(f"""s_and_b32 s{gp.sT0}, s{S_J}, 3
    s_cmp_eq_u32 s{gp.sT0}, 0
    s_cbranch_scc1 L_k
    s_cmp_eq_u32 s{gp.sT0}, 1
    s_cbranch_scc1 L_v
    s_cmp_eq_u32 s{gp.sT0}, 2
    s_cbranch_scc1 L_y""")
    gp.init_done(a, P)
    if P['help']:
        a('s_waitcnt vmcnt(0)\ns_barrier')
        gp.touch_x(a)
        if P['help'] & 2:
            gp.touch_rows(a, P_WK, 1, 2)
            a('s_waitcnt vmcnt(0)\ns_barrier')
        if P['help'] & 4: gp.touch_rows(a, P_WQ, 0, 2)
    a(f"""s_mov_b32 s{S_STEP}, 0
    s_mov_b32 s{gp.sEnd}, {P['qsplit']}
    s_mov_b32 s{gp.sFb}, 0
    s_mov_b32 s{gp.sStr}, 1
    s_branch L_toq
    L_k2q:
    s_mov_b32 s{S_STEP}, {P['qsplit']}
    s_mov_b32 s{gp.sEnd}, 64
    s_mov_b32 s{gp.sFb}, 128
    s_mov_b32 s{gp.sStr}, 2
    L_toq:
    s_mov_b32 s{gp.sDone}, 0""")
    mark(1)
    a(f"""s_lshl_b32 s{gp.sT0}, s{gp.sH}, 2
    v_add_u32 v{gp.vFa}, s{gp.sT0}, v{gp.vLn}
    s_add_u32 s{gp.sT0}, s{gp.sT0}, 128
    v_mov_b32 v10, s{gp.sT0}
    v_cmp_gt_u32 vcc, 4, v{gp.vLn}
    s_nop 1
    v_cndmask_b32 v{gp.vFa}, v10, v{gp.vFa}, vcc
    v_lshlrev_b32 v{gp.vFa}, 7, v{gp.vFa}
    v_add_u32 v{gp.vFa}, {FL_OFF}, v{gp.vFa}""")
    gp.q_role(a, P)
    a(f"""s_cmp_eq_u32 s{gp.sStr}, 2
    s_cbranch_scc1 L_exit
    s_mov_b32 s{S_STEP}, {P['qsplit']+1}
    s_mov_b32 s{gp.sEnd}, 64
    s_mov_b32 s{gp.sStr}, 2
    s_branch L_q_again""")
    gp.kv_role(a, 'k', P_WK, K_OFF, 'sc1', P); gp.kv_role(a, 'v', P_WV, V_OFF, '', P)
    gp.y_role(a, P)
    gp.alpha_role(a, P)
    a(f's_bitcmp0_b32 s{S_J}, 0\ns_cbranch_scc1 L_k2q')
    gp.beta_role(a, P)
    worker_id(a)
    mark(1)
    gp.final_role(a, P)
    a('L_exit:')
    if ds:
        a(f"""s_cmp_lg_u32 s{S_WAVE}, 3
        s_cbranch_scc1 L_nosp
        s_cmp_ge_u32 s{S_J}, 32
        s_cbranch_scc1 L_nosp
        s_sub_u32 s95, s98, s96
        s_add_u32 s95, s95, {P.get('dlen', 30000)}
        L_dspin:
        s_sleep 8
        s_memrealtime s[100:101]
        s_waitcnt lgkmcnt(0)
        s_sub_u32 s100, s100, s96
        s_cmp_lt_u32 s100, s95
        s_cbranch_scc1 L_dspin
        L_nosp:""")
    if P.get('wbx'):
        a(f's_cmp_lg_u32 s{S_WAVE}, 0\ns_cbranch_scc1 L_nowb\ns_waitcnt vmcnt(0)\nbuffer_wbl2 sc1\nL_nowb:')
    if diag:
        a(f"""s_waitcnt vmcnt(0)
        s_cmp_lg_u32 s{S_WAVE}, 3
        s_cbranch_scc1 L_exit2
        s_memrealtime s[100:101]
        s_lshl_b32 s94, s{S_X}, 5
        s_add_u32 s94, s94, s{S_J}
        s_lshl_b32 s94, s94, 4
        s_add_u32 s94, s94, {FL_OFF+0x10000}
        s_waitcnt lgkmcnt(0)
        v_mov_b32 v12, s96
        v_mov_b32 v13, s98
        v_mov_b32 v14, s100
        v_mov_b32 v15, s{S_TO}
        v_mov_b32 v10, 0
        {W('store_dwordx4', 'v[12:15]', 10, 's94')}
        v_mov_b32 v16, s97
        v_mov_b32 v17, s92
        s_add_u32 s94, s94, 0x2000
        {W('store_dwordx2', 'v[16:17]', 10, 's94')}
        L_exit2:""")
    a('s_waitcnt vmcnt(0)\ns_endpgm')
    rec_role(a, P)
    a('L_code_end:')
    return a

KNAME = 'gated_mix__linear_attn_block__memory_aug_recurrent_mem_tr__prompt_kernel'
def final_text(P):
    ref = open('gated_mix__linear_attn_block__memory_aug_recurrent_mem_tr__prompt.s.ref').read()
    top = ''.join(l+'\n' for l in ref.split('\n') if l.startswith(';') and '@launch' not in l)
    return top + head(KNAME, 163840) + merged(P).text() + KD.format(name=KNAME)
if __name__ == '__main__':
    import sys
    out = sys.argv[1] if len(sys.argv) > 1 else 'gated_mix__linear_attn_block__memory_aug_recurrent_mem_tr__prompt.s'
    P = dict(DEFP)
    for spec in sys.argv[2:]:
        for kv in spec.split(','):
            k, v = kv.split('='); P[k] = int(v)
    open(out, 'w').write(final_text(P))
```

```python
from asmb import *
from lay import *
from gen_rec import *

def common_entry(a, touch=False):
    a(f"""s_load_dwordx16 s[8:23], s[0:1], 0
    s_load_dwordx8 s[24:31], s[0:1], 64
    s_load_dwordx4 s[32:35], s[0:1], 96
    s_getreg_b32 s{S_X}, hwreg(HW_REG_XCC_ID, 0, 3)
    v_lshrrev_b32 v1, 6, v0
    s_mov_b32 s{S_TO}, 0
    v_readfirstlane_b32 s{S_WAVE}, v1
    s_waitcnt lgkmcnt(0)
    s_add_u32 s{P_WS}, s{P_WS}, 0x1fffff
    s_addc_u32 s{P_WS+1}, s{P_WS+1}, 0
    s_and_b32 s{P_WS}, s{P_WS}, 0xffe00000""")
    srd(a, SRD_W, P_WS, WS_USED)
    srd(a, SRD_D, P_DBG, 256)
    lab = a.lab('tk')
    a(f"""v_mov_b32 v1, 0
    s_cmp_lg_u32 s{S_WAVE}, 0
    s_cbranch_scc1 {lab}
    s_lshl_b32 s{S_J}, s{S_X}, 5
    v_mov_b32 v2, s{S_J}
    v_mov_b32 v3, 1
    s_mov_b64 exec, 1
    buffer_atomic_add v3, v2, s[{SRD_D}:{SRD_D+3}], 0 offen offset:{DBG_TICK} sc0 sc1
    s_mov_b64 exec, -1""")
    if touch & 4:
        a(f"""s_getpc_b64 s[52:53]
        L_here:
        s_lshr_b32 s54, s2, 3
        s_and_b32 s54, s54, 15
        s_lshl_b32 s54, s54, 13
        v_lshl_add_u32 v4, v0, 7, s54
        v_min_u32 v4, L_code_end-L_here-4, v4
        v_mov_b32 v5, s53
        v_add_co_u32 v4, vcc, s52, v4
        s_nop 1
        v_addc_co_u32 v5, vcc, 0, v5, vcc
        global_load_dword v255, v[4:5], off""")
    if touch:
        srd(a, SRD_A, P_WO, 32*192*640*2)
        a(f"""s_lshr_b32 s52, s2, 3
        s_and_b32 s52, s52, 31
        s_and_b32 s53, s{S_X}, {3 if touch & 8 else 7}
        s_lshl_b32 s53, s53, 5
        s_add_u32 s52, s52, s53
        s_mul_i32 s52, s52, 61440
        v_min_u32 v4, 59, v0
        v_lshlrev_b32 v4, 7, v4""")
        for i in range(8):
            a(f'buffer_load_dword v255, v4, s[{SRD_A}:{SRD_A+3}], s52 offen\ns_add_u32 s52, s52, 7680')
    if touch & 2:
        a(f"""v_lshlrev_b32 v4, 21, v0
        s_mov_b32 s52, {64 << 21}
        buffer_load_dword v255, v4, s[{SRD_W}:{SRD_W+3}], 0 offen
        buffer_load_dword v255, v4, s[{SRD_W}:{SRD_W+3}], s52 offen""")
    a(f"""s_waitcnt vmcnt({(8 if touch else 0) + (touch & 2) + (1 if touch & 4 else 0)})
    s_mov_b64 exec, 1
    ds_write_b32 v1, v3
    s_mov_b64 exec, -1
    s_waitcnt lgkmcnt(0)
    {lab}:
    s_barrier
    ds_read_b32 v2, v1
    s_waitcnt lgkmcnt(0)
    v_readfirstlane_b32 s{S_J}, v2
    s_barrier
    s_cmp_ge_u32 s{S_J}, 32
    s_cbranch_scc1 L_exit""")

def ring_init(a, sidx):
    a(f"""v_mbcnt_lo_u32_b32 v11, -1, 0
    v_mbcnt_hi_u32_b32 v11, -1, v11
    v_lshlrev_b32 v11, 4, v11
    v_mov_b32 v12, -1
    v_mov_b32 v13, -1
    v_mov_b32 v14, -1
    v_mov_b32 v15, -1
    s_lshl_b32 s80, s{sidx}, 2
    s_add_u32 s80, s80, s{S_WAVE}
    s_lshl_b32 s81, s80, 10""")
    for off in [G_OFF + 0x20000*i for i in range(6)] + [M_OFF, S_OFF]:
        a(f's_add_u32 s82, s81, {off}')
        a(W('store_dwordx4', 'v[12:15]', 11, 's82', 0, 'sc1'))
    a(f"""s_lshl_b32 s82, s80, 8
    s_add_u32 s82, s82, {M_OFF + 0x20000}
    s_mov_b64 exec, 0xffff""")
    a(W('store_dwordx4', 'v[12:15]', 11, 's82', 0, 'sc1'))
    a(f"""s_lshl_b32 s81, s80, 8
    s_add_u32 s82, s81, {FL_OFF}
    v_mov_b32 v16, 0
    v_mov_b32 v17, 0
    v_mov_b32 v18, 0
    v_mov_b32 v19, 0""")
    a(W('store_dwordx4', 'v[16:19]', 11, 's82', 0, 'sc1'))
    a('s_mov_b64 exec, -1')

def cal_store(a, sidx):
    a(f"""v_mbcnt_lo_u32_b32 v11, -1, 0
    v_and_b32 v12, 1, v11
    v_lshlrev_b32 v12, 7, v12
    v_bfe_u32 v13, v11, 1, 1
    v_lshl_add_u32 v12, v13, 13, v12
    s_lshl_b32 s86, s{sidx}, 8
    s_add_u32 s86, s86, {CAL_OFF}
    s_mov_b64 exec, 15""")
    a(W('store_dword', 'v11', 12, 's86', 0, 'sc1'))
    a('s_mov_b64 exec, -1')

def cal_sample(a, ns=2):
    a("""s_waitcnt vmcnt(0)
    s_mov_b32 s80, 0xffff
    s_mov_b32 s81, 0xffff
    v_mov_b32 v12, 0""")
    for i in range(ns):
        for p in range(2):
            a(f"""s_add_u32 s87, s86, {8192*p + 128*i}
            s_memtime s[82:83]
            s_waitcnt lgkmcnt(0)""")
            a(W('load_dword', 'v13', 12, 's87', 0, 'sc1'))
            a(f"""s_waitcnt vmcnt(0)
            s_memtime s[84:85]
            s_waitcnt lgkmcnt(0)
            s_sub_u32 s82, s84, s82
            s_min_u32 s{80+p}, s{80+p}, s82""")
    a(f"""s_cmp_lt_u32 s80, s81
    s_cselect_b32 s80, 1, 0
    s_or_b32 s80, s80, 0x10000
    v_mov_b32 v11, s80
    s_mov_b64 exec, 1
    buffer_atomic_add v11, v12, s[{SRD_D}:{SRD_D+3}], 0 offen offset:{DBG_PAR} sc1
    s_mov_b64 exec, -1""")

KD = """
.section .rodata,"a"
.p2align 6
.amdhsa_kernel {name}
  .amdhsa_next_free_vgpr 512
  .amdhsa_next_free_sgpr 102
  .amdhsa_accum_offset 256
  .amdhsa_group_segment_fixed_size 0
  .amdhsa_kernarg_size 112
  .amdhsa_user_sgpr_count 2
  .amdhsa_user_sgpr_kernarg_segment_ptr 1
  .amdhsa_system_sgpr_workgroup_id_x 1
.end_amdhsa_kernel
"""
def head(name, lds):
    return f"""; @launch grid=(256,1,1) block=(256,1,1) lds={lds}
.amdgcn_target "amdgcn-amd-amdhsa--gfx950"
.text
.globl {name}
.p2align 8
.type {name},@function
{name}:
"""
import struct, math
def fbits(x): return '0x%08x' % struct.unpack('<I', struct.pack('<f', x))[0]
DEFP = dict(cexp=fbits(192**-0.5 * math.log2(math.e)), ninit=0, live=0, qsplit=56, lag=6, bpw=2, epro=1, nmap=0, smpf=0, smpos=5, ylate=1, ysl=1, fsm=40, glown=0, pmode=0, yw1=0, ew1=0, ew1gap=8, ew2=0, kmw=0, fshare=42, flight=2, w1ord=2, ufrom=56, asplit=18, pk0=10, pkb=28, touch=5, calq=0, ncal=2, prio=1, touchv=0, wnt=0, help=9, own_before=0, khold=3, xpre=4, b2in=0, warm=0, b2a=1, b2c=1, u_early=2, u_pre=6, spos_s=22, spos_o=22,
            sgap_s=0, sgap_o=0, sdepth=1, mdepth=2, mgap=12, yspread=0,
            sleep_g=7, nop_g=4, gdepth=3, ggap=48, dm=32,
            wait_k0=lambda: [], wait_k=lambda: [], wait_y=lambda w: [], wait_y0=lambda w: [], progress=lambda w: [], done=lambda: [], stamp=lambda i: '', dump=lambda a, w: '')
```

```python
from asmb import *
from lay import *
S_WAVE, S_X, S_J, S_STEP, S_TO = 3, 4, 5, 6, 7
P_X, P_WQKV, P_WOA, P_MEM0, P_WQ, P_WK, P_WV, P_WO, P_GATE, P_OUT, P_DBG, P_WS = 8, 10, 12, 16, 18, 20, 22, 24, 28, 30, 32, 34
SRD_W = 36
SRD_A = 40
SRD_B = 44
SRD_D = 48
TO_LIMIT = 400000
sMr, sMw, sMp, sSw, sSr, sG, sGL, sGp, sGLp, sY, sK, sU, sKm = range(52, 65)
sTag, sTag3, sC, sT0, sT1, sT2, sPar = range(65, 72)
sSelT1, sSelT2, sSelU1, sSelU2 = range(72, 76)
sHalf = 76
sEx   = 78
sExLo = 80
sH, sCg, sHs, sCs = 82, 83, 84, 85
sGb, sMb = 86, 87
sKnY, sKnK, sFy, sFk, sFl = 90, 91, 92, 93, 94
vFk, vFd, vFa, vFp, vKc, vKd = 101, 102, 103, 184, 185, 186
vBP = 228
sExK = 34
sSelT3 = 89
sC2 = 88
MB, QB, KB, DB, RB, UB = 0, 10240, 11264, 13312, 19456, 19968
RING0, SLOT, NSLOT = 23040, 15360, 9
sYr, sYw, sYo, sPx, sBp, sBad, sLo = 45, 46, 47, 44, 67, 90, 32
vPF, vPM8, vTA, vThr, vL4k = 188, 220, 228, 187, 183
vL16, vIdx, vQw, vY = 0, 1, 2, 3
vKw, vD2 = 4, 5
vDr, vGst = 6, 7
vG0, vG1 = 6, 7
vUP = 8
vAq, vAk = 16, 20
vUa = 24
SETA, SETB = [16, 20, 36, 40], [80, 84, 88, 92]
vYt = 44
vMF = 56
vWq, vWk = 96, 176
aSel = 240
aU = 244
vMst, vDq = 8, 12
vQr, vKr, vPG, vPM, vL8 = 96, 97, 98, 99, 100
vNeg = 104
vKF = 108
vKS = 124
vQf, vKf = 136, 144
vD0, vD1, vDm, vPk = 152, 156, 160, 164
vPU, vPK = 168, 180
OWN = [[0,1,2],[3,4,5],[6,7,8],[9]]

def srd(a, base, ptr, nbytes):
    a(f"""s_mov_b32 s{base}, s{ptr}
    s_and_b32 s{base+1}, s{ptr+1}, 0xffff
    s_mov_b32 s{base+2}, {nbytes}
    s_mov_b32 s{base+3}, 0x20000""")

def W(op, data, va, so, off=0, fl=''):
    return f'buffer_{op} {data}, v{va}, s[{SRD_W}:{SRD_W+3}], {so} offen offset:{off} {fl}'.rstrip()

def retry(a, tail, lab_retry, lab_back):
    tail(f"""{lab_retry}:
    s_add_u32 s{S_TO}, s{S_TO}, 1
    s_cmp_gt_u32 s{S_TO}, {TO_LIMIT}
    s_cbranch_scc0 {lab_back}
    s_branch L_exit""")

def build_sel(a, dst, vn, vg, goff, tmp):
    a(f"""v_and_b32 v{tmp}, 1, v{vn}
    v_lshlrev_b32 v{tmp}, 4, v{tmp}
    v_mov_b32 v{tmp+1}, 0x3f80
    v_lshlrev_b32 v{tmp}, v{tmp}, v{tmp+1}
    v_lshrrev_b32 v{tmp+1}, 1, v{vn}
    v_add_u32 v{tmp+1}, {4*goff}, v{tmp+1}
    v_lshlrev_b32 v{tmp+2}, 2, v{vg}
    v_sub_u32 v{tmp+1}, v{tmp+1}, v{tmp+2}""")
    for r in range(4):
        a(f"""v_cmp_eq_u32 vcc, {r}, v{tmp+1}
        s_nop 1
        v_cndmask_b32 v{dst+r}, 0, v{tmp}, vcc""")

def phys(a, v, tmp):
    a(f"""v_lshrrev_b32 v{tmp}, 13, v{v}
    v_lshl_add_u32 v{v}, v{tmp}, 13, v{v}""")

def dma(srdb, va, so, fl=''):
    return f'buffer_load_dwordx4 v{va}, s[{srdb}:{srdb+3}], {so} offen {fl} lds'

def rec_prologue(a, P):
    n, g, ln = 60, 61, 62
    a(f"""v_and_b32 v{ln}, 63, v0
    v_and_b32 v{n}, 15, v{ln}
    v_lshrrev_b32 v{g}, 4, v{ln}
    v_lshlrev_b32 v{vL16}, 4, v{ln}
    s_and_b32 s{sT0}, s{S_J}, 1
    s_lshl_b32 s{sT0}, s{sT0}, 2
    s_add_u32 s{sT0}, s{sT0}, s{S_WAVE}
    s_lshl_b32 s{sH}, s{S_X}, 3
    s_add_u32 s{sH}, s{sH}, s{sT0}
    s_lshr_b32 s{sCg}, s{S_J}, 1
    s_lshr_b32 s{sHs}, s{S_J}, 2
    s_and_b32 s{sCs}, s{S_J}, 3
    s_lshl_b32 s{sT1}, s{S_X}, 3
    s_add_u32 s{sHs}, s{sHs}, s{sT1}
    s_lshl_b32 s{sT1}, s{S_X}, 5
    s_add_u32 s{sT1}, s{sT1}, s{S_J}
    s_mul_i32 s{sGb}, s{sT1}, 768
    s_lshl_b32 s{sSw}, s{sT1}, 10
    s_add_u32 s{sSw}, s{sSw}, {S_OFF}
    s_lshl_b32 s{sSr}, s{sH}, 12
    s_add_u32 s{sSr}, s{sSr}, {S_OFF}
    s_mov_b32 s{sSelT1}, 0x0c0c0400
    s_mov_b32 s{sSelT2}, 0x0c040100
    s_mov_b32 s{sSelT3}, 0x04020100
    s_mov_b32 s{sSelU1}, 0x0c04000c
    s_mov_b32 s{sSelU2}, 0x0402010c
    s_mov_b32 s{sC2}, {P['cexp']}
    s_mov_b32 s{sHalf}, 0xff00ff00
    s_mov_b32 s{sHalf+1}, 0xff00ff00
    s_mov_b32 s{sExK}, 0x33333333
    s_mov_b32 s{sExK+1}, 0x33333333
    s_mov_b32 s{sExLo}, 0x00ff00ff
    s_mov_b32 s{sExLo+1}, 0x00ff00ff
    s_mul_i32 s{sMb}, s{S_X}, 10240
    s_add_u32 s{sMb}, s{sMb}, {M_OFF}""")
    ps = P.get('pstamp', lambda i: '')
    a(ps(0))
    NB = 4; WB = NB*6144; IMG = 4*WB
    frag = [8+4*i for i in range(12)] + [64+4*i for i in range(6)]
    F = lambda tc, kap: frag[tc*6+kap]
    if P['epro']:
        srd(a, SRD_A, P_MEM0, 8*640*2)
        a(f"""v_min_u32 v56, 19, v{ln}
        v_lshlrev_b32 v56, 7, v56
        s_mul_i32 s{sT0}, s{S_WAVE}, 2560
        buffer_load_dword v255, v56, s[{SRD_A}:{SRD_A+3}], s{sT0} offen""")
    srd(a, SRD_A, P_WO, 32*192*640*2)
    srd(a, SRD_B, P_WV, 640*6144*2)
    a(f"""v_mul_u32_u24 v56, 0x3334, v{ln}
    v_lshrrev_b32 v56, 16, v56              ; lane/5
    v_mul_u32_u24 v57, 5, v56
    v_sub_u32 v57, v{ln}, v57
    v_mul_u32_u24 v56, 1280, v56
    v_lshl_add_u32 v56, v57, 4, v56
    s_mul_i32 s{sT0}, s{sH}, {192*1280}
    s_mul_i32 s{sT1}, s{sCg}, 80
    s_add_u32 s{sT0}, s{sT0}, s{sT1}
    s_mul_i32 s{sMr}, s{S_WAVE}, 15360
    s_add_u32 s{sMr}, s{sMr}, {IMG}
    s_mov_b32 s{sEx}, -1
    s_mov_b32 s{sEx+1}, 0x0fffffff
    s_mov_b64 exec, s[{sEx}:{sEx+1}]""")
    for i in range(16):
        a(f"""s_add_u32 m0, s{sMr}, {960*i}
        s_add_u32 s{sT1}, s{sT0}, {12*i*1280}
        {dma(SRD_A, 56, f's{sT1}')}""")
    a('s_mov_b64 exec, -1')
    if P['touchv']:
        a(f"""s_lshl_b32 s{sT0}, s{S_J}, 2
        s_add_u32 s{sT0}, s{sT0}, s{S_WAVE}
        s_mul_i32 s{sT0}, s{sT0}, {5*12288}
        s_mul_i32 s{sT1}, s{S_X}, 3072
        s_add_u32 s{sT0}, s{sT0}, s{sT1}""")
        for i in range(2):
            a(f"""v_min_u32 v57, 59, v{ln}
            v_add_u32 v57, {60*i}, v57
            v_mul_u32_u24 v58, 0xaab, v57
            v_lshrrev_b32 v58, 16, v58
            v_mul_u32_u24 v59, 24, v58
            v_sub_u32 v57, v57, v59
            v_mul_u32_u24 v58, 12288, v58
            v_lshl_add_u32 v57, v57, 7, v58
            buffer_load_dword v255, v57, s[{SRD_B}:{SRD_B+3}], s{sT0} offen""")
    if P['live']:
        a(f"""s_lshl_b32 s{sFl}, s{S_X}, 5
        s_add_u32 s{sFl}, s{sFl}, s{S_J}
        s_lshl_b32 s{sFl}, s{sFl}, 7
        s_add_u32 s{sFl}, s{sFl}, {FL_OFF}
        s_lshl_b32 s{sFy}, s{sH}, 9
        s_add_u32 s{sFy}, s{sFy}, {FL_OFF + (128+2)*128}
        s_lshl_b32 s{sFk}, s{sHs}, 9
        s_add_u32 s{sFk}, s{sFk}, {FL_OFF + 128*128}""")
    a(f"""v_lshrrev_b32 v58, 3, v{ln}
    v_bfe_u32 v57, v58, 1, 1
    v_lshlrev_b32 v56, 3, v57
    v_bfe_u32 v57, v58, 2, 1
    v_lshl_add_u32 v56, v57, 2, v56
    v_and_b32 v57, 1, v58
    v_add_u32 v56, v56, v57
    v_mul_u32_u24 v56, 12288, v56
    v_lshrrev_b32 v58, 1, v58
    v_and_b32 v57, 7, v{ln}
    v_xor_b32 v57, v57, v58
    v_lshl_add_u32 v1, v57, 4, v56          ; rows 0..7
    v_xor_b32 v57, 4, v57
    v_lshl_add_u32 v2, v57, 4, v56
    v_add_u32 v2, {16*12288}, v2            ; rows 8..15
    s_mul_i32 s{sT2}, s{S_WAVE}, {WB}
    s_mul_i32 s{sMw}, s{sH}, 384""")
    Q = []
    cfl = ('', 'sc1', 'nt')[P.get('cfl', 0)]
    def cload(tau):
        if tau >= 40: return []
        t, v = tau >> 2, tau & 3
        L = [(None, f's_add_u32 s{sT1}, s{sMw}, {(64*t+32*(v>>1)+2*(v&1))*12288}')]
        for k in range(6):
            L += [(None, f's_add_u32 m0, s{sT2}, {6144*(tau % NB)+1024*k-128*(k%3)}'),
                  (('c', tau), f'buffer_load_dwordx4 v{1 if k < 3 else 2}, s[{SRD_B}:{SRD_B+3}], s{sT1} offen offset:{128*(k%3)} {cfl} lds')]
        return L
    def put(it, pad=False):
        if it[0]:
            Q.append(it[0])
            if pad: a('s_nop 0')
        a(it[1])
    def younger(tag): return min(63, len(Q) - 1 - max(i for i, x in enumerate(Q) if x == tag))
    for tau in range(NB):
        for it in cload(tau): put(it, True)
    a(f"""v_lshrrev_b32 v56, 3, v{n}
    v_mul_u32_u24 v56, 3072, v56
    v_and_b32 v57, 7, v{n}
    v_lshl_add_u32 v56, v57, 7, v56
    v_add_u32 v56, s{sT2}, v56
    v_lshrrev_b32 v57, 1, v{n}
    v_xor_b32 v57, v57, v{g}
    v_lshl_add_u32 v3, v57, 4, v56
    v_xor_b32 v57, 4, v57
    v_lshl_add_u32 v4, v57, 4, v56""")
    for i in range(3):
        a(f"""v_add_u32 v57, {64*i}, v{ln}
        v_mul_u32_u24 v56, 0x2aab, v57
        v_lshrrev_b32 v56, 16, v56
        v_mul_u32_u24 v58, 6, v56
        v_sub_u32 v57, v57, v58
        v_mul_u32_u24 v56, 12288, v56
        v_lshl_add_u32 v{5+i}, v57, 4, v56""")
    a(f"""s_mul_i32 s{sMp}, s{sHs}, 384
    s_mul_i32 s{sT0}, s{sCs}, 96
    s_add_u32 s{sMp}, s{sMp}, s{sT0}
    s_mul_i32 s{sT0}, s{S_WAVE}, {160*12288}
    s_add_u32 s{sMp}, s{sMp}, s{sT0}""")
    def wload(tag, i):
        return [(None, f's_add_u32 m0, s{sMr}, {1024*i}'), (None, f's_add_u32 s{sT0}, s{sMp}, {32*(i//3)*12288}'),
                (tag, dma(SRD_A, 5 + i % 3, f's{sT0}', 'nt' if P['wnt'] else ''))] if not (P.get('nowk') and i > 0) else []
    a(f"""v_lshrrev_b32 v56, 2, v{n}
    v_lshl_add_u32 v56, v{g}, 3, v56
    v_mul_u32_u24 v56, 80, v56
    v_add_u32 v56, s{sMr}, v56
    v_and_b32 v57, 1, v{n}
    v_lshl_add_u32 v58, v57, 3, v56
    v_and_b32 v57, 3, v{n}
    v_lshl_add_u32 v56, v57, 3, v56
    s_waitcnt vmcnt({len(Q)})""")
    a(ps(1))
    for kap in range(6):
        for v in range(2):
            for tc in range(3):
                a(f'ds_read_b64_tr_b16 {vr(F(tc,kap)+2*v,2)}, v{56 if tc < 2 else 58} offset:{(32*kap+4*v)*80+32*tc}')
        a('s_waitcnt lgkmcnt(6)')
    srd(a, SRD_A, P_WK, 640*6144*2)
    a(f"""v_lshrrev_b32 v88, 1, v{g}
    v_lshlrev_b32 v88, 4, v88
    v_and_b32 v57, 1, v{g}
    v_lshl_add_u32 v88, v57, 2, v88
    v_bfe_u32 v57, v{n}, 2, 1
    v_add_u32 v88, v88, v57
    v_lshrrev_b32 v57, 3, v{n}
    v_lshl_add_u32 v88, v57, 3, v88
    v_mul_u32_u24 v88, 96, v88
    v_and_b32 v57, 3, v{n}
    v_lshl_add_u32 v88, v57, 3, v88
    s_min_u32 s{sT0}, s{S_WAVE}, 2
    s_lshl_b32 s{sT0}, s{sT0}, 5
    s_add_u32 s{sT0}, s{sT0}, {IMG}
    v_add_u32 v88, s{sT0}, v88
    """)
    a(ps(2))
    def trd(base):
        return [f'ds_read_b64_tr_b16 {vr(base+2*i,2)}, v88 offset:{(64*(i>>2) + 32*((i&3) >> 1) + 2*(i & 1))*96}' for i in range(40)]
    AF = lambda tau, k: 96 + 24*(tau & 1) + 4*k
    AC = lambda tau, tc: 144 + 12*(tau & 1) + 4*tc
    rd = lambda tau, k: f'ds_read_b128 {vr(AF(tau,k))}, v{3 + (k & 1)} offset:{6144*(tau % NB) + 1024*(k >> 1)}'
    def cstore(tau):
        t, v = tau >> 2, tau & 3
        L = []
        for tc in range(3):
            d = (tc*10+t)*8 + 2*v; ac = AC(tau, tc)
            L += [f'v_cvt_pk_bf16_f32 v{168+2*tc}, v{ac}, v{ac+1}', f'v_cvt_pk_bf16_f32 v{169+2*tc}, v{ac+2}, v{ac+3}',
                  f'v_accvgpr_write_b32 a{d}, v{168+2*tc}', f'v_accvgpr_write_b32 a{d+1}, v{169+2*tc}']
        return L
    a(f"s_waitcnt vmcnt({younger(('c', 0))}) lgkmcnt(0)\ns_barrier")
    for k in range(6): a(rd(0, k))
    k0, kb, q0 = P['pk0'], P['pkb'], P['pkb']+3
    ktr = trd(vWk)
    for tau in range(40):
        a('s_waitcnt lgkmcnt(0)')
        if tau == 10: a(ps(5))
        if tau == kb: a(ps(6))
        if tau == kb:
            a(f"s_waitcnt vmcnt({younger('k')})\ns_barrier")
        if tau == q0:
            a('s_barrier')
            srd(a, SRD_A, P_WQ, 640*6144*2)
        first = cload(tau+NB)
        if tau == 37 and P['epro']:
            first += [('i', f'buffer_load_dword v89, v56, s[{SRD_D}:{SRD_D+3}], 0 offen offset:{DBG_INIT} sc1'),
                      ('i', f'buffer_load_dword v92, v56, s[{SRD_D}:{SRD_D+3}], 0 offen offset:{DBG_PAR} sc1')]
        if tau == 1: first += [(None, 'v_mov_b32 v56, 0')]
        if k0 <= tau < k0+15: first += wload('k', tau-k0)
        if tau >= q0:
            for i in (2*(tau-q0), 2*(tau-q0)+1):
                if i < 15: first += wload('q', i)
        mm = []
        for k in range(6):
            for tc in range(3):
                d = vr(AC(tau, tc))
                mm.append(f'v_mfma_f32_16x16x32_bf16 {d}, {vr(AF(tau,k))}, {vr(F(tc,k))}, {"0" if k == 0 else d}')
        if P.get('nomm'): mm = ['s_nop 0']*18
        second = cstore(tau-1) if tau > 0 else []
        nk = 0
        for i, m in enumerate(mm):
            a(m)
            if i < 10:
                for _ in range(2):
                    if first:
                        it = first.pop(0); put(it)
                        if 'm0' in it[1] and first and first[0][0]: break
                if kb <= tau < q0 and i < 7:
                    for _ in range(2):
                        if ktr: a(ktr.pop(0)); nk += 1
                if i == 9:
                    while first: put(first.pop(0), True)
                    if tau < 39: a(f"s_waitcnt vmcnt({younger(('c', tau+1))})" + (' lgkmcnt(6)' if nk else ''))
            else:
                if tau < 39 and i-10 < 6: a(rd(tau+1, i-10))
            if i >= 8:
                for _ in range(1 if i < 16 else 2):
                    if second: a(second.pop(0))
        while second: a(second.pop(0))
    assert not ktr
    a(ps(3))
    a.nop(8)
    for s in cstore(39): a(s)
    lp = a.lab('wini')
    a(f"""{f's_branch {lp}_c' if P['epro'] else ''}
    {lp}:
    buffer_load_dword v89, v56, s[{SRD_D}:{SRD_D+3}], 0 offen offset:{DBG_INIT} sc1
    buffer_load_dword v92, v56, s[{SRD_D}:{SRD_D+3}], 0 offen offset:{DBG_PAR} sc1
    s_add_u32 s{S_TO}, s{S_TO}, 1
    s_cmp_gt_u32 s{S_TO}, {TO_LIMIT}
    s_cbranch_scc1 L_exit
    {lp}_c:
    s_waitcnt vmcnt(0)
    v_readfirstlane_b32 s{sT0}, v89
    v_readfirstlane_b32 s{sPar}, v92
    s_cmp_lt_u32 s{sT0}, {P['ninit']}
    s_cbranch_scc1 {lp}
    s_cmp_lt_u32 s{sPar}, {32 << 16}
    s_cbranch_scc1 {lp}
    s_cmp_gt_u32 s{sPar}, {(32 << 16) + 16}
    s_cselect_b32 s{sPar}, 8192, 0
    s_barrier""")
    lq = a.lab('nq')
    if P['epro']: a(f's_cmp_eq_u32 s{S_WAVE}, 3\ns_cbranch_scc1 {lq}')
    for i, s in enumerate(trd(vWq)):
        a(s)
        if i % 8 == 7: a('s_waitcnt lgkmcnt(6)')
    a(f'{lq}:' if P['epro'] else 's_waitcnt lgkmcnt(0)\ns_barrier')
    a(ps(4))
    a(f"""v_mov_b32 v64, 0x4444
    v_mov_b32 v65, 0xeeee
    v_cndmask_b32 v{vIdx}, v64, v65, s[{sHalf}:{sHalf+1}]
    s_lshl_b32 s{sT0}, s{S_WAVE}, 4
    v_add_u32 v64, s{sT0}, v{n}
    v_lshlrev_b32 v64, 4, v64
    v_and_b32 v65, 1, v{g}
    v_lshl_add_u32 v64, v65, 3, v64
    v_lshrrev_b32 v65, 1, v{g}
    v_lshl_add_u32 v{vQw}, v65, 2, v64
    v_lshlrev_b32 v{vKw}, 1, v{vQw}
    v_lshrrev_b32 v64, 3, v{n}
    v_lshlrev_b32 v64, 9, v64
    v_lshl_add_u32 v64, v{g}, 7, v64
    v_and_b32 v65, 7, v{n}
    v_lshl_add_u32 v{vY}, v65, 4, v64""")
    for r in range(vUP, vUP+8): a(f'v_mov_b32 v{r}, 0')
    for r in range(aU, aU+12): a(f'v_accvgpr_write_b32 a{r}, 0')
    a(f"""v_and_b32 v64, 0x1ff, v{vY}
    v_lshrrev_b32 v65, 3, v{n}
    v_lshl_add_u32 v{vD2}, v65, 3, v64""")
    a(f"""s_mov_b32 s{S_STEP}, 0
    s_mul_i32 s{sY}, s{sH}, 40960
    s_mul_i32 s{sT0}, s{sCg}, 2560
    s_add_u32 s{sY}, s{sY}, s{sT0}
    s_add_u32 s{sY}, s{sY}, {YH_OFF if P['nmap'] & 1 else Y_OFF}
    s_lshr_b32 s{sU}, s{sH}, 2
    s_mul_i32 s{sU}, s{sU}, 40960
    s_add_u32 s{sU}, s{sU}, s{sT0}
    s_add_u32 s{sBp}, s{sU}, {BP_OFF - (P['lag']+1)*8*40960}
    s_add_u32 s{sU}, s{sU}, {U_OFF - 8*40960}
    s_and_b32 s{sPx}, s{sH}, 28
    s_lshl_b32 s{sPx}, s{sPx}, 11
    s_add_u32 s{sPx}, s{sPx}, {PX_OFF - (LAG[0]+1)*65536}
    s_mov_b32 s{sYw}, {RING0}
    s_mov_b32 s{sYo}, {RING0 + ((-P['lag']-1) % NSLOT)*SLOT}
    s_mov_b32 s{sLo}, 0xffff
    s_mov_b32 s{sLo+1}, 0
    s_mul_i32 s{sK}, s{sHs}, 12288
    s_mul_i32 s{sT0}, s{sCs}, 3072
    s_add_u32 s{sK}, s{sK}, s{sT0}
    s_add_u32 s{sK}, s{sK}, {KH_OFF if P['nmap'] & 2 else K_OFF}
    s_xor_b32 s{sPn}, s{sPar}, {8192 if P.get('nfar') else 0}
    s_mul_i32 s{sKm}, s{sHs}, 3072
    s_mul_i32 s{sT0}, s{sCs}, 768
    s_add_u32 s{sKm}, s{sKm}, s{sT0}
    s_add_u32 s{sKm}, s{sKm}, {KM_OFF - 32*3072}""")
    srd(a, SRD_A, P_MEM0, 8*640*2)
    a(f"""v_and_b32 v63, 7, v{n}
    v_mul_u32_u24 v63, 1280, v63
    v_lshl_add_u32 v63, v{g}, 5, v63
    v_lshrrev_b32 v64, 3, v{n}
    v_lshl_add_u32 v40, v64, 4, v63
    v_mov_b32 v41, v{n}
    v_mov_b32 v42, v{g}
    v_mov_b32 v43, v{ln}
    s_cmp_eq_u32 s{S_WAVE}, 0
    s_cbranch_scc1 L_rec_0
    s_cmp_eq_u32 s{S_WAVE}, 1
    s_cbranch_scc1 L_rec_1
    s_cmp_eq_u32 s{S_WAVE}, 2
    s_cbranch_scc1 L_rec_2
    s_branch L_rec_3""")

def step_scalars(w):
    L = [f's_and_b32 s{sT0}, s{S_STEP}, 3',
         f's_mul_i32 s{sMr}, s{sT0}, {M_SLOT}',
         f's_add_u32 s{sMr}, s{sMr}, s{sMb}',
         f's_add_u32 s{sMr}, s{sMr}, {OWN[w][0]*1024}',
         f's_mul_i32 s{sG}, s{sT0}, {G_SLOT}',
         f's_add_u32 s{sTag}, s{S_STEP}, 1',
         f's_mul_i32 s{sTag3}, s{sTag}, 0x01010101',
         f's_mov_b32 s{sYr}, s{sYw}',
         f's_add_u32 s{sYw}, s{sYw}, {SLOT}',
         f's_cmp_ge_u32 s{sYw}, {RING0+NSLOT*SLOT}',
         f's_cselect_b32 s{sYw}, {RING0}, s{sYw}']
    if w >= 2:
        L += [f's_add_u32 s{sG}, s{sG}, s{sPar}',
              f's_xor_b32 s{sGL}, s{sG}, 8192']
    if w == 3:
        L += [f's_xor_b32 s{sT0}, s{sT0}, 2',
              f's_mul_i32 s{sGp}, s{sT0}, {G_SLOT}',
              f's_add_u32 s{sGp}, s{sGp}, s{sPar}',
              f's_xor_b32 s{sGLp}, s{sGp}, 8192',
              f's_add_u32 s{sT0}, s{S_STEP}, 3',
              f's_and_b32 s{sT0}, s{sT0}, 3',
              f's_mul_i32 s{sMp}, s{sT0}, {M_SLOT}',
              f's_add_u32 s{sMp}, s{sMp}, s{sMb}',
              f'v_mov_b32 v{vFd}, s{S_STEP}',
              f's_add_u32 s{sYo}, s{sYo}, {SLOT}',
              f's_cmp_ge_u32 s{sYo}, {RING0+NSLOT*SLOT}',
              f's_cselect_b32 s{sYo}, {RING0}, s{sYo}',
              f's_add_u32 s{sPx}, s{sPx}, 65536',
              f's_cmp_lt_u32 s{S_STEP}, {LAG[0]}',
              f's_cselect_b32 s{sPc}, 0xf0000000, s{sPx}']
    return L

def thr_next(P):
    return [f's_add_u32 s{sT0}, s{S_STEP}, 2', f's_min_u32 s{sT0}, s{sT0}, 64',
            f's_sub_u32 s{sT1}, s{S_STEP}, {LAG[0]-1}', f's_max_i32 s{sT1}, s{sT1}, 0',
            f's_cmp_ge_u32 s{S_STEP}, {62 if P["pmode"] else 63}', f's_cselect_b32 s{sT1}, 0, s{sT1}',
            f'v_mov_b32 v252, s{sT0}', f'v_mov_b32 v253, s{sT1}', f'v_cndmask_b32 v{vThr}, v253, v252, s[{sLo}:{sLo+1}]',
            f'v_cmp_gt_u32 s[{sBad}:{sBad+1}], v{vThr}, v{vFk}']

def poll_known(o, lab):
    o(f"""{lab}:
    s_add_u32 s{S_TO}, s{S_TO}, 1
    s_cmp_gt_u32 s{S_TO}, {TO_LIMIT}
    s_cbranch_scc1 L_exit
    {W('load_dword', f'v{vFk}', vFp, 0, 0, 'sc1')}
    s_waitcnt vmcnt(0)
    v_cmp_gt_u32 vcc, v{vThr}, v{vFk}
    s_cbranch_vccnz {lab}""")

def smap(d, src, add, par, t):
    return [f's_add_u32 s{d}, s{src}, {add}', f's_and_b32 s{t}, s{d}, 0xffffe000', f's_add_u32 s{d}, s{d}, s{t}',
            f's_lshr_b32 s{t}, s{d}, 8', f's_and_b32 s{t}, s{t}, 0x2000', f's_xor_b32 s{t}, s{t}, s{par}', f's_xor_b32 s{d}, s{d}, s{t}']
def vmap(v, par, t):
    return [f'v_and_b32 v{t}, 0xffffe000, v{v}', f'v_add_u32 v{v}, v{v}, v{t}', f'v_lshrrev_b32 v{t}, 8, v{v}',
            f'v_and_b32 v{t}, 0x2000, v{t}', f'v_xor_b32 v{t}, s{par}, v{t}', f'v_xor_b32 v{v}, v{v}, v{t}']
def kx_addr():
    if not NMAP[0] & 2: return []
    return sum((smap(sKa+i, sK, 1024*i, sPn, sT2) for i in range(3)), [])
def kx_load():
    if NMAP[0] & 2: L = [W('load_dwordx4', vr(vKS+4*i), vL16, f's{sKa+i}', 0, 'sc1') for i in range(3)]
    else: L = [W('load_dwordx4', vr(vKS+4*i), vL16, f's{sK}', 1024*i, 'sc1') for i in range(3)]
    return L + [f's_add_u32 s{sK}, s{sK}, {32*12288}']
def kx_copy():
    return [f'v_mov_b32 v{vKF+8*xt+2*i+r}, v{vKS+4*i+2*xt+r}' for i in range(3) for xt in range(2) for r in range(2)]

def y_dma(w, tmp):
    if NMAP[0] & 1:
        d = lambda va, off: f'buffer_load_dwordx4 v{va}, s[{SRD_W}:{SRD_W+3}], 0 offen offset:{off} sc1 lds'
        pre = [f'v_add_u32 v10, s{sY}, v{vL16}', 'v_add_u32 v11, 1024, v10', f'v_and_b32 v{tmp}, 0x1ff, v{vL16}', f'v_add_u32 v{tmp}, s{sY}, v{tmp}', f'v_add_u32 v{tmp}, 2048, v{tmp}']
        pre += vmap(10, sPn, 33) + vmap(11, sPn, 33) + vmap(tmp, sPn, 33) + ['v_subrev_u32 v11, 1024, v11', f'v_subrev_u32 v{tmp}, 2048, v{tmp}']
        return [f's_add_u32 m0, s{sYw}, {3072*w}', '\n'.join(pre), d(10, 0), d(11, 1024), d(tmp, 2048), f's_add_u32 s{sY}, s{sY}, {32*40960}']
    d = lambda va, off: f'buffer_load_dwordx4 v{va}, s[{SRD_W}:{SRD_W+3}], s{sY} offen offset:{off} sc1 lds'
    return [f's_add_u32 m0, s{sYw}, {3072*w}', f'v_and_b32 v{tmp}, 0x1ff, v{vL16}', d(vL16, 0), d(vL16, 1024), d(tmp, 2048), f's_add_u32 s{sY}, s{sY}, {32*40960}']
def y_read(w):
    return [f'v_add_u32 v11, s{sYr}, v{vY}'] + [f'ds_read_b128 {vr(vYt+4*t)}, v11 offset:{3072*w+1024*t}' for t in range(3)]
def flag_w(base, w):
    return f'ds_write_b32 v{vL16}, v{vTag} offset:{base+4*w}'
def flag_r(dst, base):
    return f'ds_read_b128 {vr(dst)}, v{vZ} offset:{base}'
def flag_chk(dst, nf):
    L = [f'v_min3_u32 v{dst}, v{dst}, v{dst+1}, v{dst+2}']
    if nf == 4: L.append(f'v_min_u32 v{dst}, v{dst}, v{dst+3}')
    return L + [f'v_cmp_ne_u32 vcc, s{sTag}, v{dst}']

def fold(acc, dst, pk=False):
    return [f'v_permlane32_swap_b32 v{acc}, v{acc+2}', f'v_permlane32_swap_b32 v{acc+1}, v{acc+3}'] + (
            [f'v_pk_add_f32 v[{acc}:{acc+1}], v[{acc}:{acc+1}], v[{acc+2}:{acc+3}]'] if pk else
            [f'v_add_f32 v{acc}, v{acc}, v{acc+2}', f'v_add_f32 v{acc+1}, v{acc+1}, v{acc+3}']) + [
            f'v_cvt_pk_bf16_f32 v{dst}, v{acc}, v{acc+1}']

def smf(acc, t, breg):
    if NOQK[0] and breg.startswith('v'): return 's_nop 3'
    return f'v_smfmac_f32_16x16x64_bf16 {vr(acc)}, {vr(vMF+4*t)}, {breg}, v{vIdx}'

def pub_reads():
    return [f'ds_read_b128 {vr(vPU+4*t)}, v{vL16} offset:{UB+1024*t}' for t in range(3)]
def u_stores():
    L = [W('store_dwordx4', vr(vPU+4*t), vY, f's{sU}', 1024*t, 'sc1') for t in range(2)]
    return L + [f's_mov_b64 exec, s[{sExLo}:{sExLo+1}]', W('store_dwordx4', vr(vPU+8), vY, f's{sU}', 2048, 'sc1'), 's_mov_b64 exec, -1']
def km_stores():
    return [f's_mov_b64 exec, s[{sExK}:{sExK+1}]', W('store_dwordx4', vr(vKf), vKc, f's{sKm}', 0, 'sc1'),
            W('store_dwordx2', vr(vKf+4, 2), vKd, f's{sKm}', 512, 'sc1'), 's_mov_b64 exec, -1']
def bp_stores(so):
    L = [W('store_dwordx4', vr(vBP+4*t), vL16, f's{so}', 1024*t, 'sc1') for t in range(2)]
    return L + ['s_mov_b32 exec_hi, 0', W('store_dwordx4', vr(vBP+8), vL16, f's{so}', 2048, 'sc1'), 's_mov_b32 exec_hi, -1']

def token_part(a, P, extra):
    l = a.lab('tk')
    a(f"""v_add_u32 v180, s{sYr}, v{vL16}
    v_add_u32 v181, s{sYo}, v{vY}
    v_add_u32 v182, s{sYo}, v{vL16}""")
    A = [56+4*i for i in range(10)] + [16, 20, 44, 48, 52]
    for h in range(4):
        for t in range(3): a(f'ds_read_b128 {vr(A[3*h+t])}, v181 offset:{3072*h+1024*t}')
    def prep(h):
        return [f'v_mov_b32 v{vPM8+4*xq+h}, v{vPF+8*h+2+xq}' for xq in range(2)] + [f'v_mov_b32 v{vPF+8*h+2}, 0', f'v_mov_b32 v{vPF+8*h+3}, 0']
    a(f's_mov_b32 s41, s{sPc}')
    for s in prep(0) + prep(1): a(s)
    a('s_waitcnt lgkmcnt(9)')
    if P['kmw']:
        a(f's_cmp_lt_u32 s{S_STEP}, {P["ufrom"]}\ns_cbranch_scc1 {l}_u')
        for s in u_stores(): a(s)
        a(f'{l}_u:')
    for t in range(3): a(f'ds_read_b128 {vr(A[12+t])}, v182 offset:{12288+1024*t}')
    fill = prep(2) + prep(3) + extra
    for h in range(5):
        if h: a(f's_waitcnt lgkmcnt({12-3*h})')
        for t in range(3):
            for xq in range(2):
                d = vr(vTA+8*t+4*xq)
                B = vPF+8*h+4*xq if h < 4 else vPM8+4*xq
                a(f'v_mfma_f32_16x16x32_bf16 {d}, {vr(A[3*h+t])}, {vr(B)}, {"0" if h == 0 else d}')
                n = 3 if (fill and fill[0].startswith('s_')) else 2
                for _ in range(n):
                    if fill: a(fill.pop(0))
    while fill: a(fill.pop(0))
    if P['pmode']:
        for i in range(8): a(W('load_dwordx4', vr(vPF+4*i), vL16 if i < 4 else vL4k, 's41', 1024*(i & 3), 'sc1'))
    for t in range(3): a(f'ds_write_b128 v180, {vr(vPU+4*t)} offset:{12288+1024*t}')
    for t in range(3):
        for xq in range(2):
            b = vTA+8*t+4*xq
            a(f'v_cvt_pk_bf16_f32 v{vBP+4*t+2*xq}, v{b}, v{b+1}\nv_cvt_pk_bf16_f32 v{vBP+4*t+2*xq+1}, v{b+2}, v{b+3}')

def rec_wave(a, tail, w, P):
    n, g, ln = 41, 42, 43
    nm = str(w)
    st0 = P['stamp']; fine = P.get('fine', 0)
    st = lambda i: '' if (fine == 1 and 5 <= i <= 9) or (fine == 2 and ((w == 3 and i == 5) or (w >= 2 and i == 9))) else st0(i)
    sf = lambda i: st0(i) if fine == 1 else ''
    own = OWN[w]; oth = [t for t in range(10) if t not in own]
    a(f'L_rec_{nm}:')
    if w < 2:
        a(f"""v_min_u32 v64, 9, v{n}
        v_add_u32 v65, {10*w}, v64
        v_lshlrev_b32 v65, 4, v65
        s_and_b32 s{sT0}, s{S_J}, 1
        s_mul_i32 s{sT1}, s{sT0}, 384
        s_mul_i32 s{sT2}, s{sCg}, 1536
        s_add_u32 s{sT1}, s{sT1}, s{sT2}
        v_add_u32 v65, s{sT1}, v65
        v_and_b32 v66, 1, v{g}
        v_mul_u32_u24 v66, 768, v66
        v_add_u32 v65, v65, v66""")
        for rho, dst in ((0, vG0), (1, vG1)):
            a(f"""v_lshrrev_b32 v66, 1, v{g}
            v_add_u32 v66, {2*rho}, v66
            v_mul_u32_u24 v67, {32*768}, v66
            v_add_u32 v{dst}, v65, v67""")
            phys(a, dst, 67)
            a(f"""v_add_u32 v{dst}, s{sPar}, v{dst}
            v_xor_b32 v67, 8192, v{dst}
            {f'v_add_u32 v66, {4*rho}, v{g}' if P['glown'] else ''}
            s_lshl_b32 s{sT2}, s{S_X}, {1 if P['glown'] else 0}
            {f's_add_u32 s{sT2}, s{sT2}, s{sT0}' if P['glown'] == 1 else ''}
            {f's_mov_b32 s{sT2}, 99' if P['glown'] == 2 else ''}
            v_cmp_eq_u32 vcc, s{sT2}, v66
            s_nop 1
            v_cndmask_b32 v{dst}, v{dst}, v67, vcc""")
        a(f"""v_lshrrev_b32 v66, 1, v64
        v_lshlrev_b32 v66, 7, v66
        v_and_b32 v67, 1, v64
        v_lshl_add_u32 v66, v67, 4, v66
        v_lshl_add_u32 v66, v{g}, 3, v66
        s_mul_i32 s{sT1}, s{sCg}, 640
        s_lshl_b32 s{sT0}, s{sT0}, 6
        s_add_u32 s{sT1}, s{sT1}, s{sT0}
        s_add_u32 s{sT1}, s{sT1}, {32*w}
        v_add_u32 v{vMst}, s{sT1}, v66
        s_mov_b32 s{sEx}, 0x03ff03ff
        s_mov_b32 s{sEx+1}, 0
        v_mov_b32 v68, 0""")
        build_sel(a, 72, n, 68, 0, 64)
        for r in range(4): a(f'v_accvgpr_write_b32 a{aSel+r}, v{72+r}')
    else:
        z = w - 2
        a(f"""v_min_u32 v64, 39, v{ln}
        v_lshlrev_b32 v{vGst}, 3, v64
        v_add_u32 v{vGst}, s{sGb}, v{vGst}
        v_add_u32 v{vGst}, {384*z}, v{vGst}""")
        phys(a, vGst, 65)
        a(f"""v_lshrrev_b32 v65, 1, v64
        v_cmp_le_u32 vcc, 10, v65
        s_nop 1
        v_cndmask_b32 v66, 0, 1, vcc          ; om
        v_mul_u32_u24 v67, 10, v66
        v_sub_u32 v65, v65, v67               ; r
        v_and_b32 v67, 1, v65
        v_lshl_add_u32 v67, v66, 1, v67
        v_add_u32 v67, {4*z}, v67             ; q
        v_lshlrev_b32 v67, 4, v67
        v_lshrrev_b32 v65, 1, v65             ; o'
        v_and_b32 v64, 1, v64                 ; hb
        v_and_b32 v66, 1, v65
        v_lshl_add_u32 v66, v66, 1, v64       ; g
        v_lshlrev_b32 v66, 8, v66
        v_bfe_u32 v68, v65, 1, 1
        v_lshl_add_u32 v66, v68, 7, v66       ; g*256 + t*128
        v_lshlrev_b32 v64, 7, v64
        v_add_u32 v64, 1024, v64
        v_cmp_eq_u32 vcc, 4, v65
        s_nop 1
        v_cndmask_b32 v66, v66, v64, vcc
        v_add_u32 v{vDr}, v66, v67
        s_mov_b32 s{sEx}, -1
        s_mov_b32 s{sEx+1}, 0xff""")
    if w == 3:
        a(f"""v_lshrrev_b32 v64, 2, v{n}
        v_lshl_add_u32 v64, v{g}, 2, v64
        v_lshlrev_b32 v64, 4, v64
        v_and_b32 v65, 1, v{n}
        v_lshl_add_u32 v{vQr}, v65, 3, v64
        v_bfe_u32 v65, v{n}, 1, 1
        v_lshlrev_b32 v65, 3, v65
        v_lshl_add_u32 v{vKr}, v{vQr}, 1, v65
        v_min_u32 v64, 47, v{ln}
        v_lshlrev_b32 v64, 4, v64
        v_add_u32 v{vPG}, s{sGb}, v64""")
        phys(a, vPG, 65)
        a(f"""v_min_u32 v64, 19, v{ln}
        v_lshrrev_b32 v65, 2, v64
        v_lshlrev_b32 v65, 7, v65
        v_and_b32 v64, 3, v64
        v_lshl_add_u32 v65, v64, 4, v65
        s_and_b32 s{sT0}, s{S_J}, 1
        s_lshl_b32 s{sT0}, s{sT0}, 6
        s_mul_i32 s{sT1}, s{sCg}, 640
        s_add_u32 s{sT1}, s{sT1}, s{sT0}
        v_add_u32 v{vPM}, s{sT1}, v65""")
        for r in range(4): a(f'v_mov_b32 v{vNeg+r}, -1')
        for r in (vKF+6, vKF+7, vKF+14, vKF+15, vQf+6, vQf+7, vKf+6, vKf+7): a(f'v_mov_b32 v{r}, 0')
        if P['warm']:
            a(W('store_dwordx4', vr(vNeg), vL16, f's{sSw}'))
            for i in range(4):
                a(f's_xor_b32 s{sT0}, s{sPar}, {8192 + G_SLOT*i}\ns_add_u32 s{sT1}, s{sMb}, {M_SLOT*i}')
                a(W('store_dwordx4', vr(vNeg), vPG, f's{sT0}'))
                a(W('store_dwordx4', vr(vNeg), vPM, f's{sT1}'))
        for s in P['wait_k0'](): a(s)
        if P['live']:
            a(f"""v_mov_b32 v64, 0xf0000000
            v_cmp_eq_u32 vcc, 0, v{ln}
            s_nop 1
            v_cndmask_b32 v{vFa}, v64, 0, vcc""")
            a(f"""v_and_b32 v64, 3, v{ln}
            v_lshlrev_b32 v64, 9, v64
            s_sub_u32 s{sT0}, s{sFy}, {3*512}
            v_add_u32 v64, s{sT0}, v64
            v_mov_b32 v65, s{sFk}
            v_cmp_gt_u32 vcc, 4, v{ln}
            s_nop 1
            v_cndmask_b32 v{vFp}, v65, v64, vcc
            v_bfe_u32 v64, v{ln}, 2, 2
            v_lshlrev_b32 v64, 9, v64
            v_and_b32 v65, 3, v{ln}
            v_lshl_add_u32 v64, v65, 2, v64
            s_add_u32 s{sT0}, s{sT0}, 128
            v_add_u32 v64, s{sT0}, v64
            v_cndmask_b32 v{vFp}, v64, v{vFp}, s[{sLo}:{sLo+1}]
            v_cndmask_b32 v{vThr}, 0, 1, s[{sLo}:{sLo+1}]""")
            poll_known(a, a.lab('k0'))
        a(f"""v_lshrrev_b32 v64, 2, v{ln}
        v_and_b32 v65, 1, v{ln}
        v_lshl_add_u32 v64, v64, 1, v65
        v_lshlrev_b32 v{vKc}, 4, v64
        v_lshlrev_b32 v{vKd}, 3, v64
        v_add_u32 v{vL4k}, 4096, v{vL16}
        v_and_b32 v{vLh}, 0x1ff, v{vL16}
        v_and_b32 v64, 3, v{ln}
        s_lshl_b32 s{sT0}, s{sCg}, 2
        v_add_u32 v64, s{sT0}, v64
        v_lshlrev_b32 v{vPt}, 7, v64""")
        for s in kx_addr() + kx_load() + kx_addr(): a(s)
    if P['epro']:
        for i, t in enumerate(own):
            a(f'buffer_load_dwordx4 {vr(vMF+4*t)}, v40, s[{SRD_A}:{SRD_A+3}], 0 offen offset:{128*t}')
    a('s_waitcnt lgkmcnt(0)\ns_barrier')
    a(P.get('after_y0', ''))
    for s in y_dma(w, 44): a(s)
    for s in step_scalars(w): a(s)
    if w == 3 and P['live']:
        for s in thr_next(P): a(s)
    for i, t in enumerate([] if P['epro'] else own):
        a(f'buffer_load_dwordx4 {vr(vMF+4*t)}, v40, s[{SRD_A}:{SRD_A+3}], 0 offen offset:{128*t}')
    nb_ = P.get('nobg', 0)
    ew1 = P['ew1'] and w == 3
    def do_w1(rq):
        n0 = len(a.lines)
        lb = a.lab('np')
        def pB():
            if not P['bpw']:
                a(f's_cmp_le_u32 s{S_STEP}, {P["lag"]}\ns_cbranch_scc1 {lb}_a')
                for s in ([] if nb_ & 64 else bp_stores(sBp)): a(s)
            if P['kmw'] or ew1: return
            a(f'{lb}_a:\ns_cmp_ge_u32 s{S_STEP}, {max(1, P["ufrom"]+1)}\ns_cbranch_scc1 {lb}_u\n{lb}_b:')
            tail(f'{lb}_u:')
            for s in u_stores(): tail(s)
            tail(f's_branch {lb}_b')
        def pM():
            if not P['kmw']:
                for s in km_stores(): a(s)
            elif P['live']:
                a(W('store_dword', f'v{vFd}', vFa, f's{sFl}', 0, 'sc1'))
        def pG():
            if not nb_ & 8: a(W('store_dwordx4', vr(vNeg), vPG, f's{sGp}', 0, 'sc1'))
        def pK():
            if P['live']:
                lk = a.lab('wk')
                a(f's_cmp_lg_u64 s[{sBad}:{sBad+1}], 0\ns_cbranch_scc1 {lk}\n{lk}_b:')
                a(W('load_dword', f'v{vFk}', vFp, 0, 0, 'sc1'))
                poll_known(tail, lk)
                tail(f's_branch {lk}_b')
            for s in ([] if nb_ & 2 else kx_load()[:3]):
                a(s)
                if rq: a(rq.pop(0))
        def pR():
            while rq: a(rq.pop(0))
        def pP():
            for h in range(4 if P['yw1'] else 0):
                for pc in {1: (0,), 2: (2,), 3: (0, 2)}[P['yw1']]:
                    a(f's_add_u32 m0, s{sYw}, {3072*h}\ns_sub_u32 s{sT0}, s{sY}, {40960*(3-h)}')
                    a(f'buffer_load_dwordx4 v{vL16 if pc == 0 else vLh}, s[{SRD_W}:{SRD_W+3}], s{sT0} offen offset:{1024*pc} sc1 lds')
                    if rq: a(rq.pop(0))
            if P['pmode']:
                a(W('load_dword', 'v254', vPt, f's{sPc}', 0, 'sc1'))
                return
            a(f's_cmp_lt_u32 s{S_STEP}, {P["lag"]}\ns_cbranch_scc1 {lb}_p')
            tail(f'{lb}_p:')
            for x in rq: tail(x)
            tail(f's_branch {lb}_q')
            for i in range(0 if nb_ & 32 else 8):
                a(W('load_dwordx4', vr(vPF+4*i), vL16 if i < 4 else vL4k, f's{sPc}', 1024*(i & 3), 'sc1'))
                if rq: a(rq.pop(0))
            while rq: a(rq.pop(0))
            a(f'{lb}_q:')
        for f in [(pK, pP, pB, pM, pG, pR), (pK, pB, pM, pG, pP, pR), (pK, pM, pP, pB, pG, pR)][P['w1ord']]: f()
        return sum('buffer_' in x for x in a.lines[n0:])
    uz = [f'v_mov_b32 v{vUa+r}, 0' for r in range(12)]
    az = ([f'v_mov_b32 v{vAq+r}, 0' for r in range(8)] if w < 3 else []) + uz
    for s in az: a(s)
    a('s_waitcnt vmcnt(0)')
    if w == 3:
        for s in kx_copy(): a(s)
    for t in own: a(f'ds_write_b128 v{vL16}, {vr(vMF+4*t)} offset:{MB+1024*t}')
    o = []
    if w < 3:
        o = [smf(vAq, t, vr(vWq+8*t, 8)) for t in own] + [smf(vAk, t, vr(vWk+8*t, 8)) for t in own]
    nb = P['own_before'] if w < 3 else 0
    for s in o[:nb]: a(s)
    if ew1: do_w1([])
    a(f"""s_waitcnt lgkmcnt(0)
    s_branch L_rec_{nm}_m""")
    a(f'.p2align 6\nL_rec_{nm}_top0:')
    a(st(0))
    mld = [f'buffer_load_dwordx4 v{vL16}, s[{SRD_W}:{SRD_W+3}], s{sMr} offen offset:{1024*i} sc1 lds' for i, t in enumerate(own)]
    md = P['mdepth']
    for r in range(md-1):
        for s in mld: a(s)
        a.nop(P['mgap'])
    a(f'L_rec_{nm}_top:')
    for s in mld: a(s)
    nx1 = 0
    if ew1:
        a.nop(P['ew1gap'])
        nx1 = do_w1([])
    for i, t in enumerate(own):
        a(f's_waitcnt vmcnt({len(own)*(md-1) + len(own)-1-i + nx1})')
        if ew1: a(f'L_rec_{nm}_chk:')
        a(f'ds_read_b128 {vr(vMF+4*t)}, v{vL16} offset:{MB+1024*t}')
    b0 = vMF+4*own[0]
    lr = a.lab('rm')
    if w < 3:
        oo = list(o[:nb])
        pop = lambda: ''
        a(f"""s_waitcnt lgkmcnt(2)
        {pop()}
        v_max3_u32 v40, v{b0}, v{b0+1}, v{b0+2}
        s_waitcnt lgkmcnt(1)
        v_max3_u32 v41, v{b0+3}, v{b0+4}, v{b0+5}
        {pop()}
        v_max3_u32 v40, v40, v{b0+6}, v{b0+7}
        s_waitcnt lgkmcnt(0)
        v_max3_u32 v41, v41, v{b0+8}, v{b0+9}
        v_max3_u32 v40, v40, v{b0+10}, v{b0+11}
        {pop()}
        v_max_u32 v40, v40, v41
        v_cmp_eq_u32 vcc, -1, v40""")
        while oo: a(oo.pop(0))
        if nb:
            tail(f'{lr}_z:\ns_nop 7')
            for r in range(8): tail(f'v_mov_b32 v{vAq+r}, 0')
            tail(f's_branch L_rec_{nm}_top')
        retry(a, tail, lr, f'{lr}_z' if nb else f'L_rec_{nm}_top')
    else:
        a(f"""s_waitcnt lgkmcnt(0)
        v_max3_u32 v40, v{b0}, v{b0+1}, v{b0+2}
        v_max_u32 v40, v40, v{b0+3}
        v_cmp_eq_u32 vcc, -1, v40""")
        if ew1:
            tail(f'{lr}_e:')
            for s in mld: tail(s)
            tail(f's_nop 15\ns_branch L_rec_{nm}_chk')
        retry(a, tail, lr, f'{lr}_e' if ew1 else f'L_rec_{nm}_top')
    a(f's_cbranch_vccnz {lr}')
    a(f'L_rec_{nm}_m:')
    a(st(1))
    reads = [f'ds_read_b128 {vr(vMF+4*t)}, v{vL16} offset:{MB+1024*t}' for t in oth]
    sld = lambda S: [W('load_dwordx4', vr(r), vL16, f's{sSr}', 1024*i, 'sc1') for i, r in enumerate(S)]
    uch = [smf(vUa+4*tc, t, ar((tc*10+t)*8, 8)) for tc in range(3) for t in range(10)]
    if P.get('nou'): uch = ['s_nop 3']*30
    ufold = lambda tc: fold(vUa+4*tc, 10+(tc & 1), tc == 2) + [f'ds_write_b32 v{vL16}, v{10+(tc & 1)} offset:{UB+1024*tc+4*w}', f'v_accvgpr_write_b32 a{aU+4*tc}, v{10+(tc & 1)}']
    nb_ = P.get('nobg', 0)
    a('s_barrier')
    a(st(2))
    if w < 3:
        oq = o[nb:]; held = []
        for _ in range(P['khold']):
            i = max(i for i, x in enumerate(oq) if f' {vr(vAk)},' in x or 'nop' in x); held.insert(0, oq.pop(i))
        a(reads[0])
        for s in interleave(oq, reads[1:], 3): a(s)
        for i, t in enumerate(oth):
            a(f's_waitcnt lgkmcnt({len(oth)-1-i})\n' + smf(vAq, t, vr(vWq+8*t, 8)))
        a(sf(5))
        kch = [smf(vAk, t, vr(vWk+8*t, 8)) for t in oth]
        fq = fold(vAq, 40) + [f'ds_write_b32 v{vQw}, v40 offset:{QB}']
        kch = held + kch
        gapf = [['s_nop 2'], ['s_nop 2'], [fq[0]], [fq[1]], [fq[2], fq[3]], [fq[4], fq[5]]]
        bpos = len(kch) - 1 - P['b2in']
        for i, s in enumerate(kch):
            a(s)
            if i < len(gapf):
                for x in gapf[i]: a(x)
            if i == bpos and P['b2a']:
                a('s_waitcnt lgkmcnt(0)')
                a(sf(6))
                a('s_barrier')
                a(sf(7))
        a.nop(6 if (P['b2a'] and not P['b2in']) else 8)
        for s in fold(vAk, 41, True): a(s)
        a(f'ds_write_b32 v{vKw}, v41 offset:{KB}')
        np_ = P['u_early']
        for s in uch[:np_]: a(s)
        a('s_waitcnt lgkmcnt(0)')
        a(sf(8)); a(sf(9))
        a('s_barrier')
        a(st(3)); a(st(4))
        upos, spos = np_, P['spos_o']
        pend = y_read(w)
    else:
        if not ew1: do_w1(list(reads))
        else:
            assert P['bpw'] and not P['kmw']
            lu = a.lab('us')
            a(f's_cmp_ge_u32 s{S_STEP}, {max(1, P["ufrom"]+1)}\ns_cbranch_scc1 {lu}_u\n{lu}:')
            tail(f'{lu}_u:')
            for x in u_stores(): tail(x)
            tail(f's_branch {lu}')
            for x in reads: a(x)
        plain = [] if nb_ & 4 else [W('store_dwordx4', vr(vNeg), vPG, f's{sGLp}'), W('store_dwordx4', vr(vNeg), vPM, f's{sMp}')]
        plain += [f's_add_u32 s{sU}, s{sU}, {8*40960}', f's_add_u32 s{sKm}, s{sKm}, {32*3072}', kx_load()[3],
                  f's_cmp_le_u32 s{S_STEP}, {P["lag"]}\ns_cselect_b32 s{sMw}, 0xf0000000, s{sBp}', f's_add_u32 s{sBp}, s{sBp}, {8*40960}']
        a(sf(5))
        np_ = P['u_pre']
        if np_: a('s_waitcnt lgkmcnt(0)')
        for s in uch[:np_]: a(s)
        qrd = [f'ds_read_b64_tr_b16 {vr(vQf+2*i,2)}, v{vQr} offset:{QB+256*i}' for i in range(3)]
        krd = [f'ds_read_b64_tr_b16 {vr(vKf+2*i,2)}, v{vKr} offset:{KB+512*i}' for i in range(3)]
        xm = [f'v_mfma_f32_16x16x32_bf16 {vr(vD0)}, {vr(vKF)}, {vr(vQf)}, 0',
              f'v_mfma_f32_16x16x32_bf16 {vr(vD1)}, {vr(vKF+8)}, {vr(vQf)}, 0',
              f'v_mfma_f32_16x16x32_bf16 {vr(vD0)}, {vr(vKF+4)}, {vr(vQf+4)}, {vr(vD0)}',
              f'v_mfma_f32_16x16x32_bf16 {vr(vD1)}, {vr(vKF+12)}, {vr(vQf+4)}, {vr(vD1)}']
        mm_ = [f'v_mfma_f32_16x16x32_bf16 {vr(vDm)}, {vr(vKf)}, {vr(vQf)}, 0',
               f'v_mfma_f32_16x16x32_bf16 {vr(vDm)}, {vr(vKf+4)}, {vr(vQf+4)}, {vr(vDm)}']
        sel = [f'v_cndmask_b32 v{vPk+i}, v{vD0+i}, v{vD1+i}, s[{sHalf}:{sHalf+1}]' for i in range(4)]
        sel += [f'v_mul_f32 v{vPk+i}, s{sC2}, v{vPk+i}' for i in range(4)]
        sel += [f'v_mov_b32_sdwa v{vPk}, s{sTag} dst_sel:BYTE_0 dst_unused:UNUSED_PRESERVE src0_sel:BYTE_0']
        a(sf(6))
        a('s_barrier')
        a(sf(7))
        if P['b2a']:
            for s in qrd: a(s)
            a('s_waitcnt lgkmcnt(0)')
            a(sf(8))
            nx = P['xpre']
            for s in xm[:nx]: a(s)
            a(sf(9))
            a('s_barrier')
            a(st(3))
            for s in krd: a(s)
            for s in xm[nx:]: a(s)
            if nx == 4:
                a.nop(4)
                for s in sel[:4]: a(s)
                a('s_waitcnt lgkmcnt(0)')
                a(mm_[0]); a(mm_[1])
                for s in sel[4:]: a(s)
                a.nop(3)
            else:
                a.nop(5)
                a('s_waitcnt lgkmcnt(0)')
                a(mm_[0]); a(mm_[1])
                for s in sel: a(s)
        else:
            a(st(3))
            for s in qrd + krd: a(s)
            a('s_waitcnt lgkmcnt(3)')
            for s in xm: a(s)
            a('s_waitcnt lgkmcnt(0)')
            a(mm_[0]); a(mm_[1])
            a.nop(5)
            for s in sel: a(s)
        a(f"""v_cndmask_b32 v{vDm}, v{vDm}, v{vDm+1}, s[{sHalf}:{sHalf+1}]
        v_mul_f32 v{vDm}, s{sC2}, v{vDm}
        v_mov_b32_sdwa v{vPk+1}, v{vDm} dst_sel:BYTE_0 dst_unused:UNUSED_PRESERVE src0_sel:BYTE_1
        v_mov_b32_sdwa v{vPk+2}, v{vDm} dst_sel:BYTE_0 dst_unused:UNUSED_PRESERVE src0_sel:BYTE_2
        v_mov_b32_sdwa v{vPk+3}, v{vDm} dst_sel:BYTE_0 dst_unused:UNUSED_PRESERVE src0_sel:BYTE_3
        s_nop 0""")
        a(W('store_dwordx4', vr(vPk), vL16, f's{sSw}'))
        a(st(4))
        if fine == 2: a('s_waitcnt vmcnt(1)\n' + st0(5))
        upos, spos = np_, P['spos_s']
        pend = y_read(w) + plain
    done0 = done1 = False
    lg0 = 'lgkmcnt(0)'
    for i in range(upos, 30):
        a(uch[i])
        if P['smpf'] and i == upos + P['smpos']:
            a('s_waitcnt lgkmcnt(0)'); lg0 = ''
            pend = pend + [f's_buffer_load_dword s42, s[{SRD_W}:{SRD_W+3}], s{sY} offset:{128*(19-k)}' for k in range(P['smpf'])]
        if i == spos: pend = sld(SETA) + pend
        if not done0 and i >= 17: pend += ufold(0); done0 = True
        if not done1 and i >= 25: pend += ['s_nop 1'] + ufold(1); done1 = True
        for _ in range(2):
            if pend:
                x = pend.pop(0); a(x)
                if 'permlane' in x or (pend and 'permlane' in pend[0]): break
    k = len(pend)
    while pend: a(pend.pop(0))
    if spos >= 30:
        if spos > 30: a.nop(spos-30)
        for s in sld(SETA): a(s)
        k += 4
    a.nop(max(0, 8-k))
    for s in ufold(2): a(s)
    a(f"""s_cmp_eq_u32 s{S_STEP}, 63
    s_cbranch_scc1 L_rec_{nm}_fin""")
    a.nop(P['sgap_s'] if w == 3 else P['sgap_o'])
    X, MV, T = 68, 72, 73
    ls = a.lab('ps')
    fsm = P['fsm']
    def scheck(o, S, fail, nleft, first=''):
        A, B, C, D = S
        o(f"""s_waitcnt vmcnt({nleft+3}) {first}
        v_perm_b32 v{MV}, v{A+2}, v{A+1}, s{sSelU1}
        v_perm_b32 v{MV}, v{A+3}, v{MV}, s{sSelU2}
        s_waitcnt vmcnt({nleft+2})
        v_perm_b32 v{T}, v{B+2}, v{B+1}, s{sSelU1}
        v_pk_add_f32 v[{X}:{X+1}], v[{A}:{A+1}], v[{B}:{B+1}]
        v_perm_b32 v{T}, v{B+3}, v{T}, s{sSelU2}
        v_pk_add_f32 v[{X+2}:{X+3}], v[{A+2}:{A+3}], v[{B+2}:{B+3}]
        v_add_f32 v{MV}, v{MV}, v{T}
        v_perm_b32 v{T+1}, v{A}, v{B}, s{sSelT1}
        s_waitcnt vmcnt({nleft+1})
        v_perm_b32 v{T}, v{C+2}, v{C+1}, s{sSelU1}
        v_pk_add_f32 v[{X}:{X+1}], v[{X}:{X+1}], v[{C}:{C+1}]
        v_perm_b32 v{T}, v{C+3}, v{T}, s{sSelU2}
        v_pk_add_f32 v[{X+2}:{X+3}], v[{X+2}:{X+3}], v[{C+2}:{C+3}]
        v_add_f32 v{MV}, v{MV}, v{T}
        v_perm_b32 v{T+1}, v{C}, v{T+1}, s{sSelT2}
        s_waitcnt vmcnt({nleft})
        v_perm_b32 v{T+1}, v{D}, v{T+1}, s{sSelT3}
        v_perm_b32 v{T}, v{D+2}, v{D+1}, s{sSelU1}
        v_cmp_ne_u32 vcc, s{sTag3}, v{T+1}
        v_perm_b32 v{T}, v{D+3}, v{T}, s{sSelU2}
        v_pk_add_f32 v[{X}:{X+1}], v[{X}:{X+1}], v[{D}:{D+1}]
        v_pk_add_f32 v[{X+2}:{X+3}], v[{X+2}:{X+3}], v[{D+2}:{D+3}]
        v_add_f32 v{MV}, v{MV}, v{T}
        {f'v_max3_f32 v{T}, |v{X}|, |v{X+1}|, |v{X+2}|' if fsm else f'v_max3_f32 v{T}, v{X}, v{X+1}, v{X+2}'}
        {f'v_max3_f32 v{T}, v{T}, |v{X+3}|, |v{MV}|' if fsm else f'v_max3_f32 v{T}, v{T}, v{X+3}, v{MV}'}
        s_cbranch_vccnz {fail}""")
    yd = ([] if nb_ & 16 else y_dma(w, 25))
    for s in yd[:2]: a(s)
    a(f'v_and_b32 v26, 0x1ff, v{vY}')
    if fsm: a(f'v_mov_b32 v27, {float(fsm)}')
    if w >= 2: a(f'v_and_b32 v24, 0x70, v{vDr}')
    yd = yd[2:]
    if P['yw1'] & 2: yd.pop(2)
    if P['yw1'] & 1: yd.pop(0)
    ylt = []
    if P['ylate'] and yd:
        idx = {1: [2], 2: [1], 3: [1, 2]}[P['ylate']]
        ylt = [yd[i] for i in idx] + [yd[3]]
        yd = [x for i, x in enumerate(yd) if i not in idx + [3]]
    nw2 = sum(' lds' in x for x in yd)
    if P['live'] and w == 3 and not P['kmw']:
        yd.insert(1, W('store_dword', f'v{vFd}', vFa, f's{sFl}', 0, 'sc1')); nw2 += 1
    a(st(5))
    if P['ew2']:
        if P['sdepth'] == 2:
            for s in sld(SETB): a(s)
        a('s_waitcnt lgkmcnt(0)\ns_barrier')
        ydm = [x for x in yd if ' lds' in x][:P['ew2']]
        for x in ydm: a(x); yd.remove(x)
        ne = len(ydm)
        if P['sdepth'] == 2:
            scheck(a, SETA, f'{ls}_b', 4+ne)
            tail(f'{ls}_b:')
            scheck(tail, SETB, f'{ls}_r', ne)
            tail(f's_branch {ls}_j')
        else:
            scheck(a, SETA, f'{ls}_r', ne)
        tail(f'{ls}_c:')
        for s in sld(SETA): tail(s)
        scheck(tail, SETA, f'{ls}_r', 0)
        tail(f's_branch {ls}_j')
        retry(a, tail, f'{ls}_r', f'{ls}_c')
    elif P['sdepth'] == 2:
        a(f'{ls}_a:')
        for s in sld(SETB): a(s)
        scheck(a, SETA, f'{ls}_b', 4, lg0)
        tail(f'{ls}_b:')
        for s in sld(SETA): tail(s)
        scheck(tail, SETB, f'{ls}_r', 4)
        tail(f's_branch {ls}_j')
        retry(a, tail, f'{ls}_r', f'{ls}_a')
    else:
        a(f'{ls}_a:')
        scheck(a, SETA, f'{ls}_r', 0, lg0)
        tail(f'{ls}_b:')
        for s in sld(SETA): tail(s)
        tail(f's_branch {ls}_a')
        retry(a, tail, f'{ls}_r', f'{ls}_b')
    PB = 76
    def one(): return yd.pop(0) if yd else 's_nop 0'
    ys = P['yspread']
    dpp = 'row_ror:8 row_mask:0xf bank_mask:0xf'
    dpc = 'row_ror:8 row_mask:0xf bank_mask:0xc'
    def truemax(o, fill):
        o(f"""v_max_f32_dpp v{T+1}, v{T}, v{T} {dpp}
        v_max_f32_dpp v{T+2}, v{T}, v{T} {dpp}
        {fill()}
        {fill() if (not ys or w == 3) else 's_nop 0'}
        v_permlane16_swap_b32 v{T+1}, v{T+2}
        v_max_f32 v{T}, v{T+1}, v{T+2}
        v_max_f32 v{T+1}, v{T+1}, v{T+2}
        {fill()}
        {fill() if not ys else 's_nop 0'}
        v_permlane32_swap_b32 v{T}, v{T+1}
        v_max_f32 v{T+1}, v{T}, v{T+1}
        v_sub_f32 v{MV}, v{MV}, v{T+1}
        v_pk_add_f32 v[{X}:{X+1}], v[{X}:{X+1}], v[{T+1}:{T+2}] op_sel_hi:[1,0] neg_lo:[0,1] neg_hi:[0,1]
        v_pk_add_f32 v[{X+2}:{X+3}], v[{X+2}:{X+3}], v[{T+1}:{T+2}] op_sel_hi:[1,0] neg_lo:[0,1] neg_hi:[0,1]""")
    E = 28 if fsm else X
    EM = 32 if fsm else MV
    if fsm:
        a(f"""{ls}_j:
        v_cmp_nle_f32 vcc, v{T}, v27
        s_barrier
        {st(6)}
        {ls}_x:
        v_exp_f32 v{EM}, v{MV}
        v_exp_f32 v{E}, v{X}
        v_exp_f32 v{E+1}, v{X+1}
        s_cbranch_vccnz {ls}_m""")
        tail(f"""{ls}_m:
        v_max3_f32 v{T}, v{X}, v{X+1}, v{X+2}
        v_max3_f32 v{T}, v{T}, v{X+3}, v{MV}
        s_nop 1""")
        truemax(tail, lambda: 's_nop 0')
        tail(f's_mov_b64 vcc, 0\ns_branch {ls}_x')
    else:
        a(f'{ls}_j:\ns_barrier\n{st(6)}')
        truemax(a, one)
        a(f'v_exp_f32 v{MV}, v{MV}\nv_exp_f32 v{X}, v{X}\nv_exp_f32 v{X+1}, v{X+1}')
    fo = (lambda: one() if yd else '') if fsm else (lambda: '')
    a(f"""v_mov_b32_dpp v{T+1}, v{EM} {dpp}
    v_cvt_pk_bf16_f32 v{vDq}, v{EM}, v{T+1}
    v_exp_f32 v{E+2}, v{X+2}
    v_cvt_pk_bf16_f32 v{PB}, v{E}, v{E+1}
    v_mfma_f32_16x16x32_bf16 {vr(60)}, {ar(aU+4)}, {vr(vDq)}, 0
    {fo()}
    v_exp_f32 v{E+3}, v{X+3}
    v_mfma_f32_16x16x32_bf16 {vr(56)}, {ar(aU)}, {vr(vDq)}, 0
    {fo()}
    v_cvt_pk_bf16_f32 v{PB+1}, v{E+2}, v{E+3}
    v_mov_b32_dpp v{PB+2}, v{PB} {dpp}
    v_mfma_f32_16x16x32_bf16 {vr(64)}, {ar(aU+8)}, {vr(vDq)}, 0
    {fo()}
    v_mov_b32_dpp v{PB+3}, v{PB+1} {dpp}
    v_add_f32 v{T}, v{E}, v{E+1}
    v_add_f32 v{T+2}, v{E+2}, v{E+3}
    v_mfma_f32_16x16x32_bf16 {vr(60)}, {vr(vYt+4)}, {vr(PB)}, {vr(60)}
    {fo()}
    v_add_f32 v{T}, v{T}, v{EM}
    v_add_f32 v{T}, v{T}, v{T+2}
    v_mfma_f32_16x16x32_bf16 {vr(56)}, {vr(vYt)}, {vr(PB)}, {vr(56)}
    {one()}
    v_add_f32_dpp v{T+1}, v{T}, v{T} {dpp}
    v_mfma_f32_16x16x32_bf16 {vr(64)}, {vr(vYt+8)}, {vr(PB)}, {vr(64)}
    v_add_f32_dpp v{T+2}, v{T}, v{T} {dpp}
    s_nop 1
    v_permlane16_swap_b32 v{T+1}, v{T+2}
    v_add_f32 v{T}, v{T+1}, v{T+2}
    v_add_f32 v{T+1}, v{T+1}, v{T+2}
    v_mov_b32_dpp v56, v60 {dpc}
    v_mov_b32_dpp v57, v61 {dpc}
    v_permlane32_swap_b32 v{T}, v{T+1}
    v_mov_b32_dpp v58, v62 {dpc}
    v_mov_b32_dpp v59, v63 {dpc}
    ds_write_b128 v{vL16}, {vr(56)} offset:{DB+1536*w}
    v_add_f32 v{T}, v{T}, v{T+1}
    v_rcp_f32 v{T}, v{T}
    v_mov_b32_dpp v64, v66 {dpc}
    v_mov_b32_dpp v65, v67 {dpc}
    ds_write_b32 v26, v{T} offset:{RB+4*w}
    ds_write_b64 v{vD2}, v[64:65] offset:{DB+1536*w+1024}""")
    while yd: a(yd.pop(0))
    if w == 3 and P['kmw'] == 1:
        for s in km_stores(): a(s)
        nw2 += 2
    if w == 3 and P['bpw'] == 1 and not nb_ & 64:
        lq = a.lab('bq')
        a(f's_cmp_le_u32 s{S_STEP}, {P["lag"]}\ns_cbranch_scc1 {lq}_s')
        tail(f'{lq}_s:\ns_waitcnt vmcnt({nw2})\ns_branch {lq}')
        for s in bp_stores(sMw): a(s)
        a(f'{lq}:')
        nw2 += 3
    a(f"""{f's_mov_b64 exec, s[{sEx}:{sEx+1}]' if w >= 2 else ''}
    s_waitcnt lgkmcnt(0)
    s_barrier""")
    a(st(7))
    nxt = [f's_add_u32 s{S_STEP}, s{S_STEP}, 1'] + step_scalars(w)
    if P.get('ywrap'):
        nxt += [f's_cmp_eq_u32 s{S_STEP}, 31', f's_cselect_b32 s{sT0}, {32*32*40960}, 0', f's_cselect_b32 s{sT1}, {32*32*12288}, 0', f's_sub_u32 s{sY}, s{sY}, s{sT0}', f's_sub_u32 s{sK}, s{sK}, s{sT1}']
    if w >= 2:
        a(f'ds_read_b128 {vr(72)}, v24 offset:{RB}')
        for i in range(4): a(f'ds_read_b128 {vr(56+4*i)}, v{vDr} offset:{DB+1536*i}')
        a(f"""s_waitcnt lgkmcnt(3)
        v_pk_mul_f32 v[76:77], v[56:57], v[72:73] op_sel_hi:[1,0]
        v_pk_mul_f32 v[78:79], v[58:59], v[72:73] op_sel_hi:[1,0]
        s_waitcnt lgkmcnt(2)
        v_pk_fma_f32 v[76:77], v[60:61], v[72:73], v[76:77] op_sel:[0,1,0] op_sel_hi:[1,1,1]
        v_pk_fma_f32 v[78:79], v[62:63], v[72:73], v[78:79] op_sel:[0,1,0] op_sel_hi:[1,1,1]
        s_waitcnt lgkmcnt(1)
        v_pk_fma_f32 v[76:77], v[64:65], v[74:75], v[76:77] op_sel_hi:[1,0,1]
        v_pk_fma_f32 v[78:79], v[66:67], v[74:75], v[78:79] op_sel_hi:[1,0,1]
        s_waitcnt lgkmcnt(0)
        v_pk_fma_f32 v[76:77], v[68:69], v[74:75], v[76:77] op_sel:[0,1,0] op_sel_hi:[1,1,1]
        v_pk_fma_f32 v[78:79], v[70:71], v[74:75], v[78:79] op_sel:[0,1,0] op_sel_hi:[1,1,1]
        v_cvt_pk_bf16_f32 v76, v76, v77
        v_cvt_pk_bf16_f32 v77, v78, v79
        v_min_u32 v76, -2, v76""")
        a(W('store_dwordx2', 'v[76:77]', vGst, f's{sG}', 0, 'sc1'))
        a(W('store_dwordx2', 'v[76:77]', vGst, f's{sGL}'))
        a(st(8)); a(st(9))
        a('s_mov_b64 exec, -1')
        for s in ylt: a(s)
        nw2 += max(0, len(ylt)-1)
        if w == 3 and P['kmw'] == 2:
            for s in km_stores(): a(s)
            nw2 += 2
        if w == 3 and P['bpw'] == 2:
            lq = a.lab('bq')
            a(f's_cmp_le_u32 s{S_STEP}, {P["lag"]}\ns_cbranch_scc1 {lq}_s')
            tail(f'{lq}_s:\ns_waitcnt vmcnt({nw2+2})\ns_branch {lq}')
            for s in bp_stores(sMw): a(s)
            a(f'{lq}:')
            nw2 += 3
        a(f's_waitcnt vmcnt({nw2+2})')
        if w == 3:
            for s in pub_reads(): a(s)
            token_part(a, P, kx_copy() + az + nxt + kx_addr() + (thr_next(P) if P['live'] else []))
        if w == 2 and P.get('steptrace'):
            a(f"""s_memrealtime s[8:9]
            s_waitcnt lgkmcnt(0)
            s_mov_b32 m0, s{S_STEP}
            v_accvgpr_read_b32 v40, a240
            s_nop 1
            v_writelane_b32 v40, s8, m0
            s_nop 1
            v_accvgpr_write_b32 a240, v40""")
        if w == 2:
            if fine == 2: a('s_waitcnt vmcnt(2)\n' + st0(9))
            for s in nxt + az: a(s)
        if w == 3 and fine == 2: a('s_waitcnt vmcnt(0)\n' + st0(9))
        a('s_waitcnt lgkmcnt(0)')
    else:
        a(f's_waitcnt vmcnt({nw2}) lgkmcnt(0)')
        if ylt: a('v_mov_b32 v43, v25')
        for s in az: a(s)
        a(f"""s_and_b32 s{sT0}, s{sTag}, 3
        s_mul_i32 s{sMw}, s{sT0}, {M_SLOT}
        s_add_u32 s{sMw}, s{sMw}, s{sMb}
        s_mov_b32 s{sGp}, s{sG}""")
        for s in nxt: a(s)
        if ylt:
            a(f"s_sleep {P['ysl']}")
            for s in ylt: a(s.replace(' v25,', ' v43,'))
            a(f"s_sleep {P['sleep_g']-P['ysl']}")
        elif P['sleep_g']: a(f"s_sleep {P['sleep_g']}")
        a.nop(P['nop_g'])
        dep = P['gdepth']
        gl = lambda r: [W('load_dwordx4', vr(60+8*r), vG0, f's{sGp}', 0, 'sc1'), W('load_dwordx4', vr(64+8*r), vG1, f's{sGp}', 0, 'sc1')]
        lg = a.lab('pg')
        a(st(8))
        for r in range(dep-1):
            for s in gl(r): a(s)
            a.nop(P['ggap'])
        a(f'{lg}:')
        for r in range(dep):
            for s in gl((r+dep-1) % dep): a(s)
            b = 60+8*r
            a(f"""s_waitcnt vmcnt({2*(dep-1)})
            v_mfma_f32_16x16x32_bf16 {vr(56)}, {ar(aSel)}, {vr(b)}, 0
            v_max3_u32 v40, v{b}, v{b+2}, v{b+4}
            v_max_u32 v40, v40, v{b+6}
            v_mfma_f32_16x16x32_bf16 {vr(56)}, {ar(aSel)}, {vr(b+4)}, {vr(56)}
            v_cmp_eq_u32 vcc, -1, v40
            s_nop 4
            s_cbranch_vccz {lg}_ok""")
        a(f"""s_add_u32 s{S_TO}, s{S_TO}, 1
        s_cmp_gt_u32 s{S_TO}, {TO_LIMIT}
        s_cbranch_scc1 L_exit
        s_branch {lg}
        {lg}_ok:
        {st(9)}
        s_mov_b64 exec, s[{sEx}:{sEx+1}]
        v_cvt_pk_bf16_f32 v40, v56, v57
        v_cvt_pk_bf16_f32 v41, v58, v59
        v_min_u32 v40, -2, v40
        v_min_u32 v41, -2, v41""")
        a(W('store_dwordx2', 'v[40:41]', vMst, f's{sMw}'))
        a('s_mov_b64 exec, -1')
    a('s_barrier')
    a(st(10))
    a(P['dump'](a, w))
    a(f's_mov_b32 m0, {MB+1024*own[0]}')
    a.nop(P['dm'])
    a(f's_branch L_rec_{nm}_top0')
    a(f"""L_rec_{nm}_fin:
    s_waitcnt lgkmcnt(0)
    s_barrier""")
    if w == 3:
        for s in pub_reads() + km_stores() + (bp_stores(sMw) if P['bpw'] else []): a(s)
        a('s_waitcnt lgkmcnt(0)')
        for s in u_stores(): a(s)
        if P['live']:
            a(f'v_mov_b32 v{vFd}, 64\ns_waitcnt vmcnt(0)')
            a(W('store_dword', f'v{vFd}', vFa, f's{sFl}', 0, 'sc1'))
    if w == 2 and P.get('steptrace'):
        a(f"""v_accvgpr_read_b32 v40, a240
        v_lshrrev_b32 v41, 2, v{vL16}
        s_lshl_b32 s{sT0}, s{S_X}, 5
        s_add_u32 s{sT0}, s{sT0}, s{S_J}
        s_lshl_b32 s{sT0}, s{sT0}, 8
        s_add_u32 s{sT0}, s{sT0}, {FL_OFF+0x40000}""")
        a(W('store_dword', 'v40', 41, f's{sT0}'))
    a('s_branch L_rec_done')

NOQK = [0]
LAG = [0]
NMAP = [0]
sPn, sKa = 82, 84
sPc = 95
vPt, vLh = 100, 255
def rec_role(a, P):
    NMAP[0] = P['nmap']; NOQK[0] = P.get('noqk', 0); LAG[0] = P['lag'] - (1 if P['pmode'] else 0)
    tail = Asm(); tail.uid = 100000
    a('L_rec:')
    rec_prologue(a, P)
    for w in range(4):
        rec_wave(a, tail, w, P)
    a.lines += tail.lines
    a(f"""L_rec_done:
    s_waitcnt vmcnt(0)
    s_barrier""")
    for s in P['done'](): a(s)
    a('s_branch L_exit')
```

```python
import sys
sys.path.insert(0,'code'); sys.path.insert(0,'work')
from hx import *
from gen_common import *
NAME='rec_kernel'
def make(P, stamp=True):
    P = dict(P); P['ufrom'] = 57
    a = Asm()
    if stamp: a('s_memrealtime s[96:97]')
    common_entry(a, P['touch'] & 3)
    a(f"""s_cmp_lt_u32 s{S_X}, 4
    s_cbranch_scc1 L_rec
    s_cmp_lg_u32 s{S_X}, 4
    s_cbranch_scc1 L_exit
""")
    ring_init(a, S_J)
    a(f's_waitcnt vmcnt(0)\ns_barrier\ns_cmp_lg_u32 s{S_WAVE}, 0\ns_cbranch_scc1 L_exit')
    cal_store(a, S_J); cal_sample(a)
    a('s_branch L_exit')
    P = dict(P)
    if stamp:
        P['wait_k0'] = lambda: ['s_memrealtime s[98:99]', 's_memtime s[30:31]', 's_waitcnt lgkmcnt(0)']
        P['done'] = lambda: [f"""s_cmp_lg_u32 s{S_WAVE}, 3
        s_cbranch_scc1 L_exit
        s_memrealtime s[100:101]
        s_memtime s[92:93]
        s_waitcnt lgkmcnt(0)
        s_sub_u32 s92, s92, s30
        s_lshl_b32 s{sT0}, s{S_X}, 5
        s_add_u32 s{sT0}, s{sT0}, s{S_J}
        s_lshl_b32 s{sT0}, s{sT0}, 5
        s_add_u32 s{sT0}, s{sT0}, {FL_OFF+0x8000}
        v_mov_b32 v16, s96
        v_mov_b32 v17, s98
        v_mov_b32 v18, s100
        v_mov_b32 v19, s{S_TO}
        v_mov_b32 v20, s92
        v_mov_b32 v21, 0""", W('store_dwordx4','v[16:19]',21,f's{sT0}'), W('store_dword','v20',21,f's{sT0}',16)]
    if P.get('pprof'):
        PR = [8,10,12,14,26,28,28]
        P['pstamp'] = lambda i: f's_memrealtime s[{PR[i]}:{PR[i]+1}]'
        d0 = P['done']
        P['done'] = lambda: d0() + [f'v_mov_b32 v{24+i}, s{PR[i]}' for i in range(5)] + [f's_add_u32 s{sT0}, s{sT0}, 0x58000', W('store_dwordx4','v[24:27]',21,f's{sT0}'), W('store_dword','v28',21,f's{sT0}',16)]
    if P.get('prof'):
        P['stamp'] = lambda i: f"{'s_memtime' if P['prof']==1 else 's_memrealtime'} s[{8+2*i}:{9+2*i}]"
        def dump(a, w):
            l = a.lab('dmp')
            t = f'''s_and_b32 s{sT0}, s{sTag}, 7
            s_cmp_lg_u32 s{sT0}, 7
            s_cbranch_scc1 {l}
            s_waitcnt lgkmcnt(0)
            s_lshl_b32 s{sT0}, s{S_X}, 5
            s_add_u32 s{sT0}, s{sT0}, s{S_J}
            s_lshl_b32 s{sT0}, s{sT0}, 2
            s_add_u32 s{sT0}, s{sT0}, s{S_WAVE}
            s_lshl_b32 s{sT0}, s{sT0}, 3
            s_lshr_b32 s{sT1}, s{sTag}, 3
            s_add_u32 s{sT0}, s{sT0}, s{sT1}
            s_lshl_b32 s{sT0}, s{sT0}, 6
            s_add_u32 s{sT0}, s{sT0}, {FL_OFF+0x10000}
            v_mov_b32 v40, 0
            '''
            for i in range(11):
                t += f'v_mov_b32 v41, s{8+2*i}\n' + W('store_dword','v41',40,f's{sT0}',4*i) + '\n'
            return t + f'{l}:'
        P['dump'] = dump
    rec_role(a, P)
    a('L_exit:\ns_waitcnt vmcnt(0)\ns_endpgm')
    return head(NAME, 163840) + a.text() + KD.format(name=NAME)

if __name__ == '__main__':
    if len(sys.argv)>1 and sys.argv[1]=='asm':
        print(build(make(DEFP), NAME, 14)); sys.exit(0)
    import torch
    import gated_mix__linear_attn_block__memory_aug_recurrent_mem_tr__prompt_np as R
    from refdata import *
    np.random.seed(0); torch.manual_seed(0)
    inp = R.setup_inputs()
    if 'big' in sys.argv:
        inp['B_Wv'] = (inp['B_Wv'].float()*1.5).to(torch.bfloat16); inp['B_Wo'] = (inp['B_Wo'].float()*1.5).to(torch.bfloat16); inp['A_x']=(inp['A_x'].float()*10).to(torch.bfloat16)
    D = ref_all(inp); print('U rms', [float(np.sqrt((D['U'][s]**2).mean())) for s in (0,1,2,3,10,30,63)])
    bufs, ws, out, dbg, karg = alloc_all(inp)
    base = (-ws.ptr) % (2<<20)
    LK = lay_K(D['K']); LY = lay_Y(D['Y']); PAR = [0]
    put(ws, base+PX_OFF, lay_P(D['P'].cpu().numpy()))
    bigbuf = DeviceBuffer(400<<20)
    def run(label, P, check=True):
        co = build(make(P), NAME, 14); k = AsmKernel(co, NAME)
        def expand(arr, off):
            b = arr.reshape(-1, 4096); o = np.zeros((len(b), 2, 4096), np.uint16)
            pg = ((off + np.arange(len(b))*16384) >> 21) & 1
            o[np.arange(len(b)), pg ^ PAR[0] ^ P.get('nfar', 0)] = b
            return o
        put(ws, base+K_OFF, expand(LK, K_OFF) if P['nmap'] & 2 else LK); put(ws, base+Y_OFF, expand(LY, Y_OFF) if P['nmap'] & 1 else LY)
        res=[]
        for rep in range(5):
            memset(dbg);
            if P.get('cold'): memset(bigbuf, rep)
            _check(_hip.hipMemset(ctypes.c_void_p(ws.ptr+base), 0x5a+rep, 2<<20)); sync()
            k.launch((256,1,1),(256,1,1), karg, shared_mem=163840); sync()
            st = get(ws, base+FL_OFF+0x8000, np.uint32, (128,8));
            t0 = st[:,0].min()
            res.append(f'pro {(st[:,1].max()-t0)/100:.1f}us loop {(st[:,2].max()-st[:,1].max())/100:.1f}us ({np.median(st[:,4])/63.5:.0f}cyc/step) to {st[:,3].mean():.0f}')
        if P.get('pprof'):
            pp = get(ws, base+FL_OFF+0x60000, np.uint32, (128,8))[:,:5].astype(np.int64)
            print('   prologue stamps (max over CUs, us): ticket, wo landed, wo read, C done, wq read', ((pp.max(0)-int(t0))/100).tolist(), 'min', ((pp.min(0)-int(t0))/100).tolist())
        d = dbg.to_numpy(np.uint32,(64,))
        PAR[0] = 1 if d[DBG_PAR//4]&0xffff > 16 else 0
        msg = f'{label}: ' + ' | '.join(res[2:]) + f' par {d[DBG_PAR//4]&0xffff}'
        if check:
            U = unlay_U(get(ws, base+U_OFF, np.uint16, (64*8*80*4*8*8,))); km = unlay_KM(get(ws, base+KM_OFF, np.uint16, (64*32*4*384,)))
            eu = [float(np.linalg.norm(U[s]-D['U'][s])/np.linalg.norm(D['U'][s])) if s >= 57 else 0 for s in range(64)]
            ek = [float(np.linalg.norm(km[s]-D['km'][s])/np.linalg.norm(D['km'][s])) for s in range(64)]
            bp = bf2f(get(ws, base+BP_OFF, np.uint16, (64,8,160,16,2,4))).sum(1).transpose(0,3,2,1,4).reshape(64,32,640)[:63-P['lag']]
            bb = D['b'].cpu().numpy().reshape(64,32,640)[:63-P['lag']]
            msg += f' b err {[round(float(np.linalg.norm(bp[s]-bb[s])/np.linalg.norm(bb[s])),4) for s in (0,1,2,30,62-P["lag"])]}'
            msg += f'\n   relerr U: {[round(eu[s],4) for s in (0,1,2,3,10,62,63)]} max {max(eu):.4f}  km: {[round(ek[s],4) for s in (0,1,2,3,10,62,63)]} max {max(ek):.4f}'
        print(msg); k.unload()
        if P.get('prof'):
            pr = get(ws, base+FL_OFF+0x10000, np.uint32, (128,4,8,16))[:,:,1:,:11].astype(np.int64)
            d = pr - pr[...,:1]
            sc = np.arange(128)>=0
            print('   stamps: top, Mok, B1, B2, preU, preSw, Sok, B3, Gst/Gissue, Gok, B4')
            if P['prof']==2:
                t0 = pr[...,0].min(axis=(0,1))
                e = (pr - t0[None,None,:,None])*23.4
                for w in range(4):
                    x = e[sc,w]
                    print(f'   abs w{w} min', np.median(x.min(0),axis=0).astype(int).tolist())
                    print(f'   abs w{w} med', np.median(np.median(x,axis=0),axis=0).astype(int).tolist())
                    print(f'   abs w{w} max', np.median(x.max(0),axis=0).astype(int).tolist())
                for xc in range(4):
                    x = e[xc*32:xc*32+32][:,0]
                    print(f'   xcd{xc} w0 min', np.median(x.min(0),axis=0).astype(int).tolist(), 'max', np.median(x.max(0),axis=0).astype(int).tolist())
            for nm,sel in (('score',sc),):
                for w in range(4):
                    print(f'   {nm} w{w}:', np.median(d[sel,w].reshape(-1,11),axis=0).astype(int).tolist())
    def ev(P):
        co = build(make(P), NAME, 14); k = AsmKernel(co, NAME, check=False); r=[]
        for rep in range(4):
            memset(dbg); sync()
            k.launch((256,1,1),(256,1,1), karg, shared_mem=163840); sync()
            st = get(ws, base+FL_OFF+0x8000, np.uint32, (128,8))
            r.append((st[:,2].max()-st[:,1].max())/100)
        k.unload(); return float(np.median(r[1:]))
    if 'tune' in sys.argv:
        import time
        t0=time.time()
        P = dict(DEFP)
        for spec in sys.argv[1:]:
            if '=' in spec:
                for kv in spec.split(','):
                    kk,v = kv.split('='); P[kk]=int(v)
        ev(P); best = ev(P); print('start', best)
        space = dict(dm=8, spos_o=2, spos_s=2, sleep_g=1, nop_g=8, mgap=12, ggap=8, sgap_o=8, sgap_s=8, u_pre=2, u_early=1, own_before=1, mdepth=1, sdepth=1, gdepth=1, b2a=1)
        lim = dict(mdepth=(1,3), sdepth=(1,2), gdepth=(1,4), b2a=(0,1), own_before=(0,6), u_early=(0,4), u_pre=(0,16))
        for it in range(3):
            for kk,dl in space.items():
                for sg in (1,-1):
                    moved=False
                    while time.time()-t0 < 480:
                        v = P[kk]+sg*dl; lo,hi = lim.get(kk,(0,200))
                        if v<lo or v>hi: break
                        Q=dict(P); Q[kk]=v
                        if Q['spos_s']<Q['u_pre'] or Q['spos_o']<Q['u_early']: break
                        r=ev(Q)
                        if r<best-0.15: best=r; P=Q; moved=True; print(f'  {kk}={v} -> {r:.1f}', flush=True)
                        else: break
                    if moved: break
            print('iter',it,best,{k:P[k] for k in space}, flush=True)
        run('tuned', P); P['prof']=1; run('tuned prof', P); P['prof']=2; run('tuned prof', P)
        sys.exit(0)
    run('default', DEFP)
    for spec in sys.argv[1:]:
        if '=' in spec:
            P = dict(DEFP);
            for kv in spec.split(','):
                kk,v = kv.split('='); P[kk]=int(v)
            run(spec, P)
```
